```python
import torch

def _softmax(x, axis=-1):
    return torch.softmax(x, dim=axis)
def _gelu(x):
    return torch.nn.functional.gelu(x, approximate="tanh")
def _silu(x):
    return torch.nn.functional.silu(x)
def _sigmoid(x):
    return torch.sigmoid(x)
def _layernorm(x, axis=-1, eps=1e-5):
    m = x.mean(dim=axis, keepdim=True)
    v = x.var(dim=axis, keepdim=True, unbiased=False)
    return (x - m) / torch.sqrt(v + eps)
def _scatter_add(tgt, idx, src, axis=0):
    return tgt.clone().index_add_(axis, idx, src)
def _segment_sum(src, seg, n):
    out = torch.zeros((n,) + src.shape[1:], dtype=src.dtype)
    return out.index_add_(0, seg, src)
def _pad(x, pw):
    flat = tuple(v for pair in reversed(pw) for v in pair)
    return torch.nn.functional.pad(x, flat)

kernel_name = 'gated_mix__ssm_conv_s5__linear_attn_block__prompt'

def setup_inputs():

    _w = (lambda a: (lambda t: t.to(torch.bfloat16) if t.is_floating_point() else t)(torch.as_tensor(a)))
    def _A_setup():
        B, S, D = 1, 2048, 640
        P = D
        Lambda_re = -0.5 * (lambda _x: torch.exp(torch.as_tensor(_x)))((lambda *s: torch.randn(*s, dtype=torch.bfloat16) * 0.2)(P))
        Lambda_im = (lambda *s: torch.randn(*s, dtype=torch.bfloat16) * 0.8)(P) * 1.0
        B_re = (lambda *s: torch.randn(*s, dtype=torch.bfloat16) * 0.4)(P, D) * (D ** -0.5)
        B_im = (lambda *s: torch.randn(*s, dtype=torch.bfloat16) * 0.4)(P, D) * (D ** -0.5)
        C_re = (lambda *s: torch.randn(*s, dtype=torch.bfloat16) * 0.4)(D, P) * (P ** -0.5)
        C_im = (lambda *s: torch.randn(*s, dtype=torch.bfloat16) * 0.4)(D, P) * (P ** -0.5)
        log_dt = (lambda *s: torch.randn(*s, dtype=torch.bfloat16) * 0.2)(P) * 0.3 - 2.0
        Dskip = (lambda *s: torch.randn(*s, dtype=torch.bfloat16) * 0.05)(D)
        return {
            "x": _w((lambda *s: torch.randn(*s, dtype=torch.bfloat16) * 0.05)(B, S, D)),
            "Lambda_re": _w(Lambda_re),
            "Lambda_im": _w(Lambda_im),
            "B_re": _w(B_re),
            "B_im": _w(B_im),
            "C_re": _w(C_re),
            "C_im": _w(C_im),
            "log_dt": _w(log_dt),
            "Dskip": _w(Dskip),
        }
    _A_in = _A_setup()

    def _B_setup():
        B, S, D = 1, 2048, 640
        return {
            "x": _w((lambda *s: torch.randn(*s, dtype=torch.bfloat16) * 0.05)(B, S, D)),
            "wqkv": _w((lambda *s: torch.randn(*s, dtype=torch.bfloat16) * 0.8)(D, 3 * D)),
            "wo": _w((lambda *s: torch.randn(*s, dtype=torch.bfloat16) * 0.05)(D, D)),
        }
    _B_in = _B_setup()

    return {
        "A_x": _A_in["x"],
        "A_Lambda_re": _A_in["Lambda_re"],
        "A_Lambda_im": _A_in["Lambda_im"],
        "A_B_re": _A_in["B_re"],
        "A_B_im": _A_in["B_im"],
        "A_C_re": _A_in["C_re"],
        "A_C_im": _A_in["C_im"],
        "A_log_dt": _A_in["log_dt"],
        "A_Dskip": _A_in["Dskip"],
        "B_x": _B_in["x"],
        "B_wqkv": _B_in["wqkv"],
        "B_wo": _B_in["wo"],
        "gate_w": _w((lambda *s: torch.randn(*s, dtype=torch.bfloat16) * 0.05)(640) * 16.0),
    }

def reference(A_x, A_Lambda_re, A_Lambda_im, A_B_re, A_B_im, A_C_re, A_C_im, A_log_dt, A_Dskip, B_x, B_wqkv, B_wo, gate_w):
    def _A_ref(x, Lambda_re, Lambda_im, B_re, B_im, C_re, C_im, log_dt, Dskip):
        Bsz, L, H = x.shape
        Lam = Lambda_re + 1j * Lambda_im
        Bmat = B_re + 1j * B_im
        Cmat = C_re + 1j * C_im
        dt = torch.exp(log_dt)
        Lam_bar = torch.exp(dt * Lam)
        B_bar = ((Lam_bar - 1.0) / Lam)[:, None] * Bmat
        Bu = torch.einsum("bld,pd->blp", x + 0j, B_bar)
        h = torch.zeros_like(Bu[:, 0, :])
        hs = []
        for t in range(L):
            h = Lam_bar[None, :] * h + Bu[:, t, :]
            hs.append(h)
        hseq = torch.stack(hs, 1)
        y = 2.0 * torch.einsum("blp,dp->bld", hseq, Cmat).real + x * Dskip[None, None, :]
        return y

    def _B_ref(x, wqkv, wo):
        B, S, D = x.shape
        H = 32; Dh = D // H
        qkv = (lambda x, *d: x.permute(*d))((x @ wqkv).reshape(B, S, 3, H, Dh), 2, 0, 3, 1, 4)
        q, k, v = qkv[0], qkv[1], qkv[2]
        phi = lambda t: torch.where(t > 0, t + 1, torch.exp(t)) + 1e-6
        pq, pk = phi(q), phi(k)
        kv = torch.einsum("bhsd,bhse->bhde", pk, v)
        z = torch.einsum("bhsd->bhd", pk)
        num = torch.einsum("bhqd,bhde->bhqe", pq, kv)
        den = torch.einsum("bhqd,bhd->bhq", pq, z)[..., None] + 1e-6
        o = num / den
        return (lambda x, *d: x.permute(*d))(o, 0, 2, 1, 3).reshape(B, S, D) @ wo

    x = A_x
    g = _sigmoid((x * gate_w).sum(-1, keepdims=True))
    a = _A_ref(x, A_Lambda_re, A_Lambda_im, A_B_re, A_B_im, A_C_re, A_C_im, A_log_dt, A_Dskip)
    b = _B_ref(x, B_wqkv, B_wo)
    return g * a + (1 - g) * b
```

```python
import re
NAME = "gated_mix__ssm_conv_s5__linear_attn_block__prompt_kernel"

def regs_of(op):
    op = op.strip()
    op = re.sub(r"^-", "", op)
    m = re.match(r"^abs\((.*)\)$", op)
    if m: op = m.group(1)
    m = re.match(r"^\|(.*)\|$", op)
    if m: op = m.group(1)
    if op == "vcc": return {("s", "vcc_lo"), ("s", "vcc_hi")}
    if op in ("vcc_lo", "vcc_hi"): return {("s", op)}
    if op == "exec": return {("s", "exec")}
    if op == "m0": return {("s", "m0")}
    m = re.match(r"^([vas])(\d+)$", op)
    if m: return {(m.group(1), int(m.group(2)))}
    m = re.match(r"^([vas])\[(\d+):(\d+)\]$", op)
    if m: return {(m.group(1), i) for i in range(int(m.group(2)), int(m.group(3)) + 1)}
    return set()

TRANS = ("v_exp_f32", "v_log_f32", "v_rcp_f32", "v_rsq_f32", "v_sqrt_f32", "v_sin_f32", "v_cos_f32", "v_rcp_iflag_f32")

class Ins:
    def __init__(self, text):
        self.text = text
        t = text.split(";")[0].strip()
        parts = t.split(None, 1)
        self.mn = parts[0]
        rest = parts[1] if len(parts) > 1 else ""
        ops = [o.strip() for o in rest.split(",")] if rest else []
        clean = []
        for o in ops:
            clean.append(o.split()[0] if o.split() else o)
        self.ops = clean
        self.rest = rest
        mn = self.mn
        self.kind = None
        self.defs = set(); self.uses = set()
        self.mfma_c = set(); self.mfma_ab = set()
        self.store_data = set()
        self.slots = 1
        R = regs_of
        if mn.startswith("v_mfma"):
            self.kind = "mfma"
            self.defs = R(clean[0]); self.mfma_ab = R(clean[1]) | R(clean[2]); self.mfma_c = R(clean[3])
            self.uses = self.mfma_ab | self.mfma_c
            self.passes = 8 if "32x32" in mn else 4
        elif mn.startswith("v_"):
            self.kind = "valu"
            self.defs = R(clean[0])
            srcs = clean[1:]
            if mn.startswith(("v_add_co", "v_sub_co", "v_addc_co", "v_subb_co", "v_subrev_co", "v_div_scale", "v_mad_u64_u32")):
                self.defs |= R(clean[1]); srcs = clean[2:]
            for s in srcs: self.uses |= R(s)
            if mn.startswith(("v_fmac", "v_pk_fmac", "v_dot2c", "v_writelane")) or "d16" in mn: self.uses |= R(clean[0])
            if mn.startswith("v_permlane") and "swap" in mn:
                self.defs |= R(clean[1]); self.uses |= R(clean[0])
            if mn.startswith("v_cmpx"): self.defs |= {("s", "exec")}
            if mn.startswith("v_cndmask") and len(clean) == 3: self.uses |= R("vcc")
        elif mn.startswith("ds_"):
            self.kind = "ds"
            if mn.startswith(("ds_read", "ds_bpermute", "ds_permute", "ds_swizzle")):
                self.defs = R(clean[0])
                for s in clean[1:]: self.uses |= R(s)
            else:
                for s in clean: self.uses |= R(s)
        elif mn.startswith(("buffer_", "global_")):
            self.kind = "vmem"
            islds = bool(re.search(r"\blds\b", rest)) or "load_lds" in mn
            self.islds = islds
            if "load" in mn:
                if islds:
                    for s in clean: self.uses |= R(s)
                    self.uses |= {("s", "m0")}
                else:
                    self.defs = R(clean[0])
                    for s in clean[1:]: self.uses |= R(s)
                    if "d16" in mn: self.uses |= R(clean[0])
            elif "store" in mn:
                for s in clean: self.uses |= R(s)
                if "x4" in mn or "x3" in mn:
                    self.store_data = R(clean[0]) if mn.startswith("buffer") else R(clean[1])
            else:
                for s in clean: self.uses |= R(s)
        elif mn.startswith("s_"):
            self.kind = "salu"
            if mn == "s_nop":
                self.slots = int(clean[0], 0) + 1
            elif mn.startswith(("s_cmp", "s_cbranch", "s_branch", "s_waitcnt", "s_barrier", "s_endpgm", "s_sleep", "s_setprio", "s_bitcmp")):
                for s in clean: self.uses |= R(s)
            else:
                self.defs = R(clean[0])
                for s in clean[1:]: self.uses |= R(s)
                if "saveexec" in mn: self.defs |= {("s", "exec")}
        else:
            raise ValueError("unknown instr " + text)

def need_between(p, c):
    n = 0
    vec = lambda s: {r for r in s if r[0] in "va"}
    sca = lambda s: {r for r in s if r[0] == "s"}
    if p.kind == "valu":
        dv = vec(p.defs); ds_ = sca(p.defs)
        if c.kind == "mfma" and dv & c.uses: n = max(n, 2)
        if c.kind == "mfma" and ("s", "exec") in p.defs: n = max(n, 4)
        if c.kind == "valu":
            if c.mn.startswith(("v_readlane", "v_readfirstlane")) and dv & c.uses: n = max(n, 1)
            if c.mn.startswith("v_permlane") and dv & c.uses: n = max(n, 2)
            if ("dpp" in c.mn or "row_" in c.rest or "quad_perm" in c.rest) and dv & c.uses: n = max(n, 2)
            if p.mn.startswith(TRANS) and dv & c.uses and not c.mn.startswith(TRANS): n = max(n, 1)
            if ds_ & c.uses: n = max(n, 4 if c.mn.startswith(("v_readlane", "v_writelane", "v_div_fmas")) else 2)
            if ("s", "exec") in p.defs and c.mn.startswith(("v_readlane", "v_readfirstlane", "v_writelane", "v_permlane")): n = max(n, 4)
            if "op_sel" in p.rest and not p.mn.startswith("v_pk") and dv & (c.uses | c.defs): n = max(n, 1)
        if c.kind == "vmem" and ds_ & c.uses: n = max(n, 5)
        if c.kind == "salu" and ds_ & c.uses: n = max(n, 1)
        if c.kind == "salu" and c.mn.startswith(("s_cbranch_vcc",)) and ds_ & {("s","vcc_lo"),("s","vcc_hi")}: n = max(n, 1)
    if p.kind == "mfma":
        big = {4: 8, 8: 12}[p.passes]; ovl = {4: 6, 8: 10}[p.passes]; war = {4: 3, 8: 7}[p.passes]
        if c.kind == "mfma":
            if p.defs & c.mfma_ab: n = max(n, big)
            if p.defs & c.mfma_c and not (p.defs == c.mfma_c and p.passes == c.passes): n = max(n, ovl)
            if p.defs & c.defs and not (p.defs & c.mfma_c): n = max(n, big)
        elif c.kind == "valu":
            if p.defs & (c.uses | c.defs): n = max(n, big)
            if p.mfma_c & c.defs: n = max(n, war)
        elif c.kind in ("ds", "vmem"):
            if p.defs & (c.uses | c.defs): n = max(n, big)
    if p.kind == "salu":
        if ("s", "m0") in p.defs and c.kind == "vmem" and getattr(c, "islds", False): n = max(n, 1)
    if p.kind == "vmem" and p.store_data:
        if c.kind in ("valu", "mfma") and p.store_data & c.defs: n = max(n, 2)
        elif p.store_data & c.defs: n = max(n, 1)
    return n

class Asm:
    def __init__(self):
        self.items = []
        self.lab = 0
        self.vm = []
        self.lg = []
    def __call__(self, s):
        for l in s.split("\n"):
            l = l.strip()
            if l: self.items.append(l)
    def label(self, prefix="L"):
        self.lab += 1
        return f"{prefix}_{self.lab}"
    def vmem(self, text, tag=None, certain=True):
        self(text); self.vm.append((tag, certain))
    def lds(self, text, tag=None, certain=True):
        self(text); self.lg.append((tag, certain))
    def _cnt(self, lst, tags):
        if not isinstance(tags, (list, tuple, set)): tags = [tags]
        last = -1
        for i, (t, c) in enumerate(lst):
            if t in tags: last = i
        if last < 0: return None
        return sum(1 for (t, c) in lst[last+1:] if c), last
    def wait(self, vm=None, lg=None, keep=False):
        parts = []
        if vm is not None:
            if vm == "all":
                parts.append("vmcnt(0)"); self.vm = []
            else:
                r = self._cnt(self.vm, vm)
                if r is not None:
                    n, last = r
                    parts.append(f"vmcnt({min(n, 63)})"); self.vm = self.vm[last+1:]
        if lg is not None:
            if lg == "all":
                parts.append("lgkmcnt(0)"); self.lg = []
            else:
                r = self._cnt(self.lg, lg)
                if r is not None:
                    n, last = r
                    parts.append(f"lgkmcnt({min(n, 15)})"); self.lg = self.lg[last+1:]
        if parts: self("s_waitcnt " + " ".join(parts))
    def text(self, hazards=True):
        out = []
        hists = [[]]
        saved = {}
        nnop = 0
        for l in self.items:
            if l.startswith(";") or l.startswith("."):
                out.append(l); continue
            if l.endswith(":"):
                out.append(l)
                for h in saved.pop(l[:-1], []): hists.append(h)
                continue
            ins = Ins(l)
            need = 0
            if hazards:
                for h in hists:
                    d = 0
                    for p in reversed(h):
                        n = need_between(p, ins)
                        if n > d: need = max(need, n - d)
                        d += p.slots
                        if d >= 12: break
            if need > 0:
                nop = Ins(f"s_nop {need-1}")
                out.append("    " + nop.text); nnop += 1
                for h in hists: h.append(nop)
            out.append("    " + l)
            for h in hists: h.append(ins)
            hists = [h[-14:] for h in hists]
            uniq = []
            for h in hists:
                if not any(len(h) == len(u) and all(x is y for x, y in zip(h, u)) for u in uniq): uniq.append(h)
            hists = uniq
            if ins.mn.startswith(("s_cbranch", "s_branch")):
                saved.setdefault(ins.ops[0], []).extend([list(h) for h in hists])
                if ins.mn == "s_branch": hists = [[]]
            if ins.mn == "s_endpgm": hists = [[]]
        self.nnop = nnop
        return "\n".join(out) + "\n"

def kernel_begin(name):
    return f""".text
.globl {name}
.p2align 8
.type {name},@function
{name}:
"""
def kernel_desc(name, vgpr, sgpr=102, accum=None):
    if accum is None:
        accum = min(256, (vgpr + 3)//4*4)
    return f""".section .rodata,"a"
.p2align 6
.amdhsa_kernel {name}
  .amdhsa_next_free_vgpr {vgpr}
  .amdhsa_next_free_sgpr {sgpr}
  .amdhsa_accum_offset {accum}
  .amdhsa_group_segment_fixed_size 0
  .amdhsa_kernarg_size 128
  .amdhsa_user_sgpr_count 2
  .amdhsa_user_sgpr_kernarg_segment_ptr 1
  .amdhsa_system_sgpr_workgroup_id_x 1
  .amdhsa_float_denorm_mode_32 3
.end_amdhsa_kernel
"""
HEADER = '.amdgcn_target "amdgcn-amd-amdhsa--gfx950"\n'
```

```python
import sys, os
sys.path.insert(0, "work")
from asmlib import *

STAMPS = int(os.environ.get("STAMPS", "0"))

WS_A = 0
WS_M = 0x800000
WS_KVP = 0x900000
WS_ZP = 0xA00000
WS_SP = 0xA40000
WS_G = 0xA80000
WS_FL = 0xA90000
FKV, FM, FB = WS_FL, WS_FL + 0x4000, WS_FL + 0x8000
WS_EPOCH = 0xAC0000
WS_SIZE = 0xAD0000
WS_STAMP = 0xC000000
OOB = 0x40000000
RT = 61440
L_W = 65536
L_SCR = 147456
L_PT = L_SCR
L_EB = L_SCR + 3840
L_ZB = L_EB + 10240
L_GW = L_SCR
L_WO = L_SCR + 2048
L_KVB = L_WO + 7168
LDS_BYTES = 163840
sWV, sR, sJ, sTAG, sT0 = 3, 4, 5, 6, 7
SX, SW, SQ, SWS, SOUT = 8, 12, 16, 20, 24
sRB, sCT, sOFF, sT1 = 28, 29, 30, 31
pX, pLRE, pLIM, pBRE, pBIM, pCRE, pCIM, pLDT, pDSK, pBX, pQKV, pWO, pGW, pOUT, pDBG, pWS = range(32, 64, 2)
sKA = 64
sKQ = 74
sLC = 84
sXB, sWB, sCW = 89, 90, 91
sT2, sT3, sT4, sT5 = 92, 93, 94, 95
sSPIN = 96
sST = 98
sM0, sM1 = 50, 51
vTID, vLANE = 0, 1
vX = 2
vW = 6
vQ = 11
vXR = 16
vWR = 18
vT40 = 22
vC = 26
vCR = 30
ACC = 32

def srd(n): return f"s[{n}:{n+3}]"
def sp(n): return f"s[{n}:{n+1}]"
def v4(n): return f"v[{n}:{n+3}]"
def v2(n): return f"v[{n}:{n+1}]"
def a4(n): return f"a[{n}:{n+3}]"

a = Asm()
nstamp = [0]
def stamp(idx):
    if not STAMPS: return
    a(f"""s_memrealtime {sp(sST)}
s_lshl_b32 s100, s2, 2
s_add_u32 s100, s100, s{sWV}
s_lshl_b32 s100, s100, 7
s_add_u32 s100, s100, {idx*8}
s_waitcnt lgkmcnt(0)
v_mov_b32 v252, s{sST}
v_mov_b32 v253, s{sST+1}
v_mov_b32 v254, s100
s_add_u32 s{sST}, s{pWS}, {WS_STAMP}
s_addc_u32 s{sST+1}, s{pWS+1}, 0""")
    a.lg = []
    a.vmem(f"global_store_dwordx2 v254, v[252:253], {sp(sST)}", "stamp")

def mfma(d, A, B, C):
    a(f"v_mfma_f32_16x16x32_bf16 {d}, {A}, {B}, {C}")

def mk_srd(n, ptr, size):
    a(f"s_mov_b32 s{n}, s{ptr}\ns_and_b32 s{n+1}, s{ptr+1}, 0xffff\ns_mov_b32 s{n+2}, {size}\ns_mov_b32 s{n+3}, 0x20000")

def poll(vaddr, vtmp, execmask, name):
    L = a.label("Lpoll"); E = a.label("Lpolle")
    a(f"s_mov_b64 exec, {execmask}\ns_mov_b32 s{sSPIN}, 0\n{L}:")
    a(f"buffer_load_dword v{vtmp}, v{vaddr}, {srd(SWS)}, 0 offen sc1")
    a(f"""s_add_u32 s{sSPIN}, s{sSPIN}, 1
s_waitcnt vmcnt(0)
v_cmp_ne_u32 vcc, s{sTAG}, v{vtmp}
s_cmp_gt_u32 s{sSPIN}, 0x20000
s_cbranch_scc1 {E}
s_cbranch_vccnz {L}
{E}:
s_mov_b64 exec, -1""")

def prologue():
    a(f"""s_cmp_ge_u32 s2, 256
s_cbranch_scc1 Lend
s_load_dwordx16 s[32:47], s[0:1], 0
s_load_dwordx16 s[48:63], s[0:1], 64
v_and_b32 v{vLANE}, 63, v0
v_lshrrev_b32 v32, 6, v0
s_and_b32 s{sT0}, s2, 7
s_lshr_b32 s{sT1}, s2, 3
v_readfirstlane_b32 s{sWV}, v32""")
    a(f"""s_getpc_b64 s[92:93]
Lpc:
s_lshl_b32 s{sT4}, s{sWV}, 5
s_add_u32 s{sT4}, s{sT4}, s{sT1}
s_lshl_b32 s{sT4}, s{sT4}, 10
s_cmp_ge_u32 s{sT4}, Lcode_end-Lpc
s_cbranch_scc1 Lnopf
v_lshl_add_u32 v33, v{vLANE}, 4, s{sT4}""")
    a.vmem(f"global_load_dwordx4 v[36:39], v33, s[92:93]", "pf", certain=False)
    a("Lnopf:")
    a(f"""s_lshr_b32 s{sR}, s{sT0}, 1
s_and_b32 s{sR}, s{sR}, 1
s_lshl_b32 s{sR}, s{sR}, 3
s_and_b32 s{sT2}, s{sT1}, 7
s_add_u32 s{sR}, s{sR}, s{sT2}
s_and_b32 s{sJ}, s{sT0}, 1
s_lshl_b32 s{sJ}, s{sJ}, 2
s_lshr_b32 s{sT3}, s{sT1}, 3
s_add_u32 s{sJ}, s{sJ}, s{sT3}
s_lshr_b32 s{sT4}, s{sT2}, 2
s_add_u32 s{sT2}, s{sT2}, s{sT4}
s_mul_i32 s{sT3}, s{sT3}, 5
s_add_u32 s{sT3}, s{sT3}, 1
s_lshr_b32 s{sT3}, s{sT3}, 1
s_add_u32 s{sT2}, s{sT2}, s{sT3}
s_sub_u32 s{sT3}, s{sT2}, 10
s_cmp_ge_u32 s{sT2}, 10
s_cselect_b32 s{sT2}, s{sT3}, s{sT2}
s_lshl_b32 s{sKA}, s{sT2}, 7""")
    for s in range(1, 10):
        a(f"s_add_u32 s{sKA+s}, s{sKA+s-1}, 128\ns_cmp_eq_u32 s{sKA+s}, 1280\ns_cselect_b32 s{sKA+s}, 0, s{sKA+s}")
    for s in range(10):
        a(f"s_mul_i32 s{sKQ+s}, s{sKA+s}, 1920")
    a(f"""s_and_b32 s{sT2}, s{sT1}, 3
s_lshl_b32 s{sRB}, s{sT0}, 2
s_add_u32 s{sRB}, s{sRB}, s{sT2}
s_lshr_b32 s{sCT}, s{sT1}, 2
s_add_u32 s{sOFF}, s{sCT}, s{sT2}
s_sub_u32 s{sT3}, s{sOFF}, 5
s_cmp_ge_u32 s{sOFF}, 5
s_cselect_b32 s{sOFF}, s{sT3}, s{sOFF}
s_sub_u32 s{sT3}, s{sOFF}, 5
s_cmp_ge_u32 s{sOFF}, 5
s_cselect_b32 s{sOFF}, s{sT3}, s{sOFF}
s_mul_i32 s{sT2}, s{sWV}, 5
s_add_u32 s{sT2}, s{sT2}, s{sOFF}""")
    for i in range(5):
        a(f"s_add_u32 s{sLC+i}, s{sT2}, {i}\ns_sub_u32 s{sT3}, s{sLC+i}, 20\ns_cmp_ge_u32 s{sLC+i}, 20\ns_cselect_b32 s{sLC+i}, s{sT3}, s{sLC+i}")
    a(f"""s_lshl_b32 s{sXB}, s{sWV}, 14
s_mul_i32 s{sWB}, s{sWV}, 5120
s_add_u32 s{sWB}, s{sWB}, {L_W}
s_mul_i32 s{sCW}, s{sWV}, 20480
s_add_u32 s{sCW}, s{sCW}, {L_W}""")
    a(f"""v_lshrrev_b32 v40, 3, v{vLANE}
v_and_b32 v41, 7, v{vLANE}
v_lshrrev_b32 v43, 1, v40
v_xor_b32 v41, v41, v43
v_lshlrev_b32 v41, 4, v41
v_lshrrev_b32 v42, 2, v40
v_lshlrev_b32 v42, 3, v42
v_and_b32 v43, 1, v43
v_add_u32 v42, v42, v43
v_and_b32 v43, 1, v40
v_lshl_add_u32 v42, v43, 2, v42
s_lshl_b32 s{sT2}, s{sR}, 7
s_lshl_b32 s{sT3}, s{sWV}, 5
s_add_u32 s{sT2}, s{sT2}, s{sT3}
v_add_u32 v42, s{sT2}, v42
v_mul_u32_u24 v42, 1280, v42
v_add_u32 v{vX}, v42, v41
v_xor_b32 v44, 64, v41
v_add_u32 v{vX+1}, v42, v44
v_add_u32 v{vX+1}, {16*1280-1024}, v{vX+1}
v_add_u32 v{vX+2}, 512, v{vX}
v_add_u32 v{vX+3}, 512, v{vX+1}""")
    a(f"""v_mul_u32_u24 v43, 1280, v40
v_add_u32 v45, v43, v41
v_add_u32 v46, v43, v44""")
    for i in range(5):
        a(f"""v_add_u32 v52, {64*i}, v{vLANE}
v_mul_u32_u24 v53, 6554, v52
v_lshrrev_b32 v53, 16, v53
v_mul_u32_u24 v54, 10, v53
v_sub_u32 v54, v52, v54
v_lshrrev_b32 v55, 1, v53
v_and_b32 v55, 4, v55
v_xor_b32 v53, v53, v55
v_mul_u32_u24 v53, 3840, v53
v_lshl_add_u32 v{47+i}, v54, 4, v53""")
        if i & 3: a(f"v_subrev_u32 v{47+i}, {(i&3)*1024}, v{47+i}")
    a(f"""v_and_b32 v52, 15, v{vLANE}
v_lshrrev_b32 v53, 4, v{vLANE}
v_lshrrev_b32 v54, 1, v52
v_xor_b32 v54, v54, v53
v_lshlrev_b32 v54, 4, v54
v_lshl_add_u32 v56, v52, 7, v54
v_xor_b32 v57, 64, v56
v_add_u32 v{vXR}, s{sXB}, v56
v_add_u32 v{vXR+1}, s{sXB}, v57
v_add_u32 v{vCR}, s{sCW}, v56
v_add_u32 v{vCR+1}, s{sCW}, v57""")
    a(f"""v_bfe_u32 v54, v{vLANE}, 2, 2
v_lshl_add_u32 v54, v53, 3, v54
v_and_b32 v55, 1, v53
v_lshlrev_b32 v55, 2, v55
v_add_u32 v58, v54, v55
v_xor_b32 v55, 4, v55
v_add_u32 v59, v54, v55
v_mul_u32_u24 v58, 160, v58
v_mul_u32_u24 v59, 160, v59
v_and_b32 v60, 3, v{vLANE}
v_mul_u32_u24 v61, 40, v60
v_add_u32 v62, v58, v61
v_add_u32 v63, v59, v61
v_add_u32 v{vT40}, {L_W}, v62
v_add_u32 v{vT40+1}, {L_W}, v63
v_add_u32 v{vT40+2}, {L_W+40960}, v62
v_add_u32 v{vT40+3}, {L_W+40960}, v63""")
    a(f"""s_mul_i32 s{sT2}, s{sCT}, {80*1280}
v_add_u32 v{vC}, s{sT2}, v45
v_add_u32 v{vC+1}, s{sT2}, v46
v_add_u32 v{vC+1}, {10240-1024}, v{vC+1}
v_add_u32 v{vC+2}, {2*(10240-1024)}, v{vC}
v_add_u32 v{vC+3}, {2*(10240-1024)}, v{vC+1}""")
    a("s_waitcnt lgkmcnt(0)")
    mk_srd(SX, pX, 2048*1280)
    mk_srd(SQ, pQKV, 640*3840)
    mk_srd(SWS, pWS, WS_SIZE)
    a(f"""s_add_u32 s{sT2}, s{pWS}, {WS_EPOCH}
s_addc_u32 s{sT3}, s{pWS+1}, 0
s_load_dword s{sTAG}, s[{sT2}:{sT3}], 0
s_cmp_ge_u32 s{sT0}, 4
s_cbranch_scc1 LtypeB""")

def tag_ready():
    a(f"""s_waitcnt lgkmcnt(0)
s_mul_i32 s{sTAG}, s{sTAG}, 1664525
s_add_u32 s{sTAG}, s{sTAG}, 1013904223""")
    a.lg = []

def dma_x(s):
    ops = []
    def m0(): a(f"s_add_u32 m0, s{sXB}, {(s%4)*4096}")
    ops.append(("s", m0))
    for i in range(4):
        def f(i=i): a.vmem(f"buffer_load_dwordx4 v{vX+i}, {srd(SX)}, s{sKA+s} offen offset:{i*1024} lds", ("st", s))
        ops.append(("d", f))
    return ops
def dma_w(s, vaddr, rsrc, soff):
    ops = []
    def m0(): a(f"s_add_u32 m0, s{sWB}, {(s%4)*20480}")
    ops.append(("s", m0))
    for i in range(4):
        def f(i=i): a.vmem(f"buffer_load_dwordx4 v{vaddr+i}, {srd(rsrc)}, s{soff} offen offset:{i*1024} lds", ("st", s))
        ops.append(("d", f))
    def m1(): a(f"s_add_u32 m0, s{sWB}, {(s%4)*20480+4096}")
    ops.append(("s", m1))
    def g(): a.vmem(f"buffer_load_dwordx4 v{vaddr+4}, {srd(rsrc)}, s{soff} offen lds", ("st", s))
    ops.append(("d", g))
    return ops
def dma_c(slot, sbase, ldsoff):
    ops = []
    def setup():
        a(f"""s_cmp_ge_u32 s{sLC+slot}, 10
s_cselect_b32 s{SW}, s{pCIM}, s{pCRE}
s_cselect_b32 s{SW+1}, s{pCIM+1}, s{pCRE+1}
s_cselect_b32 s{sM1}, 1280, 0
s_and_b32 s{SW+1}, s{SW+1}, 0xffff
s_lshl_b32 s{sM0}, s{sLC+slot}, 7
s_sub_u32 s{sM0}, s{sM0}, s{sM1}""")
    ops.append(("s", setup))
    for g in range(3):
        def m0(g=g):
            a(f"s_add_u32 m0, s{sbase}, {ldsoff + g*4096}")
            if g: a(f"s_add_u32 s{sM0}, s{sM0}, 40960")
        ops.append(("s", m0))
        for i in range(4 if g < 2 else 2):
            def f(i=i): a.vmem(f"buffer_load_dwordx4 v{vC+i}, {srd(SW)}, s{sM0} offen offset:{i*1024} lds", ("c", slot))
            ops.append(("d", f))
    return ops
CHOME = [160, 200, 0, 40, 80]
def c_reads(slot, vbase, ldsoff):
    ops = []
    for ks in range(2):
        for nt in range(5):
            def f(ks=ks, nt=nt):
                a.lds(f"ds_read_b128 {a4(CHOME[slot] + (ks*5+nt)*4)}, v{vbase+ks} offset:{ldsoff + nt*2048}", ("cr", slot))
            ops.append(("r", f))
    return ops

class BG:
    def __init__(self): self.q = []; self.keys = {}
    def add(self, ops, key=None):
        self.q.extend(ops)
        if key is not None: self.keys[key] = ops[-1]
    def require(self, key):
        last = self.keys.get(key)
        while last in self.q:
            print("note: forced flush for", key)
            self.q.pop(0)[1]()
    def tick(self, n=1):
        while n > 0 and self.q:
            k, f = self.q.pop(0)
            f()
            if k != "s": n -= 1
    def tick_s(self):
        while self.q and self.q[0][0] == "s":
            self.q.pop(0)[1]()
    def flush(self):
        while self.q: self.q.pop(0)[1]()

def run_ops(ops):
    for k, f in ops: f()

def gemm_loop(nstage, frags_per_stage, read_frag, mfmas, x_reads, stage_dma, bg, ring, LOOK, hooks, first_stage=0, pre_issued=2):
    F = frags_per_stage
    total = nstage * F
    NR = len(ring)
    def sid(f): return first_stage + f // F, f % F
    def issue(f):
        s, i = sid(f)
        if i == 0:
            bg.require(s)
            a.wait(vm=[("st", s)])
            a("s_barrier")
            d = stage_dma(s + 2)
            if d and s + 2 >= pre_issued: bg.add(d, s + 2)
        xr = x_reads(s)
        if i in xr:
            for e in xr[i]: e()
        read_frag(s, i, ring[f % NR])
    for f in range(min(LOOK, total)): issue(f)
    for f in range(total):
        s, i = sid(f)
        if (s, i) in hooks: hooks[(s, i)]()
        if f % 2 == 0:
            f2 = min(f + 1, total - 1)
            s2, i2 = sid(f2)
            a.wait(lg=[("w", s, i), ("w", s2, i2)])
        ms = mfmas(s, i, ring[f % NR])
        ms[0]()
        if f + LOOK < total: issue(f + LOOK)
        ms[1]()
        if f % 2 == 0: bg.tick(1)
        else: bg.tick_s()

LOG2E = 0x3fb8aa3b
def phi(regs, sconst_log2e, tmp):
    for n, r in enumerate(regs):
        t = tmp + (n % 4) * 2
        a(f"v_pk_mul_f32 {v2(t)}, {v2(r)}, {sp(sconst_log2e)} op_sel_hi:[1,0]")
        a(f"v_max_f32 v{r}, 0x358637bd, v{r}\nv_max_f32 v{r+1}, 0x358637bd, v{r+1}")
        a(f"v_exp_f32_e64 v{t}, v{t} clamp\nv_exp_f32_e64 v{t+1}, v{t+1} clamp")
        if n > 0:
            rp = regs[n-1]; tp = tmp + ((n-1) % 4) * 2
            a(f"v_pk_add_f32 {v2(rp)}, {v2(rp)}, {v2(tp)}")
    rp = regs[-1]; tp = tmp + ((len(regs)-1) % 4) * 2
    a(f"v_pk_add_f32 {v2(rp)}, {v2(rp)}, {v2(tp)}")

def cmul_acc(dr, di, lr, li, pr, pi, ar, ai):
    a(f"""v_fma_f32 v{dr}, v{lr}, v{pr}, v{ar}
v_fma_f32 v{di}, v{lr}, v{pi}, v{ai}
v_fma_f32 v{dr}, -v{li}, v{pi}, v{dr}
v_fma_f32 v{di}, v{li}, v{pr}, v{di}""")

def type_A():
    bg = BG()
    AK, AV, AG = ACC, ACC + 40, ACC + 80
    RING = [128 + 4*i for i in range(8)]
    a(f"""s_lshr_b32 s{sT2}, s{sWV}, 1
s_add_u32 s{sT2}, s{sT2}, 1
s_mul_i32 s{sT2}, s{sT2}, 1280
s_mul_i32 s{sT3}, s{sJ}, 160
s_add_u32 s{sT2}, s{sT2}, s{sT3}
s_and_b32 s{sT3}, s{sWV}, 1
s_mul_i32 s{sT3}, s{sT3}, {32*3840}
s_add_u32 s{sT2}, s{sT2}, s{sT3}""")
    for i in range(5): a(f"v_add_u32 v{vW+i}, s{sT2}, v{47+i}")
    def stage_dma(s):
        if s >= 10: return None
        return dma_w(s, vW, SQ, sKQ + s) + dma_x(s)
    run_ops(stage_dma(0))
    mk_srd(SW, pGW, 1280)
    a(f"""s_and_b32 s{sT2}, s{sWV}, 1
s_lshl_b32 s{sT2}, s{sT2}, 10
s_add_u32 m0, s{sT2}, {L_GW}
v_lshlrev_b32 v64, 4, v{vLANE}""")
    a.vmem(f"buffer_load_dwordx4 v64, {srd(SW)}, s{sT2} offen lds", ("st", 0))
    run_ops(stage_dma(1))
    mk_srd(SW, pWO, 640*1280)
    a(f"""s_and_b32 s{sT2}, s{sR}, 1
s_mul_i32 s{sT2}, s{sT2}, 40
s_mul_i32 s{sT3}, s{sJ}, 80
s_add_u32 s{sT2}, s{sT2}, s{sT3}
s_mul_i32 s{sT2}, s{sT2}, 1280
s_lshr_b32 s{sT3}, s{sR}, 1
s_mul_i32 s{sT3}, s{sT3}, 160
s_add_u32 s{sT2}, s{sT2}, s{sT3}
s_lshl_b32 s{sT4}, s{sWV}, 10""")
    for n in range(2):
        a(f"""v_add_u32 v65, {256*n}, v0
v_mul_u32_u24 v66, 6554, v65
v_lshrrev_b32 v66, 16, v66
v_mul_u32_u24 v67, 10, v66
v_sub_u32 v67, v65, v67
v_mul_u32_u24 v66, 1280, v66
v_lshl_add_u32 v66, v67, 4, v66
v_mov_b32 v67, {OOB}
v_cmp_gt_u32 vcc, 400, v65
v_cndmask_b32 v66, v67, v66, vcc
s_add_u32 m0, s{sT4}, {L_WO + 4096*n}""")
        if n == 1:
            a(f"s_cmp_eq_u32 s{sWV}, 3\ns_cbranch_scc1 LskipWo")
            a.vmem(f"buffer_load_dwordx4 v66, {srd(SW)}, s{sT2} offen lds", ("st", 1), certain=False)
            a("LskipWo:")
        else:
            a.vmem(f"buffer_load_dwordx4 v66, {srd(SW)}, s{sT2} offen lds", ("st", 1))
    a(f"""v_mov_b32 v68, 0
v_mov_b32 v69, 0
v_mov_b32 v70, 0
v_mov_b32 v71, 0
v_lshlrev_b32 v65, 4, v0
v_add_u32 v65, {L_KVB}, v65
v_cmp_gt_u32 vcc, 164, v0
s_and_saveexec_b64 {sp(sT2)}, vcc""")
    a.lds("ds_write_b128 v65, v[68:71]", "z0")
    a(f"s_mov_b64 exec, {sp(sT2)}")
    a(f"""v_lshlrev_b32 v61, 3, v60
v_add_u32 v62, v58, v61
v_add_u32 v63, v59, v61
v_add_u32 v{vWR}, {L_W}, v62
v_add_u32 v{vWR+1}, {L_W}, v63
v_add_u32 v{vWR+2}, {L_W+40960}, v62
v_add_u32 v{vWR+3}, {L_W+40960}, v63
v_lshrrev_b32 v{vQ}, 4, v{vLANE}
v_lshlrev_b32 v{vQ}, 4, v{vQ}
v_add_u32 v{vQ}, {L_GW}, v{vQ}""")
    tag_ready()
    stamp(0)
    XA = lambda s, ks, m: (s % 2) * 16 + ks * 8 + m * 4 + 120
    def x_reads(s):
        def mk(ks):
            return [(lambda m=m: a.lds(f"ds_read_b128 {a4(XA(s, ks, m))}, v{vXR+ks} offset:{(s%4)*4096 + m*2048}", ("x", s, ks))) for m in range(2)]
        return {0: mk(0), 11: mk(1)}
    def read_frag(s, i, reg):
        ks, t = divmod(i, 11)
        sl = s % 4
        if t == 10:
            if ks == 0: a(f"v_add_u32 v{vQ+1}, s{sKA+s}, v{vQ}")
            a.lds(f"ds_read_b128 {v4(reg)}, v{vQ+1} offset:{ks*64}", ("w", s, i))
            return
        seg, T = divmod(t, 5)
        off = (sl % 2) * 20480 + seg * 10240 + ks * 5120
        for hh in range(2):
            if T < 4: va, o = vWR + (sl // 2) * 2 + hh, off + 40 * T
            else: va, o = vT40 + (sl // 2) * 2 + hh, off + 32
            a.lds(f"ds_read_b64_tr_b16 {v2(reg + 2*hh)}, v{va} offset:{o}", ("w", s, i))
    def mfmas(s, i, reg):
        ks, t = divmod(i, 11)
        out = []
        for m in range(2):
            d = ACC + t * 8 + m * 4
            c = "0" if (s == 0 and ks == 0) else v4(d)
            out.append(lambda d=d, m=m, c=c: mfma(v4(d), a4(XA(s, ks, m)), v4(reg), c))
        return out
    gemm_loop(10, 22, read_frag, mfmas, x_reads, stage_dma, bg, RING, 5, {})
    bg.flush()
    stamp(1)
    a(f"s_mov_b32 s{sT2}, {LOG2E}")
    T = 160
    phi([AK + 2*n for n in range(20)], sT2, T)
    PKR, VR = 168, 188
    a(f"v_lshl_add_u32 v{T}, v{vLANE}, 4, s{sXB}")
    for t in range(10):
        dst = PKR + 4*t
        for q in range(4):
            a(f"v_cvt_pk_bf16_f32 v{dst+q}, v{ACC + t*8 + 2*q}, v{ACC + t*8 + 2*q + 1}")
        a.lds(f"ds_write_b128 v{T}, {v4(dst)} offset:{t*1024}", "kvx")
    for q in range(4):
        r = AG + 2*q
        a(f"""v_cvt_pk_bf16_f32 v{T+1}, v{r}, v{r+1}
v_lshlrev_b32 v{r}, 16, v{T+1}
v_and_b32 v{r+1}, 0xffff0000, v{T+1}
v_mul_f32 v{r}, 0xbfb8aa3b, v{r}
v_mul_f32 v{r+1}, 0xbfb8aa3b, v{r+1}
v_exp_f32 v{r}, v{r}
v_exp_f32 v{r+1}, v{r+1}
s_nop 0
v_add_f32 v{r}, 1.0, v{r}
v_add_f32 v{r+1}, 1.0, v{r+1}
v_rcp_f32 v{r}, v{r}
v_rcp_f32 v{r+1}, v{r+1}
s_nop 0
v_cvt_pk_bf16_f32 v{T+1}, v{r}, v{r+1}
v_lshlrev_b32 v{r}, 16, v{T+1}
v_and_b32 v{r+1}, 0xffff0000, v{T+1}""")
    a(f"""v_and_b32 v208, 15, v{vLANE}
v_lshrrev_b32 v209, 4, v{vLANE}
v_lshrrev_b32 v210, 2, v208
v_mov_b32 v211, {OOB}
v_lshlrev_b32 v212, 4, v209
v_cmp_eq_u32 vcc, 0, v208
v_cndmask_b32 v212, v211, v212, vcc
s_lshl_b32 s{sT2}, s{sR}, 9
s_lshl_b32 s{sT3}, s{sWV}, 7
s_add_u32 s{sT2}, s{sT2}, s{sT3}
s_add_u32 s{sT2}, s{sT2}, {WS_G}
s_cmp_eq_u32 s{sJ}, 0
s_cselect_b32 s{sT2}, s{sT2}, {OOB}""")
    for m in range(2):
        a.vmem(f"buffer_store_dwordx4 {v4(AG + 4*m)}, v212, {srd(SWS)}, s{sT2} offen offset:{m*64} sc1", "gst")
    a.wait(lg="all")
    a("s_barrier")
    a(f"""s_lshl_b32 s{sT2}, s{sWV}, 10
v_lshlrev_b32 v{T}, 4, v{vLANE}
v_add_u32 v{T+1}, s{sT2}, v{T}""")
    F0 = 32
    for w in range(4):
        b = F0 + w * 16
        a.lds(f"ds_read_b128 {v4(b)}, v{T+1} offset:{w*16384}", ("kr", w))
        a.lds(f"ds_read_b128 {v4(b+4)}, v{T} offset:{w*16384 + 4096}", ("kr", w))
        a.lds(f"ds_read_b128 {v4(b+8)}, v{T+1} offset:{w*16384 + 5120}", ("kr", w))
        a.lds(f"ds_read_b128 {v4(b+12)}, v{T} offset:{w*16384 + 9216}", ("kr", w))
        if w == 2:
            a(f"""v_cmp_eq_u32 {sp(sT2)}, s{sWV}, v210
v_cmp_eq_u32 {sp(sT4)}, s{sWV}, v209
v_mov_b32 v213, 0x3f803f80""")
    P = 96
    for w in range(4):
        b = F0 + w * 16
        a.wait(lg=[("kr", w)])
        for q in range(4): a(f"v_cndmask_b32 v{b+12+q}, v213, v{b+12+q}, {sp(sT2)}")
        c = lambda n: "0" if w == 0 else v4(P + 4*n)
        mfma(v4(P), v4(b+8), v4(b), c(0))
        mfma(v4(P+8), v4(b+8), v4(b+4), c(2))
        mfma(v4(P+4), v4(b+12), v4(b), c(1))
        mfma(v4(P+12), v4(b+12), v4(b+4), c(3))
    a(f"""s_add_u32 s{sM0}, s{sWV}, 1
s_and_b32 s{sM0}, s{sM0}, 3
v_cmp_eq_u32 vcc, s{sM0}, v209
v_lshlrev_b32 v214, 3, v208
v_and_b32 v215, 3, v208
v_add_u32 v215, 16, v215
v_lshlrev_b32 v216, 3, v215
v_cndmask_b32 v214, v211, v214, vcc
v_cndmask_b32 v216, v211, v216, vcc
v_cndmask_b32 v216, v211, v216, {sp(sT2)}
s_lshl_b32 s{sM0}, s{sJ}, 4
s_add_u32 s{sM0}, s{sM0}, s{sR}
s_mul_i32 s{sM1}, s{sM0}, 640
s_mul_i32 s{sT0}, s{sWV}, 160
s_add_u32 s{sM1}, s{sM1}, s{sT0}
s_add_u32 s{sM1}, s{sM1}, {WS_ZP}
v_mov_b32 v218, v{P+4}
v_mov_b32 v219, s{sTAG}
v_mov_b32 v220, v{P+12}
v_mov_b32 v221, s{sTAG}""")
    a.vmem(f"buffer_store_dwordx2 v[218:219], v214, {srd(SWS)}, s{sM1} offen sc1", "zst")
    a.vmem(f"buffer_store_dwordx2 v[220:221], v216, {srd(SWS)}, s{sM1} offen sc1", "zst")
    a(f"""v_mul_u32_u24 v222, 320, v209
v_lshl_add_u32 v223, v208, 4, v222
v_lshlrev_b32 v224, 4, v208
v_cndmask_b32 v224, v211, v224, {sp(sT4)}
v_lshl_add_u32 v225, v215, 4, v222
v_cndmask_b32 v225, v211, v225, {sp(sT2)}
v_lshlrev_b32 v226, 4, v215
v_cndmask_b32 v226, v211, v226, {sp(sT2)}
v_cndmask_b32 v226, v211, v226, {sp(sT4)}
s_mul_i32 s{sM1}, s{sM0}, 6400
s_mul_i32 s{sT0}, s{sWV}, 1600
s_add_u32 s{sM1}, s{sM1}, s{sT0}
s_add_u32 s{sM1}, s{sM1}, {WS_KVP}""")
    a.vmem(f"buffer_store_dwordx4 {v4(P)}, v223, {srd(SWS)}, s{sM1} offen sc1", "kvst")
    a.vmem(f"buffer_store_dwordx4 {v4(P+4)}, v224, {srd(SWS)}, s{sM1} offen offset:1280 sc1", "kvst")
    a.vmem(f"buffer_store_dwordx4 {v4(P+8)}, v225, {srd(SWS)}, s{sM1} offen sc1", "kvst")
    a.vmem(f"buffer_store_dwordx4 {v4(P+12)}, v226, {srd(SWS)}, s{sM1} offen offset:1280 sc1", "kvst")
    mk_srd(SW, pCRE, 640*1280)
    a.wait(vm="all")
    a("s_barrier")
    stamp(2)
    a(f"""s_lshl_b32 s{sT0}, s{sM0}, 7
s_add_u32 s{sT0}, s{sT0}, {FKV}
s_cmp_lg_u32 s{sWV}, 0
s_cbranch_scc1 LA_nf
v_mov_b32 v214, s{sT0}
s_mov_b64 exec, 1""")
    a.vmem(f"buffer_store_dword v219, v214, {srd(SWS)}, 0 offen sc1", "fl", certain=False)
    a("s_mov_b64 exec, -1\nLA_nf:")
    run_ops(dma_c(3, sCW, 0))
    a(f"""s_cmp_lg_u32 s{sWV}, 0
s_cbranch_scc1 LA_np
s_lshl_b32 s{sT0}, s{sJ}, 11
s_add_u32 s{sT0}, s{sT0}, {FKV}
v_lshl_add_u32 v214, v{vLANE}, 7, s{sT0}""")
    poll(214, 215, "0xffff", "kv")
    a("LA_np:\ns_barrier")
    stamp(3)
    a(f"""v_lshlrev_b32 v214, 4, v0
v_cmp_gt_u32 vcc, 200, v0
v_cndmask_b32 v214, v211, v214, vcc
s_mul_i32 s{sT0}, s{sJ}, {16*6400}
s_and_b32 s{sT1}, s{sR}, 1
s_mul_i32 s{sT2}, s{sT1}, 3200
s_add_u32 s{sT0}, s{sT0}, s{sT2}
s_add_u32 s{sT0}, s{sT0}, {WS_KVP}""")
    for n in range(16):
        a.vmem(f"buffer_load_dwordx4 {v4(32 + 4*n)}, v214, {srd(SWS)}, s{sT0} offen sc1", ("kp", n))
        if n < 15: a(f"s_add_u32 s{sT0}, s{sT0}, 6400")
    run_ops(dma_c(4, sCW, 10240))
    a(f"""v_cmp_le_u32 vcc, 100, v0
v_subrev_u32 v215, 100, v0
v_cndmask_b32 v215, v0, v215, vcc
v_mov_b32 v216, 0
v_mov_b32 v217, 1280
v_cndmask_b32 v216, v216, v217, vcc
v_mul_u32_u24 v217, 3277, v215
v_lshrrev_b32 v217, 16, v217
v_mul_u32_u24 v218, 20, v217
v_sub_u32 v218, v215, v218
v_lshl_add_u32 v216, v218, 6, v216
v_lshl_add_u32 v216, v217, 3, v216
v_add_u32 v216, {L_KVB}, v216""")
    ZR = L_KVB + 2560
    a(f"""v_and_b32 v220, 3, v208
v_lshrrev_b32 v221, 1, v210
v_lshl_add_u32 v221, v221, 3, v220
v_lshlrev_b32 v221, 6, v221
v_lshl_add_u32 v221, v209, 4, v221
v_add_u32 v221, {L_KVB}, v221
v_add_u32 v222, 1280, v221
v_mov_b32 v223, {ZR - 256}
v_and_b32 v224, 1, v210
v_cmp_eq_u32 vcc, 0, v224
v_cndmask_b32 v225, v223, v221, vcc
v_cndmask_b32 v226, v222, v223, vcc
v_mov_b32 v223, {ZR}
v_cndmask_b32 v221, v223, v221, vcc
v_cndmask_b32 v222, v222, v223, vcc
v_lshlrev_b32 v227, 6, v220
v_lshl_add_u32 v227, v209, 4, v227
v_add_u32 v227, {L_KVB + 16*64}, v227
v_add_u32 v228, 1280, v227
v_cmp_eq_u32 vcc, 0, v210
v_cndmask_b32 v227, v223, v227, vcc
v_cmp_eq_u32 vcc, 1, v210
v_cndmask_b32 v228, v223, v228, vcc""")
    a(f"""v_bfe_u32 v229, v{vLANE}, 2, 2
v_lshl_add_u32 v229, v209, 3, v229
v_add_u32 v230, 4, v229
v_min_u32 v229, 19, v229
v_min_u32 v230, 19, v230
v_mul_u32_u24 v229, 160, v229
v_mul_u32_u24 v230, 160, v230
v_and_b32 v231, 3, v{vLANE}
v_lshl_add_u32 v229, v231, 3, v229
v_lshl_add_u32 v230, v231, 3, v230
v_add_u32 v229, {L_WO}, v229
v_add_u32 v230, {L_WO}, v230
s_lshl_b32 s{sT2}, s{sWV}, 5
v_add_u32 v231, s{sT2}, v229
v_add_u32 v232, s{sT2}, v230""")
    WOF = 128
    for ts in range(2):
        for hd in range(2):
            r = WOF + (ts*2 + hd) * 4
            for hh in range(2):
                va = (231 + hh) if ts == 0 else (229 + hh)
                a.lds(f"ds_read_b64_tr_b16 {v2(r + 2*hh)}, v{va} offset:{hd*3200 + (128 if ts else 0)}", "wof")
    for n in range(1, 16):
        a.wait(vm=[("kp", n)])
        a(f"v_pk_add_f32 v[32:33], v[32:33], {v2(32+4*n)}\nv_pk_add_f32 v[34:35], v[34:35], {v2(34+4*n)}")
    a(f"""v_cvt_pk_bf16_f32 v36, v32, v33
v_cvt_pk_bf16_f32 v37, v34, v35
v_cmp_gt_u32 vcc, 200, v0
s_and_saveexec_b64 {sp(sT2)}, vcc""")
    a.lds("ds_write_b64 v216, v[36:37]", "kvb")
    a(f"s_mov_b64 exec, {sp(sT2)}")
    a.wait(lg="all")
    a("s_barrier")
    KF = 40
    a.lds(f"ds_read_b128 {v4(KF)}, v221", "kf")
    a.lds(f"ds_read_b128 {v4(KF+4)}, v222", "kf")
    a.lds(f"ds_read_b128 {v4(KF+8)}, v225 offset:256", "kf")
    a.lds(f"ds_read_b128 {v4(KF+12)}, v226 offset:256", "kf")
    a.lds(f"ds_read_b128 {v4(KF+16)}, v227", "kf")
    a.lds(f"ds_read_b128 {v4(KF+20)}, v228", "kf")
    a(f"""v_and_b32 v233, 1, v209
v_lshrrev_b32 v234, 1, v209
v_lshl_add_u32 v233, v234, 2, v233
v_lshlrev_b32 v233, 8, v233
v_lshl_add_u32 v233, v208, 4, v233
v_lshlrev_b32 v234, 3, v209
v_lshl_add_u32 v234, v208, 4, v234
v_cmp_gt_u32 vcc, 2, v209
v_cndmask_b32 v234, v211, v234, vcc
s_lshr_b32 s{sT0}, s{sR}, 1
s_mul_i32 s{sT0}, s{sT0}, {5*20480}
s_mul_i32 s{sT2}, s{sJ}, 2560
s_add_u32 s{sT0}, s{sT0}, s{sT2}
s_add_u32 s{sT0}, s{sT0}, {WS_M}
s_lshl_b32 s{sT2}, s{sT1}, 9
s_add_u32 s{sT2}, s{sT2}, s{sT0}
s_lshl_b32 s{sT3}, s{sT1}, 8
s_add_u32 s{sT3}, s{sT3}, s{sT0}
s_mul_i32 s{sT0}, s{sWV}, 20480
s_add_u32 s{sT4}, s{sT2}, s{sT0}
s_add_u32 s{sT5}, s{sT3}, s{sT0}
s_add_u32 s{sT2}, s{sT2}, {4*20480}
s_add_u32 s{sT3}, s{sT3}, {4*20480}
s_cmp_eq_u32 s{sWV}, 0
s_cselect_b32 s{sT2}, s{sT2}, {OOB}
s_cselect_b32 s{sT3}, s{sT3}, {OOB}""")
    a.wait(lg="all")
    MD = 64
    for hd in range(2):
        for ts in range(2):
            for tl in range(3):
                d = MD + (ts*3 + tl) * 4
                mfma(v4(d), v4(KF + tl*8 + hd*4), v4(WOF + (ts*2+hd)*4), "0" if hd == 0 else v4(d))
    for ts in range(2):
        d = MD + ts*12; o = 88 + ts*8
        for q in range(6):
            a(f"v_cvt_pk_bf16_f32 v{o+q}, v{d+2*q}, v{d+2*q+1}")
        a.vmem(f"buffer_store_dwordx4 {v4(o)}, v233, {srd(SWS)}, s{sT4 if ts == 0 else sT2} offen sc1", "mst")
        a.vmem(f"buffer_store_dwordx2 {v2(o+4)}, v234, {srd(SWS)}, s{sT5 if ts == 0 else sT3} offen offset:2048 sc1", "mst")
    a.wait(vm="all")
    a("s_barrier")
    a(f"""s_lshl_b32 s{sT0}, s{sJ}, 4
s_add_u32 s{sT0}, s{sT0}, s{sR}
s_lshl_b32 s{sT0}, s{sT0}, 7
s_add_u32 s{sT0}, s{sT0}, {FM}
s_cmp_lg_u32 s{sWV}, 0
s_cbranch_scc1 LA_nf2
v_mov_b32 v214, s{sT0}
s_mov_b64 exec, 1""")
    a.vmem(f"buffer_store_dword v219, v214, {srd(SWS)}, 0 offen sc1", "fl", certain=False)
    a("s_mov_b64 exec, -1\nLA_nf2:")
    stamp(4)
    run_ops(dma_c(2, sXB, 0))
    run_ops(c_reads(3, vCR, 0))
    a.wait(lg="all")
    run_ops(dma_c(0, sCW, 0))
    run_ops(c_reads(4, vCR, 10240))
    a.wait(lg="all")
    run_ops(dma_c(1, sCW, 10240))
    a.wait(vm=[("c", 2)])
    run_ops(c_reads(2, vXR, 0))
    a.wait(vm=[("c", 0)], lg="all")
    run_ops(c_reads(0, vCR, 0))
    a.wait(vm=[("c", 1)], lg="all")
    run_ops(c_reads(1, vCR, 10240))
    a.wait(vm="all", lg="all")
    a("s_branch LK2")

def type_B():
    a("LtypeB:")
    a.vm = [("pf", False)]; a.lg = []
    bg = BG()
    U = ACC; Q = ACC + 80
    RING = [152 + 4*i for i in range(8)]
    T = 184
    a(f"""s_cmp_ge_u32 s{sWV}, 2
s_cselect_b32 s{SW}, s{pBIM}, s{pBRE}
s_cselect_b32 s{SW+1}, s{pBIM+1}, s{pBRE+1}
s_and_b32 s{SW+1}, s{SW+1}, 0xffff
s_mov_b32 s{SW+2}, {640*1280}
s_mov_b32 s{SW+3}, 0x20000
s_and_b32 s{sT2}, s{sWV}, 1
s_mul_i32 s{sT3}, s{sT2}, 40
s_mul_i32 s{sT4}, s{sJ}, 80
s_add_u32 s{sT3}, s{sT3}, s{sT4}
s_mul_i32 s{sT3}, s{sT3}, 1280
s_lshl_b32 s{sT4}, s{sT2}, 6
v_xor_b32 v64, s{sT4}, v45
v_xor_b32 v65, s{sT4}, v46
v_add_u32 v{vW}, s{sT3}, v64
v_add_u32 v65, s{sT3}, v65
v_add_u32 v{vW+1}, {10240-1024}, v65
v_add_u32 v{vW+2}, {2*(10240-1024)}, v{vW}
v_add_u32 v{vW+3}, {3*(10240-1024)}, v65
v_add_u32 v{vW+4}, {4*10240}, v{vW}""")
    a(f"""s_mul_i32 s{sT4}, s{sJ}, 160
v_min_u32 v66, 79, v0
v_lshl_add_u32 v66, v66, 1, s{sT4}
v_mov_b32 v{T}, 0
v_mov_b32 v{T+1}, 0
v_mov_b32 v{T+2}, 0""")
    a.vmem(f"global_load_short_d16_hi v{T}, v66, {sp(pLRE)}", "par")
    a.vmem(f"global_load_short_d16_hi v{T+1}, v66, {sp(pLIM)}", "par")
    a.vmem(f"global_load_short_d16_hi v{T+2}, v66, {sp(pLDT)}", "par")
    def stage_dma(s):
        if s < 10: return dma_w(s, vW, SW, sKA + s) + dma_x(s)
        if s < 15: return dma_w(s, vQ, SQ, sKQ + (s - 10))
        return None
    run_ops(stage_dma(0))
    a(f"""s_mul_i32 s{sT3}, s{sT2}, {32*3840}
s_add_u32 s{sT3}, s{sT3}, s{sT4}
s_cmp_ge_u32 s{sWV}, 2""")
    for q in range(5): a(f"s_cselect_b32 s{sKQ+q}, s{sKQ+2*q+1}, s{sKQ+2*q}")
    for i in range(5): a(f"v_add_u32 v{vQ+i}, s{sT3}, v{47+i}")
    a(f"""v_add_u32 v{vWR}, {L_W}, v56
v_add_u32 v{vWR+1}, {L_W}, v57
v_add_u32 v{vWR+2}, {L_W+40960}, v56
v_add_u32 v{vWR+3}, {L_W+40960}, v57""")
    bg.add(stage_dma(1))
    bg.tick(2)
    a.wait(vm="par")
    P = T + 4
    L8, L128 = 244, 246
    t0, t1, t2, t3 = T+16, T+17, T+18, T+19
    a(f"""v_mul_f32 v{T+2}, {LOG2E}, v{T+2}
v_exp_f32 v{T+2}, v{T+2}
s_nop 0
v_cvt_pk_bf16_f32 v{T+2}, v{T+2}, v{T+2}
v_lshlrev_b32 v{T+2}, 16, v{T+2}
v_mul_f32 v{t0}, v{T+2}, v{T}
v_mul_f32 v{t1}, v{T+2}, v{T+1}
v_mul_f32 v{t0}, {LOG2E}, v{t0}
v_mul_f32 v{t1}, 0.15915494, v{t1}
v_exp_f32 v{t0}, v{t0}
v_fract_f32 v{t1}, v{t1}
v_cos_f32 v{t2}, v{t1}
v_sin_f32 v{t3}, v{t1}
s_nop 0
v_mul_f32 v{P+2}, v{t0}, v{t2}
v_mul_f32 v{t3}, v{t0}, v{t3}""")
    bg.tick(2)
    a(f"""v_sub_f32 v{P+3}, 0, v{t3}
v_add_f32 v{t0}, -1.0, v{P+2}
v_mul_f32 v{t1}, v{T}, v{T}
v_fma_f32 v{t1}, v{T+1}, v{T+1}, v{t1}
v_rcp_f32 v{t1}, v{t1}
v_mul_f32 v{P}, v{t0}, v{T}
v_fma_f32 v{P}, v{t3}, v{T+1}, v{P}
v_mul_f32 v{P+1}, v{t3}, v{T}
v_fma_f32 v{P+1}, -v{t0}, v{T+1}, v{P+1}
v_add_f32 v{t1}, v{t1}, v{t1}
v_mul_f32 v{P}, v{P}, v{t1}
v_mul_f32 v{P+1}, v{P+1}, v{t1}""")
    bg.tick(2)
    def csq(d, s):
        a(f"""v_mul_f32 v{t0}, v{s+1}, v{s+1}
v_mul_f32 v{t1}, v{s}, v{s+1}
v_fma_f32 v{d}, v{s}, v{s}, -v{t0}
v_add_f32 v{d+1}, v{t1}, v{t1}""")
    csq(P+4, P+2)
    a(f"""v_mul_f32 v{P+6}, v{P+4}, v{P+2}
v_mul_f32 v{P+7}, v{P+4}, v{P+3}
v_fma_f32 v{P+6}, -v{P+5}, v{P+3}, v{P+6}
v_fma_f32 v{P+7}, v{P+5}, v{P+2}, v{P+7}""")
    csq(P+8, P+4)
    bg.tick(2)
    csq(L8, P+8)
    csq(L128, L8); csq(L128, L128); csq(L128, L128); csq(L128, L128)
    bg.flush()
    tag_ready()
    a(f"""v_mul_u32_u24 v{t0}, 48, v0
v_add_u32 v{t0}, {L_PT}, v{t0}
v_cmp_gt_u32 vcc, 80, v0
s_and_saveexec_b64 {sp(sT2)}, vcc""")
    for q in range(3): a.lds(f"ds_write_b128 v{t0}, {v4(P+4*q)} offset:{16*q}", "pt")
    a(f"s_mov_b64 exec, {sp(sT2)}")
    stamp(0)
    XA = lambda s, ks, m: s * 16 + ks * 8 + m * 4
    def x_reads(s):
        if s >= 10: return {}
        def mk(ks):
            return [(lambda m=m: a.lds(f"ds_read_b128 {a4(XA(s, ks, m))}, v{vXR+ks} offset:{(s%4)*4096 + m*2048}", ("x", s, ks))) for m in range(2)]
        return {0: mk(0), 10: mk(1)}
    def read_frag(s, i, reg):
        sl = s % 4
        if s < 10:
            ks, t = divmod(i, 10)
            c5, part = divmod(t, 2)
            a.lds(f"ds_read_b128 {v4(reg)}, v{vWR + (sl//2)*2 + ks} offset:{(sl%2)*20480 + part*10240 + c5*2048}", ("w", s, i))
        else:
            k4, Tt = divmod(i, 5)
            for hh in range(2):
                a.lds(f"ds_read_b64_tr_b16 {v2(reg+2*hh)}, v{vT40 + (sl//2)*2 + hh} offset:{(sl%2)*20480 + k4*5120 + 8*Tt}", ("w", s, i))
    def mfmas(s, i, reg):
        out = []
        if s < 10:
            ks, t = divmod(i, 10)
            for m in range(2):
                d = U + t*8 + m*4
                c = "0" if (s == 0 and ks == 0) else v4(d)
                out.append(lambda d=d, m=m, c=c: mfma(v4(d), a4(XA(s, ks, m)), v4(reg), c))
        else:
            k4, Tt = divmod(i, 5)
            xs, ks = 2*(s-10) + k4//2, k4 % 2
            for m in range(2):
                d = Q + Tt*8 + m*4
                c = "0" if (s == 10 and k4 == 0) else v4(d)
                out.append(lambda d=d, m=m, c=c: mfma(v4(d), v4(reg), a4(XA(xs, ks, m)), c))
        return out
    PT = T
    EREG = None
    def ur(c5, i): return U + (2*c5)*8 + 2*i
    def ui(c5, i): return U + (2*c5+1)*8 + 2*i
    LO = "op_sel_hi:[1,0,1]"
    HI = "op_sel:[0,1,0] op_sel_hi:[1,1,1]"
    NEG = "neg_lo:[0,1,0] neg_hi:[0,1,0]"
    vEA, vSA = vX, vX + 1
    def scan1():
        stamp(1)
        a(f"""v_and_b32 v248, 15, v{vLANE}
v_mul_u32_u24 v249, 48, v248
v_add_u32 v249, {L_PT}, v249""")
        for c5 in range(5):
            for q in range(3 if c5 < 5 else 0):
                a.lds(f"ds_read_b128 {v4(PT + c5*12 + 4*q)}, v249 offset:{c5*16*48 + 16*q}", ("ptr", c5))
            if c5 == 0:
                a(f"""v_lshrrev_b32 v250, 4, v0
v_mul_u32_u24 v250, 640, v250
v_lshl_add_u32 v{vEA}, v248, 3, v250
v_add_u32 v{vEA}, {L_EB}, v{vEA}""")
            a.wait(lg=[("ptr", c5)])
        tA, tB = 248, 250
        for c5 in range(5):
            c = PT + c5*12
            for i in range(4):
                r_, i_ = ur(c5, i), ui(c5, i)
                a(f"""v_pk_mul_f32 {v2(tA)}, {v2(r_)}, {v2(c)} op_sel_hi:[1,0]
v_pk_mul_f32 {v2(tB)}, {v2(r_)}, {v2(c)} op_sel:[0,1] op_sel_hi:[1,1] neg_lo:[0,1] neg_hi:[0,1]
v_pk_fma_f32 {v2(r_)}, {v2(i_)}, {v2(c)}, {v2(tA)} {HI} {NEG}
v_pk_fma_f32 {v2(i_)}, {v2(i_)}, {v2(c)}, {v2(tB)} {LO} {NEG}""")
            bg.tick(1)
        for i in range(1, 4):
            for c5 in range(5):
                l = PT + c5*12 + 2
                a(f"""v_pk_fma_f32 {v2(ur(c5,i))}, {v2(ur(c5,i-1))}, {v2(l)}, {v2(ur(c5,i))} {LO}
v_pk_fma_f32 {v2(ui(c5,i))}, {v2(ui(c5,i-1))}, {v2(l)}, {v2(ui(c5,i))} {LO}""")
            for c5 in range(5):
                l = PT + c5*12 + 2
                a(f"""v_pk_fma_f32 {v2(ur(c5,i))}, {v2(ui(c5,i-1))}, {v2(l)}, {v2(ur(c5,i))} {HI} {NEG}
v_pk_fma_f32 {v2(ui(c5,i))}, {v2(ur(c5,i-1))}, {v2(l)}, {v2(ui(c5,i))} {HI}""")
            bg.tick(1)
        for c5 in range(5):
            l4 = PT + c5*12 + 8
            e = PT + c5*12 + 10
            cmul_acc(e, e+1, l4, l4+1, ur(c5,3), ui(c5,3), ur(c5,3)+1, ui(c5,3)+1)
            a.lds(f"ds_write_b64 v{vEA}, {v2(e)} offset:{c5*128}", "ew")
        a.wait(lg="all")
        a("s_barrier")
        a(f"s_cmp_ge_u32 s{sWV}, 2\ns_cbranch_scc1 LB_nocarry1")
        a(f"""v_min_u32 v248, 79, v0
v_lshlrev_b32 v{vSA}, 3, v248
v_add_u32 v{vSA}, {L_EB}, v{vSA}""")
        E0 = Q
        for s in range(16):
            a(f"ds_read_b64 {v2(E0 + 2*s)}, v{vSA} offset:{s*640}")
            if s == 7: a("s_waitcnt lgkmcnt(0)")
        a("s_waitcnt lgkmcnt(0)")
        for s in range(1, 16):
            cmul_acc(E0+2*s, E0+2*s+1, L8, L8+1, E0+2*s-2, E0+2*s-1, E0+2*s, E0+2*s+1)
        a(f"""v_mov_b32 v248, v{E0+30}
v_mov_b32 v249, s{sTAG}
v_mov_b32 v250, v{E0+31}
v_mov_b32 v251, s{sTAG}
v_lshlrev_b32 v{vX+2}, 4, v0
v_mov_b32 v{vX+3}, {OOB}
v_cmp_gt_u32 vcc, 80, v0
v_cndmask_b32 v{vX+2}, v{vX+3}, v{vX+2}, vcc
s_lshl_b32 s{sT2}, s{sJ}, 4
s_add_u32 s{sT2}, s{sT2}, s{sR}
s_mul_i32 s{sT2}, s{sT2}, 1280
s_add_u32 s{sT2}, s{sT2}, {WS_SP}""")
        a.vmem(f"buffer_store_dwordx4 v[248:251], v{vX+2}, {srd(SWS)}, s{sT2} offen sc1", "sst", certain=False)
        a("s_nop 1\nLB_nocarry1:")
        stamp(2)
    def start_c():
        bg.add([("s", lambda: a(f"s_mov_b32 s{SW+2}, {640*1280}"))])
        bg.add(dma_c(0, sXB, 0))
    def c0_move():
        bg.flush()
        a.wait(vm=[("c", 0)])
    hooks = {(10, 0): scan1, (12, 16): start_c}
    gemm_loop(15, 20, read_frag, mfmas, x_reads, stage_dma, bg, RING, 5, hooks)
    bg.flush()
    stamp(3)
    SL = 152
    a("s_barrier")
    run_ops(dma_c(3, sCW, 0))
    Lx = a.label("LB_x")
    a(f"s_cmp_ge_u32 s{sWV}, 2\ns_cbranch_scc1 LB_z")
    HR = 248
    a(f"""s_mov_b32 s{sSPIN}, 0
LB_sretry:
v_mov_b32 v{HR}, 0
v_mov_b32 v{HR+1}, 0
v_mov_b32 v252, 0
s_lshl_b32 s{sT2}, s{sJ}, 4
s_add_u32 s{sT2}, s{sT2}, s{sR}
s_mul_i32 s{sT2}, s{sT2}, 1280
s_add_u32 s{sT2}, s{sT2}, {WS_SP}""")
    for batch in ([14, 13, 12, 11, 10, 9, 8], [7, 6, 5, 4, 3, 2, 1, 0]):
        skip = a.label("LB_sk")
        a(f"s_cmp_le_u32 s{sR}, {batch[-1]}\ns_cbranch_scc1 {skip}")
        for q, n in enumerate(batch):
            a(f"""s_sub_u32 s{sT3}, s{sT2}, {(n+1)*1280}
s_cmp_gt_u32 s{sR}, {n}
s_cselect_b32 s{sT3}, s{sT3}, {OOB}
buffer_load_dwordx4 {v4(SL+4*q)}, v{vX+2}, {srd(SWS)}, s{sT3} offen sc1""")
        a("s_waitcnt vmcnt(0)")
        for q, n in enumerate(batch):
            r = SL + 4*q
            a(f"""s_cmp_gt_u32 s{sR}, {n}
s_cselect_b32 s{sT3}, s{sTAG}, 0
v_xor_b32 v{r+1}, s{sT3}, v{r+1}
v_xor_b32 v{r+3}, s{sT3}, v{r+3}
v_or3_b32 v252, v252, v{r+1}, v{r+3}""")
            cmul_acc(r, r+2, L128, L128+1, HR, HR+1, r, r+2)
            a(f"v_mov_b32 v{HR}, v{r}\nv_mov_b32 v{HR+1}, v{r+2}")
        a(f"{skip}:")
    a(f"""v_cmp_gt_u32 vcc, 80, v0
s_mov_b64 {sp(sT4)}, vcc
v_cmp_ne_u32 vcc, 0, v252
s_add_u32 s{sSPIN}, s{sSPIN}, 1
s_and_b64 vcc, vcc, {sp(sT4)}
s_cmp_gt_u32 s{sSPIN}, 0x20000
s_cbranch_scc1 LB_sdone
s_cbranch_vccnz LB_sretry
LB_sdone:""")
    for s in range(15):
        a(f"ds_read_b64 {v2(SL + 2*s)}, v{vSA} offset:{s*640}")
        if s == 7: a("s_waitcnt lgkmcnt(0)")
    a(f"s_waitcnt lgkmcnt(0)\ns_mov_b64 exec, {sp(sT4)}")
    a(f"ds_write_b64 v{vSA}, {v2(HR)}")
    for s in range(15):
        p = HR if s == 0 else SL + 2*(s-1)
        cmul_acc(SL+2*s, SL+2*s+1, L8, L8+1, p, p+1, SL+2*s, SL+2*s+1)
        a(f"ds_write_b64 v{vSA}, {v2(SL+2*s)} offset:{(s+1)*640}")
        if s == 7: a("s_waitcnt lgkmcnt(4)")
    a(f"s_mov_b64 exec, -1\ns_branch {Lx}")
    a(f"""LB_z:
s_cmp_lg_u32 s{sWV}, 2
s_cbranch_scc1 {Lx}
v_lshlrev_b32 v253, 4, v{vLANE}
v_mov_b32 v254, {OOB}
v_cmp_gt_u32 {sp(sT4)}, 40, v{vLANE}
s_mov_b32 s{sSPIN}, 0
v_cndmask_b32 v253, v254, v253, {sp(sT4)}
LB_zretry:
v_mov_b32 v{HR}, 0
v_mov_b32 v{HR+1}, 0
v_mov_b32 v252, 0
s_mul_i32 s{sT2}, s{sJ}, {16*640}
s_add_u32 s{sT2}, s{sT2}, {WS_ZP}""")
    for b in range(2):
        for q in range(8):
            n = b*8 + q
            a(f"buffer_load_dwordx4 {v4(SL+4*q)}, v253, {srd(SWS)}, s{sT2} offen offset:{(n%4)*640} sc1")
            if n % 4 == 3: a(f"s_add_u32 s{sT2}, s{sT2}, 2560")
        a("s_waitcnt vmcnt(0)")
        for q in range(8):
            r = SL + 4*q
            a(f"""v_xor_b32 v{r+1}, s{sTAG}, v{r+1}
v_xor_b32 v{r+3}, s{sTAG}, v{r+3}
v_or3_b32 v252, v252, v{r+1}, v{r+3}
v_add_f32 v{HR}, v{HR}, v{r}
v_add_f32 v{HR+1}, v{HR+1}, v{r+2}""")
    a(f"""v_cmp_ne_u32 vcc, 0, v252
s_add_u32 s{sSPIN}, s{sSPIN}, 1
s_and_b64 vcc, vcc, {sp(sT4)}
s_cmp_gt_u32 s{sSPIN}, 0x20000
s_cbranch_scc1 LB_zdone
s_cbranch_vccnz LB_zretry
LB_zdone:
v_cvt_pk_bf16_f32 v252, v{HR}, v{HR+1}
v_lshlrev_b32 v{HR}, 16, v252
v_and_b32 v{HR+1}, 0xffff0000, v252
v_lshlrev_b32 v253, 3, v{vLANE}
v_add_u32 v253, {L_ZB}, v253
s_mov_b64 exec, {sp(sT4)}
ds_write_b64 v253, {v2(HR)}
s_mov_b64 exec, -1
{Lx}:""")
    a(f"s_mov_b32 s{sT2}, {LOG2E}")
    phi([Q + 2*n for n in range(20)], sT2, 152)
    a.wait(vm=[("c", 0)])
    run_ops(c_reads(0, vXR, 0))
    a.wait(lg="all")
    a("s_barrier")
    stamp(4)
    bg.add(dma_c(1, sXB, 0))
    bg.add(dma_c(4, sCW, 10240))
    H = 152
    for c5 in range(5):
        a.lds(f"ds_read_b64 {v2(H+4*c5)}, v{vEA} offset:{c5*128}", ("hin", c5))
    vTW, vTR0, vTR1, vST, vL16 = vW, vW+1, vW+2, vW+3, vW+4
    a(f"""v_and_b32 v248, 15, v{vLANE}
v_lshrrev_b32 v249, 4, v{vLANE}
v_bfe_u32 v250, v248, 1, 2
v_xor_b32 v250, v250, v249
v_lshlrev_b32 v250, 4, v250
v_lshl_add_u32 v250, v248, 6, v250
s_add_u32 s{sT2}, s{sXB}, 10240
v_add_u32 v{vTW}, s{sT2}, v250
v_bfe_u32 v250, v{vLANE}, 2, 2
v_lshrrev_b32 v251, 1, v249
v_lshl_add_u32 v252, v251, 3, v250
v_lshlrev_b32 v252, 6, v252
v_and_b32 v253, 1, v249
v_lshl_add_u32 v252, v253, 3, v252
v_add_u32 v252, s{sT2}, v252
v_lshrrev_b32 v250, 1, v250
v_and_b32 v254, 3, v{vLANE}
v_xor_b32 v250, v250, v254
v_lshl_add_u32 v{vTR0}, v250, 4, v252
v_xor_b32 v250, 2, v250
v_lshl_add_u32 v{vTR1}, v250, 4, v252
v_add_u32 v{vTR1}, 256, v{vTR1}
v_mul_u32_u24 v253, {RT}, v253
v_lshl_add_u32 v253, v251, 8, v253
v_lshl_add_u32 v{vST}, v248, 4, v253
v_lshlrev_b32 v{vL16}, 4, v{vLANE}
s_lshl_b32 s{sT2}, s{sR}, 3
s_lshl_b32 s{sT3}, s{sWV}, 1
s_add_u32 s{sT2}, s{sT2}, s{sT3}
s_mul_i32 s{sT2}, s{sT2}, {RT}
s_mul_i32 s{sT3}, s{sJ}, 2560
s_add_u32 s{sT2}, s{sT2}, s{sT3}
s_add_u32 s{sT3}, s{sT2}, 20480
s_add_u32 s{sT4}, s{sT2}, 40960
s_add_u32 s{sT5}, s{sT4}, {RT}""")
    for c5 in range(5):
        a.wait(lg=[("hin", c5)])
        h = H + 4*c5; l4 = PT + c5*12 + 8
        a(f"v_mov_b32 v{h+2}, v{h+1}")
        cmul_acc(h+1, h+3, l4, l4+1, h, h+2, ur(c5,3), ui(c5,3))
    bg.tick(1)
    PK = 172
    TRD = 248
    def fix(c5):
        h = H + 4*c5
        for i in range(4):
            l = PT + c5*12 + 2 + 2*i
            a(f"""v_pk_fma_f32 {v2(ur(c5,i))}, {v2(h)}, {v2(l)}, {v2(ur(c5,i))} {LO}
v_pk_fma_f32 {v2(ui(c5,i))}, {v2(h+2)}, {v2(l)}, {v2(ui(c5,i))} {LO}""")
        for i in range(4):
            l = PT + c5*12 + 2 + 2*i
            a(f"""v_pk_fma_f32 {v2(ur(c5,i))}, {v2(h+2)}, {v2(l)}, {v2(ur(c5,i))} {HI} {NEG}
v_pk_fma_f32 {v2(ui(c5,i))}, {v2(h)}, {v2(l)}, {v2(ui(c5,i))} {HI}""")
        for part in range(2):
            src = U + (2*c5 + part)*8
            pk = PK + 4*part
            for q in range(4): a(f"v_cvt_pk_bf16_f32 v{pk+q}, v{src+2*q}, v{src+2*q+1}")
            a.lds(f"ds_write_b128 v{vTW}, {v4(pk)} offset:{((c5%3)*2+part)*1024}", ("tw", c5))
    def trd(c5):
        for part in range(2):
            for hh in range(2):
                a.lds(f"ds_read_b64_tr_b16 {v2(U + (2*c5+part)*8 + 2*hh)}, v{vTR0+hh} offset:{((c5%3)*2+part)*1024}", ("tr", c5))
    def tst(c5):
        a.wait(lg=[("tr", c5)])
        for part in range(2):
            a.vmem(f"buffer_store_dwordx4 {v4(U + (2*c5+part)*8)}, v{vST}, {srd(SWS)}, s{sT2 if part == 0 else sT3} offen offset:{c5*512} sc1", "ast")
    for c5 in range(5):
        fix(c5)
        trd(c5)
        if c5 > 0: tst(c5-1)
        bg.tick(2)
    Z = 184
    a(f"""v_lshrrev_b32 v248, 4, v{vLANE}
v_mul_u32_u24 v248, 80, v248
v_add_u32 v248, {L_ZB}, v248""")
    for q in range(5): a.lds(f"ds_read_b128 {v4(Z+4*q)}, v248 offset:{16*q}", "zr")
    tst(4)
    a.wait(lg="all")
    DN = 204
    for m in range(2):
        d = DN + 2*m
        for Tt in range(5):
            for q in range(2):
                r = Q + Tt*8 + m*4 + 2*q; z = Z + Tt*4 + 2*q
                if Tt == 0 and q == 0: a(f"v_pk_mul_f32 {v2(d)}, {v2(r)}, {v2(z)}")
                else: a(f"v_pk_fma_f32 {v2(d)}, {v2(r)}, {v2(z)}, {v2(d)}")
        bg.tick(2)
    for m in range(2):
        d = DN + 2*m
        a(f"v_add_f32 v{d}, v{d}, v{d+1}\nv_add_f32 v{d}, 0x358637bd, v{d}\nv_rcp_f32 v{d}, v{d}")
    WP = 208
    for m in range(2):
        d = DN + 2*m
        for Tt in range(5):
            for q in range(2):
                r = Q + Tt*8 + m*4 + 2*q
                a(f"v_pk_mul_f32 {v2(r)}, {v2(r)}, {v2(d)} op_sel_hi:[1,0]")
        for Tt in range(5):
            for q in range(2):
                r = Q + Tt*8 + m*4 + 2*q
                dst = (WP + m*8 + Tt*2 + q) if Tt < 4 else (224 + m*2 + q)
                a(f"v_cvt_pk_bf16_f32 v{dst}, v{r}, v{r+1}")
        for hf in range(2):
            a.vmem(f"buffer_store_dwordx4 {v4(WP + m*8 + hf*4)}, v{vL16}, {srd(SWS)}, s{sT4 if m == 0 else sT5} offen offset:{hf*1024} sc1", "ast")
        bg.tick(2)
    a("v_permlane16_swap_b32 v224, v226\nv_permlane16_swap_b32 v225, v227")
    a.vmem(f"buffer_store_dwordx4 v[224:227], v{vST}, {srd(SWS)}, s{sT4} offen offset:2048 sc1", "ast")
    bg.flush()
    stamp(5)
    a.wait(vm="all")
    a("s_barrier")
    a(f"""s_lshl_b32 s{sT0}, s{sJ}, 4
s_add_u32 s{sT0}, s{sT0}, s{sR}
s_lshl_b32 s{sT0}, s{sT0}, 7
s_add_u32 s{sT0}, s{sT0}, {FB}
s_cmp_lg_u32 s{sWV}, 0
s_cbranch_scc1 LB_nf
v_mov_b32 v248, s{sT0}
v_mov_b32 v249, s{sTAG}
s_mov_b64 exec, 1""")
    a.vmem(f"buffer_store_dword v249, v248, {srd(SWS)}, 0 offen sc1", "fl", certain=False)
    a("s_mov_b64 exec, -1\nLB_nf:")
    stamp(6)
    run_ops(c_reads(1, vXR, 0))
    a.wait(lg="all")
    run_ops(dma_c(2, sXB, 0))
    run_ops(c_reads(3, vCR, 0))
    a.wait(lg="all")
    run_ops(c_reads(4, vCR, 10240))
    a.wait(vm="all", lg="all")
    run_ops(c_reads(2, vXR, 0))
    a.wait(lg="all")

def k2():
    a("LK2:")
    a.vm = []; a.lg = []
    AH, AB = 32, 112
    STG = [192 + 4*i for i in range(16)]
    vA = 2
    vM = 6
    vG = 11
    vFX = 16
    mk_srd(SOUT, pOUT, 2048*2560)
    a(f"v_lshlrev_b32 v{vA}, 4, v{vLANE}")
    for mt in range(1, 4): a(f"v_add_u32 v{vA+mt}, {mt*RT}, v{vA}")
    a(f"v_mov_b32 v{vM}, v{vA}")
    for nt in range(1, 5): a(f"v_add_u32 v{vM+nt}, {nt*20480}, v{vA}")
    a(f"s_mul_i32 s{sT0}, s{sRB}, {4*RT}\ns_mul_i32 s{sT1}, s{sCT}, {5*20480}\ns_add_u32 s{sT1}, s{sT1}, {WS_M}")
    for i in range(5):
        a(f"""s_lshl_b32 s{sT2}, s{sLC+i}, 11
s_add_u32 s{sKA+i}, s{sT0}, s{sT2}
s_lshl_b32 s{sT2}, s{sLC+i}, 10
s_add_u32 s{sKA+5+i}, s{sT0}, s{sT2}
s_add_u32 s{sKA+5+i}, s{sKA+5+i}, 40960
s_add_u32 s{sKQ+i}, s{sT1}, s{sT2}""")
    a(f"""s_lshl_b32 s{sT2}, s{sRB}, 2
s_add_u32 s{sT2}, s{sT2}, s{sWV}
s_lshr_b32 s{sT3}, s{sT2}, 1
s_lshl_b32 s{sT3}, s{sT3}, 5
s_and_b32 s{sT4}, s{sT2}, 1
s_lshl_b32 s{sT4}, s{sT4}, 1
s_add_u32 s{sT3}, s{sT3}, s{sT4}
s_mul_i32 s{sT4}, s{sCT}, 160
s_lshl_b32 s{sT2}, s{sT2}, 6
s_add_u32 s{sT2}, s{sT2}, {WS_G}
s_mul_i32 s{sT5}, s{sWV}, {16*336}""")
    mk_srd(SW, pDSK, 1280)
    FO, FL, FG = 240, 245, 250
    FD = 112
    for n in range(5):
        a(f"""v_add_u32 v192, {64*n}, v{vLANE}
v_mul_u32_u24 v193, 3277, v192
v_lshrrev_b32 v193, 16, v193
v_mul_u32_u24 v194, 20, v193
v_sub_u32 v194, v192, v194
v_lshrrev_b32 v195, 2, v193
v_lshlrev_b32 v195, 3, v195
v_bfe_u32 v196, v193, 1, 1
v_add_u32 v195, v195, v196
v_and_b32 v196, 1, v193
v_lshl_add_u32 v195, v196, 2, v195
v_add_u32 v195, s{sT3}, v195
v_mul_u32_u24 v195, 1280, v195
v_lshl_add_u32 v196, v194, 3, s{sT4}
v_add_u32 v195, v195, v196""")
        a.vmem(f"buffer_load_dwordx2 {v2(vFX+2*n)}, v195, {srd(SX)}, 0 offen", "fx")
        a.vmem(f"buffer_load_dwordx2 {v2(FD+2*n)}, v196, {srd(SW)}, 0 offen", "fx")
        a(f"""v_lshlrev_b32 v195, 1, v195
v_accvgpr_write_b32 a{FO+n}, v195
v_mul_u32_u24 v195, 336, v193
v_lshl_add_u32 v195, v194, 4, v195
v_add_u32 v195, s{sT5}, v195
v_accvgpr_write_b32 a{FL+n}, v195
v_lshl_add_u32 v195, v193, 2, s{sT2}
v_accvgpr_write_b32 a{FG+n}, v195""")
    a.wait(vm="all")
    for n in range(10):
        a(f"""v_lshlrev_b32 v192, 16, v{vFX+n}
v_and_b32 v193, 0xffff0000, v{vFX+n}
v_lshlrev_b32 v194, 16, v{FD+n}
v_and_b32 v195, 0xffff0000, v{FD+n}
v_pk_mul_f32 v[192:193], v[192:193], v[194:195]
v_cvt_pk_bf16_f32 v{vFX+n}, v192, v193""")
    a(f"""s_lshr_b32 s{sT2}, s{sRB}, 1
s_lshl_b32 s{sT2}, s{sT2}, 7
s_add_u32 s{sT2}, s{sT2}, {FB}
v_lshl_add_u32 v26, v{vLANE}, 11, s{sT2}
s_lshl_b32 s{sT2}, s{sCT}, 8
s_add_u32 s{sT2}, s{sT2}, {FM}
v_lshrrev_b32 v27, 1, v{vLANE}
v_lshl_add_u32 v27, v27, 11, s{sT2}
v_and_b32 v28, 1, v{vLANE}
v_lshl_add_u32 v27, v28, 7, v27
v_and_b32 v29, 15, v{vLANE}
v_lshlrev_b32 v29, 2, v29
s_lshl_b32 s{sM0}, s{sRB}, 8
s_add_u32 s{sM0}, s{sM0}, {WS_G}""")
    stamp(7)
    a(f"s_cmp_lg_u32 s{sWV}, 0\ns_cbranch_scc1 LK_np")
    poll(26, 28, "0xff", "fb")
    a("LK_np:\ns_barrier")
    stamp(8)
    steps = [("h", i, ks) for i in range(5) for ks in range(2)] + [("w", i, 0) for i in range(5)]
    MH = [120, 140, 160, 180, 200]
    def issueA(n):
        kind, i, ks = steps[n]
        for mt in range(4):
            r = STG[(n % 4)*4 + mt]
            if kind == "h": a.vmem(f"buffer_load_dwordx4 {v4(r)}, v{vA+mt}, {srd(SWS)}, s{sKA+i} offen offset:{ks*1024} sc1", ("A", n))
            else: a.vmem(f"buffer_load_dwordx4 {v4(r)}, v{vA+mt}, {srd(SWS)}, s{sKA+5+i} offen sc1", ("A", n))
    def issueM(i):
        for nt in range(5):
            a.vmem(f"buffer_load_dwordx4 {a4(MH[i] + 4*nt)}, v{vM+nt}, {srd(SWS)}, s{sKQ+i} offen sc1", ("M", i))
    for n in range(4): issueA(n)
    for n in range(15):
        kind, i, ks = steps[n]
        if n == 5:
            poll(27, 28, "0xffff", "fm")
            a.vm = []
            for mt in range(4):
                a.vmem(f"buffer_load_dword v{vG+mt}, v29, {srd(SWS)}, s{sM0} offen offset:{mt*64} sc1", "g")
            for q in range(5):
                a(f"v_accvgpr_read_b32 v28, a{FG+q}")
                a.vmem(f"buffer_load_dword a{FG+q}, v28, {srd(SWS)}, 0 offen sc1", "g")
        a.wait(vm=[("A", n)] + ([("M", i)] if kind == "w" else []))
        for mt in range(4):
            for nt in range(5):
                base = AH if kind == "h" else AB
                d = base + (mt*5 + nt)*4
                first = (n == 0) or (n == 10)
                fa = a4(CHOME[i] + (ks*5+nt)*4) if kind == "h" else a4(MH[i] + 4*nt)
                mfma(v4(d), fa, v4(STG[(n % 4)*4 + mt]), "0" if first else v4(d))
        if n + 4 < 15:
            if n + 4 >= 10: issueM(n + 4 - 10)
            issueA(n + 4)
    stamp(9)
    a(f"""s_cmp_lg_u32 s2, 255
s_cbranch_scc1 LK_ne
s_cmp_lg_u32 s{sWV}, 0
s_cbranch_scc1 LK_ne
v_mov_b32 v26, {WS_EPOCH}
v_mov_b32 v27, s{sTAG}
s_mov_b64 exec, 1
buffer_store_dword v27, v26, {srd(SWS)}, 0 offen sc1
s_mov_b64 exec, -1
LK_ne:""")
    a(f"""v_and_b32 v26, 15, v{vLANE}
v_lshrrev_b32 v27, 4, v{vLANE}
v_mul_u32_u24 v26, 336, v26
v_lshl_add_u32 v26, v27, 4, v26
s_mul_i32 s{sT2}, s{sWV}, {64*336}
v_add_u32 v26, s{sT2}, v26""")
    for mt in range(4):
        g = 192 + 2*mt
        a(f"""v_mov_b32 v{g}, v{vG+mt}
v_sub_f32 v{g+1}, 1.0, v{vG+mt}
v_cvt_pk_bf16_f32 v{g+1}, v{g+1}, v{g+1}
v_lshlrev_b32 v{g+1}, 16, v{g+1}""")
    for mt in range(4):
        g = 192 + 2*mt
        for nt in range(5):
            h = AH + (mt*5+nt)*4; b = AB + (mt*5+nt)*4
            for q in (0, 2):
                a(f"v_pk_mul_f32 {v2(h+q)}, {v2(h+q)}, {v2(g)} op_sel_hi:[1,0]")
            for q in (0, 2):
                a(f"v_pk_fma_f32 {v2(h+q)}, {v2(b+q)}, {v2(g)}, {v2(h+q)} op_sel:[0,1,0] op_sel_hi:[1,1,1]")
            a.lds(f"ds_write_b128 v26, {v4(h)} offset:{mt*16*336 + nt*64}", "red")
    a.wait(lg="all")
    a("s_barrier")
    R = 32
    for n in range(5):
        a(f"v_accvgpr_read_b32 v{200+n}, a{FL+n}")
    for n in range(5):
        for w in range(4):
            a.lds(f"ds_read_b128 {v4(R + (n*4+w)*4)}, v{200+n} offset:{w*64*336}", ("rr", n))
        if n == 2: a.wait(lg=[("rr", 0)])
    for n in range(5):
        a(f"""v_accvgpr_read_b32 v206, a{FG+n}
v_accvgpr_read_b32 v{210+n}, a{FO+n}
v_lshlrev_b32 v216, 16, v{vFX+2*n}
v_and_b32 v217, 0xffff0000, v{vFX+2*n}
v_lshlrev_b32 v218, 16, v{vFX+2*n+1}
v_and_b32 v219, 0xffff0000, v{vFX+2*n+1}""")
        a.wait(lg=[("rr", n)])
        r = R + n*16
        a(f"""v_pk_add_f32 {v2(r)}, {v2(r)}, {v2(r+4)}
v_pk_add_f32 {v2(r+2)}, {v2(r+2)}, {v2(r+6)}
v_pk_add_f32 {v2(r+8)}, {v2(r+8)}, {v2(r+12)}
v_pk_add_f32 {v2(r+10)}, {v2(r+10)}, {v2(r+14)}
v_pk_fma_f32 {v2(r)}, v[216:217], v[206:207], {v2(r)} op_sel_hi:[1,0,1]
v_pk_fma_f32 {v2(r+2)}, v[218:219], v[206:207], {v2(r+2)} op_sel_hi:[1,0,1]
v_pk_add_f32 {v2(r)}, {v2(r)}, {v2(r+8)}
v_pk_add_f32 {v2(r+2)}, {v2(r+2)}, {v2(r+10)}""")
        a.vmem(f"buffer_store_dwordx4 {v4(r)}, v{210+n}, {srd(SOUT)}, 0 offen", "ost")
    stamp(10)
    a("Lend:\ns_endpgm\nLcode_end:\n.fill 320, 4, 0xbf800000")

prologue()
type_A()
type_B()
k2()
body = a.text()
hdr = open("gated_mix__ssm_conv_s5__linear_attn_block__prompt.s.ref").read().split("; Override launch")[0]
src = hdr + f"; @launch grid=(256,1,1) block=(256,1,1) lds={LDS_BYTES}\n" + HEADER + kernel_begin(NAME) + body + kernel_desc(NAME, 512, 102, 256)
out = sys.argv[1] if len(sys.argv) > 1 else "k.s"
open(out, "w").write(src)
print("written", out, "nops inserted:", a.nnop, "lines", src.count("\n"))
```

```python
import sys, os
sys.path.insert(0, "work")
from asmlib import *

STAMPS = int(os.environ.get("STAMPS", "0"))
NODMA = int(os.environ.get("NODMA", "0"))
NOMFMA = int(os.environ.get("NOMFMA", "0"))
NOREAD = int(os.environ.get("NOREAD", "0"))
LOOKA = int(os.environ.get("LOOK", "5"))

WS_A = 0
WS_M = 0x800000
WS_KVP = 0x900000
WS_ZP = 0xA00000
WS_SP = 0xA40000
WS_G = 0xA80000
WS_FL = 0xA90000
FKV, FM, FB = WS_FL, WS_FL + 0x4000, WS_FL + 0x8000
WS_EPOCH = 0xAC0000
WS_SIZE = 0xAD0000
WS_STAMP = 0xC000000
OOB = 0x40000000
RT = 61440
L_W = 65536
L_SCR = 147456
L_PT = L_SCR
L_LT = L_SCR + 3840
L_ZB = L_LT + 10240
L_HB = L_ZB + 320
L_EB = 0
L_GW = L_SCR
L_WO = L_SCR + 2048
L_KVB = L_WO + 7168
LDS_BYTES = 163840
sWV, sR, sJ, sTAG, sT0 = 3, 4, 5, 6, 7
SX, SW, SQ, SWS, SOUT = 8, 12, 16, 20, 24
sRB, sCT, sOFF, sT1 = 28, 29, 30, 31
pX, pLRE, pLIM, pBRE, pBIM, pCRE, pCIM, pLDT, pDSK, pBX, pQKV, pWO, pGW, pOUT, pDBG, pWS = range(32, 64, 2)
sKA = 64
sKQ = 74
sLC = 84
sXB, sWB, sCW = 89, 90, 91
sT2, sT3, sT4, sT5 = 92, 93, 94, 95
sSPIN = 96
sJL = 101
sST = 98
sM0, sM1 = 50, 51
vTID, vLANE = 0, 1
vX = 2
vW = 6
vQ = 11
vXR = 16
vWR = 18
vT40 = 22
vC = 26
vCR = 30
ACC = 32

def srd(n): return f"s[{n}:{n+3}]"
def sp(n): return f"s[{n}:{n+1}]"
def v4(n): return f"v[{n}:{n+3}]"
def v2(n): return f"v[{n}:{n+1}]"
def a4(n): return f"a[{n}:{n+3}]"

a = Asm()
nstamp = [0]
def stamp(idx, existing=False):
    if not STAMPS: return
    if not existing: a(f"s_memrealtime {sp(sST)}\ns_memtime s[96:97]")
    a(f"""s_lshl_b32 s100, s2, 2
s_add_u32 s100, s100, s{sWV}
s_lshl_b32 s100, s100, 8
s_add_u32 s100, s100, {idx*16}
s_waitcnt lgkmcnt(0)
v_mov_b32 v252, s{sST}
v_mov_b32 v253, s{sST+1}
v_mov_b32 v254, s96
v_mov_b32 v255, s97
v_mov_b32 v251, s100
s_add_u32 s{sST}, s{pWS}, {WS_STAMP}
s_addc_u32 s{sST+1}, s{pWS+1}, 0""")
    a.lg = []
    a.vmem(f"global_store_dwordx4 v251, v[252:255], {sp(sST)}", "stamp")

def mfma(d, A, B, C):
    a(f"v_mfma_f32_16x16x32_bf16 {d}, {A}, {B}, {C}")

def mk_srd(n, ptr, size):
    a(f"s_mov_b32 s{n}, s{ptr}\ns_and_b32 s{n+1}, s{ptr+1}, 0xffff\ns_mov_b32 s{n+2}, {size}\ns_mov_b32 s{n+3}, 0x20000")

def poll(vaddr, vtmp, execmask, name):
    L = a.label("Lpoll"); E = a.label("Lpolle")
    a(f"s_mov_b64 exec, {execmask}\ns_mov_b32 s{sSPIN}, 0\n{L}:")
    a(f"buffer_load_dword v{vtmp}, v{vaddr}, {srd(SWS)}, 0 offen sc1")
    a(f"""s_add_u32 s{sSPIN}, s{sSPIN}, 1
s_waitcnt vmcnt(0)
v_cmp_ne_u32 vcc, s{sTAG}, v{vtmp}
s_cmp_gt_u32 s{sSPIN}, 0x20000
s_cbranch_scc1 {E}
s_cbranch_vccnz {L}
{E}:
s_mov_b64 exec, -1""")

def wq_pattern(dst, sadd):
    for i in range(5):
        a(f"""v_add_u32 v52, {64*i}, v{vLANE}
v_mul_u32_u24 v53, 6554, v52
v_lshrrev_b32 v53, 16, v53
v_mul_u32_u24 v54, 10, v53
v_sub_u32 v54, v52, v54
v_lshrrev_b32 v55, 1, v53
v_and_b32 v55, 4, v55
v_xor_b32 v53, v53, v55
v_mul_u32_u24 v53, 3840, v53
v_lshl_add_u32 v54, v54, 4, s{sadd}""")
        if i & 3: a(f"v_subrev_u32 v53, {(i&3)*1024}, v53")
        a(f"v_add_u32 v{dst+i}, v53, v54")

def prologue():
    if STAMPS: a(f"s_memrealtime {sp(sST)}\ns_memtime s[96:97]")
    a(f"""s_cmp_ge_u32 s2, 256
s_cbranch_scc1 Lend
s_load_dwordx16 s[32:47], s[0:1], 0
s_load_dwordx16 s[48:63], s[0:1], 64
v_and_b32 v{vLANE}, 63, v0
v_lshrrev_b32 v32, 6, v0
s_and_b32 s{sT0}, s2, 7
s_lshr_b32 s{sT1}, s2, 3
v_readfirstlane_b32 s{sWV}, v32""")
    a(f"""s_getpc_b64 s[92:93]
Lpc:
s_lshl_b32 s{sT4}, s{sWV}, 5
s_add_u32 s{sT4}, s{sT4}, s{sT1}
s_lshl_b32 s{sT4}, s{sT4}, 10
s_cmp_ge_u32 s{sT4}, Lcode_end-Lpc
s_cbranch_scc1 Lnopf
v_lshl_add_u32 v33, v{vLANE}, 4, s{sT4}""")
    a.vmem(f"global_load_dwordx4 v[36:39], v33, s[92:93]", "pf", certain=False)
    a("Lnopf:")
    a(f"""s_lshr_b32 s{sR}, s{sT0}, 2
s_lshl_b32 s{sR}, s{sR}, 3
s_and_b32 s{sCT}, s{sT1}, 7
s_add_u32 s{sR}, s{sR}, s{sCT}
s_lshr_b32 s{sJL}, s{sT1}, 3
s_and_b32 s{sJ}, s{sT0}, 3
s_lshl_b32 s{sJ}, s{sJ}, 1
s_and_b32 s{sT3}, s{sJL}, 1
s_add_u32 s{sJ}, s{sJ}, s{sT3}
s_lshl_b32 s{sRB}, s{sT0}, 2
s_add_u32 s{sRB}, s{sRB}, s{sJL}
s_lshr_b32 s{sT2}, s{sCT}, 2
s_add_u32 s{sT2}, s{sT2}, s{sCT}
s_mul_i32 s{sT3}, s{sJL}, 5
s_add_u32 s{sT3}, s{sT3}, 1
s_lshr_b32 s{sT3}, s{sT3}, 1
s_add_u32 s{sT2}, s{sT2}, s{sT3}
s_sub_u32 s{sT3}, s{sT2}, 10
s_cmp_ge_u32 s{sT2}, 10
s_cselect_b32 s{sT2}, s{sT3}, s{sT2}
s_lshl_b32 s{sKA}, s{sT2}, 7
s_add_u32 s{sKA+1}, s{sKA}, 128
s_cmp_eq_u32 s{sKA+1}, 1280
s_cselect_b32 s{sKA+1}, 0, s{sKA+1}
s_lshl_b32 s{sXB}, s{sWV}, 14
s_mul_i32 s{sWB}, s{sWV}, 5120
s_add_u32 s{sWB}, s{sWB}, {L_W}""")
    a(f"""v_lshrrev_b32 v40, 3, v{vLANE}
v_and_b32 v41, 7, v{vLANE}
v_lshrrev_b32 v43, 1, v40
v_xor_b32 v41, v41, v43
v_lshlrev_b32 v41, 4, v41
v_lshrrev_b32 v42, 2, v40
v_lshlrev_b32 v42, 3, v42
v_and_b32 v43, 1, v43
v_add_u32 v42, v42, v43
v_and_b32 v43, 1, v40
v_lshl_add_u32 v42, v43, 2, v42
s_lshl_b32 s{sT2}, s{sR}, 7
s_lshl_b32 s{sT3}, s{sWV}, 5
s_add_u32 s{sT2}, s{sT2}, s{sT3}
v_add_u32 v42, s{sT2}, v42
v_mul_u32_u24 v42, 1280, v42
v_add_u32 v{vX}, v42, v41
v_xor_b32 v44, 64, v41
v_add_u32 v{vX+1}, v42, v44
v_add_u32 v{vX+1}, {16*1280-1024}, v{vX+1}
v_add_u32 v{vX+2}, 512, v{vX}
v_add_u32 v{vX+3}, 512, v{vX+1}
v_mul_u32_u24 v43, 1280, v40
v_add_u32 v45, v43, v41
v_add_u32 v46, v43, v44
s_mov_b32 s{SX+2}, {2048*1280}
s_mov_b32 s{SX+3}, 0x20000
s_mov_b32 s{SW+2}, {640*1280}
s_mov_b32 s{SW+3}, 0x20000
s_mov_b32 s{SQ+2}, {640*3840}
s_mov_b32 s{SQ+3}, 0x20000
s_cmp_lt_u32 s{sJL}, 2
s_cbranch_scc1 LtypeB""")

def args_ready():
    a("s_waitcnt lgkmcnt(0)")
    stamp(11, True)
    stamp(12)
    a(f"s_mov_b32 s{SX}, s{pX}\ns_and_b32 s{SX+1}, s{pX+1}, 0xffff")

def late_setup():
    mk_srd(SWS, pWS, WS_SIZE)
    a(f"""s_add_u32 s{sT2}, s{pWS}, {WS_EPOCH}
s_addc_u32 s{sT3}, s{pWS+1}, 0
s_load_dword s{sTAG}, s[{sT2}:{sT3}], 0""")
    for s in range(2, 10):
        a(f"s_add_u32 s{sKA+s}, s{sKA+s-1}, 128\ns_cmp_eq_u32 s{sKA+s}, 1280\ns_cselect_b32 s{sKA+s}, 0, s{sKA+s}")
    for s in range(2, 10):
        a(f"s_mul_i32 s{sKQ+s}, s{sKA+s}, 1920")
    a(f"""s_lshl_b32 s{sOFF}, s{sJL}, 1
s_add_u32 s{sOFF}, s{sOFF}, s{sCT}
s_sub_u32 s{sT3}, s{sOFF}, 10
s_cmp_ge_u32 s{sOFF}, 10
s_cselect_b32 s{sOFF}, s{sT3}, s{sOFF}
s_sub_u32 s{sT3}, s{sOFF}, 5
s_cmp_ge_u32 s{sOFF}, 5
s_cselect_b32 s{sOFF}, s{sT3}, s{sOFF}
s_mul_i32 s{sT2}, s{sWV}, 5
s_add_u32 s{sT2}, s{sT2}, s{sOFF}""")
    for i in range(5):
        a(f"s_add_u32 s{sLC+i}, s{sT2}, {i}\ns_sub_u32 s{sT3}, s{sLC+i}, 20\ns_cmp_ge_u32 s{sLC+i}, 20\ns_cselect_b32 s{sLC+i}, s{sT3}, s{sLC+i}")
    a(f"""s_mul_i32 s{sCW}, s{sWV}, 20480
s_add_u32 s{sCW}, s{sCW}, {L_W}""")
    a(f"""v_and_b32 v52, 15, v{vLANE}
v_lshrrev_b32 v53, 4, v{vLANE}
v_lshrrev_b32 v54, 1, v52
v_xor_b32 v54, v54, v53
v_lshlrev_b32 v54, 4, v54
v_lshl_add_u32 v56, v52, 7, v54
v_xor_b32 v57, 64, v56
v_add_u32 v{vXR}, s{sXB}, v56
v_add_u32 v{vXR+1}, s{sXB}, v57
v_add_u32 v{vCR}, s{sCW}, v56
v_add_u32 v{vCR+1}, s{sCW}, v57""")
    a(f"""v_bfe_u32 v54, v{vLANE}, 2, 2
v_lshl_add_u32 v54, v53, 3, v54
v_and_b32 v55, 1, v53
v_lshlrev_b32 v55, 2, v55
v_add_u32 v58, v54, v55
v_xor_b32 v55, 4, v55
v_add_u32 v59, v54, v55
v_mul_u32_u24 v58, 160, v58
v_mul_u32_u24 v59, 160, v59
v_and_b32 v60, 3, v{vLANE}
v_mul_u32_u24 v61, 40, v60
v_add_u32 v62, v58, v61
v_add_u32 v63, v59, v61
v_add_u32 v{vT40}, {L_W}, v62
v_add_u32 v{vT40+1}, {L_W}, v63
v_add_u32 v{vT40+2}, {L_W+40960}, v62
v_add_u32 v{vT40+3}, {L_W+40960}, v63""")
    a(f"""s_mul_i32 s{sT2}, s{sCT}, {80*1280}
v_add_u32 v{vC}, s{sT2}, v45
v_add_u32 v{vC+1}, s{sT2}, v46
v_add_u32 v{vC+1}, {10240-1024}, v{vC+1}
v_add_u32 v{vC+2}, {2*(10240-1024)}, v{vC}
v_add_u32 v{vC+3}, {2*(10240-1024)}, v{vC+1}""")

def tag_ready():
    a(f"""s_waitcnt lgkmcnt(0)
s_add_u32 s{sTAG}, s{sTAG}, 0x9e3779b1""")
    a.lg = []

def set_flag(base, lab, vt):
    a(f"""s_cmp_lg_u32 s{sWV}, 0
s_cbranch_scc1 {lab}
s_lshl_b32 s{sT0}, s{sJ}, 4
s_add_u32 s{sT0}, s{sT0}, s{sR}
s_lshl_b32 s{sT0}, s{sT0}, 7
s_add_u32 s{sT0}, s{sT0}, {base}
v_mov_b32 v{vt}, s{sT0}
v_mov_b32 v{vt+1}, s{sTAG}
s_mov_b64 exec, 1""")
    a.vmem(f"buffer_store_dword v{vt+1}, v{vt}, {srd(SWS)}, 0 offen sc1", "fl", certain=False)
    a(f"s_mov_b64 exec, -1\n{lab}:")

def pk_cmul_acc(d, l, p, acc):
    a(f"""v_pk_fma_f32 {v2(d)}, {v2(p)}, {v2(l)}, {v2(acc)} op_sel_hi:[1,0,1]
v_pk_fma_f32 {v2(d)}, {v2(p)}, {v2(l)}, {v2(d)} op_sel:[1,1,0] op_sel_hi:[0,1,1] neg_lo:[0,1,0]""")

def dma_x(s):
    ops = []
    def m0(): a(f"s_add_u32 m0, s{sXB}, {(s%4)*4096}")
    ops.append(("s", m0))
    for i in range(4):
        def f(i=i): a.vmem(f"buffer_load_dwordx4 v{vX+i}, {srd(SX)}, s{sKA+s} offen offset:{i*1024} lds", ("st", s))
        ops.append(("d", f))
    return ops
def dma_w(s, vaddr, rsrc, soff):
    ops = []
    def m0(): a(f"s_add_u32 m0, s{sWB}, {(s%4)*20480}")
    ops.append(("s", m0))
    for i in range(4):
        def f(i=i): a.vmem(f"buffer_load_dwordx4 v{vaddr+i}, {srd(rsrc)}, s{soff} offen offset:{i*1024} lds", ("st", s))
        ops.append(("d", f))
    def m1(): a(f"s_add_u32 m0, s{sWB}, {(s%4)*20480+4096}")
    ops.append(("s", m1))
    def g(): a.vmem(f"buffer_load_dwordx4 v{vaddr+4}, {srd(rsrc)}, s{soff} offen lds", ("st", s))
    ops.append(("d", g))
    return ops
def dma_c(slot, sbase, ldsoff):
    ops = []
    def setup():
        a(f"""s_cmp_ge_u32 s{sLC+slot}, 10
s_cselect_b32 s{SW}, s{pCIM}, s{pCRE}
s_cselect_b32 s{SW+1}, s{pCIM+1}, s{pCRE+1}
s_cselect_b32 s{sM1}, 1280, 0
s_and_b32 s{SW+1}, s{SW+1}, 0xffff
s_lshl_b32 s{sM0}, s{sLC+slot}, 7
s_sub_u32 s{sM0}, s{sM0}, s{sM1}""")
    ops.append(("s", setup))
    for g in range(3):
        def m0(g=g):
            a(f"s_add_u32 m0, s{sbase}, {ldsoff + g*4096}")
            if g: a(f"s_add_u32 s{sM0}, s{sM0}, 40960")
        ops.append(("s", m0))
        for i in range(4 if g < 2 else 2):
            def f(i=i): a.vmem(f"buffer_load_dwordx4 v{vC+i}, {srd(SW)}, s{sM0} offen offset:{i*1024} lds", ("c", slot))
            ops.append(("d", f))
    return ops
CHOME = [160, 200, 0, 40, 80]
def c_reads(slot, vbase, ldsoff):
    ops = []
    for ks in range(2):
        for nt in range(5):
            def f(ks=ks, nt=nt):
                a.lds(f"ds_read_b128 {a4(CHOME[slot] + (ks*5+nt)*4)}, v{vbase+ks} offset:{ldsoff + nt*2048}", ("cr", slot))
            ops.append(("r", f))
    return ops

class BG:
    def __init__(self): self.q = []; self.keys = {}; self.fast = False
    def add(self, ops, key=None):
        self.q.extend(ops)
        if key is not None: self.keys[key] = ops[-1]
    def require(self, key):
        last = self.keys.get(key)
        while last in self.q:
            print("note: forced flush for", key)
            self.q.pop(0)[1]()
    def tick(self, n=1):
        while n > 0 and self.q:
            k, f = self.q.pop(0)
            f()
            if k != "s": n -= 1
    def tick_s(self):
        while self.q and self.q[0][0] == "s":
            self.q.pop(0)[1]()
    def flush(self):
        while self.q: self.q.pop(0)[1]()

def run_ops(ops):
    for k, f in ops: f()

def gemm_loop(nstage, frags_per_stage, read_frag, mfmas, x_reads, stage_dma, bg, ring, LOOK, hooks, first_stage=0, pre_issued=2):
    F = frags_per_stage
    total = nstage * F
    NR = len(ring)
    def sid(f): return first_stage + f // F, f % F
    def issue(f):
        s, i = sid(f)
        if i == 0:
            bg.require(s)
            a.wait(vm=[("st", s)])
            a("s_barrier")
            d = stage_dma(s + 2)
            if d and s + 2 >= pre_issued and not NODMA: bg.add(d, s + 2)
        xr = x_reads(s)
        if i in xr:
            for e in xr[i]: e()
        if not NOREAD: read_frag(s, i, ring[f % NR])
    for f in range(min(LOOK, total)): issue(f)
    for f in range(total):
        s, i = sid(f)
        if (s, i) in hooks: hooks[(s, i)]()
        if f % 2 == 0:
            f2 = min(f + 1, total - 1)
            s2, i2 = sid(f2)
            a.wait(lg=[("w", s, i), ("w", s2, i2)])
        ms = mfmas(s, i, ring[f % NR])
        if NOMFMA: ms = [lambda: None, lambda: None]
        ms[0]()
        if f + LOOK < total: issue(f + LOOK)
        ms[1]()
        if f % 2 == 0 or bg.fast: bg.tick(1)
        else: bg.tick_s()

LOG2E = 0x3fb8aa3b
def phi(regs, sconst_log2e, tmp, NT=4):
    for n, r in enumerate(regs):
        t = tmp + (n % NT) * 2
        a(f"v_pk_mul_f32 {v2(t)}, {v2(r)}, {sp(sconst_log2e)} op_sel_hi:[1,0]")
        a(f"v_max_f32 v{r}, 0x358637bd, v{r}\nv_max_f32 v{r+1}, 0x358637bd, v{r+1}")
        a(f"v_exp_f32_e64 v{t}, v{t} clamp\nv_exp_f32_e64 v{t+1}, v{t+1} clamp")
        if n > 0:
            rp = regs[n-1]; tp = tmp + ((n-1) % NT) * 2
            a(f"v_pk_add_f32 {v2(rp)}, {v2(rp)}, {v2(tp)}")
    rp = regs[-1]; tp = tmp + ((len(regs)-1) % NT) * 2
    a(f"v_pk_add_f32 {v2(rp)}, {v2(rp)}, {v2(tp)}")

def cmul_acc(dr, di, lr, li, pr, pi, ar, ai):
    a(f"""v_fma_f32 v{dr}, v{lr}, v{pr}, v{ar}
v_fma_f32 v{di}, v{lr}, v{pi}, v{ai}
v_fma_f32 v{dr}, -v{li}, v{pi}, v{dr}
v_fma_f32 v{di}, v{li}, v{pr}, v{di}""")

def c_tail():
    a.wait(vm=[("c", 3)])
    run_ops(c_reads(3, vCR, 0))
    a.wait(lg="all")
    run_ops(dma_c(0, sCW, 0))
    a.wait(vm=[("c", 4)])
    run_ops(c_reads(4, vCR, 10240))
    a.wait(lg="all")
    run_ops(dma_c(1, sCW, 10240))

def type_A():
    bg = BG()
    AK, AG = ACC, ACC + 80
    RING = [128 + 4*i for i in range(8)]
    sZB, sKVB, sGA, sMa, sMb, sMc, sMd, sGB = 34, 35, 36, 37, 38, 39, 40, 41
    sMK = 60
    sGW = 46
    a(f"""s_lshr_b32 s{sT2}, s{sWV}, 1
s_add_u32 s{sT2}, s{sT2}, 1
s_mul_i32 s{sT2}, s{sT2}, 1280
s_mul_i32 s{sT3}, s{sJ}, 160
s_add_u32 s{sT2}, s{sT2}, s{sT3}
s_and_b32 s{sT3}, s{sWV}, 1
s_mul_i32 s{sT3}, s{sT3}, {32*3840}
s_add_u32 s{sT2}, s{sT2}, s{sT3}
s_mul_i32 s{sKQ}, s{sKA}, 1920
s_mul_i32 s{sKQ+1}, s{sKA+1}, 1920""")
    wq_pattern(vW, sT2)
    args_ready()
    a(f"s_mov_b32 s{SQ}, s{pQKV}\ns_and_b32 s{SQ+1}, s{pQKV+1}, 0xffff")
    def stage_dma(s):
        if s >= 10: return None
        return dma_x(s) + dma_w(s, vW, SQ, sKQ + s)
    run_ops(stage_dma(0))
    mk_srd(SW, pGW, 1280)
    a(f"""s_and_b32 s{sT2}, s{sWV}, 1
s_lshl_b32 s{sT2}, s{sT2}, 10
s_add_u32 m0, s{sT2}, {L_GW}
v_lshlrev_b32 v64, 4, v{vLANE}""")
    a.vmem(f"buffer_load_dwordx4 v64, {srd(SW)}, s{sT2} offen lds", ("st", 0))
    late_setup()
    a(f"""v_mov_b32 v68, 0
v_mov_b32 v69, 0
v_mov_b32 v70, 0
v_mov_b32 v71, 0
v_lshlrev_b32 v65, 4, v0
v_add_u32 v65, {L_KVB}, v65
v_cmp_gt_u32 vcc, 164, v0
s_and_saveexec_b64 {sp(sT2)}, vcc""")
    a.lds("ds_write_b128 v65, v[68:71]", "z0")
    a(f"s_mov_b64 exec, {sp(sT2)}")
    vXM = vQ + 1
    a(f"""v_lshlrev_b32 v61, 3, v60
v_add_u32 v62, v58, v61
v_add_u32 v63, v59, v61
v_add_u32 v{vWR}, {L_W}, v62
v_add_u32 v{vWR+1}, {L_W}, v63
v_add_u32 v{vWR+2}, {L_W+40960}, v62
v_add_u32 v{vWR+3}, {L_W+40960}, v63
v_lshrrev_b32 v{vQ}, 4, v{vLANE}
v_lshlrev_b32 v{vQ}, 4, v{vQ}
v_add_u32 v{vQ}, {L_GW}, v{vQ}
s_and_b32 s{sT2}, s{sJ}, 1
s_lshl_b32 s{sT2}, s{sT2}, 11
s_xor_b32 s{sT3}, s{sT2}, 2048
v_add_u32 v{vXM}, s{sT2}, v{vXR}
v_add_u32 v{vXM+1}, s{sT2}, v{vXR+1}
v_add_u32 v{vXM+2}, s{sT3}, v{vXR}
v_add_u32 v{vXM+3}, s{sT3}, v{vXR+1}""")
    run_ops(stage_dma(1))
    mk_srd(SW, pWO, 640*1280)
    a(f"""s_and_b32 s{sT1}, s{sR}, 1
s_mul_i32 s{sT2}, s{sT1}, 40
s_mul_i32 s{sT3}, s{sJ}, 80
s_add_u32 s{sT2}, s{sT2}, s{sT3}
s_mul_i32 s{sT2}, s{sT2}, 1280
s_lshr_b32 s{sT3}, s{sR}, 1
s_mul_i32 s{sT3}, s{sT3}, 160
s_add_u32 s{sT2}, s{sT2}, s{sT3}
s_lshl_b32 s{sT4}, s{sWV}, 10
v_mov_b32 v211, {OOB}""")
    for n in range(2):
        a(f"""v_add_u32 v65, {256*n}, v0
v_mul_u32_u24 v66, 6554, v65
v_lshrrev_b32 v66, 16, v66
v_mul_u32_u24 v67, 10, v66
v_sub_u32 v67, v65, v67
v_mul_u32_u24 v66, 1280, v66
v_lshl_add_u32 v66, v67, 4, v66
v_cmp_gt_u32 vcc, 400, v65
v_cndmask_b32 v66, v211, v66, vcc
s_add_u32 m0, s{sT4}, {L_WO + 4096*n}""")
        if n == 1:
            a(f"s_cmp_eq_u32 s{sWV}, 3\ns_cbranch_scc1 LskipWo")
            a.vmem(f"buffer_load_dwordx4 v66, {srd(SW)}, s{sT2} offen lds", ("st", 1), certain=False)
            a("LskipWo:")
        else:
            a.vmem(f"buffer_load_dwordx4 v66, {srd(SW)}, s{sT2} offen lds", ("st", 1))
    vGS, vZ1, vZ2, vK1, vK2, vK3, vK4 = 212, 213, 214, 215, 216, 217, 218
    vXW, vR0, vR1, vKP, vKB = 219, 220, 221, 222, 223
    vOa0, vOa1, vOb0, vOb1, vOc0, vOc1 = 224, 225, 226, 227, 228, 229
    vWo = 230
    vMS, vMR, vONE, vTG = 234, 235, 236, 237
    ZR = L_KVB + 2560
    def precompute():
        a(f"""v_and_b32 v208, 15, v{vLANE}
v_lshrrev_b32 v209, 4, v{vLANE}
v_lshrrev_b32 v210, 2, v208
v_lshlrev_b32 v{vGS}, 4, v209
v_cmp_eq_u32 vcc, 0, v208
v_cndmask_b32 v{vGS}, v211, v{vGS}, vcc
s_lshl_b32 s{sGB}, s{sR}, 3
s_add_u32 s{sGB}, s{sGB}, s{sJ}
s_lshl_b32 s{sGB}, s{sGB}, 6
s_add_u32 s{sGB}, s{sGB}, {WS_G}
v_cmp_eq_u32 {sp(sMK)}, s{sWV}, v210
v_cmp_eq_u32 {sp(sT4)}, s{sWV}, v209
s_add_u32 s{sT2}, s{sWV}, 1
s_and_b32 s{sT2}, s{sT2}, 3
v_cmp_eq_u32 vcc, s{sT2}, v209
v_lshlrev_b32 v{vZ1}, 2, v208
v_and_b32 v240, 3, v208
v_add_u32 v241, 16, v240
v_lshlrev_b32 v{vZ2}, 2, v241
v_cndmask_b32 v{vZ1}, v211, v{vZ1}, vcc
v_cndmask_b32 v{vZ2}, v211, v{vZ2}, vcc
v_cndmask_b32 v{vZ2}, v211, v{vZ2}, {sp(sMK)}
s_lshl_b32 s{sT2}, s{sJ}, 4
s_add_u32 s{sT2}, s{sT2}, s{sR}
s_mul_i32 s{sZB}, s{sT2}, 320
s_mul_i32 s{sT3}, s{sWV}, 80
s_add_u32 s{sZB}, s{sZB}, s{sT3}
s_add_u32 s{sZB}, s{sZB}, {WS_ZP}
v_mul_u32_u24 v242, 320, v209
v_lshl_add_u32 v{vK1}, v208, 4, v242
v_lshlrev_b32 v{vK2}, 4, v208
v_cndmask_b32 v{vK2}, v211, v{vK2}, {sp(sT4)}
v_lshl_add_u32 v{vK3}, v241, 4, v242
v_cndmask_b32 v{vK3}, v211, v{vK3}, {sp(sMK)}
v_lshlrev_b32 v{vK4}, 4, v241
v_cndmask_b32 v{vK4}, v211, v{vK4}, {sp(sMK)}
v_cndmask_b32 v{vK4}, v211, v{vK4}, {sp(sT4)}
s_mul_i32 s{sKVB}, s{sT2}, 6400
s_mul_i32 s{sT3}, s{sWV}, 1600
s_add_u32 s{sKVB}, s{sKVB}, s{sT3}
s_add_u32 s{sKVB}, s{sKVB}, {WS_KVP}
v_lshlrev_b32 v{vR0}, 4, v{vLANE}
v_add_u32 v{vXW}, s{sXB}, v{vR0}
s_lshl_b32 s{sT2}, s{sWV}, 10
v_add_u32 v{vR1}, s{sT2}, v{vR0}
v_lshlrev_b32 v{vKP}, 4, v0
v_cmp_gt_u32 vcc, 200, v0
v_cndmask_b32 v{vKP}, v211, v{vKP}, vcc
s_mul_i32 s{sGA}, s{sJ}, {16*6400}
s_and_b32 s{sT1}, s{sR}, 1
s_mul_i32 s{sT2}, s{sT1}, 3200
s_add_u32 s{sGA}, s{sGA}, s{sT2}
s_add_u32 s{sGA}, s{sGA}, {WS_KVP}""")
        a(f"""v_cmp_le_u32 vcc, 100, v0
v_subrev_u32 v242, 100, v0
v_cndmask_b32 v242, v0, v242, vcc
v_mov_b32 v243, {L_KVB}
v_mov_b32 v244, {L_KVB + 1280}
v_cndmask_b32 v243, v243, v244, vcc
v_mul_u32_u24 v244, 3277, v242
v_lshrrev_b32 v244, 16, v244
v_mul_u32_u24 v245, 20, v244
v_sub_u32 v245, v242, v245
v_lshl_add_u32 v243, v245, 6, v243
v_lshl_add_u32 v{vKB}, v244, 3, v243""")
        a(f"""v_lshrrev_b32 v242, 1, v210
v_lshl_add_u32 v242, v242, 3, v240
v_lshlrev_b32 v242, 6, v242
v_lshl_add_u32 v242, v209, 4, v242
v_add_u32 v242, {L_KVB}, v242
v_add_u32 v243, 1280, v242
v_mov_b32 v244, {ZR - 256}
v_and_b32 v245, 1, v210
v_cmp_eq_u32 vcc, 0, v245
v_cndmask_b32 v{vOb0}, v244, v242, vcc
v_cndmask_b32 v{vOb1}, v243, v244, vcc
v_mov_b32 v244, {ZR}
v_cndmask_b32 v{vOa0}, v244, v242, vcc
v_cndmask_b32 v{vOa1}, v243, v244, vcc
v_lshlrev_b32 v242, 6, v240
v_lshl_add_u32 v242, v209, 4, v242
v_add_u32 v242, {L_KVB + 16*64}, v242
v_add_u32 v243, 1280, v242
v_cmp_eq_u32 vcc, 0, v210
v_cndmask_b32 v{vOc0}, v244, v242, vcc
v_cmp_eq_u32 vcc, 1, v210
v_cndmask_b32 v{vOc1}, v244, v243, vcc""")
        a(f"""v_bfe_u32 v242, v{vLANE}, 2, 2
v_lshl_add_u32 v242, v209, 3, v242
v_add_u32 v243, 4, v242
v_min_u32 v242, 19, v242
v_min_u32 v243, 19, v243
v_mul_u32_u24 v242, 160, v242
v_mul_u32_u24 v243, 160, v243
v_lshl_add_u32 v242, v240, 3, v242
v_lshl_add_u32 v243, v240, 3, v243
v_add_u32 v{vWo+2}, {L_WO}, v242
v_add_u32 v{vWo+3}, {L_WO}, v243
s_lshl_b32 s{sT2}, s{sWV}, 5
v_add_u32 v{vWo}, s{sT2}, v{vWo+2}
v_add_u32 v{vWo+1}, s{sT2}, v{vWo+3}""")
        a(f"""v_and_b32 v242, 1, v209
v_lshrrev_b32 v243, 1, v209
v_lshl_add_u32 v242, v243, 2, v242
v_lshlrev_b32 v242, 8, v242
v_lshl_add_u32 v{vMS}, v208, 4, v242
v_lshlrev_b32 v243, 3, v209
v_lshl_add_u32 v243, v208, 4, v243
v_cmp_gt_u32 vcc, 2, v209
v_cndmask_b32 v{vMR}, v211, v243, vcc
s_lshr_b32 s{sT0}, s{sR}, 1
s_mul_i32 s{sT0}, s{sT0}, {5*20480}
s_mul_i32 s{sT2}, s{sJ}, 2560
s_add_u32 s{sT0}, s{sT0}, s{sT2}
s_add_u32 s{sT0}, s{sT0}, {WS_M}
s_lshl_b32 s{sT2}, s{sT1}, 9
s_add_u32 s{sT2}, s{sT2}, s{sT0}
s_lshl_b32 s{sT3}, s{sT1}, 8
s_add_u32 s{sT3}, s{sT3}, s{sT0}
s_mul_i32 s{sT0}, s{sWV}, 20480
s_add_u32 s{sMa}, s{sT2}, s{sT0}
s_add_u32 s{sMb}, s{sT3}, s{sT0}
s_add_u32 s{sT2}, s{sT2}, {4*20480}
s_add_u32 s{sT3}, s{sT3}, {4*20480}
s_cmp_eq_u32 s{sWV}, 0
s_cselect_b32 s{sMc}, s{sT2}, {OOB}
s_cselect_b32 s{sMd}, s{sT3}, {OOB}
v_mov_b32 v{vONE}, 0x3f803f80
v_mov_b32 v{vTG}, s{sTAG}
s_mov_b64 vcc, {sp(sGW)}""")
    tag_ready()
    a(f"""s_lshr_b32 s{sT2}, s{sJ}, 1
s_cmp_eq_u32 s{sT2}, s{sWV}
s_cselect_b64 {sp(sGW)}, -1, 0
s_mov_b64 vcc, {sp(sGW)}""")
    stamp(0)
    XA = lambda s, ks, m: (s % 2) * 16 + ks * 8 + m * 4 + 120
    def x_reads(s):
        def mk(ks):
            return [(lambda m=m: a.lds(f"ds_read_b128 {a4(XA(s, ks, m))}, v{vXM+2*m+ks} offset:{(s%4)*4096}", ("x", s, ks))) for m in range(2)]
        return {0: mk(0), 11: mk(1)}
    def read_frag(s, i, reg):
        ks, t = divmod(i, 11)
        sl = s % 4
        if t == 10:
            if ks == 0: a(f"v_add_u32 v120, s{sKA+s}, v{vQ}")
            a.lds(f"ds_read_b128 {v4(reg)}, v120 offset:{ks*64}", ("w", s, i))
            return
        seg, T = divmod(t, 5)
        off = (sl % 2) * 20480 + seg * 10240 + ks * 5120
        for hh in range(2):
            if T < 4: va, o = vWR + (sl // 2) * 2 + hh, off + 40 * T
            else: va, o = vT40 + (sl // 2) * 2 + hh, off + 32
            a.lds(f"ds_read_b64_tr_b16 {v2(reg + 2*hh)}, v{va} offset:{o}", ("w", s, i))
    def mfmas(s, i, reg):
        ks, t = divmod(i, 11)
        first = (s == 0 and ks == 0)
        if t == 10:
            def g():
                L = a.label("Lng")
                a(f"s_cbranch_vccz {L}")
                mfma(v4(AG), a4(XA(s, ks, 0)), v4(reg), "0" if first else v4(AG))
                a(f"{L}:")
            return [g, lambda: None]
        out = []
        for m in range(2):
            d = ACC + t * 8 + m * 4
            c = "0" if first else v4(d)
            out.append(lambda d=d, m=m, c=c: mfma(v4(d), a4(XA(s, ks, m)), v4(reg), c))
        return out
    gemm_loop(10, 22, read_frag, mfmas, x_reads, stage_dma, bg, RING, LOOKA, {(0, 16): precompute})
    bg.flush()
    stamp(1)
    a(f"s_mov_b32 s{sT2}, {LOG2E}\ns_movk_i32 s{sT3}, 0xff")
    T = 160
    PKR = 168
    def pack(t):
        dst = PKR + 4*t
        for q in range(4):
            a(f"v_cvt_pk_bf16_f32 v{dst+q}, v{ACC + t*8 + 2*q}, v{ACC + t*8 + 2*q + 1}")
        a.lds(f"ds_write_b128 v{vXW}, {v4(dst)} offset:{t*1024}", "kvx")
    for t in range(5):
        phi([AK + 8*t + 2*n for n in range(4)], sT2, T)
        pack(5 + t)
        pack(t)
    a.wait(lg="all")
    a("s_barrier")
    F0 = 32
    for w in range(4):
        b = F0 + w * 16
        a.lds(f"ds_read_b128 {v4(b+12)}, v{vR0} offset:{w*16384 + 9216}", ("kr", w))
        a.lds(f"ds_read_b128 {v4(b)}, v{vR1} offset:{w*16384}", ("kr", w))
        a.lds(f"ds_read_b128 {v4(b+4)}, v{vR0} offset:{w*16384 + 4096}", ("kr", w))
        a.lds(f"ds_read_b128 {v4(b+8)}, v{vR1} offset:{w*16384 + 5120}", ("kr", w))
    P = 96
    for w in range(4):
        b = F0 + w * 16
        a.wait(lg=[("kr", w)])
        for q in range(4): a(f"v_cndmask_b32 v{b+12+q}, v{vONE}, v{b+12+q}, {sp(sMK)}")
        c = lambda n: "0" if w == 0 else v4(P + 4*n)
        mfma(v4(P), v4(b+8), v4(b), c(0))
        mfma(v4(P+8), v4(b+8), v4(b+4), c(2))
        mfma(v4(P+4), v4(b+12), v4(b), c(1))
        mfma(v4(P+12), v4(b+12), v4(b+4), c(3))
    a(f"s_mov_b32 s{SW+2}, {640*1280}")
    for n in (0, 2, 1, 3):
        for q in (0, 2):
            a(f"v_bfi_b32 v{P+4*n+q}, s{sT3}, v{vTG}, v{P+4*n+q}")
    a.vmem(f"buffer_store_dword v{P+4}, v{vZ1}, {srd(SWS)}, s{sZB} offen sc1", "zst")
    a.vmem(f"buffer_store_dword v{P+12}, v{vZ2}, {srd(SWS)}, s{sZB} offen sc1", "zst")
    a.vmem(f"buffer_store_dwordx4 {v4(P)}, v{vK1}, {srd(SWS)}, s{sKVB} offen sc1", "kvst")
    a.vmem(f"buffer_store_dwordx4 {v4(P+4)}, v{vK2}, {srd(SWS)}, s{sKVB} offen offset:1280 sc1", "kvst")
    a.vmem(f"buffer_store_dwordx4 {v4(P+8)}, v{vK3}, {srd(SWS)}, s{sKVB} offen sc1", "kvst")
    a.vmem(f"buffer_store_dwordx4 {v4(P+12)}, v{vK4}, {srd(SWS)}, s{sKVB} offen offset:1280 sc1", "kvst")
    stamp(2)
    run_ops(dma_c(3, sCW, 0))
    a("s_cbranch_vccz LA_ng")
    for q in range(2):
        r = AG + 2*q
        a(f"""v_cvt_pk_bf16_f32 v{T+1}, v{r}, v{r+1}
v_lshlrev_b32 v{r}, 16, v{T+1}
v_and_b32 v{r+1}, 0xffff0000, v{T+1}
v_mul_f32 v{r}, 0xbfb8aa3b, v{r}
v_mul_f32 v{r+1}, 0xbfb8aa3b, v{r+1}
v_exp_f32 v{r}, v{r}
v_exp_f32 v{r+1}, v{r+1}
s_nop 0
v_add_f32 v{r}, 1.0, v{r}
v_add_f32 v{r+1}, 1.0, v{r+1}
v_rcp_f32 v{r}, v{r}
v_rcp_f32 v{r+1}, v{r+1}
s_nop 0
v_cvt_pk_bf16_f32 v{T+1}, v{r}, v{r+1}
v_lshlrev_b32 v{r}, 16, v{T+1}
v_and_b32 v{r+1}, 0xffff0000, v{T+1}""")
    a.vmem(f"buffer_store_dwordx4 {v4(AG)}, v{vGS}, {srd(SWS)}, s{sGB} offen sc1", "gst", certain=False)
    a("LA_ng:")
    WOF = 128
    for ts in range(2):
        for hd in range(2):
            r = WOF + (ts*2 + hd) * 4
            for hh in range(2):
                a.lds(f"ds_read_b64_tr_b16 {v2(r + 2*hh)}, v{vWo + 2*ts + hh} offset:{hd*3200 + (128 if ts else 0)}", "wof")
    run_ops(dma_c(4, sCW, 10240))
    a(f"""v_cmp_gt_u32 vcc, 200, v0
s_mov_b32 s{sSPIN}, 0
s_mov_b64 {sp(sT4)}, vcc
LA_gr:
s_mov_b32 s{sT0}, s{sGA}""")
    for n in range(16):
        a.vmem(f"buffer_load_dwordx4 {v4(32 + 4*n)}, v{vKP}, {srd(SWS)}, s{sT0} offen sc1", ("kp", n))
        if n < 15: a(f"s_add_u32 s{sT0}, s{sT0}, 6400")
    a.wait(vm=[("kp", 0)])
    a(f"v_xor_b32 v{T}, v32, v{vTG}\nv_bitop3_b32 v{T}, v{T}, v34, v{vTG} bitop3:0xf6")
    for n in range(1, 16):
        a.wait(vm=[("kp", n)])
        a(f"""v_bitop3_b32 v{T}, v{T}, v{32+4*n}, v{vTG} bitop3:0xf6
v_pk_add_f32 v[32:33], v[32:33], {v2(32+4*n)}
v_bitop3_b32 v{T}, v{T}, v{34+4*n}, v{vTG} bitop3:0xf6
v_pk_add_f32 v[34:35], v[34:35], {v2(34+4*n)}""")
    a(f"""v_and_b32 v{T}, 0xff, v{T}
v_cmp_ne_u32 vcc, 0, v{T}
s_add_u32 s{sSPIN}, s{sSPIN}, 1
s_and_b64 vcc, vcc, {sp(sT4)}
s_cmp_gt_u32 s{sSPIN}, 0x20000
s_cbranch_scc1 LA_gd
s_cbranch_vccnz LA_gr
LA_gd:
v_cvt_pk_bf16_f32 v36, v32, v33
v_cvt_pk_bf16_f32 v37, v34, v35
s_mov_b64 exec, {sp(sT4)}""")
    a.lds(f"ds_write_b64 v{vKB}, v[36:37]", "kvb")
    a("s_mov_b64 exec, -1")
    a.wait(lg="all")
    a("s_barrier")
    stamp(3)
    KF = 40
    a.lds(f"ds_read_b128 {v4(KF)}, v{vOa0}", "kf")
    a.lds(f"ds_read_b128 {v4(KF+8)}, v{vOb0} offset:256", "kf")
    a.lds(f"ds_read_b128 {v4(KF+16)}, v{vOc0}", "kf")
    a.lds(f"ds_read_b128 {v4(KF+4)}, v{vOa1}", "kf")
    a.lds(f"ds_read_b128 {v4(KF+12)}, v{vOb1} offset:256", "kf")
    a.lds(f"ds_read_b128 {v4(KF+20)}, v{vOc1}", "kf")
    a.wait(lg="all")
    MD = 64
    for hd in range(2):
        for ts in range(2):
            for tl in range(3):
                d = MD + (ts*3 + tl) * 4
                mfma(v4(d), v4(KF + tl*8 + hd*4), v4(WOF + (ts*2+hd)*4), "0" if hd == 0 else v4(d))
    for ts in range(2):
        d = MD + ts*12; o = 88 + ts*8
        for q in range(6):
            a(f"v_cvt_pk_bf16_f32 v{o+q}, v{d+2*q}, v{d+2*q+1}")
        a.vmem(f"buffer_store_dwordx4 {v4(o)}, v{vMS}, {srd(SWS)}, s{sMa if ts == 0 else sMc} offen sc1", "mst")
        a.vmem(f"buffer_store_dwordx2 {v2(o+4)}, v{vMR}, {srd(SWS)}, s{sMb if ts == 0 else sMd} offen offset:2048 sc1", "mst")
    a.wait(vm="all")
    a("s_barrier")
    set_flag(FM, "LA_nf2", 240)
    stamp(4)
    run_ops(dma_c(2, sXB, 0))
    c_tail()
    a("s_branch LK2")

def type_B():
    a("LtypeB:")
    a.vm = []; a.lg = []
    bg = BG()
    U = ACC; Q = ACC + 80
    RING = [152 + 4*i for i in range(6)]
    LAM = 176
    XR = 216
    COEF = 216
    L8, L128 = 226, 248
    T = 176
    sSa, sSb, sSc, sSd = 54, 55, 56, 57
    sSS, sXBa, sXSt, sXCn, sPEND = 60, 61, 38, 39, 40
    sVAL = 34
    a(f"""s_and_b32 s{sT2}, s{sWV}, 1
s_mul_i32 s{sT3}, s{sT2}, 40
s_mul_i32 s{sT4}, s{sJ}, 80
s_add_u32 s{sT3}, s{sT3}, s{sT4}
s_mul_i32 s{sT3}, s{sT3}, 1280
s_lshl_b32 s{sT4}, s{sT2}, 6
v_xor_b32 v64, s{sT4}, v45
v_xor_b32 v65, s{sT4}, v46
v_add_u32 v{vW}, s{sT3}, v64
v_add_u32 v65, s{sT3}, v65
v_add_u32 v{vW+1}, {10240-1024}, v65
v_add_u32 v{vW+2}, {2*(10240-1024)}, v{vW}
v_add_u32 v{vW+3}, {3*(10240-1024)}, v65
v_add_u32 v{vW+4}, {4*10240}, v{vW}
s_mul_i32 s{sT4}, s{sJ}, 160
v_min_u32 v66, 79, v0
v_lshl_add_u32 v66, v66, 1, s{sT4}
v_mov_b32 v{T}, 0
v_mov_b32 v{T+1}, 0
v_mov_b32 v{T+2}, 0
s_mul_i32 s{sKQ}, s{sKA}, 1920
s_mul_i32 s{sKQ+1}, s{sKA+1}, 1920
s_mul_i32 s{sT5}, s{sT2}, {32*3840}
s_add_u32 s{sT5}, s{sT5}, s{sT4}""")
    args_ready()
    a(f"""s_cmp_ge_u32 s{sWV}, 2
s_cselect_b32 s{SW}, s{pBIM}, s{pBRE}
s_cselect_b32 s{SW+1}, s{pBIM+1}, s{pBRE+1}
s_and_b32 s{SW+1}, s{SW+1}, 0xffff""")
    def stage_dma(s):
        if s < 10: return dma_x(s) + dma_w(s, vW, SW, sKA + s)
        if s < 15: return dma_w(s, vQ, SQ, sKQ + (s - 10))
        return None
    run_ops(stage_dma(0))
    a.vmem(f"global_load_short_d16_hi v{T}, v66, {sp(pLRE)}", "par")
    a.vmem(f"global_load_short_d16_hi v{T+1}, v66, {sp(pLIM)}", "par")
    a.vmem(f"global_load_short_d16_hi v{T+2}, v66, {sp(pLDT)}", "par")
    a(f"s_mov_b32 s{SQ}, s{pQKV}\ns_and_b32 s{SQ+1}, s{pQKV+1}, 0xffff")
    wq_pattern(vQ, sT5)
    late_setup()
    a(f"s_cmp_ge_u32 s{sWV}, 2")
    for q in range(5): a(f"s_cselect_b32 s{sKQ+q}, s{sKQ+2*q+1}, s{sKQ+2*q}")
    a(f"""v_add_u32 v{vWR}, {L_W}, v56
v_add_u32 v{vWR+1}, {L_W}, v57
v_add_u32 v{vWR+2}, {L_W+40960}, v56
v_add_u32 v{vWR+3}, {L_W+40960}, v57""")
    run_ops(stage_dma(1))
    tag_ready()
    stamp(0)
    aTW, aTR0, aTR1, aST, aEA, aPT, aSA, aXA, aXW, aHR, aZR = range(240, 251)
    def params():
        a.wait(vm="par")
        P = T + 4
        t0, t1, t2, t3 = T+16, T+17, T+18, T+19
        C = P + 8
        a(f"""v_mul_f32 v{T+2}, {LOG2E}, v{T+2}
v_exp_f32 v{T+2}, v{T+2}
s_nop 0
v_cvt_pk_bf16_f32 v{T+2}, v{T+2}, v{T+2}
v_lshlrev_b32 v{T+2}, 16, v{T+2}
v_mul_f32 v{t0}, v{T+2}, v{T}
v_mul_f32 v{t1}, v{T+2}, v{T+1}
v_mul_f32 v{t0}, {LOG2E}, v{t0}
v_mul_f32 v{t1}, 0.15915494, v{t1}
v_exp_f32 v{t0}, v{t0}
v_fract_f32 v{t1}, v{t1}
v_cos_f32 v{t2}, v{t1}
v_sin_f32 v{t3}, v{t1}
s_nop 0
v_mul_f32 v{P}, v{t0}, v{t2}
v_mul_f32 v{t3}, v{t0}, v{t3}
v_sub_f32 v{P+1}, 0, v{t3}
v_add_f32 v{t0}, -1.0, v{P}
v_mul_f32 v{t1}, v{T}, v{T}
v_fma_f32 v{t1}, v{T+1}, v{T+1}, v{t1}
v_rcp_f32 v{t1}, v{t1}
v_mul_f32 v{C}, v{t0}, v{T}
v_fma_f32 v{C}, v{t3}, v{T+1}, v{C}
v_mul_f32 v{C+1}, v{t3}, v{T}
v_fma_f32 v{C+1}, -v{t0}, v{T+1}, v{C+1}
v_add_f32 v{t1}, v{t1}, v{t1}
v_mul_f32 v{C}, v{C}, v{t1}
v_mul_f32 v{C+1}, v{C+1}, v{t1}""")
        def cmul(d, l, p):
            a(f"""v_pk_mul_f32 {v2(d)}, {v2(p)}, {v2(l)} op_sel_hi:[1,0]
v_pk_fma_f32 {v2(d)}, {v2(p)}, {v2(l)}, {v2(d)} op_sel:[1,1,0] op_sel_hi:[0,1,1] neg_lo:[0,1,0]""")
        cmul(P+2, P, P); cmul(P+4, P+2, P); cmul(P+6, P+2, P+2); cmul(L8, P+6, P+6)
        a(f"""v_mul_u32_u24 v{t0}, 48, v0
v_add_u32 v{t0}, {L_PT}, v{t0}
v_lshlrev_b32 v{t1}, 3, v0
v_add_u32 v{t1}, {L_LT}, v{t1}
v_mov_b32 v{T+20}, 1.0
v_mov_b32 v{T+21}, 0
v_cmp_gt_u32 vcc, 80, v0
s_and_saveexec_b64 {sp(sT2)}, vcc
s_cbranch_execz LB_nopar""")
        for q in range(3): a.lds(f"ds_write_b128 v{t0}, {v4(P+4*q)} offset:{16*q}", "pt", certain=False)
        a.lds(f"ds_write_b64 v{t1}, {v2(T+20)}", "pt", certain=False)
        a.lds(f"ds_write_b64 v{t1}, {v2(L8)} offset:640", "pt", certain=False)
        prev = L8
        for s in range(2, 17):
            d = (T + 22 + 2*(s % 2)) if s < 16 else L128
            cmul(d, L8, prev)
            if s < 16: a.lds(f"ds_write_b64 v{t1}, {v2(d)} offset:{s*640}", "pt", certain=False)
            prev = d
        a(f"""LB_nopar:
s_mov_b64 exec, {sp(sT2)}""")
        a(f"""s_lshl_b32 s{sT2}, s{sJ}, 4
s_add_u32 s{sT3}, s{sT2}, s{sR}
s_mul_i32 s{sSS}, s{sT3}, 640
s_add_u32 s{sSS}, s{sSS}, {WS_SP}
s_sub_u32 s{sT3}, s{sSS}, 640
s_mul_i32 s{sT2}, s{sT2}, 320
s_add_u32 s{sT2}, s{sT2}, {WS_ZP}
s_cmp_eq_u32 s{sWV}, 2
s_cselect_b32 s{sT4}, 16, 0
s_cmp_ge_u32 s{sWV}, 2
s_cselect_b32 s{sXBa}, s{sT2}, s{sT3}
s_movk_i32 s{sXSt}, -640
s_cmov_b32 s{sXSt}, 320
s_cselect_b32 s{sXCn}, s{sT4}, s{sR}
s_movk_i32 s{sT2}, 80
s_cmov_b32 s{sT2}, {128+40}
s_cselect_b32 s{sT3}, 128, 0
s_mov_b32 s{sT4}, {L_HB}
s_cmov_b32 s{sT4}, {L_ZB}
s_cbranch_scc0 LB_l128
v_mov_b32 v{L128}, 1.0
v_mov_b32 v{L128+1}, 0
LB_l128:
v_cmp_gt_u32 {sp(sVAL)}, s{sT2}, v0
v_subrev_u32 v{t0}, s{sT3}, v0
v_lshlrev_b32 v{t0}, 3, v{t0}
v_add_u32 v{t1}, s{sT4}, v{t0}
v_accvgpr_write_b32 a{aXW}, v{t1}
v_mov_b32 v{t1}, {OOB}
v_cndmask_b32 v{t0}, v{t1}, v{t0}, {sp(sVAL)}
v_accvgpr_write_b32 a{aXA}, v{t0}
v_min_u32 v{t0}, 79, v0
v_lshlrev_b32 v{t0}, 3, v{t0}
v_accvgpr_write_b32 a{aSA}, v{t0}""")
        c_, g_, u0, u1, u2, u3 = T, T+1, T+2, T+3, T+4, T+5
        a(f"""v_and_b32 v{c_}, 15, v{vLANE}
v_lshrrev_b32 v{g_}, 4, v{vLANE}
v_mul_u32_u24 v{u0}, 48, v{c_}
v_add_u32 v{u0}, {L_PT}, v{u0}
v_accvgpr_write_b32 a{aPT}, v{u0}
v_lshrrev_b32 v{u0}, 4, v0
v_mul_u32_u24 v{u0}, 640, v{u0}
v_lshl_add_u32 v{u0}, v{c_}, 3, v{u0}
v_accvgpr_write_b32 a{aEA}, v{u0}
v_lshlrev_b32 v{u0}, 3, v{c_}
v_add_u32 v{u0}, {L_HB}, v{u0}
v_accvgpr_write_b32 a{aHR}, v{u0}
v_mul_u32_u24 v{u0}, 80, v{g_}
v_add_u32 v{u0}, {L_ZB}, v{u0}
v_accvgpr_write_b32 a{aZR}, v{u0}
v_bfe_u32 v{u0}, v{c_}, 1, 2
v_xor_b32 v{u0}, v{u0}, v{g_}
v_lshlrev_b32 v{u0}, 4, v{u0}
v_lshl_add_u32 v{u0}, v{c_}, 6, v{u0}
s_add_u32 s{sT2}, s{sXB}, 10240
v_add_u32 v{u0}, s{sT2}, v{u0}
v_accvgpr_write_b32 a{aTW}, v{u0}
v_bfe_u32 v{u0}, v{vLANE}, 2, 2
v_lshrrev_b32 v{u1}, 1, v{g_}
v_lshl_add_u32 v{u2}, v{u1}, 3, v{u0}
v_lshlrev_b32 v{u2}, 6, v{u2}
v_and_b32 v{u3}, 1, v{g_}
v_lshl_add_u32 v{u2}, v{u3}, 3, v{u2}
v_add_u32 v{u2}, s{sT2}, v{u2}
v_lshrrev_b32 v{u0}, 1, v{u0}
v_and_b32 v{g_}, 3, v{vLANE}
v_xor_b32 v{u0}, v{u0}, v{g_}
v_lshl_add_u32 v{g_}, v{u0}, 4, v{u2}
v_accvgpr_write_b32 a{aTR0}, v{g_}
v_xor_b32 v{u0}, 2, v{u0}
v_lshl_add_u32 v{g_}, v{u0}, 4, v{u2}
v_add_u32 v{g_}, 256, v{g_}
v_accvgpr_write_b32 a{aTR1}, v{g_}
v_mul_u32_u24 v{u3}, {RT}, v{u3}
v_lshl_add_u32 v{u3}, v{u1}, 8, v{u3}
v_lshl_add_u32 v{u3}, v{c_}, 4, v{u3}
v_accvgpr_write_b32 a{aST}, v{u3}
s_lshl_b32 s{sT2}, s{sR}, 3
s_lshl_b32 s{sT3}, s{sWV}, 1
s_add_u32 s{sT2}, s{sT2}, s{sT3}
s_mul_i32 s{sT2}, s{sT2}, {RT}
s_mul_i32 s{sT3}, s{sJ}, 2560
s_add_u32 s{sSa}, s{sT2}, s{sT3}
s_add_u32 s{sSb}, s{sSa}, 20480
s_add_u32 s{sSc}, s{sSa}, 40960
s_add_u32 s{sSd}, s{sSc}, {RT}""")
        a.wait(lg="all")
    XA = lambda s, ks, m: s * 16 + ks * 8 + m * 4
    def x_reads(s):
        if s >= 10: return {}
        def mk(ks):
            return [(lambda m=m: a.lds(f"ds_read_b128 {a4(XA(s, ks, m))}, v{vXR+ks} offset:{(s%4)*4096 + m*2048}", ("x", s, ks))) for m in range(2)]
        return {0: mk(0), 10: mk(1)}
    def read_frag(s, i, reg):
        sl = s % 4
        if s < 10:
            ks, t = divmod(i, 10)
            c5, part = divmod(t, 2)
            a.lds(f"ds_read_b128 {v4(reg)}, v{vWR + (sl//2)*2 + ks} offset:{(sl%2)*20480 + part*10240 + c5*2048}", ("w", s, i))
        else:
            k4, Tt = divmod(i, 5)
            for hh in range(2):
                a.lds(f"ds_read_b64_tr_b16 {v2(reg+2*hh)}, v{vT40 + (sl//2)*2 + hh} offset:{(sl%2)*20480 + k4*5120 + 8*Tt}", ("w", s, i))
    def mfmas(s, i, reg):
        out = []
        if s < 10:
            ks, t = divmod(i, 10)
            for m in range(2):
                d = U + t*8 + m*4
                c = "0" if (s == 0 and ks == 0) else v4(d)
                out.append(lambda d=d, m=m, c=c: mfma(v4(d), a4(XA(s, ks, m)), v4(reg), c))
        else:
            k4, Tt = divmod(i, 5)
            xs, ks = 2*(s-10) + k4//2, k4 % 2
            for m in range(2):
                d = Q + Tt*8 + m*4
                c = "0" if (s == 10 and k4 == 0) else v4(d)
                out.append(lambda d=d, m=m, c=c: mfma(v4(d), v4(reg), a4(XA(xs, ks, m)), c))
        return out
    def ur(c5, i): return U + (2*c5)*8 + 2*i
    def ui(c5, i): return U + (2*c5+1)*8 + 2*i
    LO = "op_sel_hi:[1,0,1]"
    HI = "op_sel:[0,1,0] op_sel_hi:[1,1,1]"
    NEG = "neg_lo:[0,1,0] neg_hi:[0,1,0]"
    vEA, vSA, vXA, vPT = vX, vX+1, vX+2, vX+3
    vTW, vTR0, vTR1, vST, vL16 = vW, vW+1, vW+2, vW+3, vW+4
    vXW, vHR, vZR, vLT = vWR, vWR+1, vWR+2, vWR+3
    def mk_ptread(c5):
        def f():
            if c5 == 0: a(f"v_accvgpr_read_b32 v{vPT}, a{aPT}")
            a.lds(f"ds_read_b128 {v4(LAM + c5*8)}, v{vPT} offset:{c5*768}", "ptr")
            a.lds(f"ds_read_b128 {v4(LAM + c5*8 + 4)}, v{vPT} offset:{c5*768 + 16}", "ptr")
            a.lds(f"ds_read_b64 {v2(COEF + c5*2)}, v{vPT} offset:{c5*768 + 32}", "ptr")
            if c5 == 4: a(f"v_accvgpr_read_b32 v{vEA}, a{aEA}\nv_accvgpr_read_b32 v{vSA}, a{aSA}\nv_accvgpr_read_b32 v{vXA}, a{aXA}")
        return f
    def scan1():
        stamp(1)
        tA, tB = 228, 230
        for c5 in range(5):
            c = COEF + c5*2
            for i in range(4):
                r_, i_ = ur(c5, i), ui(c5, i)
                a(f"""v_pk_mul_f32 {v2(tA)}, {v2(r_)}, {v2(c)} op_sel_hi:[1,0]
v_pk_mul_f32 {v2(tB)}, {v2(r_)}, {v2(c)} op_sel:[0,1] op_sel_hi:[1,1] neg_lo:[0,1] neg_hi:[0,1]
v_pk_fma_f32 {v2(r_)}, {v2(i_)}, {v2(c)}, {v2(tA)} {HI} {NEG}
v_pk_fma_f32 {v2(i_)}, {v2(i_)}, {v2(c)}, {v2(tB)} {LO} {NEG}""")
            l = LAM + c5*8
            for i in range(1, 4):
                a(f"""v_pk_fma_f32 {v2(ur(c5,i))}, {v2(ur(c5,i-1))}, {v2(l)}, {v2(ur(c5,i))} {LO}
v_pk_fma_f32 {v2(ui(c5,i))}, {v2(ui(c5,i-1))}, {v2(l)}, {v2(ui(c5,i))} {LO}
v_pk_fma_f32 {v2(ur(c5,i))}, {v2(ui(c5,i-1))}, {v2(l)}, {v2(ur(c5,i))} {HI} {NEG}
v_pk_fma_f32 {v2(ui(c5,i))}, {v2(ur(c5,i-1))}, {v2(l)}, {v2(ui(c5,i))} {HI}""")
            l4 = l + 6
            cmul_acc(c, c+1, l4, l4+1, ur(c5,3), ui(c5,3), ur(c5,3)+1, ui(c5,3)+1)
            a.lds(f"ds_write_b64 v{vEA}, {v2(c)} offset:{L_EB + c5*128}", "ew")
            bg.tick(1)
        a.wait(lg="all")
        a("s_barrier")
        a(f"s_cmp_ge_u32 s{sWV}, 2\ns_cbranch_scc1 LB_nocarry1")
        E0 = Q
        for s in range(0, 16, 2):
            a(f"ds_read2_b64 {v4(E0 + 2*s)}, v{vSA} offset0:{(s%4)*80} offset1:{(s%4)*80+80}")
            if s % 4 == 2 and s < 14: a(f"v_add_u32 v{vSA}, 2560, v{vSA}")
        a(f"""v_mov_b32 v{tA}, 0
v_mov_b32 v{tA+1}, 0
v_mov_b32 v{tB}, s{sTAG}
s_movk_i32 s{sT3}, 0xff
v_subrev_u32 v{vSA}, {3*2560}, v{vSA}""")
        for s in range(1, 16):
            if s % 2 == 0 or s == 1: a(f"s_waitcnt lgkmcnt({7 - s//2})")
            pk_cmul_acc(E0+2*s, L8, E0+2*s-2, E0+2*s)
        a(f"""v_bfi_b32 v{E0+30}, s{sT3}, v{tB}, v{E0+30}
v_bfi_b32 v{E0+31}, s{sT3}, v{tB}, v{E0+31}""")
        a.vmem(f"buffer_store_dwordx2 {v2(E0+30)}, v{vXA}, {srd(SWS)}, s{sSS} offen sc1", "sst", certain=False)
        a(f"s_mov_b64 exec, {sp(sVAL)}\nds_write_b64 v{vSA}, {v2(tA)}")
        for s in range(15):
            a(f"ds_write_b64 v{vSA}, {v2(E0+2*s)} offset:{(s+1)*640}")
        a("s_mov_b64 exec, -1\ns_waitcnt lgkmcnt(0)\nLB_nocarry1:")
        stamp(2)
    def x_loads(tracked):
        ops = []
        ops.append(("s", lambda: a(f"s_mov_b32 s{sT2}, s{sXBa}")))
        for n in range(16):
            def f(n=n):
                a(f"s_cmp_gt_u32 s{sXCn}, {n}\ns_cselect_b32 s{sT3}, s{sT2}, {OOB}\ns_add_u32 s{sT2}, s{sT2}, s{sXSt}")
                t = f"buffer_load_dwordx2 {v2(XR + 2*n)}, v{vXA}, {srd(SWS)}, s{sT3} offen sc1"
                if tracked: a.vmem(t, "xl")
                else: a(t)
            ops.append(("d", f))
        return ops
    def x_check(sfx, defer):
        a(f"s_mov_b32 s{sSPIN}, 0\nLB_xt{sfx}:\ns_waitcnt vmcnt(0)")
        for n in range(15, -1, -1):
            r = XR + 2*n
            a(f"s_cmp_gt_u32 s{sXCn}, {n}\ns_cselect_b32 s{sT3}, s{sTAG}, 0")
            if n == 15: a(f"v_xor_b32 v250, s{sT3}, v{r}")
            else: a(f"v_bitop3_b32 v250, v250, v{r}, s{sT3} bitop3:0xf6")
            a(f"v_bitop3_b32 v250, v250, v{r+1}, s{sT3} bitop3:0xf6")
            if n < 15: pk_cmul_acc(r, L128, r+2, r)
        a(f"""v_and_b32 v250, 0xff, v250
v_cmp_ne_u32 vcc, 0, v250
s_add_u32 s{sSPIN}, s{sSPIN}, 1
s_and_b64 vcc, vcc, {sp(sVAL)}
s_cmp_gt_u32 s{sSPIN}, 0x20000
s_cbranch_scc1 LB_xok{sfx}
s_cbranch_vccz LB_xok{sfx}""")
        if defer:
            a(f"s_mov_b32 s{sPEND}, 1\ns_cmp_eq_u32 s{sWV}, 2\ns_cbranch_scc1 LB_xe{sfx}")
        run_ops(x_loads(False))
        a(f"""s_branch LB_xt{sfx}
LB_xok{sfx}:
s_mov_b32 s{sPEND}, 0
s_cmp_lg_u32 s{sWV}, 2
s_cbranch_scc1 LB_xw{sfx}
v_cvt_pk_bf16_f32 v250, v{XR}, v{XR+1}
v_lshlrev_b32 v{XR}, 16, v250
v_and_b32 v{XR+1}, 0xffff0000, v250
LB_xw{sfx}:
s_mov_b64 exec, {sp(sVAL)}
ds_write_b64 v{vXW}, {v2(XR)}
s_mov_b64 exec, -1
LB_xe{sfx}:""")
    def start_x():
        bg.add(x_loads(True)); bg.fast = True
    hooks = {(0, 14): params, (10, 0): scan1, (14, 0): start_x}
    for c5 in range(5): hooks[(9, 2*c5 + 1)] = mk_ptread(c5)
    gemm_loop(15, 20, read_frag, mfmas, x_reads, stage_dma, bg, RING, LOOKA, hooks)
    bg.flush()
    stamp(3)
    for vr, ar in ((vTW, aTW), (vTR0, aTR0), (vTR1, aTR1), (vST, aST), (vXW, aXW), (vHR, aHR), (vZR, aZR)):
        a(f"v_accvgpr_read_b32 v{vr}, a{ar}")
    a(f"v_lshlrev_b32 v{vL16}, 4, v{vLANE}\nv_add_u32 v{vLT}, {L_LT}, v{vEA}")
    H = 152
    for c5 in range(5):
        a.lds(f"ds_read_b64 {v2(H+4*c5)}, v{vEA} offset:{L_EB + c5*128}", "pl")
        a.lds(f"ds_read_b64 {v2(H+4*c5+2)}, v{vLT} offset:{c5*128}", "pl")
    a(f"s_mov_b32 s{sT4}, {LOG2E}")
    phi([Q + 2*n for n in range(20)], sT4, 172, NT=2)
    x_check("1", True)
    a.vm = []
    a.wait(lg="all")
    a("s_barrier")
    stamp(4)
    HR = XR + 2
    for c5 in range(5):
        a.lds(f"ds_read_b64 {v2(HR+2*c5)}, v{vHR} offset:{c5*128}", ("hin", c5))
    PK = 228
    def fix(c5):
        h = H + 4*c5; lam = LAM + c5*8
        a.wait(lg=[("hin", c5)])
        pk_cmul_acc(h, h+2, HR+2*c5, h)
        a(f"v_mov_b32 v{h+2}, v{h+1}")
        cmul_acc(h+1, h+3, lam+6, lam+7, h, h+2, ur(c5,3), ui(c5,3))
        for i in range(4):
            l = lam + 2*i
            a(f"""v_pk_fma_f32 {v2(ur(c5,i))}, {v2(h)}, {v2(l)}, {v2(ur(c5,i))} {LO}
v_pk_fma_f32 {v2(ui(c5,i))}, {v2(h+2)}, {v2(l)}, {v2(ui(c5,i))} {LO}""")
        for part in range(2):
            for i in range(4):
                l = lam + 2*i
                if part == 0: a(f"v_pk_fma_f32 {v2(ur(c5,i))}, {v2(h+2)}, {v2(l)}, {v2(ur(c5,i))} {HI} {NEG}")
                else: a(f"v_pk_fma_f32 {v2(ui(c5,i))}, {v2(h)}, {v2(l)}, {v2(ui(c5,i))} {HI}")
            src = U + (2*c5 + part)*8
            pk = PK + 4*part
            for q in range(4): a(f"v_cvt_pk_bf16_f32 v{pk+q}, v{src+2*q}, v{src+2*q+1}")
            a.lds(f"ds_write_b128 v{vTW}, {v4(pk)} offset:{((c5%3)*2+part)*1024}", ("tw", c5))
    def trd(c5):
        for part in range(2):
            for hh in range(2):
                a.lds(f"ds_read_b64_tr_b16 {v2(U + (2*c5+part)*8 + 2*hh)}, v{vTR0+hh} offset:{((c5%3)*2+part)*1024}", ("tr", c5))
    def tst(c5):
        a.wait(lg=[("tr", c5)])
        for part in range(2):
            a.vmem(f"buffer_store_dwordx4 {v4(U + (2*c5+part)*8)}, v{vST}, {srd(SWS)}, s{sSa if part == 0 else sSb} offen offset:{c5*512} sc1", "ast")
    for c5 in range(5):
        fix(c5)
        if c5 > 0: tst(c5-1)
        trd(c5)
    tst(4)
    a(f"s_cmp_eq_u32 s{sPEND}, 0\ns_cbranch_scc1 LB_xe2")
    run_ops(x_loads(False))
    x_check("2", False)
    a.wait(lg="all")
    a("s_barrier")
    Z = 176
    for q in range(5): a.lds(f"ds_read_b128 {v4(Z+4*q)}, v{vZR} offset:{16*q}", ("zr", q))
    DN = 196
    for Tt in range(5):
        a.wait(lg=[("zr", Tt)])
        for q in range(2):
            for m in range(2):
                d = DN + 2*m
                r = Q + Tt*8 + m*4 + 2*q; z = Z + Tt*4 + 2*q
                if Tt == 0 and q == 0: a(f"v_pk_mul_f32 {v2(d)}, {v2(r)}, {v2(z)}")
                else: a(f"v_pk_fma_f32 {v2(d)}, {v2(r)}, {v2(z)}, {v2(d)}")
    a(f"""v_add_f32 v{DN}, v{DN}, v{DN+1}
v_add_f32 v{DN+2}, v{DN+2}, v{DN+3}
v_add_f32 v{DN}, 0x358637bd, v{DN}
v_add_f32 v{DN+2}, 0x358637bd, v{DN+2}
v_rcp_f32 v{DN}, v{DN}
v_rcp_f32 v{DN+2}, v{DN+2}""")
    WP = 200
    for m in range(2):
        d = DN + 2*m
        for hf in range(3):
            for Tt in ((0, 1), (2, 3), (4,))[hf]:
                for q in range(2):
                    r = Q + Tt*8 + m*4 + 2*q
                    a(f"v_pk_mul_f32 {v2(r)}, {v2(r)}, {v2(d)} op_sel_hi:[1,0]")
            for Tt in ((0, 1), (2, 3), (4,))[hf]:
                for q in range(2):
                    r = Q + Tt*8 + m*4 + 2*q
                    dst = (WP + m*8 + Tt*2 + q) if Tt < 4 else (216 + m*2 + q)
                    a(f"v_cvt_pk_bf16_f32 v{dst}, v{r}, v{r+1}")
            if hf < 2:
                a.vmem(f"buffer_store_dwordx4 {v4(WP + m*8 + hf*4)}, v{vL16}, {srd(SWS)}, s{sSc if m == 0 else sSd} offen offset:{hf*1024} sc1", "ast")
    a("v_permlane16_swap_b32 v216, v218\nv_permlane16_swap_b32 v217, v219")
    a.vmem(f"buffer_store_dwordx4 v[216:219], v{vST}, {srd(SWS)}, s{sSc} offen offset:2048 sc1", "ast")
    stamp(5)
    run_ops(dma_c(3, sCW, 0))
    a.wait(vm="all")
    a("s_barrier")
    set_flag(FB, "LB_nf", 240)
    stamp(6)
    run_ops(dma_c(4, sCW, 10240))
    run_ops(dma_c(2, sXB, 0))
    c_tail()

def k2():
    a("LK2:")
    a.vm = [(("c", 2), True)]*10 + [(("c", 0), True)]*10 + [(("c", 1), True)]*10; a.lg = []
    AH = 32
    AB = [112, 132]
    NS = 12
    STG = [196 + 4*i for i in range(NS)]
    vA = 2
    vM = 6
    vFB, vFM, vGA, vRW, vTmp = 11, 12, 13, 14, 15
    vG = 18
    FL = [26, 27, 28, 29, 249]
    FO = [244, 245, 246, 247, 248]
    sMT = 34
    MH = [f"a[{120+4*n}:{123+4*n}]" for n in range(10)] + [f"a[{240+4*n}:{243+4*n}]" for n in range(4)] + [v4(152+4*n) for n in range(11)]
    mk_srd(SOUT, pOUT, 2048*2560)
    a(f"s_add_u32 s{sT0}, s{sWV}, s{sCT}")
    a(f"v_lshlrev_b32 v{vM}, 4, v{vLANE}")
    for i in range(4):
        a(f"""s_add_u32 s{sMT+i}, s{sT0}, {i}
s_and_b32 s{sMT+i}, s{sMT+i}, 3
s_mul_i32 s{sT1}, s{sMT+i}, {RT}
v_add_u32 v{vA+i}, s{sT1}, v{vM}""")
    for nt in range(1, 5): a(f"v_add_u32 v{vM+nt}, {nt*20480}, v{vM}")
    mk_srd(SQ, pDSK, 1280)
    a(f"""s_lshl_b32 s{sT2}, s{sRB}, 2
s_add_u32 s{sT2}, s{sT2}, s{sMT}
s_lshr_b32 s{sT3}, s{sT2}, 1
s_lshl_b32 s{sT3}, s{sT3}, 5
s_and_b32 s{sT2}, s{sT2}, 1
s_lshl_b32 s{sT2}, s{sT2}, 1
s_add_u32 s{sT3}, s{sT3}, s{sT2}
s_mul_i32 s{sT4}, s{sCT}, 160
v_bfe_u32 v196, v{vLANE}, 2, 2
v_lshlrev_b32 v196, 3, v196
v_bfe_u32 v197, v{vLANE}, 1, 1
v_add_u32 v196, v196, v197
v_and_b32 v197, 1, v{vLANE}
v_lshl_add_u32 v196, v197, 2, v196
v_add_u32 v196, s{sT3}, v196
v_mul_u32_u24 v196, 1280, v196
v_lshrrev_b32 v197, 4, v{vLANE}
v_lshl_add_u32 v197, v197, 3, s{sT4}
v_add_u32 v196, v196, v197""")
    for nt in range(5):
        a.vmem(f"buffer_load_dwordx2 {v2(200+2*nt)}, v196, {srd(SX)}, 0 offen offset:{nt*32}", "fx")
        a.vmem(f"buffer_load_dwordx2 {v2(210+2*nt)}, v197, {srd(SQ)}, 0 offen offset:{nt*32}", "fx")
    a(f"s_mul_i32 s{sT0}, s{sRB}, {4*RT}\ns_mul_i32 s{sT1}, s{sCT}, {5*20480}\ns_add_u32 s{sT1}, s{sT1}, {WS_M}")
    for i in range(5):
        a(f"""s_lshl_b32 s{sT2}, s{sLC+i}, 11
s_add_u32 s{sKA+i}, s{sT0}, s{sT2}
s_lshl_b32 s{sT2}, s{sLC+i}, 10
s_add_u32 s{sKA+5+i}, s{sT0}, s{sT2}
s_add_u32 s{sKA+5+i}, s{sKA+5+i}, 40960
s_add_u32 s{sKQ+i}, s{sT1}, s{sT2}""")
    a.wait(vm=[("c", 2)])
    run_ops(c_reads(2, vXR, 0))
    a(f"""s_lshl_b32 s{sT2}, s{sRB}, 2
s_add_u32 s{sT2}, s{sT2}, s{sWV}
s_lshr_b32 s{sT3}, s{sT2}, 1
s_lshl_b32 s{sT3}, s{sT3}, 5
s_and_b32 s{sT2}, s{sT2}, 1
s_lshl_b32 s{sT2}, s{sT2}, 1
s_add_u32 s{sT3}, s{sT3}, s{sT2}
s_lshl_b32 s{sT4}, s{sT4}, 1
s_mul_i32 s{sT5}, s{sWV}, {16*336}""")
    for n in range(5):
        a(f"""v_add_u32 v222, {64*n}, v{vLANE}
v_mul_u32_u24 v223, 3277, v222
v_lshrrev_b32 v223, 16, v223
v_mul_u32_u24 v224, 20, v223
v_sub_u32 v224, v222, v224
v_lshrrev_b32 v225, 2, v223
v_lshlrev_b32 v225, 3, v225
v_bfe_u32 v226, v223, 1, 1
v_add_u32 v225, v225, v226
v_and_b32 v226, 1, v223
v_lshl_add_u32 v225, v226, 2, v225
v_add_u32 v225, s{sT3}, v225
v_mul_u32_u24 v225, 2560, v225
v_lshl_add_u32 v226, v224, 4, s{sT4}
v_add_u32 v{FO[n]}, v225, v226
v_mul_u32_u24 v225, 336, v223
v_lshl_add_u32 v225, v224, 4, v225
v_add_u32 v{FL[n]}, s{sT5}, v225""")
        if n == 2:
            a.wait(vm=[("c", 0)], lg="all")
            run_ops(c_reads(0, vCR, 0))
    a(f"""s_lshr_b32 s{sT2}, s{sRB}, 1
s_lshl_b32 s{sT2}, s{sT2}, 7
s_add_u32 s{sT3}, s{sT2}, {FB}
v_lshl_add_u32 v{vFB}, v{vLANE}, 11, s{sT3}
s_and_b32 s{sT3}, s{sRB}, 1
s_lshl_b32 s{sT3}, s{sT3}, 13
s_add_u32 s{sT2}, s{sT2}, s{sT3}
s_add_u32 s{sT2}, s{sT2}, {FM - 16*2048}
v_lshl_add_u32 v222, v{vLANE}, 11, s{sT2}
s_lshl_b32 s{sT2}, s{sCT}, 8
s_add_u32 s{sT2}, s{sT2}, {FM}
v_lshrrev_b32 v{vFM}, 1, v{vLANE}
v_lshl_add_u32 v{vFM}, v{vFM}, 11, s{sT2}
v_and_b32 v223, 1, v{vLANE}
v_lshl_add_u32 v{vFM}, v223, 7, v{vFM}
v_cmp_gt_u32 vcc, 16, v{vLANE}
v_cndmask_b32 v{vFM}, v222, v{vFM}, vcc
v_and_b32 v222, 15, v{vLANE}
v_lshlrev_b32 v{vGA}, 2, v222
v_lshrrev_b32 v223, 4, v{vLANE}
v_mul_u32_u24 v222, 336, v222
v_lshl_add_u32 v222, v223, 4, v222
s_mul_i32 s{sT2}, s{sWV}, {64*336}
v_add_u32 v{vRW}, s{sT2}, v222""")
    a.wait(vm=[("c", 1)], lg="all")
    run_ops(c_reads(1, vCR, 10240))
    a.wait(vm="all")
    for n in range(10):
        d = AH + 2*n
        a(f"""v_lshlrev_b32 v222, 16, v{200+n}
v_and_b32 v223, 0xffff0000, v{200+n}
v_lshlrev_b32 v224, 16, v{210+n}
v_and_b32 v225, 0xffff0000, v{210+n}
v_pk_mul_f32 v[222:223], v[222:223], v[224:225]
v_cvt_pk_bf16_f32 v222, v222, v223
v_lshlrev_b32 v{d}, 16, v222
v_and_b32 v{d+1}, 0xffff0000, v222""")
    a.wait(lg="all")
    stamp(7)
    a(f"s_cmp_lg_u32 s{sWV}, 0\ns_cbranch_scc1 LK_np0")
    poll(vFM, vTmp, "0xfffff", "fm")
    a("LK_np0:\ns_barrier")
    stamp(13)
    for i in range(4):
        a(f"""s_lshl_b32 s{sT2}, s{sRB}, 2
s_add_u32 s{sT2}, s{sT2}, s{sMT+i}
s_lshl_b32 s{sT2}, s{sT2}, 6
s_add_u32 s{sT2}, s{sT2}, {WS_G}""")
        a.vmem(f"buffer_load_dword v{vG+2*i}, v{vGA}, {srd(SWS)}, s{sT2} offen sc1", "g")
    for i in range(5):
        for nt in range(5):
            a.vmem(f"buffer_load_dwordx4 {MH[i*5+nt]}, v{vM+nt}, {srd(SWS)}, s{sKQ+i} offen sc1", "M")
    a(f"s_cmp_lg_u32 s{sWV}, 0\ns_cbranch_scc1 LK_np")
    poll(vFB, vTmp, "0xff", "fb")
    a("LK_np:\ns_barrier")
    stamp(8)
    frags = [("h", i, ks, mt) for i in range(5) for ks in range(2) for mt in range(4)] + [("w", i, 0, mt) for mt in range(4) for i in range(5)]
    def issueA(n):
        kind, i, ks, mt = frags[n]
        r = STG[n % NS]
        if kind == "h": a.vmem(f"buffer_load_dwordx4 {v4(r)}, v{vA+mt}, {srd(SWS)}, s{sKA+i} offen offset:{ks*1024} sc1", ("A", n))
        else: a.vmem(f"buffer_load_dwordx4 {v4(r)}, v{vA+mt}, {srd(SWS)}, s{sKA+5+i} offen sc1", ("A", n))
    for n in range(NS): issueA(n)
    a.wait(vm="g")
    for i in range(4):
        g = vG + 2*i
        a(f"""v_sub_f32 v{g+1}, 1.0, v{g}
v_cvt_pk_bf16_f32 v{g+1}, v{g+1}, v{g+1}
v_lshlrev_b32 v{g+1}, 16, v{g+1}
s_mul_i32 s{sMT+i}, s{sMT+i}, {16*336}""")
    pend = []
    def combine(mt):
        g = vG + 2*mt
        ops = [lambda: a(f"v_add_u32 v{vTmp}, s{sMT+mt}, v{vRW}")]
        for nt in range(5):
            h = AH + (mt*5+nt)*4; b = AB[mt % 2] + nt*4
            def f(h=h, b=b, nt=nt):
                for q in (0, 2):
                    a(f"v_pk_mul_f32 {v2(h+q)}, {v2(h+q)}, {v2(g)} op_sel_hi:[1,0]")
                for q in (0, 2):
                    a(f"v_pk_fma_f32 {v2(h+q)}, {v2(b+q)}, {v2(g)}, {v2(h+q)} op_sel:[0,1,0] op_sel_hi:[1,1,1]")
                a.lds(f"ds_write_b128 v{vTmp}, {v4(h)} offset:{nt*64}", "red")
            ops.append(f)
        return ops
    for n in range(60):
        kind, i, ks, mt = frags[n]
        a.wait(vm=[("A", n)])
        for nt in range(5):
            if kind == "h":
                d = AH + (mt*5 + nt)*4
                first = (i == 0 and ks == 0 and mt != 0)
                fa = a4(CHOME[i] + (ks*5+nt)*4)
            else:
                d = AB[mt % 2] + nt*4
                first = (i == 0)
                fa = MH[i*5 + nt]
            mfma(v4(d), fa, v4(STG[n % NS]), "0" if first else v4(d))
        if n + NS < 60: issueA(n + NS)
        if pend:
            pend.pop(0)()
            if len(pend) == 5: pend.pop(0)()
        if kind == "w" and i == 4:
            assert not pend
            pend = combine(mt)
    stamp(9)
    for f in pend: f()
    a(f"""s_cmp_lg_u32 s2, 255
s_cbranch_scc1 LK_ne
s_cmp_lg_u32 s{sWV}, 0
s_cbranch_scc1 LK_ne
v_mov_b32 v196, {WS_EPOCH}
v_mov_b32 v197, s{sTAG}
s_mov_b64 exec, 1
buffer_store_dword v197, v196, {srd(SWS)}, 0 offen sc1
s_mov_b64 exec, -1
LK_ne:""")
    a.wait(lg="all")
    a("s_barrier")
    R = 32
    for n in range(5):
        for w in range(4):
            a.lds(f"ds_read_b128 {v4(R + (n*4+w)*4)}, v{FL[n]} offset:{w*64*336}", ("rr", n))
    for n in range(5):
        a.wait(lg=[("rr", n)])
        r = R + n*16
        a(f"""v_pk_add_f32 {v2(r)}, {v2(r)}, {v2(r+4)}
v_pk_add_f32 {v2(r+2)}, {v2(r+2)}, {v2(r+6)}
v_pk_add_f32 {v2(r+8)}, {v2(r+8)}, {v2(r+12)}
v_pk_add_f32 {v2(r+10)}, {v2(r+10)}, {v2(r+14)}
v_pk_add_f32 {v2(r)}, {v2(r)}, {v2(r+8)}
v_pk_add_f32 {v2(r+2)}, {v2(r+2)}, {v2(r+10)}""")
        a.vmem(f"buffer_store_dwordx4 {v4(r)}, v{FO[n]}, {srd(SOUT)}, 0 offen", "ost")
    stamp(10)
    a("Lend:\ns_endpgm\nLcode_end:\n.fill 320, 4, 0xbf800000")

prologue()
type_A()
type_B()
k2()
body = a.text()
hdr = open("gated_mix__ssm_conv_s5__linear_attn_block__prompt.s.ref").read().split("; Override launch")[0]
src = hdr + f"; @launch grid=(256,1,1) block=(256,1,1) lds={LDS_BYTES}\n" + HEADER + kernel_begin(NAME) + body + kernel_desc(NAME, 512, 102, 256)
out = sys.argv[1] if len(sys.argv) > 1 else "k.s"
open(out, "w").write(src)
print("written", out, "nops inserted:", a.nnop, "lines", src.count("\n"))
```

```python
import sys, os
sys.path.insert(0, "work")
from asmlib import *

STAMPS = int(os.environ.get("STAMPS", "0"))
NODMA = int(os.environ.get("NODMA", "0"))
NOMFMA = int(os.environ.get("NOMFMA", "0"))
NOREAD = int(os.environ.get("NOREAD", "0"))
LOOKA = int(os.environ.get("LOOK", "5"))

WS_A = 0
WS_M = 0x800000
WS_KVP = 0x900000
WS_ZP = 0xA00000
WS_SP = 0xA40000
WS_G = 0xA80000
WS_FL = 0xA90000
FKV, FM, FB = WS_FL, WS_FL + 0x4000, WS_FL + 0x8000
WS_EPOCH = 0xAC0000
WS_SIZE = 0xAD0000
WS_STAMP = 0xC000000
OOB = 0x40000000
RT = 61440
L_W = 65536
L_SCR = 147456
L_PT = L_SCR
L_LT = L_SCR + 3840
L_ZB = L_LT + 10240
L_HB = L_ZB + 320
L_EB = 0
L_GW = L_SCR
L_WO = L_SCR + 2048
L_KVB = L_WO + 7168
LDS_BYTES = 163840
sWV, sR, sJ, sTAG, sT0 = 3, 4, 5, 6, 7
SX, SW, SQ, SWS, SOUT = 8, 12, 16, 20, 24
sRB, sCT, sOFF, sT1 = 28, 29, 30, 31
pX, pLRE, pLIM, pBRE, pBIM, pCRE, pCIM, pLDT, pDSK, pBX, pQKV, pWO, pGW, pOUT, pDBG, pWS = range(32, 64, 2)
sKA = 64
sKQ = 74
sLC = 84
sXB, sWB, sCW = 89, 90, 91
sT2, sT3, sT4, sT5 = 92, 93, 94, 95
sSPIN = 96
sJL = 101
sST = 98
sM0, sM1 = 50, 51
vTID, vLANE = 0, 1
vX = 2
vW = 6
vQ = 11
vXR = 16
vWR = 18
vT40 = 22
vC = 26
vCR = 30
ACC = 32

def srd(n): return f"s[{n}:{n+3}]"
def sp(n): return f"s[{n}:{n+1}]"
def v4(n): return f"v[{n}:{n+3}]"
def v2(n): return f"v[{n}:{n+1}]"
def a4(n): return f"a[{n}:{n+3}]"

a = Asm()
nstamp = [0]
def stamp(idx, existing=False):
    if not STAMPS: return
    if not existing: a(f"s_memrealtime {sp(sST)}\ns_memtime s[96:97]")
    a(f"""s_lshl_b32 s100, s2, 2
s_add_u32 s100, s100, s{sWV}
s_lshl_b32 s100, s100, 8
s_add_u32 s100, s100, {idx*16}
s_waitcnt lgkmcnt(0)
v_mov_b32 v252, s{sST}
v_mov_b32 v253, s{sST+1}
v_mov_b32 v254, s96
v_mov_b32 v255, s97
v_mov_b32 v251, s100
s_add_u32 s{sST}, s{pWS}, {WS_STAMP}
s_addc_u32 s{sST+1}, s{pWS+1}, 0""")
    a.lg = []
    if STAMPS == 2:
        L = a.label("Lst")
        a(f"""s_cmp_lg_u32 s100, {int(os.environ.get('DBGWG', '0'))*1024 + idx*16}
s_cbranch_scc1 {L}
s_load_dwordx2 {sp(sST)}, s[0:1], 112
v_mov_b32 v251, {idx*4}
s_waitcnt lgkmcnt(0)""")
        a.vmem(f"global_store_dword v251, v252, {sp(sST)}", "stamp", certain=False)
        a(f"{L}:")
        return
    a.vmem(f"global_store_dwordx4 v251, v[252:255], {sp(sST)}", "stamp")

def mfma(d, A, B, C):
    a(f"v_mfma_f32_16x16x32_bf16 {d}, {A}, {B}, {C}")

def mk_srd(n, ptr, size):
    a(f"s_mov_b32 s{n}, s{ptr}\ns_and_b32 s{n+1}, s{ptr+1}, 0xffff\ns_mov_b32 s{n+2}, {size}\ns_mov_b32 s{n+3}, 0x20000")

def poll(vaddr, vtmp, execmask, name):
    L = a.label("Lpoll"); E = a.label("Lpolle")
    a(f"s_mov_b64 exec, {execmask}\ns_mov_b32 s{sSPIN}, 0\n{L}:")
    a(f"buffer_load_dword v{vtmp}, v{vaddr}, {srd(SWS)}, 0 offen sc1")
    a(f"""s_add_u32 s{sSPIN}, s{sSPIN}, 1
s_waitcnt vmcnt(0)
v_cmp_ne_u32 vcc, s{sTAG}, v{vtmp}
s_cmp_gt_u32 s{sSPIN}, 0x20000
s_cbranch_scc1 {E}
s_cbranch_vccnz {L}
{E}:
s_mov_b64 exec, -1""")

def wq_pattern(dst, sadd):
    for i in range(5):
        a(f"""v_add_u32 v52, {64*i}, v{vLANE}
v_mul_u32_u24 v53, 6554, v52
v_lshrrev_b32 v53, 16, v53
v_mul_u32_u24 v54, 10, v53
v_sub_u32 v54, v52, v54
v_lshrrev_b32 v55, 1, v53
v_and_b32 v55, 4, v55
v_xor_b32 v53, v53, v55
v_mul_u32_u24 v53, 3840, v53
v_lshl_add_u32 v54, v54, 4, s{sadd}""")
        if i & 3: a(f"v_subrev_u32 v53, {(i&3)*1024}, v53")
        a(f"v_add_u32 v{dst+i}, v53, v54")

def prologue():
    if STAMPS: a(f"s_memrealtime {sp(sST)}\ns_memtime s[96:97]")
    a(f"""s_cmp_ge_u32 s2, 256
s_cbranch_scc1 Lend
s_load_dwordx16 s[32:47], s[0:1], 0
s_load_dwordx16 s[48:63], s[0:1], 64
v_and_b32 v{vLANE}, 63, v0
v_lshrrev_b32 v32, 6, v0
s_and_b32 s{sT0}, s2, 7
s_lshr_b32 s{sT1}, s2, 3
v_readfirstlane_b32 s{sWV}, v32""")
    a(f"""s_getpc_b64 s[92:93]
Lpc:
s_lshl_b32 s{sT4}, s{sWV}, 5
s_add_u32 s{sT4}, s{sT4}, s{sT1}
s_lshl_b32 s{sT4}, s{sT4}, 10
s_cmp_ge_u32 s{sT4}, Lcode_end-Lpc
s_cbranch_scc1 Lnopf
v_lshl_add_u32 v33, v{vLANE}, 4, s{sT4}""")
    a.vmem(f"global_load_dwordx4 v[36:39], v33, s[92:93]", "pf", certain=False)
    a("Lnopf:")
    a(f"""s_lshr_b32 s{sR}, s{sT0}, 2
s_lshl_b32 s{sR}, s{sR}, 3
s_and_b32 s{sCT}, s{sT1}, 7
s_add_u32 s{sR}, s{sR}, s{sCT}
s_lshr_b32 s{sJL}, s{sT1}, 3
s_and_b32 s{sJ}, s{sT0}, 3
s_lshl_b32 s{sJ}, s{sJ}, 1
s_and_b32 s{sT3}, s{sJL}, 1
s_add_u32 s{sJ}, s{sJ}, s{sT3}
s_lshl_b32 s{sRB}, s{sT0}, 2
s_add_u32 s{sRB}, s{sRB}, s{sJL}
s_lshr_b32 s{sT2}, s{sCT}, 2
s_add_u32 s{sT2}, s{sT2}, s{sCT}
s_mul_i32 s{sT3}, s{sJL}, 5
s_add_u32 s{sT3}, s{sT3}, 1
s_lshr_b32 s{sT3}, s{sT3}, 1
s_add_u32 s{sT2}, s{sT2}, s{sT3}
s_sub_u32 s{sT3}, s{sT2}, 10
s_cmp_ge_u32 s{sT2}, 10
s_cselect_b32 s{sT2}, s{sT3}, s{sT2}
s_lshl_b32 s{sKA}, s{sT2}, 7
s_add_u32 s{sKA+1}, s{sKA}, 128
s_cmp_eq_u32 s{sKA+1}, 1280
s_cselect_b32 s{sKA+1}, 0, s{sKA+1}
s_lshl_b32 s{sXB}, s{sWV}, 14
s_mul_i32 s{sWB}, s{sWV}, 5120
s_add_u32 s{sWB}, s{sWB}, {L_W}""")
    a(f"""v_lshrrev_b32 v40, 3, v{vLANE}
v_and_b32 v41, 7, v{vLANE}
v_lshrrev_b32 v43, 1, v40
v_xor_b32 v41, v41, v43
v_lshlrev_b32 v41, 4, v41
v_lshrrev_b32 v42, 2, v40
v_lshlrev_b32 v42, 3, v42
v_and_b32 v43, 1, v43
v_add_u32 v42, v42, v43
v_and_b32 v43, 1, v40
v_lshl_add_u32 v42, v43, 2, v42
s_lshl_b32 s{sT2}, s{sR}, 7
s_lshl_b32 s{sT3}, s{sWV}, 5
s_add_u32 s{sT2}, s{sT2}, s{sT3}
v_add_u32 v42, s{sT2}, v42
v_mul_u32_u24 v42, 1280, v42
v_add_u32 v{vX}, v42, v41
v_xor_b32 v44, 64, v41
v_add_u32 v{vX+1}, v42, v44
v_add_u32 v{vX+1}, {16*1280-1024}, v{vX+1}
v_add_u32 v{vX+2}, 512, v{vX}
v_add_u32 v{vX+3}, 512, v{vX+1}
v_mul_u32_u24 v43, 1280, v40
v_add_u32 v45, v43, v41
v_add_u32 v46, v43, v44
s_mov_b32 s{SX+2}, {2048*1280}
s_mov_b32 s{SX+3}, 0x20000
s_mov_b32 s{SW+2}, {640*1280}
s_mov_b32 s{SW+3}, 0x20000
s_mov_b32 s{SQ+2}, {640*3840}
s_mov_b32 s{SQ+3}, 0x20000
s_cmp_lt_u32 s{sJL}, 2
s_cbranch_scc1 LtypeB""")

def args_ready():
    a("s_waitcnt lgkmcnt(0)")
    stamp(11, True)
    stamp(12)
    a(f"s_mov_b32 s{SX}, s{pX}\ns_and_b32 s{SX+1}, s{pX+1}, 0xffff")

def late_setup():
    mk_srd(SWS, pWS, WS_SIZE)
    a(f"""s_add_u32 s{sT2}, s{pWS}, {WS_EPOCH}
s_addc_u32 s{sT3}, s{pWS+1}, 0
s_load_dword s{sTAG}, s[{sT2}:{sT3}], 0""")
    for s in range(2, 10):
        a(f"s_add_u32 s{sKA+s}, s{sKA+s-1}, 128\ns_cmp_eq_u32 s{sKA+s}, 1280\ns_cselect_b32 s{sKA+s}, 0, s{sKA+s}")
    for s in range(2, 10):
        a(f"s_mul_i32 s{sKQ+s}, s{sKA+s}, 1920")
    a(f"""s_lshl_b32 s{sOFF}, s{sJL}, 1
s_add_u32 s{sOFF}, s{sOFF}, s{sCT}
s_sub_u32 s{sT3}, s{sOFF}, 10
s_cmp_ge_u32 s{sOFF}, 10
s_cselect_b32 s{sOFF}, s{sT3}, s{sOFF}
s_sub_u32 s{sT3}, s{sOFF}, 5
s_cmp_ge_u32 s{sOFF}, 5
s_cselect_b32 s{sOFF}, s{sT3}, s{sOFF}
s_mul_i32 s{sT2}, s{sWV}, 5
s_add_u32 s{sT2}, s{sT2}, s{sOFF}""")
    for i in range(5):
        a(f"s_add_u32 s{sLC+i}, s{sT2}, {i}\ns_sub_u32 s{sT3}, s{sLC+i}, 20\ns_cmp_ge_u32 s{sLC+i}, 20\ns_cselect_b32 s{sLC+i}, s{sT3}, s{sLC+i}")
    a(f"""s_mul_i32 s{sCW}, s{sWV}, 20480
s_add_u32 s{sCW}, s{sCW}, {L_W}""")
    a(f"""v_and_b32 v52, 15, v{vLANE}
v_lshrrev_b32 v53, 4, v{vLANE}
v_lshrrev_b32 v54, 1, v52
v_xor_b32 v54, v54, v53
v_lshlrev_b32 v54, 4, v54
v_lshl_add_u32 v56, v52, 7, v54
v_xor_b32 v57, 64, v56
v_add_u32 v{vXR}, s{sXB}, v56
v_add_u32 v{vXR+1}, s{sXB}, v57
v_add_u32 v{vCR}, s{sCW}, v56
v_add_u32 v{vCR+1}, s{sCW}, v57""")
    a(f"""v_bfe_u32 v54, v{vLANE}, 2, 2
v_lshl_add_u32 v54, v53, 3, v54
v_and_b32 v55, 1, v53
v_lshlrev_b32 v55, 2, v55
v_add_u32 v58, v54, v55
v_xor_b32 v55, 4, v55
v_add_u32 v59, v54, v55
v_mul_u32_u24 v58, 160, v58
v_mul_u32_u24 v59, 160, v59
v_and_b32 v60, 3, v{vLANE}
v_mul_u32_u24 v61, 40, v60
v_add_u32 v62, v58, v61
v_add_u32 v63, v59, v61
v_add_u32 v{vT40}, {L_W}, v62
v_add_u32 v{vT40+1}, {L_W}, v63
v_add_u32 v{vT40+2}, {L_W+40960}, v62
v_add_u32 v{vT40+3}, {L_W+40960}, v63""")
    a(f"""s_mul_i32 s{sT2}, s{sCT}, {80*1280}
v_add_u32 v{vC}, s{sT2}, v45
v_add_u32 v{vC+1}, s{sT2}, v46
v_add_u32 v{vC+1}, {10240-1024}, v{vC+1}
v_add_u32 v{vC+2}, {2*(10240-1024)}, v{vC}
v_add_u32 v{vC+3}, {2*(10240-1024)}, v{vC+1}""")

def tag_ready():
    a(f"""s_waitcnt lgkmcnt(0)
s_add_u32 s{sTAG}, s{sTAG}, 0x9e3779b1""")
    a.lg = []

def set_flag(base, lab, vt):
    a(f"""s_cmp_lg_u32 s{sWV}, 0
s_cbranch_scc1 {lab}
s_lshl_b32 s{sT0}, s{sJ}, 4
s_add_u32 s{sT0}, s{sT0}, s{sR}
s_lshl_b32 s{sT0}, s{sT0}, 7
s_add_u32 s{sT0}, s{sT0}, {base}
v_mov_b32 v{vt}, s{sT0}
v_mov_b32 v{vt+1}, s{sTAG}
s_mov_b64 exec, 1""")
    a.vmem(f"buffer_store_dword v{vt+1}, v{vt}, {srd(SWS)}, 0 offen sc1", "fl", certain=False)
    a(f"s_mov_b64 exec, -1\n{lab}:")

def pk_cmul_acc(d, l, p, acc):
    a(f"""v_pk_fma_f32 {v2(d)}, {v2(p)}, {v2(l)}, {v2(acc)} op_sel_hi:[1,0,1]
v_pk_fma_f32 {v2(d)}, {v2(p)}, {v2(l)}, {v2(d)} op_sel:[1,1,0] op_sel_hi:[0,1,1] neg_lo:[0,1,0]""")

def dma_x(s):
    ops = []
    def m0(): a(f"s_add_u32 m0, s{sXB}, {(s%4)*4096}")
    ops.append(("s", m0))
    for i in range(4):
        def f(i=i): a.vmem(f"buffer_load_dwordx4 v{vX+i}, {srd(SX)}, s{sKA+s} offen offset:{i*1024} lds", ("st", s))
        ops.append(("d", f))
    return ops
def dma_w(s, vaddr, rsrc, soff):
    ops = []
    def m0(): a(f"s_add_u32 m0, s{sWB}, {(s%4)*20480}")
    ops.append(("s", m0))
    for i in range(4):
        def f(i=i): a.vmem(f"buffer_load_dwordx4 v{vaddr+i}, {srd(rsrc)}, s{soff} offen offset:{i*1024} lds", ("st", s))
        ops.append(("d", f))
    def m1(): a(f"s_add_u32 m0, s{sWB}, {(s%4)*20480+4096}")
    ops.append(("s", m1))
    def g(): a.vmem(f"buffer_load_dwordx4 v{vaddr+4}, {srd(rsrc)}, s{soff} offen lds", ("st", s))
    ops.append(("d", g))
    return ops
def dma_c(slot, sbase, ldsoff):
    ops = []
    def setup():
        a(f"""s_cmp_ge_u32 s{sLC+slot}, 10
s_cselect_b32 s{SW}, s{pCIM}, s{pCRE}
s_cselect_b32 s{SW+1}, s{pCIM+1}, s{pCRE+1}
s_cselect_b32 s{sM1}, 1280, 0
s_and_b32 s{SW+1}, s{SW+1}, 0xffff
s_lshl_b32 s{sM0}, s{sLC+slot}, 7
s_sub_u32 s{sM0}, s{sM0}, s{sM1}""")
    ops.append(("s", setup))
    for g in range(3):
        def m0(g=g):
            a(f"s_add_u32 m0, s{sbase}, {ldsoff + g*4096}")
            if g: a(f"s_add_u32 s{sM0}, s{sM0}, 40960")
        ops.append(("s", m0))
        for i in range(4 if g < 2 else 2):
            def f(i=i): a.vmem(f"buffer_load_dwordx4 v{vC+i}, {srd(SW)}, s{sM0} offen offset:{i*1024} lds", ("c", slot))
            ops.append(("d", f))
    return ops
CHOME = [160, 200, 0, 40, 80]
def c_reads(slot, vbase, ldsoff):
    ops = []
    for ks in range(2):
        for nt in range(5):
            def f(ks=ks, nt=nt):
                a.lds(f"ds_read_b128 {a4(CHOME[slot] + (ks*5+nt)*4)}, v{vbase+ks} offset:{ldsoff + nt*2048}", ("cr", slot))
            ops.append(("r", f))
    return ops

class BG:
    def __init__(self): self.q = []; self.keys = {}; self.fast = False
    def add(self, ops, key=None):
        self.q.extend(ops)
        if key is not None: self.keys[key] = ops[-1]
    def require(self, key):
        last = self.keys.get(key)
        while last in self.q:
            print("note: forced flush for", key)
            self.q.pop(0)[1]()
    def tick(self, n=1):
        while n > 0 and self.q:
            k, f = self.q.pop(0)
            f()
            if k != "s": n -= 1
    def tick_s(self):
        while self.q and self.q[0][0] == "s":
            self.q.pop(0)[1]()
    def flush(self):
        while self.q: self.q.pop(0)[1]()

def run_ops(ops):
    for k, f in ops: f()

def gemm_loop(nstage, frags_per_stage, read_frag, mfmas, x_reads, stage_dma, bg, ring, LOOK, hooks, first_stage=0, pre_issued=2):
    F = frags_per_stage
    total = nstage * F
    NR = len(ring)
    def sid(f): return first_stage + f // F, f % F
    def issue(f):
        s, i = sid(f)
        if i == 0:
            bg.require(s)
            a.wait(vm=[("st", s)])
            a("s_barrier")
            d = stage_dma(s + 2)
            if d and s + 2 >= pre_issued and not NODMA: bg.add(d, s + 2)
        xr = x_reads(s)
        if i in xr:
            for e in xr[i]: e()
        if not NOREAD: read_frag(s, i, ring[f % NR])
    for f in range(min(LOOK, total)): issue(f)
    for f in range(total):
        s, i = sid(f)
        if (s, i) in hooks: hooks[(s, i)]()
        if f % 2 == 0:
            f2 = min(f + 1, total - 1)
            s2, i2 = sid(f2)
            a.wait(lg=[("w", s, i), ("w", s2, i2)])
        ms = mfmas(s, i, ring[f % NR])
        if NOMFMA: ms = [lambda: None, lambda: None]
        ms[0]()
        if f + LOOK < total: issue(f + LOOK)
        ms[1]()
        if f % 2 == 0 or bg.fast: bg.tick(1)
        else: bg.tick_s()

LOG2E = 0x3fb8aa3b
def phi(regs, sconst_log2e, tmp, NT=4):
    for n, r in enumerate(regs):
        t = tmp + (n % NT) * 2
        a(f"v_pk_mul_f32 {v2(t)}, {v2(r)}, {sp(sconst_log2e)} op_sel_hi:[1,0]")
        a(f"v_max_f32 v{r}, 0x358637bd, v{r}\nv_max_f32 v{r+1}, 0x358637bd, v{r+1}")
        a(f"v_exp_f32_e64 v{t}, v{t} clamp\nv_exp_f32_e64 v{t+1}, v{t+1} clamp")
        if n > 0:
            rp = regs[n-1]; tp = tmp + ((n-1) % NT) * 2
            a(f"v_pk_add_f32 {v2(rp)}, {v2(rp)}, {v2(tp)}")
    rp = regs[-1]; tp = tmp + ((len(regs)-1) % NT) * 2
    a(f"v_pk_add_f32 {v2(rp)}, {v2(rp)}, {v2(tp)}")

def cmul_acc(dr, di, lr, li, pr, pi, ar, ai):
    a(f"""v_fma_f32 v{dr}, v{lr}, v{pr}, v{ar}
v_fma_f32 v{di}, v{lr}, v{pi}, v{ai}
v_fma_f32 v{dr}, -v{li}, v{pi}, v{dr}
v_fma_f32 v{di}, v{li}, v{pr}, v{di}""")

def c_tail():
    a.wait(vm=[("c", 3)])
    run_ops(c_reads(3, vCR, 0))
    a.wait(lg="all")
    run_ops(dma_c(0, sCW, 0))
    a.wait(vm=[("c", 4)])
    run_ops(c_reads(4, vCR, 10240))
    a.wait(lg="all")
    run_ops(dma_c(1, sCW, 10240))

def type_A():
    bg = BG()
    AK, AG = ACC, ACC + 80
    RING = [128 + 4*i for i in range(8)]
    sZB, sKVB, sGA, sMa, sMb, sMc, sMd, sGB = 34, 35, 36, 37, 38, 39, 40, 41
    sMK = 60
    sGW = 46
    a(f"""s_lshr_b32 s{sT2}, s{sWV}, 1
s_add_u32 s{sT2}, s{sT2}, 1
s_mul_i32 s{sT2}, s{sT2}, 1280
s_mul_i32 s{sT3}, s{sJ}, 160
s_add_u32 s{sT2}, s{sT2}, s{sT3}
s_and_b32 s{sT3}, s{sWV}, 1
s_mul_i32 s{sT3}, s{sT3}, {32*3840}
s_add_u32 s{sT2}, s{sT2}, s{sT3}
s_mul_i32 s{sKQ}, s{sKA}, 1920
s_mul_i32 s{sKQ+1}, s{sKA+1}, 1920""")
    wq_pattern(vW, sT2)
    args_ready()
    a(f"s_mov_b32 s{SQ}, s{pQKV}\ns_and_b32 s{SQ+1}, s{pQKV+1}, 0xffff")
    def stage_dma(s):
        if s >= 10: return None
        return dma_x(s) + dma_w(s, vW, SQ, sKQ + s)
    run_ops(stage_dma(0))
    mk_srd(SW, pGW, 1280)
    a(f"""s_and_b32 s{sT2}, s{sWV}, 1
s_lshl_b32 s{sT2}, s{sT2}, 10
s_add_u32 m0, s{sT2}, {L_GW}
v_lshlrev_b32 v64, 4, v{vLANE}""")
    a.vmem(f"buffer_load_dwordx4 v64, {srd(SW)}, s{sT2} offen lds", ("st", 0))
    late_setup()
    a(f"""v_mov_b32 v68, 0
v_mov_b32 v69, 0
v_mov_b32 v70, 0
v_mov_b32 v71, 0
v_lshlrev_b32 v65, 4, v0
v_add_u32 v65, {L_KVB}, v65
v_cmp_gt_u32 vcc, 164, v0
s_and_saveexec_b64 {sp(sT2)}, vcc""")
    a.lds("ds_write_b128 v65, v[68:71]", "z0")
    a(f"s_mov_b64 exec, {sp(sT2)}")
    vXM = vQ + 1
    a(f"""v_lshlrev_b32 v61, 3, v60
v_add_u32 v62, v58, v61
v_add_u32 v63, v59, v61
v_add_u32 v{vWR}, {L_W}, v62
v_add_u32 v{vWR+1}, {L_W}, v63
v_add_u32 v{vWR+2}, {L_W+40960}, v62
v_add_u32 v{vWR+3}, {L_W+40960}, v63
v_lshrrev_b32 v{vQ}, 4, v{vLANE}
v_lshlrev_b32 v{vQ}, 4, v{vQ}
v_add_u32 v{vQ}, {L_GW}, v{vQ}
s_and_b32 s{sT2}, s{sJ}, 1
s_lshl_b32 s{sT2}, s{sT2}, 11
s_xor_b32 s{sT3}, s{sT2}, 2048
v_add_u32 v{vXM}, s{sT2}, v{vXR}
v_add_u32 v{vXM+1}, s{sT2}, v{vXR+1}
v_add_u32 v{vXM+2}, s{sT3}, v{vXR}
v_add_u32 v{vXM+3}, s{sT3}, v{vXR+1}""")
    run_ops(stage_dma(1))
    mk_srd(SW, pWO, 640*1280)
    a(f"""s_and_b32 s{sT1}, s{sR}, 1
s_mul_i32 s{sT2}, s{sT1}, 40
s_mul_i32 s{sT3}, s{sJ}, 80
s_add_u32 s{sT2}, s{sT2}, s{sT3}
s_mul_i32 s{sT2}, s{sT2}, 1280
s_lshr_b32 s{sT3}, s{sR}, 1
s_mul_i32 s{sT3}, s{sT3}, 160
s_add_u32 s{sT2}, s{sT2}, s{sT3}
s_lshl_b32 s{sT4}, s{sWV}, 10
v_mov_b32 v211, {OOB}""")
    for n in range(2):
        a(f"""v_add_u32 v65, {256*n}, v0
v_mul_u32_u24 v66, 6554, v65
v_lshrrev_b32 v66, 16, v66
v_mul_u32_u24 v67, 10, v66
v_sub_u32 v67, v65, v67
v_mul_u32_u24 v66, 1280, v66
v_lshl_add_u32 v66, v67, 4, v66
v_cmp_gt_u32 vcc, 400, v65
v_cndmask_b32 v66, v211, v66, vcc
s_add_u32 m0, s{sT4}, {L_WO + 4096*n}""")
        if n == 1:
            a(f"s_cmp_eq_u32 s{sWV}, 3\ns_cbranch_scc1 LskipWo")
            a.vmem(f"buffer_load_dwordx4 v66, {srd(SW)}, s{sT2} offen lds", ("st", 1), certain=False)
            a("LskipWo:")
        else:
            a.vmem(f"buffer_load_dwordx4 v66, {srd(SW)}, s{sT2} offen lds", ("st", 1))
    vGS, vZ1, vZ2, vK1, vK2, vK3, vK4 = 212, 213, 214, 215, 216, 217, 218
    vXW, vR0, vR1, vKP, vKB = 219, 220, 221, 222, 223
    vOa0, vOa1, vOb0, vOb1, vOc0, vOc1 = 224, 225, 226, 227, 228, 229
    vWo = 230
    vMS, vMR, vONE, vTG = 234, 235, 236, 237
    ZR = L_KVB + 2560
    def precompute():
        a(f"""v_and_b32 v208, 15, v{vLANE}
v_lshrrev_b32 v209, 4, v{vLANE}
v_lshrrev_b32 v210, 2, v208
v_lshlrev_b32 v{vGS}, 4, v209
v_cmp_eq_u32 vcc, 0, v208
v_cndmask_b32 v{vGS}, v211, v{vGS}, vcc
s_lshl_b32 s{sGB}, s{sR}, 3
s_add_u32 s{sGB}, s{sGB}, s{sJ}
s_lshl_b32 s{sGB}, s{sGB}, 6
s_add_u32 s{sGB}, s{sGB}, {WS_G}
v_cmp_eq_u32 {sp(sMK)}, s{sWV}, v210
v_cmp_eq_u32 {sp(sT4)}, s{sWV}, v209
s_add_u32 s{sT2}, s{sWV}, 1
s_and_b32 s{sT2}, s{sT2}, 3
v_cmp_eq_u32 vcc, s{sT2}, v209
v_lshlrev_b32 v{vZ1}, 2, v208
v_and_b32 v240, 3, v208
v_add_u32 v241, 16, v240
v_lshlrev_b32 v{vZ2}, 2, v241
v_cndmask_b32 v{vZ1}, v211, v{vZ1}, vcc
v_cndmask_b32 v{vZ2}, v211, v{vZ2}, vcc
v_cndmask_b32 v{vZ2}, v211, v{vZ2}, {sp(sMK)}
s_lshl_b32 s{sT2}, s{sJ}, 4
s_add_u32 s{sT2}, s{sT2}, s{sR}
s_mul_i32 s{sZB}, s{sT2}, 320
s_mul_i32 s{sT3}, s{sWV}, 80
s_add_u32 s{sZB}, s{sZB}, s{sT3}
s_add_u32 s{sZB}, s{sZB}, {WS_ZP}
v_mul_u32_u24 v242, 320, v209
v_lshl_add_u32 v{vK1}, v208, 4, v242
v_lshlrev_b32 v{vK2}, 4, v208
v_cndmask_b32 v{vK2}, v211, v{vK2}, {sp(sT4)}
v_lshl_add_u32 v{vK3}, v241, 4, v242
v_cndmask_b32 v{vK3}, v211, v{vK3}, {sp(sMK)}
v_lshlrev_b32 v{vK4}, 4, v241
v_cndmask_b32 v{vK4}, v211, v{vK4}, {sp(sMK)}
v_cndmask_b32 v{vK4}, v211, v{vK4}, {sp(sT4)}
s_mul_i32 s{sKVB}, s{sT2}, 6400
s_mul_i32 s{sT3}, s{sWV}, 1600
s_add_u32 s{sKVB}, s{sKVB}, s{sT3}
s_add_u32 s{sKVB}, s{sKVB}, {WS_KVP}
v_lshlrev_b32 v{vR0}, 4, v{vLANE}
v_add_u32 v{vXW}, s{sXB}, v{vR0}
s_lshl_b32 s{sT2}, s{sWV}, 10
v_add_u32 v{vR1}, s{sT2}, v{vR0}
v_lshlrev_b32 v{vKP}, 4, v0
v_cmp_gt_u32 vcc, 200, v0
v_cndmask_b32 v{vKP}, v211, v{vKP}, vcc
s_mul_i32 s{sGA}, s{sJ}, {16*6400}
s_and_b32 s{sT1}, s{sR}, 1
s_mul_i32 s{sT2}, s{sT1}, 3200
s_add_u32 s{sGA}, s{sGA}, s{sT2}
s_add_u32 s{sGA}, s{sGA}, {WS_KVP}""")
        a(f"""v_cmp_le_u32 vcc, 100, v0
v_subrev_u32 v242, 100, v0
v_cndmask_b32 v242, v0, v242, vcc
v_mov_b32 v243, {L_KVB}
v_mov_b32 v244, {L_KVB + 1280}
v_cndmask_b32 v243, v243, v244, vcc
v_mul_u32_u24 v244, 3277, v242
v_lshrrev_b32 v244, 16, v244
v_mul_u32_u24 v245, 20, v244
v_sub_u32 v245, v242, v245
v_lshl_add_u32 v243, v245, 6, v243
v_lshl_add_u32 v{vKB}, v244, 3, v243""")
        a(f"""v_lshrrev_b32 v242, 1, v210
v_lshl_add_u32 v242, v242, 3, v240
v_lshlrev_b32 v242, 6, v242
v_lshl_add_u32 v242, v209, 4, v242
v_add_u32 v242, {L_KVB}, v242
v_add_u32 v243, 1280, v242
v_mov_b32 v244, {ZR - 256}
v_and_b32 v245, 1, v210
v_cmp_eq_u32 vcc, 0, v245
v_cndmask_b32 v{vOb0}, v244, v242, vcc
v_cndmask_b32 v{vOb1}, v243, v244, vcc
v_mov_b32 v244, {ZR}
v_cndmask_b32 v{vOa0}, v244, v242, vcc
v_cndmask_b32 v{vOa1}, v243, v244, vcc
v_lshlrev_b32 v242, 6, v240
v_lshl_add_u32 v242, v209, 4, v242
v_add_u32 v242, {L_KVB + 16*64}, v242
v_add_u32 v243, 1280, v242
v_cmp_eq_u32 vcc, 0, v210
v_cndmask_b32 v{vOc0}, v244, v242, vcc
v_cmp_eq_u32 vcc, 1, v210
v_cndmask_b32 v{vOc1}, v244, v243, vcc""")
        a(f"""v_bfe_u32 v242, v{vLANE}, 2, 2
v_lshl_add_u32 v242, v209, 3, v242
v_add_u32 v243, 4, v242
v_min_u32 v242, 19, v242
v_min_u32 v243, 19, v243
v_mul_u32_u24 v242, 160, v242
v_mul_u32_u24 v243, 160, v243
v_lshl_add_u32 v242, v240, 3, v242
v_lshl_add_u32 v243, v240, 3, v243
v_add_u32 v{vWo+2}, {L_WO}, v242
v_add_u32 v{vWo+3}, {L_WO}, v243
s_lshl_b32 s{sT2}, s{sWV}, 5
v_add_u32 v{vWo}, s{sT2}, v{vWo+2}
v_add_u32 v{vWo+1}, s{sT2}, v{vWo+3}""")
        a(f"""v_and_b32 v242, 1, v209
v_lshrrev_b32 v243, 1, v209
v_lshl_add_u32 v242, v243, 2, v242
v_lshlrev_b32 v242, 8, v242
v_lshl_add_u32 v{vMS}, v208, 4, v242
v_lshlrev_b32 v243, 3, v209
v_lshl_add_u32 v243, v208, 4, v243
v_cmp_gt_u32 vcc, 2, v209
v_cndmask_b32 v{vMR}, v211, v243, vcc
s_lshr_b32 s{sT0}, s{sR}, 1
s_mul_i32 s{sT0}, s{sT0}, {5*20480}
s_mul_i32 s{sT2}, s{sJ}, 2560
s_add_u32 s{sT0}, s{sT0}, s{sT2}
s_add_u32 s{sT0}, s{sT0}, {WS_M}
s_lshl_b32 s{sT2}, s{sT1}, 9
s_add_u32 s{sT2}, s{sT2}, s{sT0}
s_lshl_b32 s{sT3}, s{sT1}, 8
s_add_u32 s{sT3}, s{sT3}, s{sT0}
s_mul_i32 s{sT0}, s{sWV}, 20480
s_add_u32 s{sMa}, s{sT2}, s{sT0}
s_add_u32 s{sMb}, s{sT3}, s{sT0}
s_add_u32 s{sT2}, s{sT2}, {4*20480}
s_add_u32 s{sT3}, s{sT3}, {4*20480}
s_cmp_eq_u32 s{sWV}, 0
s_cselect_b32 s{sMc}, s{sT2}, {OOB}
s_cselect_b32 s{sMd}, s{sT3}, {OOB}
v_mov_b32 v{vONE}, 0x3f803f80
v_mov_b32 v{vTG}, s{sTAG}
s_mov_b64 vcc, {sp(sGW)}""")
    tag_ready()
    a(f"""s_lshr_b32 s{sT2}, s{sJ}, 1
s_cmp_eq_u32 s{sT2}, s{sWV}
s_cselect_b64 {sp(sGW)}, -1, 0
s_mov_b64 vcc, {sp(sGW)}""")
    stamp(0)
    XA = lambda s, ks, m: (s % 2) * 16 + ks * 8 + m * 4 + 120
    def x_reads(s):
        def mk(ks):
            return [(lambda m=m: a.lds(f"ds_read_b128 {a4(XA(s, ks, m))}, v{vXM+2*m+ks} offset:{(s%4)*4096}", ("x", s, ks))) for m in range(2)]
        return {0: mk(0), 11: mk(1)}
    def read_frag(s, i, reg):
        ks, t = divmod(i, 11)
        sl = s % 4
        if t == 10:
            if ks == 0: a(f"v_add_u32 v120, s{sKA+s}, v{vQ}")
            a.lds(f"ds_read_b128 {v4(reg)}, v120 offset:{ks*64}", ("w", s, i))
            return
        seg, T = divmod(t, 5)
        off = (sl % 2) * 20480 + seg * 10240 + ks * 5120
        for hh in range(2):
            if T < 4: va, o = vWR + (sl // 2) * 2 + hh, off + 40 * T
            else: va, o = vT40 + (sl // 2) * 2 + hh, off + 32
            a.lds(f"ds_read_b64_tr_b16 {v2(reg + 2*hh)}, v{va} offset:{o}", ("w", s, i))
    def mfmas(s, i, reg):
        ks, t = divmod(i, 11)
        first = (s == 0 and ks == 0)
        if t == 10:
            def g():
                L = a.label("Lng")
                a(f"s_cbranch_vccz {L}")
                mfma(v4(AG), a4(XA(s, ks, 0)), v4(reg), "0" if first else v4(AG))
                a(f"{L}:")
            return [g, lambda: None]
        out = []
        for m in range(2):
            d = ACC + t * 8 + m * 4
            c = "0" if first else v4(d)
            out.append(lambda d=d, m=m, c=c: mfma(v4(d), a4(XA(s, ks, m)), v4(reg), c))
        return out
    gemm_loop(10, 22, read_frag, mfmas, x_reads, stage_dma, bg, RING, LOOKA, {(0, 16): precompute})
    bg.flush()
    stamp(1)
    a(f"s_mov_b32 s{sT2}, {LOG2E}\ns_movk_i32 s{sT3}, 0xff")
    T = 160
    PKR = 168
    def pack(t):
        dst = PKR + 4*t
        for q in range(4):
            a(f"v_cvt_pk_bf16_f32 v{dst+q}, v{ACC + t*8 + 2*q}, v{ACC + t*8 + 2*q + 1}")
        a.lds(f"ds_write_b128 v{vXW}, {v4(dst)} offset:{t*1024}", "kvx")
    for t in range(5):
        phi([AK + 8*t + 2*n for n in range(4)], sT2, T)
        pack(5 + t)
        pack(t)
    a.wait(lg="all")
    a("s_barrier")
    F0 = 32
    for w in range(4):
        b = F0 + w * 16
        a.lds(f"ds_read_b128 {v4(b+12)}, v{vR0} offset:{w*16384 + 9216}", ("kr", w))
        a.lds(f"ds_read_b128 {v4(b)}, v{vR1} offset:{w*16384}", ("kr", w))
        a.lds(f"ds_read_b128 {v4(b+4)}, v{vR0} offset:{w*16384 + 4096}", ("kr", w))
        a.lds(f"ds_read_b128 {v4(b+8)}, v{vR1} offset:{w*16384 + 5120}", ("kr", w))
    P = 96
    for w in range(4):
        b = F0 + w * 16
        a.wait(lg=[("kr", w)])
        for q in range(4): a(f"v_cndmask_b32 v{b+12+q}, v{vONE}, v{b+12+q}, {sp(sMK)}")
        c = lambda n: "0" if w == 0 else v4(P + 4*n)
        mfma(v4(P), v4(b+8), v4(b), c(0))
        mfma(v4(P+8), v4(b+8), v4(b+4), c(2))
        mfma(v4(P+4), v4(b+12), v4(b), c(1))
        mfma(v4(P+12), v4(b+12), v4(b+4), c(3))
    a(f"s_mov_b32 s{SW+2}, {640*1280}")
    for n in (0, 2, 1, 3):
        for q in (0, 2):
            a(f"v_bfi_b32 v{P+4*n+q}, s{sT3}, v{vTG}, v{P+4*n+q}")
    a.vmem(f"buffer_store_dword v{P+4}, v{vZ1}, {srd(SWS)}, s{sZB} offen sc1", "zst")
    a.vmem(f"buffer_store_dword v{P+12}, v{vZ2}, {srd(SWS)}, s{sZB} offen sc1", "zst")
    a.vmem(f"buffer_store_dwordx4 {v4(P)}, v{vK1}, {srd(SWS)}, s{sKVB} offen sc1", "kvst")
    a.vmem(f"buffer_store_dwordx4 {v4(P+4)}, v{vK2}, {srd(SWS)}, s{sKVB} offen offset:1280 sc1", "kvst")
    a.vmem(f"buffer_store_dwordx4 {v4(P+8)}, v{vK3}, {srd(SWS)}, s{sKVB} offen sc1", "kvst")
    a.vmem(f"buffer_store_dwordx4 {v4(P+12)}, v{vK4}, {srd(SWS)}, s{sKVB} offen offset:1280 sc1", "kvst")
    stamp(2)
    run_ops(dma_c(3, sCW, 0))
    a("s_cbranch_vccz LA_ng")
    for q in range(2):
        r = AG + 2*q
        a(f"""v_cvt_pk_bf16_f32 v{T+1}, v{r}, v{r+1}
v_lshlrev_b32 v{r}, 16, v{T+1}
v_and_b32 v{r+1}, 0xffff0000, v{T+1}
v_mul_f32 v{r}, 0xbfb8aa3b, v{r}
v_mul_f32 v{r+1}, 0xbfb8aa3b, v{r+1}
v_exp_f32 v{r}, v{r}
v_exp_f32 v{r+1}, v{r+1}
s_nop 0
v_add_f32 v{r}, 1.0, v{r}
v_add_f32 v{r+1}, 1.0, v{r+1}
v_rcp_f32 v{r}, v{r}
v_rcp_f32 v{r+1}, v{r+1}
s_nop 0
v_cvt_pk_bf16_f32 v{T+1}, v{r}, v{r+1}
v_lshlrev_b32 v{r}, 16, v{T+1}
v_and_b32 v{r+1}, 0xffff0000, v{T+1}""")
    a.vmem(f"buffer_store_dwordx4 {v4(AG)}, v{vGS}, {srd(SWS)}, s{sGB} offen sc1", "gst", certain=False)
    a("LA_ng:")
    WOF = 128
    for ts in range(2):
        for hd in range(2):
            r = WOF + (ts*2 + hd) * 4
            for hh in range(2):
                a.lds(f"ds_read_b64_tr_b16 {v2(r + 2*hh)}, v{vWo + 2*ts + hh} offset:{hd*3200 + (128 if ts else 0)}", "wof")
    run_ops(dma_c(4, sCW, 10240))
    a(f"""v_cmp_gt_u32 vcc, 200, v0
s_mov_b32 s{sSPIN}, 0
s_mov_b64 {sp(sT4)}, vcc
LA_gr:
s_mov_b32 s{sT0}, s{sGA}""")
    for n in range(16):
        a.vmem(f"buffer_load_dwordx4 {v4(32 + 4*n)}, v{vKP}, {srd(SWS)}, s{sT0} offen sc1", ("kp", n))
        if n < 15: a(f"s_add_u32 s{sT0}, s{sT0}, 6400")
    a.wait(vm=[("kp", 0)])
    a(f"v_xor_b32 v{T}, v32, v{vTG}\nv_bitop3_b32 v{T}, v{T}, v34, v{vTG} bitop3:0xf6")
    for n in range(1, 16):
        a.wait(vm=[("kp", n)])
        a(f"""v_bitop3_b32 v{T}, v{T}, v{32+4*n}, v{vTG} bitop3:0xf6
v_pk_add_f32 v[32:33], v[32:33], {v2(32+4*n)}
v_bitop3_b32 v{T}, v{T}, v{34+4*n}, v{vTG} bitop3:0xf6
v_pk_add_f32 v[34:35], v[34:35], {v2(34+4*n)}""")
    a(f"""v_and_b32 v{T}, 0xff, v{T}
v_cmp_ne_u32 vcc, 0, v{T}
s_add_u32 s{sSPIN}, s{sSPIN}, 1
s_and_b64 vcc, vcc, {sp(sT4)}
s_cmp_gt_u32 s{sSPIN}, 0x20000
s_cbranch_scc1 LA_gd
s_cbranch_vccnz LA_gr
LA_gd:
v_cvt_pk_bf16_f32 v36, v32, v33
v_cvt_pk_bf16_f32 v37, v34, v35
s_mov_b64 exec, {sp(sT4)}""")
    a.lds(f"ds_write_b64 v{vKB}, v[36:37]", "kvb")
    a("s_mov_b64 exec, -1")
    a.wait(lg="all")
    a("s_barrier")
    stamp(3)
    KF = 40
    a.lds(f"ds_read_b128 {v4(KF)}, v{vOa0}", "kf")
    a.lds(f"ds_read_b128 {v4(KF+8)}, v{vOb0} offset:256", "kf")
    a.lds(f"ds_read_b128 {v4(KF+16)}, v{vOc0}", "kf")
    a.lds(f"ds_read_b128 {v4(KF+4)}, v{vOa1}", "kf")
    a.lds(f"ds_read_b128 {v4(KF+12)}, v{vOb1} offset:256", "kf")
    a.lds(f"ds_read_b128 {v4(KF+20)}, v{vOc1}", "kf")
    a.wait(lg="all")
    MD = 64
    for hd in range(2):
        for ts in range(2):
            for tl in range(3):
                d = MD + (ts*3 + tl) * 4
                mfma(v4(d), v4(KF + tl*8 + hd*4), v4(WOF + (ts*2+hd)*4), "0" if hd == 0 else v4(d))
    for ts in range(2):
        d = MD + ts*12; o = 88 + ts*8
        for q in range(6):
            a(f"v_cvt_pk_bf16_f32 v{o+q}, v{d+2*q}, v{d+2*q+1}")
        a.vmem(f"buffer_store_dwordx4 {v4(o)}, v{vMS}, {srd(SWS)}, s{sMa if ts == 0 else sMc} offen sc1", "mst")
        a.vmem(f"buffer_store_dwordx2 {v2(o+4)}, v{vMR}, {srd(SWS)}, s{sMb if ts == 0 else sMd} offen offset:2048 sc1", "mst")
    a.wait(vm="all")
    a("s_barrier")
    set_flag(FM, "LA_nf2", 240)
    stamp(4)
    run_ops(dma_c(2, sXB, 0))
    c_tail()
    a("s_branch LK2")

def type_B():
    a("LtypeB:")
    a.vm = []; a.lg = []
    bg = BG()
    U = ACC; Q = ACC + 80
    RING = [152 + 4*i for i in range(6)]
    LAM = 176
    XR = 216
    COEF = 216
    L8, L128 = 226, 248
    T = 176
    sSa, sSb, sSc, sSd = 54, 55, 56, 57
    sSS, sXBa, sXSt, sXCn, sPEND = 60, 61, 38, 39, 40
    sVAL = 34
    a(f"""s_and_b32 s{sT2}, s{sWV}, 1
s_mul_i32 s{sT3}, s{sT2}, 40
s_mul_i32 s{sT4}, s{sJ}, 80
s_add_u32 s{sT3}, s{sT3}, s{sT4}
s_mul_i32 s{sT3}, s{sT3}, 1280
s_lshl_b32 s{sT4}, s{sT2}, 6
v_xor_b32 v64, s{sT4}, v45
v_xor_b32 v65, s{sT4}, v46
v_add_u32 v{vW}, s{sT3}, v64
v_add_u32 v65, s{sT3}, v65
v_add_u32 v{vW+1}, {10240-1024}, v65
v_add_u32 v{vW+2}, {2*(10240-1024)}, v{vW}
v_add_u32 v{vW+3}, {3*(10240-1024)}, v65
v_add_u32 v{vW+4}, {4*10240}, v{vW}
s_mul_i32 s{sT4}, s{sJ}, 160
v_min_u32 v66, 79, v0
v_lshl_add_u32 v66, v66, 1, s{sT4}
v_mov_b32 v{T}, 0
v_mov_b32 v{T+1}, 0
v_mov_b32 v{T+2}, 0
s_mul_i32 s{sKQ}, s{sKA}, 1920
s_mul_i32 s{sKQ+1}, s{sKA+1}, 1920
s_mul_i32 s{sT5}, s{sT2}, {32*3840}
s_add_u32 s{sT5}, s{sT5}, s{sT4}""")
    args_ready()
    a(f"""s_cmp_ge_u32 s{sWV}, 2
s_cselect_b32 s{SW}, s{pBIM}, s{pBRE}
s_cselect_b32 s{SW+1}, s{pBIM+1}, s{pBRE+1}
s_and_b32 s{SW+1}, s{SW+1}, 0xffff""")
    def stage_dma(s):
        if s < 10: return dma_x(s) + dma_w(s, vW, SW, sKA + s)
        if s < 15: return dma_w(s, vQ, SQ, sKQ + (s - 10))
        return None
    run_ops(stage_dma(0))
    a.vmem(f"global_load_short_d16_hi v{T}, v66, {sp(pLRE)}", "par")
    a.vmem(f"global_load_short_d16_hi v{T+1}, v66, {sp(pLIM)}", "par")
    a.vmem(f"global_load_short_d16_hi v{T+2}, v66, {sp(pLDT)}", "par")
    a(f"s_mov_b32 s{SQ}, s{pQKV}\ns_and_b32 s{SQ+1}, s{pQKV+1}, 0xffff")
    wq_pattern(vQ, sT5)
    late_setup()
    a(f"s_cmp_ge_u32 s{sWV}, 2")
    for q in range(5): a(f"s_cselect_b32 s{sKQ+q}, s{sKQ+2*q+1}, s{sKQ+2*q}")
    a(f"""v_add_u32 v{vWR}, {L_W}, v56
v_add_u32 v{vWR+1}, {L_W}, v57
v_add_u32 v{vWR+2}, {L_W+40960}, v56
v_add_u32 v{vWR+3}, {L_W+40960}, v57""")
    run_ops(stage_dma(1))
    tag_ready()
    stamp(0)
    aTW, aTR0, aTR1, aST, aEA, aPT, aSA, aXA, aXW, aHR, aZR = range(240, 251)
    def params():
        a.wait(vm="par")
        P = T + 4
        t0, t1, t2, t3 = T+16, T+17, T+18, T+19
        C = P + 8
        a(f"""v_mul_f32 v{T+2}, {LOG2E}, v{T+2}
v_exp_f32 v{T+2}, v{T+2}
s_nop 0
v_cvt_pk_bf16_f32 v{T+2}, v{T+2}, v{T+2}
v_lshlrev_b32 v{T+2}, 16, v{T+2}
v_mul_f32 v{t0}, v{T+2}, v{T}
v_mul_f32 v{t1}, v{T+2}, v{T+1}
v_mul_f32 v{t0}, {LOG2E}, v{t0}
v_mul_f32 v{t1}, 0.15915494, v{t1}
v_exp_f32 v{t0}, v{t0}
v_fract_f32 v{t1}, v{t1}
v_cos_f32 v{t2}, v{t1}
v_sin_f32 v{t3}, v{t1}
s_nop 0
v_mul_f32 v{P}, v{t0}, v{t2}
v_mul_f32 v{t3}, v{t0}, v{t3}
v_sub_f32 v{P+1}, 0, v{t3}
v_add_f32 v{t0}, -1.0, v{P}
v_mul_f32 v{t1}, v{T}, v{T}
v_fma_f32 v{t1}, v{T+1}, v{T+1}, v{t1}
v_rcp_f32 v{t1}, v{t1}
v_mul_f32 v{C}, v{t0}, v{T}
v_fma_f32 v{C}, v{t3}, v{T+1}, v{C}
v_mul_f32 v{C+1}, v{t3}, v{T}
v_fma_f32 v{C+1}, -v{t0}, v{T+1}, v{C+1}
v_add_f32 v{t1}, v{t1}, v{t1}
v_mul_f32 v{C}, v{C}, v{t1}
v_mul_f32 v{C+1}, v{C+1}, v{t1}""")
        def cmul(d, l, p):
            a(f"""v_pk_mul_f32 {v2(d)}, {v2(p)}, {v2(l)} op_sel_hi:[1,0]
v_pk_fma_f32 {v2(d)}, {v2(p)}, {v2(l)}, {v2(d)} op_sel:[1,1,0] op_sel_hi:[0,1,1] neg_lo:[0,1,0]""")
        cmul(P+2, P, P); cmul(P+4, P+2, P); cmul(P+6, P+2, P+2); cmul(L8, P+6, P+6)
        a(f"""v_mul_u32_u24 v{t0}, 48, v0
v_add_u32 v{t0}, {L_PT}, v{t0}
v_lshlrev_b32 v{t1}, 3, v0
v_add_u32 v{t1}, {L_LT}, v{t1}
v_mov_b32 v{T+20}, 1.0
v_mov_b32 v{T+21}, 0
v_cmp_gt_u32 vcc, 80, v0
s_and_saveexec_b64 {sp(sT2)}, vcc
s_cbranch_execz LB_nopar""")
        for q in range(3): a.lds(f"ds_write_b128 v{t0}, {v4(P+4*q)} offset:{16*q}", "pt", certain=False)
        a.lds(f"ds_write_b64 v{t1}, {v2(T+20)}", "pt", certain=False)
        a.lds(f"ds_write_b64 v{t1}, {v2(L8)} offset:640", "pt", certain=False)
        prev = L8
        for s in range(2, 17):
            d = (T + 22 + 2*(s % 2)) if s < 16 else L128
            cmul(d, L8, prev)
            if s < 16: a.lds(f"ds_write_b64 v{t1}, {v2(d)} offset:{s*640}", "pt", certain=False)
            prev = d
        a(f"""LB_nopar:
s_mov_b64 exec, {sp(sT2)}""")
        a(f"""s_lshl_b32 s{sT2}, s{sJ}, 4
s_add_u32 s{sT3}, s{sT2}, s{sR}
s_mul_i32 s{sSS}, s{sT3}, 640
s_add_u32 s{sSS}, s{sSS}, {WS_SP}
s_sub_u32 s{sT3}, s{sSS}, 640
s_mul_i32 s{sT2}, s{sT2}, 320
s_add_u32 s{sT2}, s{sT2}, {WS_ZP}
s_cmp_eq_u32 s{sWV}, 2
s_cselect_b32 s{sT4}, 16, 0
s_cmp_ge_u32 s{sWV}, 2
s_cselect_b32 s{sXBa}, s{sT2}, s{sT3}
s_movk_i32 s{sXSt}, -640
s_cmov_b32 s{sXSt}, 320
s_cselect_b32 s{sXCn}, s{sT4}, s{sR}
s_movk_i32 s{sT2}, 80
s_cmov_b32 s{sT2}, {128+40}
s_cselect_b32 s{sT3}, 128, 0
s_mov_b32 s{sT4}, {L_HB}
s_cmov_b32 s{sT4}, {L_ZB}
s_cbranch_scc0 LB_l128
v_mov_b32 v{L128}, 1.0
v_mov_b32 v{L128+1}, 0
LB_l128:
v_cmp_gt_u32 {sp(sVAL)}, s{sT2}, v0
v_subrev_u32 v{t0}, s{sT3}, v0
v_lshlrev_b32 v{t0}, 3, v{t0}
v_add_u32 v{t1}, s{sT4}, v{t0}
v_accvgpr_write_b32 a{aXW}, v{t1}
v_mov_b32 v{t1}, {OOB}
v_cndmask_b32 v{t0}, v{t1}, v{t0}, {sp(sVAL)}
v_accvgpr_write_b32 a{aXA}, v{t0}
v_min_u32 v{t0}, 79, v0
v_lshlrev_b32 v{t0}, 3, v{t0}
v_accvgpr_write_b32 a{aSA}, v{t0}""")
        c_, g_, u0, u1, u2, u3 = T, T+1, T+2, T+3, T+4, T+5
        a(f"""v_and_b32 v{c_}, 15, v{vLANE}
v_lshrrev_b32 v{g_}, 4, v{vLANE}
v_mul_u32_u24 v{u0}, 48, v{c_}
v_add_u32 v{u0}, {L_PT}, v{u0}
v_accvgpr_write_b32 a{aPT}, v{u0}
v_lshrrev_b32 v{u0}, 4, v0
v_mul_u32_u24 v{u0}, 640, v{u0}
v_lshl_add_u32 v{u0}, v{c_}, 3, v{u0}
v_accvgpr_write_b32 a{aEA}, v{u0}
v_lshlrev_b32 v{u0}, 3, v{c_}
v_add_u32 v{u0}, {L_HB}, v{u0}
v_accvgpr_write_b32 a{aHR}, v{u0}
v_mul_u32_u24 v{u0}, 80, v{g_}
v_add_u32 v{u0}, {L_ZB}, v{u0}
v_accvgpr_write_b32 a{aZR}, v{u0}
v_bfe_u32 v{u0}, v{c_}, 1, 2
v_xor_b32 v{u0}, v{u0}, v{g_}
v_lshlrev_b32 v{u0}, 4, v{u0}
v_lshl_add_u32 v{u0}, v{c_}, 6, v{u0}
s_add_u32 s{sT2}, s{sXB}, 10240
v_add_u32 v{u0}, s{sT2}, v{u0}
v_accvgpr_write_b32 a{aTW}, v{u0}
v_bfe_u32 v{u0}, v{vLANE}, 2, 2
v_lshrrev_b32 v{u1}, 1, v{g_}
v_lshl_add_u32 v{u2}, v{u1}, 3, v{u0}
v_lshlrev_b32 v{u2}, 6, v{u2}
v_and_b32 v{u3}, 1, v{g_}
v_lshl_add_u32 v{u2}, v{u3}, 3, v{u2}
v_add_u32 v{u2}, s{sT2}, v{u2}
v_lshrrev_b32 v{u0}, 1, v{u0}
v_and_b32 v{g_}, 3, v{vLANE}
v_xor_b32 v{u0}, v{u0}, v{g_}
v_lshl_add_u32 v{g_}, v{u0}, 4, v{u2}
v_accvgpr_write_b32 a{aTR0}, v{g_}
v_xor_b32 v{u0}, 2, v{u0}
v_lshl_add_u32 v{g_}, v{u0}, 4, v{u2}
v_add_u32 v{g_}, 256, v{g_}
v_accvgpr_write_b32 a{aTR1}, v{g_}
v_mul_u32_u24 v{u3}, {RT}, v{u3}
v_lshl_add_u32 v{u3}, v{u1}, 8, v{u3}
v_lshl_add_u32 v{u3}, v{c_}, 4, v{u3}
v_accvgpr_write_b32 a{aST}, v{u3}
s_lshl_b32 s{sT2}, s{sR}, 3
s_lshl_b32 s{sT3}, s{sWV}, 1
s_add_u32 s{sT2}, s{sT2}, s{sT3}
s_mul_i32 s{sT2}, s{sT2}, {RT}
s_mul_i32 s{sT3}, s{sJ}, 2560
s_add_u32 s{sSa}, s{sT2}, s{sT3}
s_add_u32 s{sSb}, s{sSa}, 20480
s_add_u32 s{sSc}, s{sSa}, 40960
s_add_u32 s{sSd}, s{sSc}, {RT}""")
        a.wait(lg="all")
    XA = lambda s, ks, m: s * 16 + ks * 8 + m * 4
    def x_reads(s):
        if s >= 10: return {}
        def mk(ks):
            return [(lambda m=m: a.lds(f"ds_read_b128 {a4(XA(s, ks, m))}, v{vXR+ks} offset:{(s%4)*4096 + m*2048}", ("x", s, ks))) for m in range(2)]
        return {0: mk(0), 10: mk(1)}
    def read_frag(s, i, reg):
        sl = s % 4
        if s < 10:
            ks, t = divmod(i, 10)
            c5, part = divmod(t, 2)
            a.lds(f"ds_read_b128 {v4(reg)}, v{vWR + (sl//2)*2 + ks} offset:{(sl%2)*20480 + part*10240 + c5*2048}", ("w", s, i))
        else:
            k4, Tt = divmod(i, 5)
            for hh in range(2):
                a.lds(f"ds_read_b64_tr_b16 {v2(reg+2*hh)}, v{vT40 + (sl//2)*2 + hh} offset:{(sl%2)*20480 + k4*5120 + 8*Tt}", ("w", s, i))
    def mfmas(s, i, reg):
        out = []
        if s < 10:
            ks, t = divmod(i, 10)
            for m in range(2):
                d = U + t*8 + m*4
                c = "0" if (s == 0 and ks == 0) else v4(d)
                out.append(lambda d=d, m=m, c=c: mfma(v4(d), a4(XA(s, ks, m)), v4(reg), c))
        else:
            k4, Tt = divmod(i, 5)
            xs, ks = 2*(s-10) + k4//2, k4 % 2
            for m in range(2):
                d = Q + Tt*8 + m*4
                c = "0" if (s == 10 and k4 == 0) else v4(d)
                out.append(lambda d=d, m=m, c=c: mfma(v4(d), v4(reg), a4(XA(xs, ks, m)), c))
        return out
    def ur(c5, i): return U + (2*c5)*8 + 2*i
    def ui(c5, i): return U + (2*c5+1)*8 + 2*i
    LO = "op_sel_hi:[1,0,1]"
    HI = "op_sel:[0,1,0] op_sel_hi:[1,1,1]"
    NEG = "neg_lo:[0,1,0] neg_hi:[0,1,0]"
    vEA, vSA, vXA, vPT = vX, vX+1, vX+2, vX+3
    vTW, vTR0, vTR1, vST, vL16 = vW, vW+1, vW+2, vW+3, vW+4
    vXW, vHR, vZR, vLT = vWR, vWR+1, vWR+2, vWR+3
    def mk_ptread(c5):
        def f():
            if c5 == 0: a(f"v_accvgpr_read_b32 v{vPT}, a{aPT}")
            a.lds(f"ds_read_b128 {v4(LAM + c5*8)}, v{vPT} offset:{c5*768}", "ptr")
            a.lds(f"ds_read_b128 {v4(LAM + c5*8 + 4)}, v{vPT} offset:{c5*768 + 16}", "ptr")
            a.lds(f"ds_read_b64 {v2(COEF + c5*2)}, v{vPT} offset:{c5*768 + 32}", "ptr")
            if c5 == 4: a(f"v_accvgpr_read_b32 v{vEA}, a{aEA}\nv_accvgpr_read_b32 v{vSA}, a{aSA}\nv_accvgpr_read_b32 v{vXA}, a{aXA}")
        return f
    def scan1():
        stamp(1)
        tA, tB = 228, 230
        for c5 in range(5):
            c = COEF + c5*2
            for i in range(4):
                r_, i_ = ur(c5, i), ui(c5, i)
                a(f"""v_pk_mul_f32 {v2(tA)}, {v2(r_)}, {v2(c)} op_sel_hi:[1,0]
v_pk_mul_f32 {v2(tB)}, {v2(r_)}, {v2(c)} op_sel:[0,1] op_sel_hi:[1,1] neg_lo:[0,1] neg_hi:[0,1]
v_pk_fma_f32 {v2(r_)}, {v2(i_)}, {v2(c)}, {v2(tA)} {HI} {NEG}
v_pk_fma_f32 {v2(i_)}, {v2(i_)}, {v2(c)}, {v2(tB)} {LO} {NEG}""")
            l = LAM + c5*8
            for i in range(1, 4):
                a(f"""v_pk_fma_f32 {v2(ur(c5,i))}, {v2(ur(c5,i-1))}, {v2(l)}, {v2(ur(c5,i))} {LO}
v_pk_fma_f32 {v2(ui(c5,i))}, {v2(ui(c5,i-1))}, {v2(l)}, {v2(ui(c5,i))} {LO}
v_pk_fma_f32 {v2(ur(c5,i))}, {v2(ui(c5,i-1))}, {v2(l)}, {v2(ur(c5,i))} {HI} {NEG}
v_pk_fma_f32 {v2(ui(c5,i))}, {v2(ur(c5,i-1))}, {v2(l)}, {v2(ui(c5,i))} {HI}""")
            l4 = l + 6
            cmul_acc(c, c+1, l4, l4+1, ur(c5,3), ui(c5,3), ur(c5,3)+1, ui(c5,3)+1)
            a.lds(f"ds_write_b64 v{vEA}, {v2(c)} offset:{L_EB + c5*128}", "ew")
            bg.tick(1)
        a.wait(lg="all")
        a("s_barrier")
        a(f"s_cmp_ge_u32 s{sWV}, 2\ns_cbranch_scc1 LB_nocarry1")
        E0 = Q
        for s in range(0, 16, 2):
            a(f"ds_read2_b64 {v4(E0 + 2*s)}, v{vSA} offset0:{(s%4)*80} offset1:{(s%4)*80+80}")
            if s % 4 == 2 and s < 14: a(f"v_add_u32 v{vSA}, 2560, v{vSA}")
        a(f"""v_mov_b32 v{tA}, 0
v_mov_b32 v{tA+1}, 0
v_mov_b32 v{tB}, s{sTAG}
s_movk_i32 s{sT3}, 0xff
v_subrev_u32 v{vSA}, {3*2560}, v{vSA}""")
        for s in range(1, 16):
            if s % 2 == 0 or s == 1: a(f"s_waitcnt lgkmcnt({7 - s//2})")
            pk_cmul_acc(E0+2*s, L8, E0+2*s-2, E0+2*s)
        a(f"""v_bfi_b32 v{E0+30}, s{sT3}, v{tB}, v{E0+30}
v_bfi_b32 v{E0+31}, s{sT3}, v{tB}, v{E0+31}""")
        a.vmem(f"buffer_store_dwordx2 {v2(E0+30)}, v{vXA}, {srd(SWS)}, s{sSS} offen sc1", "sst", certain=False)
        a(f"s_mov_b64 exec, {sp(sVAL)}\nds_write_b64 v{vSA}, {v2(tA)}")
        for s in range(15):
            a(f"ds_write_b64 v{vSA}, {v2(E0+2*s)} offset:{(s+1)*640}")
        a("s_mov_b64 exec, -1\ns_waitcnt lgkmcnt(0)\nLB_nocarry1:")
        stamp(2)
    def x_loads(tracked):
        ops = []
        ops.append(("s", lambda: a(f"s_mov_b32 s{sT2}, s{sXBa}")))
        for n in range(16):
            def f(n=n):
                a(f"s_cmp_gt_u32 s{sXCn}, {n}\ns_cselect_b32 s{sT3}, s{sT2}, {OOB}\ns_add_u32 s{sT2}, s{sT2}, s{sXSt}")
                t = f"buffer_load_dwordx2 {v2(XR + 2*n)}, v{vXA}, {srd(SWS)}, s{sT3} offen sc1"
                if tracked: a.vmem(t, "xl")
                else: a(t)
            ops.append(("d", f))
        return ops
    def x_check(sfx, defer):
        a(f"s_mov_b32 s{sSPIN}, 0\nLB_xt{sfx}:\ns_waitcnt vmcnt(0)")
        for n in range(15, -1, -1):
            r = XR + 2*n
            a(f"s_cmp_gt_u32 s{sXCn}, {n}\ns_cselect_b32 s{sT3}, s{sTAG}, 0")
            if n == 15: a(f"v_xor_b32 v250, s{sT3}, v{r}")
            else: a(f"v_bitop3_b32 v250, v250, v{r}, s{sT3} bitop3:0xf6")
            a(f"v_bitop3_b32 v250, v250, v{r+1}, s{sT3} bitop3:0xf6")
            if n < 15: pk_cmul_acc(r, L128, r+2, r)
        a(f"""v_and_b32 v250, 0xff, v250
v_cmp_ne_u32 vcc, 0, v250
s_add_u32 s{sSPIN}, s{sSPIN}, 1
s_and_b64 vcc, vcc, {sp(sVAL)}
s_cmp_gt_u32 s{sSPIN}, 0x20000
s_cbranch_scc1 LB_xok{sfx}
s_cbranch_vccz LB_xok{sfx}""")
        if defer:
            a(f"s_mov_b32 s{sPEND}, 1\ns_cmp_eq_u32 s{sWV}, 2\ns_cbranch_scc1 LB_xe{sfx}")
        run_ops(x_loads(False))
        a(f"""s_branch LB_xt{sfx}
LB_xok{sfx}:
s_mov_b32 s{sPEND}, 0
s_cmp_lg_u32 s{sWV}, 2
s_cbranch_scc1 LB_xw{sfx}
v_cvt_pk_bf16_f32 v250, v{XR}, v{XR+1}
v_lshlrev_b32 v{XR}, 16, v250
v_and_b32 v{XR+1}, 0xffff0000, v250
LB_xw{sfx}:
s_mov_b64 exec, {sp(sVAL)}
ds_write_b64 v{vXW}, {v2(XR)}
s_mov_b64 exec, -1
LB_xe{sfx}:""")
    def start_x():
        bg.add(x_loads(True)); bg.fast = True
    hooks = {(0, 14): params, (10, 0): scan1, (14, 0): start_x}
    for c5 in range(5): hooks[(9, 2*c5 + 1)] = mk_ptread(c5)
    gemm_loop(15, 20, read_frag, mfmas, x_reads, stage_dma, bg, RING, LOOKA, hooks)
    bg.flush()
    stamp(3)
    for vr, ar in ((vTW, aTW), (vTR0, aTR0), (vTR1, aTR1), (vST, aST), (vXW, aXW), (vHR, aHR), (vZR, aZR)):
        a(f"v_accvgpr_read_b32 v{vr}, a{ar}")
    a(f"v_lshlrev_b32 v{vL16}, 4, v{vLANE}\nv_add_u32 v{vLT}, {L_LT}, v{vEA}")
    H = 152
    for c5 in range(5):
        a.lds(f"ds_read_b64 {v2(H+4*c5)}, v{vEA} offset:{L_EB + c5*128}", "pl")
        a.lds(f"ds_read_b64 {v2(H+4*c5+2)}, v{vLT} offset:{c5*128}", "pl")
    a(f"s_mov_b32 s{sT4}, {LOG2E}")
    phi([Q + 2*n for n in range(20)], sT4, 172, NT=2)
    x_check("1", True)
    a.vm = []
    a.wait(lg="all")
    a("s_barrier")
    stamp(4)
    HR = XR + 2
    for c5 in range(5):
        a.lds(f"ds_read_b64 {v2(HR+2*c5)}, v{vHR} offset:{c5*128}", ("hin", c5))
    PK = 228
    def fix(c5):
        h = H + 4*c5; lam = LAM + c5*8
        a.wait(lg=[("hin", c5)])
        pk_cmul_acc(h, h+2, HR+2*c5, h)
        a(f"v_mov_b32 v{h+2}, v{h+1}")
        cmul_acc(h+1, h+3, lam+6, lam+7, h, h+2, ur(c5,3), ui(c5,3))
        for i in range(4):
            l = lam + 2*i
            a(f"""v_pk_fma_f32 {v2(ur(c5,i))}, {v2(h)}, {v2(l)}, {v2(ur(c5,i))} {LO}
v_pk_fma_f32 {v2(ui(c5,i))}, {v2(h+2)}, {v2(l)}, {v2(ui(c5,i))} {LO}""")
        for part in range(2):
            for i in range(4):
                l = lam + 2*i
                if part == 0: a(f"v_pk_fma_f32 {v2(ur(c5,i))}, {v2(h+2)}, {v2(l)}, {v2(ur(c5,i))} {HI} {NEG}")
                else: a(f"v_pk_fma_f32 {v2(ui(c5,i))}, {v2(h)}, {v2(l)}, {v2(ui(c5,i))} {HI}")
            src = U + (2*c5 + part)*8
            pk = PK + 4*part
            for q in range(4): a(f"v_cvt_pk_bf16_f32 v{pk+q}, v{src+2*q}, v{src+2*q+1}")
            a.lds(f"ds_write_b128 v{vTW}, {v4(pk)} offset:{((c5%3)*2+part)*1024}", ("tw", c5))
    def trd(c5):
        for part in range(2):
            for hh in range(2):
                a.lds(f"ds_read_b64_tr_b16 {v2(U + (2*c5+part)*8 + 2*hh)}, v{vTR0+hh} offset:{((c5%3)*2+part)*1024}", ("tr", c5))
    def tst(c5):
        a.wait(lg=[("tr", c5)])
        for part in range(2):
            a.vmem(f"buffer_store_dwordx4 {v4(U + (2*c5+part)*8)}, v{vST}, {srd(SWS)}, s{sSa if part == 0 else sSb} offen offset:{c5*512} sc1", "ast")
    for c5 in range(5):
        fix(c5)
        if c5 > 0: tst(c5-1)
        trd(c5)
    tst(4)
    a(f"s_cmp_eq_u32 s{sPEND}, 0\ns_cbranch_scc1 LB_xe2")
    run_ops(x_loads(False))
    x_check("2", False)
    a.wait(lg="all")
    a("s_barrier")
    Z = 176
    for q in range(5): a.lds(f"ds_read_b128 {v4(Z+4*q)}, v{vZR} offset:{16*q}", ("zr", q))
    DN = 196
    for Tt in range(5):
        a.wait(lg=[("zr", Tt)])
        for q in range(2):
            for m in range(2):
                d = DN + 2*m
                r = Q + Tt*8 + m*4 + 2*q; z = Z + Tt*4 + 2*q
                if Tt == 0 and q == 0: a(f"v_pk_mul_f32 {v2(d)}, {v2(r)}, {v2(z)}")
                else: a(f"v_pk_fma_f32 {v2(d)}, {v2(r)}, {v2(z)}, {v2(d)}")
    a(f"""v_add_f32 v{DN}, v{DN}, v{DN+1}
v_add_f32 v{DN+2}, v{DN+2}, v{DN+3}
v_add_f32 v{DN}, 0x358637bd, v{DN}
v_add_f32 v{DN+2}, 0x358637bd, v{DN+2}
v_rcp_f32 v{DN}, v{DN}
v_rcp_f32 v{DN+2}, v{DN+2}""")
    WP = 200
    for m in range(2):
        d = DN + 2*m
        for hf in range(3):
            for Tt in ((0, 1), (2, 3), (4,))[hf]:
                for q in range(2):
                    r = Q + Tt*8 + m*4 + 2*q
                    a(f"v_pk_mul_f32 {v2(r)}, {v2(r)}, {v2(d)} op_sel_hi:[1,0]")
            for Tt in ((0, 1), (2, 3), (4,))[hf]:
                for q in range(2):
                    r = Q + Tt*8 + m*4 + 2*q
                    dst = (WP + m*8 + Tt*2 + q) if Tt < 4 else (216 + m*2 + q)
                    a(f"v_cvt_pk_bf16_f32 v{dst}, v{r}, v{r+1}")
            if hf < 2:
                a.vmem(f"buffer_store_dwordx4 {v4(WP + m*8 + hf*4)}, v{vL16}, {srd(SWS)}, s{sSc if m == 0 else sSd} offen offset:{hf*1024} sc1", "ast")
    a("v_permlane16_swap_b32 v216, v218\nv_permlane16_swap_b32 v217, v219")
    a.vmem(f"buffer_store_dwordx4 v[216:219], v{vST}, {srd(SWS)}, s{sSc} offen offset:2048 sc1", "ast")
    stamp(5)
    run_ops(dma_c(3, sCW, 0))
    a.wait(vm="all")
    a("s_barrier")
    set_flag(FB, "LB_nf", 240)
    stamp(6)
    run_ops(dma_c(4, sCW, 10240))
    run_ops(dma_c(2, sXB, 0))
    c_tail()

def k2():
    a("LK2:")
    a.vm = [(("c", 2), True)]*10 + [(("c", 0), True)]*10 + [(("c", 1), True)]*10; a.lg = []
    AH = 32
    AB = [112, 132]
    NS = 12
    STG = [196 + 4*i for i in range(NS)]
    vA = 2
    vM = 6
    vFB, vFM, vGA, vRW, vTmp = 11, 12, 13, 14, 15
    vG = 18
    FL = [26, 27, 28, 29, 249]
    FO = [244, 245, 246, 247, 248]
    sMT = 34
    MH = [f"a[{120+4*n}:{123+4*n}]" for n in range(10)] + [f"a[{240+4*n}:{243+4*n}]" for n in range(4)] + [v4(152+4*n) for n in range(11)]
    mk_srd(SOUT, pOUT, 2048*2560)
    a(f"s_add_u32 s{sT0}, s{sWV}, s{sCT}")
    a(f"v_lshlrev_b32 v{vM}, 4, v{vLANE}")
    for i in range(4):
        a(f"""s_add_u32 s{sMT+i}, s{sT0}, {i}
s_and_b32 s{sMT+i}, s{sMT+i}, 3
s_mul_i32 s{sT1}, s{sMT+i}, {RT}
v_add_u32 v{vA+i}, s{sT1}, v{vM}""")
    for nt in range(1, 5): a(f"v_add_u32 v{vM+nt}, {nt*20480}, v{vM}")
    mk_srd(SQ, pDSK, 1280)
    a(f"""s_lshl_b32 s{sT2}, s{sRB}, 2
s_add_u32 s{sT2}, s{sT2}, s{sMT}
s_lshr_b32 s{sT3}, s{sT2}, 1
s_lshl_b32 s{sT3}, s{sT3}, 5
s_and_b32 s{sT2}, s{sT2}, 1
s_lshl_b32 s{sT2}, s{sT2}, 1
s_add_u32 s{sT3}, s{sT3}, s{sT2}
s_mul_i32 s{sT4}, s{sCT}, 160
v_bfe_u32 v196, v{vLANE}, 2, 2
v_lshlrev_b32 v196, 3, v196
v_bfe_u32 v197, v{vLANE}, 1, 1
v_add_u32 v196, v196, v197
v_and_b32 v197, 1, v{vLANE}
v_lshl_add_u32 v196, v197, 2, v196
v_add_u32 v196, s{sT3}, v196
v_mul_u32_u24 v196, 1280, v196
v_lshrrev_b32 v197, 4, v{vLANE}
v_lshl_add_u32 v197, v197, 3, s{sT4}
v_add_u32 v196, v196, v197""")
    for nt in range(5):
        a.vmem(f"buffer_load_dwordx2 {v2(200+2*nt)}, v196, {srd(SX)}, 0 offen offset:{nt*32}", "fx")
        a.vmem(f"buffer_load_dwordx2 {v2(210+2*nt)}, v197, {srd(SQ)}, 0 offen offset:{nt*32}", "fx")
    a(f"s_mul_i32 s{sT0}, s{sRB}, {4*RT}\ns_mul_i32 s{sT1}, s{sCT}, {5*20480}\ns_add_u32 s{sT1}, s{sT1}, {WS_M}")
    for i in range(5):
        a(f"""s_lshl_b32 s{sT2}, s{sLC+i}, 11
s_add_u32 s{sKA+i}, s{sT0}, s{sT2}
s_lshl_b32 s{sT2}, s{sLC+i}, 10
s_add_u32 s{sKA+5+i}, s{sT0}, s{sT2}
s_add_u32 s{sKA+5+i}, s{sKA+5+i}, 40960
s_add_u32 s{sKQ+i}, s{sT1}, s{sT2}""")
    a.wait(vm=[("c", 2)])
    run_ops(c_reads(2, vXR, 0))
    a(f"""s_lshl_b32 s{sT2}, s{sRB}, 2
s_add_u32 s{sT2}, s{sT2}, s{sWV}
s_lshr_b32 s{sT3}, s{sT2}, 1
s_lshl_b32 s{sT3}, s{sT3}, 5
s_and_b32 s{sT2}, s{sT2}, 1
s_lshl_b32 s{sT2}, s{sT2}, 1
s_add_u32 s{sT3}, s{sT3}, s{sT2}
s_lshl_b32 s{sT4}, s{sT4}, 1
s_mul_i32 s{sT5}, s{sWV}, {16*336}""")
    for n in range(5):
        a(f"""v_add_u32 v222, {64*n}, v{vLANE}
v_mul_u32_u24 v223, 3277, v222
v_lshrrev_b32 v223, 16, v223
v_mul_u32_u24 v224, 20, v223
v_sub_u32 v224, v222, v224
v_lshrrev_b32 v225, 2, v223
v_lshlrev_b32 v225, 3, v225
v_bfe_u32 v226, v223, 1, 1
v_add_u32 v225, v225, v226
v_and_b32 v226, 1, v223
v_lshl_add_u32 v225, v226, 2, v225
v_add_u32 v225, s{sT3}, v225
v_mul_u32_u24 v225, 2560, v225
v_lshl_add_u32 v226, v224, 4, s{sT4}
v_add_u32 v{FO[n]}, v225, v226
v_mul_u32_u24 v225, 336, v223
v_lshl_add_u32 v225, v224, 4, v225
v_add_u32 v{FL[n]}, s{sT5}, v225""")
        if n == 2:
            a.wait(vm=[("c", 0)], lg="all")
            run_ops(c_reads(0, vCR, 0))
    a(f"""s_lshr_b32 s{sT2}, s{sRB}, 1
s_lshl_b32 s{sT2}, s{sT2}, 7
s_add_u32 s{sT3}, s{sT2}, {FB}
v_lshl_add_u32 v{vFB}, v{vLANE}, 11, s{sT3}
s_and_b32 s{sT3}, s{sRB}, 1
s_lshl_b32 s{sT3}, s{sT3}, 13
s_add_u32 s{sT2}, s{sT2}, s{sT3}
s_add_u32 s{sT2}, s{sT2}, {FM - 16*2048}
v_lshl_add_u32 v222, v{vLANE}, 11, s{sT2}
s_lshl_b32 s{sT2}, s{sCT}, 8
s_add_u32 s{sT2}, s{sT2}, {FM}
v_lshrrev_b32 v{vFM}, 1, v{vLANE}
v_lshl_add_u32 v{vFM}, v{vFM}, 11, s{sT2}
v_and_b32 v223, 1, v{vLANE}
v_lshl_add_u32 v{vFM}, v223, 7, v{vFM}
v_cmp_gt_u32 vcc, 16, v{vLANE}
v_cndmask_b32 v{vFM}, v222, v{vFM}, vcc
v_and_b32 v222, 15, v{vLANE}
v_lshlrev_b32 v{vGA}, 2, v222
v_lshrrev_b32 v223, 4, v{vLANE}
v_mul_u32_u24 v222, 336, v222
v_lshl_add_u32 v222, v223, 4, v222
s_mul_i32 s{sT2}, s{sWV}, {64*336}
v_add_u32 v{vRW}, s{sT2}, v222""")
    a.wait(vm=[("c", 1)], lg="all")
    run_ops(c_reads(1, vCR, 10240))
    a.wait(vm="all")
    for n in range(10):
        d = AH + 2*n
        a(f"""v_lshlrev_b32 v222, 16, v{200+n}
v_and_b32 v223, 0xffff0000, v{200+n}
v_lshlrev_b32 v224, 16, v{210+n}
v_and_b32 v225, 0xffff0000, v{210+n}
v_pk_mul_f32 v[222:223], v[222:223], v[224:225]
v_cvt_pk_bf16_f32 v222, v222, v223
v_lshlrev_b32 v{d}, 16, v222
v_and_b32 v{d+1}, 0xffff0000, v222""")
    a.wait(lg="all")
    stamp(7)
    a(f"s_cmp_lg_u32 s{sWV}, 0\ns_cbranch_scc1 LK_np0")
    poll(vFM, vTmp, "0xfffff", "fm")
    a("LK_np0:\ns_barrier")
    stamp(13)
    for i in range(4):
        a(f"""s_lshl_b32 s{sT2}, s{sRB}, 2
s_add_u32 s{sT2}, s{sT2}, s{sMT+i}
s_lshl_b32 s{sT2}, s{sT2}, 6
s_add_u32 s{sT2}, s{sT2}, {WS_G}""")
        a.vmem(f"buffer_load_dword v{vG+2*i}, v{vGA}, {srd(SWS)}, s{sT2} offen sc1", "g")
    for i in range(5):
        for nt in range(5):
            a.vmem(f"buffer_load_dwordx4 {MH[i*5+nt]}, v{vM+nt}, {srd(SWS)}, s{sKQ+i} offen sc1", "M")
    a(f"s_cmp_lg_u32 s{sWV}, 0\ns_cbranch_scc1 LK_np")
    poll(vFB, vTmp, "0xff", "fb")
    a("LK_np:\ns_barrier")
    stamp(8)
    frags = [("h", i, ks, mt) for i in range(5) for ks in range(2) for mt in range(4)] + [("w", i, 0, mt) for mt in range(4) for i in range(5)]
    def issueA(n):
        kind, i, ks, mt = frags[n]
        r = STG[n % NS]
        if kind == "h": a.vmem(f"buffer_load_dwordx4 {v4(r)}, v{vA+mt}, {srd(SWS)}, s{sKA+i} offen offset:{ks*1024} sc1", ("A", n))
        else: a.vmem(f"buffer_load_dwordx4 {v4(r)}, v{vA+mt}, {srd(SWS)}, s{sKA+5+i} offen sc1", ("A", n))
    for n in range(NS): issueA(n)
    a.wait(vm="g")
    for i in range(4):
        g = vG + 2*i
        a(f"""v_sub_f32 v{g+1}, 1.0, v{g}
v_cvt_pk_bf16_f32 v{g+1}, v{g+1}, v{g+1}
v_lshlrev_b32 v{g+1}, 16, v{g+1}
s_mul_i32 s{sMT+i}, s{sMT+i}, {16*336}""")
    pend = []
    def combine(mt):
        g = vG + 2*mt
        ops = [lambda: a(f"v_add_u32 v{vTmp}, s{sMT+mt}, v{vRW}")]
        for nt in range(5):
            h = AH + (mt*5+nt)*4; b = AB[mt % 2] + nt*4
            def f(h=h, b=b, nt=nt):
                for q in (0, 2):
                    a(f"v_pk_mul_f32 {v2(h+q)}, {v2(h+q)}, {v2(g)} op_sel_hi:[1,0]")
                for q in (0, 2):
                    a(f"v_pk_fma_f32 {v2(h+q)}, {v2(b+q)}, {v2(g)}, {v2(h+q)} op_sel:[0,1,0] op_sel_hi:[1,1,1]")
                a.lds(f"ds_write_b128 v{vTmp}, {v4(h)} offset:{nt*64}", "red")
            ops.append(f)
        return ops
    for n in range(60):
        kind, i, ks, mt = frags[n]
        a.wait(vm=[("A", n)])
        for nt in range(5):
            if kind == "h":
                d = AH + (mt*5 + nt)*4
                first = (i == 0 and ks == 0 and mt != 0)
                fa = a4(CHOME[i] + (ks*5+nt)*4)
            else:
                d = AB[mt % 2] + nt*4
                first = (i == 0)
                fa = MH[i*5 + nt]
            mfma(v4(d), fa, v4(STG[n % NS]), "0" if first else v4(d))
        if n + NS < 60: issueA(n + NS)
        if pend:
            pend.pop(0)()
            if len(pend) == 5: pend.pop(0)()
        if kind == "w" and i == 4:
            assert not pend
            pend = combine(mt)
    stamp(9)
    for f in pend: f()
    a(f"""s_cmp_lg_u32 s2, 255
s_cbranch_scc1 LK_ne
s_cmp_lg_u32 s{sWV}, 0
s_cbranch_scc1 LK_ne
v_mov_b32 v196, {WS_EPOCH}
v_mov_b32 v197, s{sTAG}
s_mov_b64 exec, 1
buffer_store_dword v197, v196, {srd(SWS)}, 0 offen sc1
s_mov_b64 exec, -1
LK_ne:""")
    a.wait(lg="all")
    a("s_barrier")
    R = 32
    for n in range(5):
        for w in range(4):
            a.lds(f"ds_read_b128 {v4(R + (n*4+w)*4)}, v{FL[n]} offset:{w*64*336}", ("rr", n))
    for n in range(5):
        a.wait(lg=[("rr", n)])
        r = R + n*16
        a(f"""v_pk_add_f32 {v2(r)}, {v2(r)}, {v2(r+4)}
v_pk_add_f32 {v2(r+2)}, {v2(r+2)}, {v2(r+6)}
v_pk_add_f32 {v2(r+8)}, {v2(r+8)}, {v2(r+12)}
v_pk_add_f32 {v2(r+10)}, {v2(r+10)}, {v2(r+14)}
v_pk_add_f32 {v2(r)}, {v2(r)}, {v2(r+8)}
v_pk_add_f32 {v2(r+2)}, {v2(r+2)}, {v2(r+10)}""")
        a.vmem(f"buffer_store_dwordx4 {v4(r)}, v{FO[n]}, {srd(SOUT)}, 0 offen", "ost")
    stamp(10)
    a("Lend:\ns_endpgm\nLcode_end:\n.fill 320, 4, 0xbf800000")

prologue()
type_A()
type_B()
k2()
body = a.text()
hdr = open("gated_mix__ssm_conv_s5__linear_attn_block__prompt.s.ref").read().split("; Override launch")[0]
src = hdr + f"; @launch grid=(256,1,1) block=(256,1,1) lds={LDS_BYTES}\n" + HEADER + kernel_begin(NAME) + body + kernel_desc(NAME, 512, 102, 256)
out = sys.argv[1] if len(sys.argv) > 1 else "k.s"
open(out, "w").write(src)
print("written", out, "nops inserted:", a.nnop, "lines", src.count("\n"))
```

```python
import sys, os
sys.path.insert(0, "work")
from asmlib import *

STAMPS = int(os.environ.get("STAMPS", "0"))
E = lambda k: int(os.environ.get(k, "0"))
E2 = lambda k, d: int(os.environ.get(k, str(d)))
STGST = int(os.environ.get("STGST", "0"))
NODMA = int(os.environ.get("NODMA", "0"))
NOMFMA = int(os.environ.get("NOMFMA", "0"))
NOREAD = int(os.environ.get("NOREAD", "0"))
LOOKA = int(os.environ.get("LOOK", "5"))

WS_A = 0
WS_M = 0x800000
WS_KVP = 0x900000
WS_ZP = 0xA00000
WS_SP = 0xA40000
WS_G = 0xA80000
WS_FL = 0xA90000
FKV, FM, FB = WS_FL, WS_FL + 0x4000, WS_FL + 0x8000
WS_EPOCH = 0xAC0000
WS_SIZE = 0xAD0000
WS_STAMP = 0xC000000
OOB = 0x40000000
RT = 61440
L_W = 65536
L_SCR = 147456
L_PT = L_SCR
L_LT = L_SCR + 3840
L_ZB = L_LT + 10240
L_HB = L_ZB + 320
L_EB = 10240
L_GW = L_SCR
L_WO = L_SCR + 2048
L_KVB = L_WO + 7168
LDS_BYTES = 163840
sWV, sR, sJ, sTAG, sT0 = 3, 4, 5, 6, 7
SX, SW, SQ, SWS, SOUT = 8, 12, 16, 20, 24
sRB, sCT, sOFF, sT1 = 28, 29, 30, 31
pX, pLRE, pLIM, pBRE, pBIM, pCRE, pCIM, pLDT, pDSK, pBX, pQKV, pWO, pGW, pOUT, pDBG, pWS = range(32, 64, 2)
sKA = 64
sKQ = 74
sLC = 84
sXB, sWB, sCW = 89, 90, 91
sT2, sT3, sT4, sT5 = 92, 93, 94, 95
sSPIN = 96
sJL = 101
sST = 98
sM0, sM1 = 50, 51
vTID, vLANE = 0, 1
vX = 2
vW = 6
vQ = 11
vXR = 16
vWR = 18
vT40 = 22
vC = 26
vCR = 30
ACC = 32

def srd(n): return f"s[{n}:{n+3}]"
def sp(n): return f"s[{n}:{n+1}]"
def v4(n): return f"v[{n}:{n+3}]"
def v2(n): return f"v[{n}:{n+1}]"
def a4(n): return f"a[{n}:{n+3}]"

a = Asm()
nstamp = [0]
def stamp(idx, existing=False):
    if not STAMPS: return
    if not existing: a(f"s_memrealtime {sp(sST)}\ns_memtime s[96:97]")
    a(f"""s_waitcnt lgkmcnt(0)
v_writelane_b32 v254, s{sST}, {idx}
v_writelane_b32 v255, s96, {idx}""")
    a.lg = []

def stamp_flush():
    if not STAMPS: return
    a(f"""s_lshl_b32 s100, s2, 2
s_add_u32 s100, s100, s{sWV}
s_lshl_b32 s100, s100, 9
v_lshl_add_u32 v253, v{vLANE}, 3, s100
s_add_u32 s{sST}, s{pWS}, {WS_STAMP}
s_addc_u32 s{sST+1}, s{pWS+1}, 0
global_store_dwordx2 v253, v[254:255], {sp(sST)}""")

def mfma(d, A, B, C):
    a(f"v_mfma_f32_16x16x32_bf16 {d}, {A}, {B}, {C}")

def mk_srd(n, ptr, size):
    a(f"s_mov_b32 s{n}, s{ptr}\ns_and_b32 s{n+1}, s{ptr+1}, 0xffff\ns_mov_b32 s{n+2}, {size}\ns_mov_b32 s{n+3}, 0x20000")

def poll_issue(vaddr, vtmp, execmask, tag):
    L = a.label("Lpi")
    a(f"s_cmp_lg_u32 s{sWV}, 0\ns_cbranch_scc1 {L}\ns_mov_b64 exec, {execmask}\nv_mov_b32 v{vtmp}, 0")
    a.vmem(f"buffer_atomic_add v{vtmp}, v{vaddr}, {srd(SWS)}, 0 offen sc0 sc1", tag, certain=False)
    a(f"s_mov_b64 exec, -1\n{L}:")
def poll_finish(vaddr, vtmp, execmask, tag):
    L = a.label("Lpoll"); E_ = a.label("Lpolle"); C = a.label("Lpollc"); S = a.label("Lpolls")
    n = a._cnt(a.vm, tag)[0]
    a(f"""s_cmp_lg_u32 s{sWV}, 0
s_cbranch_scc1 {S}
s_mov_b64 exec, {execmask}
s_mov_b32 s{sSPIN}, 0
s_waitcnt vmcnt({min(n, 63)})
s_branch {C}
{L}:
v_mov_b32 v{vtmp}, 0
buffer_atomic_add v{vtmp}, v{vaddr}, {srd(SWS)}, 0 offen sc0 sc1
s_add_u32 s{sSPIN}, s{sSPIN}, 1
s_waitcnt vmcnt(0)
{C}:
v_cmp_ne_u32 vcc, s{sTAG}, v{vtmp}
s_cmp_gt_u32 s{sSPIN}, 0x20000
s_cbranch_scc1 {E_}
s_cbranch_vccnz {L}
{E_}:
s_mov_b64 exec, -1
{S}:
s_barrier""")

def wq_pattern(dst, sadd):
    for i in range(5):
        a(f"""v_add_u32 v52, {64*i}, v{vLANE}
v_mul_u32_u24 v53, 6554, v52
v_lshrrev_b32 v53, 16, v53
v_mul_u32_u24 v54, 10, v53
v_sub_u32 v54, v52, v54
v_lshrrev_b32 v55, 1, v53
v_and_b32 v55, 4, v55
v_xor_b32 v53, v53, v55
v_mul_u32_u24 v53, 3840, v53
v_lshl_add_u32 v54, v54, 4, s{sadd}""")
        if i & 3: a(f"v_subrev_u32 v53, {(i&3)*1024}, v53")
        a(f"v_add_u32 v{dst+i}, v53, v54")

def prologue():
    if STAMPS: a(f"s_memrealtime {sp(sST)}\ns_memtime s[96:97]")
    a(f"""s_cmp_ge_u32 s2, 256
s_cbranch_scc1 Lend
s_load_dwordx16 s[32:47], s[0:1], 0
s_load_dwordx16 s[48:63], s[0:1], 64
v_and_b32 v{vLANE}, 63, v0
v_lshrrev_b32 v32, 6, v0
s_and_b32 s{sT0}, s2, 7
s_lshr_b32 s{sT1}, s2, 3
v_readfirstlane_b32 s{sWV}, v32""")
    a(f"""s_getpc_b64 s[92:93]
Lpc:
s_lshl_b32 s{sT4}, s{sWV}, 5
s_add_u32 s{sT4}, s{sT4}, s{sT1}
s_lshl_b32 s{sT4}, s{sT4}, 10
s_cmp_ge_u32 s{sT4}, Lcode_end-Lpc
s_cbranch_scc1 Lnopf
v_lshl_add_u32 v33, v{vLANE}, 4, s{sT4}""")
    a.vmem(f"global_load_dwordx4 v[36:39], v33, s[92:93]", "pf", certain=False)
    a("Lnopf:")
    a(f"""s_lshr_b32 s{sR}, s{sT0}, 2
s_lshl_b32 s{sR}, s{sR}, 3
s_and_b32 s{sCT}, s{sT1}, 7
s_add_u32 s{sR}, s{sR}, s{sCT}
s_lshr_b32 s{sJL}, s{sT1}, 3
s_and_b32 s{sJ}, s{sT0}, 3
s_lshl_b32 s{sJ}, s{sJ}, 1
s_and_b32 s{sT3}, s{sJL}, 1
s_add_u32 s{sJ}, s{sJ}, s{sT3}
s_lshl_b32 s{sRB}, s{sT0}, 2
s_add_u32 s{sRB}, s{sRB}, s{sJL}
s_lshr_b32 s{sT2}, s{sCT}, 2
s_add_u32 s{sT2}, s{sT2}, s{sCT}
s_mul_i32 s{sT3}, s{sJL}, 5
s_add_u32 s{sT3}, s{sT3}, 1
s_lshr_b32 s{sT3}, s{sT3}, 1
s_add_u32 s{sT2}, s{sT2}, s{sT3}
s_sub_u32 s{sT3}, s{sT2}, 10
s_cmp_ge_u32 s{sT2}, 10
s_cselect_b32 s{sT2}, s{sT3}, s{sT2}
s_lshl_b32 s{sKA}, s{sT2}, 7
s_add_u32 s{sKA+1}, s{sKA}, 128
s_cmp_eq_u32 s{sKA+1}, 1280
s_cselect_b32 s{sKA+1}, 0, s{sKA+1}
s_lshl_b32 s{sXB}, s{sWV}, 14
s_mul_i32 s{sWB}, s{sWV}, 5120
s_add_u32 s{sWB}, s{sWB}, {L_W}""")
    a(f"""v_lshrrev_b32 v40, 3, v{vLANE}
v_and_b32 v41, 7, v{vLANE}
v_lshrrev_b32 v43, 1, v40
v_xor_b32 v41, v41, v43
v_lshlrev_b32 v41, 4, v41
v_lshrrev_b32 v42, 2, v40
v_lshlrev_b32 v42, 3, v42
v_and_b32 v43, 1, v43
v_add_u32 v42, v42, v43
v_and_b32 v43, 1, v40
v_lshl_add_u32 v42, v43, 2, v42
s_lshl_b32 s{sT2}, s{sR}, 7
s_lshl_b32 s{sT3}, s{sWV}, 5
s_add_u32 s{sT2}, s{sT2}, s{sT3}
v_add_u32 v42, s{sT2}, v42
v_mul_u32_u24 v42, 1280, v42
v_add_u32 v{vX}, v42, v41
v_xor_b32 v44, 64, v41
v_add_u32 v{vX+1}, v42, v44
v_add_u32 v{vX+1}, {16*1280-1024}, v{vX+1}
v_add_u32 v{vX+2}, 512, v{vX}
v_add_u32 v{vX+3}, 512, v{vX+1}
v_mul_u32_u24 v43, 1280, v40
v_add_u32 v45, v43, v41
v_add_u32 v46, v43, v44
s_mov_b32 s{SX+2}, {2048*1280}
s_mov_b32 s{SX+3}, 0x20000
s_mov_b32 s{SW+2}, {640*1280}
s_mov_b32 s{SW+3}, 0x20000
s_mov_b32 s{SQ+2}, {640*3840}
s_mov_b32 s{SQ+3}, 0x20000
s_cmp_lt_u32 s{sJL}, 2
s_cbranch_scc1 LtypeB""")

def args_ready():
    a("s_waitcnt lgkmcnt(0)")
    stamp(11, True)
    stamp(12)
    a(f"s_mov_b32 s{SX}, s{pX}\ns_and_b32 s{SX+1}, s{pX+1}, 0xffff")

def late_setup():
    mk_srd(SWS, pWS, WS_SIZE)
    a(f"""s_add_u32 s{sT2}, s{pWS}, {WS_EPOCH}
s_addc_u32 s{sT3}, s{pWS+1}, 0
s_load_dword s{sTAG}, s[{sT2}:{sT3}], 0""")
    for s in range(2, 10):
        a(f"s_add_u32 s{sKA+s}, s{sKA+s-1}, 128\ns_cmp_eq_u32 s{sKA+s}, 1280\ns_cselect_b32 s{sKA+s}, 0, s{sKA+s}")
    for s in range(2, 10):
        a(f"s_mul_i32 s{sKQ+s}, s{sKA+s}, 1920")
    a(f"""s_lshl_b32 s{sOFF}, s{sJL}, 1
s_add_u32 s{sOFF}, s{sOFF}, s{sCT}
s_sub_u32 s{sT3}, s{sOFF}, 10
s_cmp_ge_u32 s{sOFF}, 10
s_cselect_b32 s{sOFF}, s{sT3}, s{sOFF}
s_sub_u32 s{sT3}, s{sOFF}, 5
s_cmp_ge_u32 s{sOFF}, 5
s_cselect_b32 s{sOFF}, s{sT3}, s{sOFF}
s_mul_i32 s{sT2}, s{sWV}, 5
s_add_u32 s{sT2}, s{sT2}, s{sOFF}""")
    for i in range(5):
        a(f"s_add_u32 s{sLC+i}, s{sT2}, {i}\ns_sub_u32 s{sT3}, s{sLC+i}, 20\ns_cmp_ge_u32 s{sLC+i}, 20\ns_cselect_b32 s{sLC+i}, s{sT3}, s{sLC+i}")
    a(f"""s_mul_i32 s{sCW}, s{sWV}, 20480
s_add_u32 s{sCW}, s{sCW}, {L_W}""")
    a(f"""v_and_b32 v52, 15, v{vLANE}
v_lshrrev_b32 v53, 4, v{vLANE}
v_lshrrev_b32 v54, 1, v52
v_xor_b32 v54, v54, v53
v_lshlrev_b32 v54, 4, v54
v_lshl_add_u32 v56, v52, 7, v54
v_xor_b32 v57, 64, v56
v_add_u32 v{vXR}, s{sXB}, v56
v_add_u32 v{vXR+1}, s{sXB}, v57
v_add_u32 v{vCR}, s{sCW}, v56
v_add_u32 v{vCR+1}, s{sCW}, v57""")
    a(f"""v_bfe_u32 v54, v{vLANE}, 2, 2
v_lshl_add_u32 v54, v53, 3, v54
v_and_b32 v55, 1, v53
v_lshlrev_b32 v55, 2, v55
v_add_u32 v58, v54, v55
v_xor_b32 v55, 4, v55
v_add_u32 v59, v54, v55
v_mul_u32_u24 v58, 160, v58
v_mul_u32_u24 v59, 160, v59
v_and_b32 v60, 3, v{vLANE}
v_mul_u32_u24 v61, 40, v60
v_add_u32 v62, v58, v61
v_add_u32 v63, v59, v61
v_add_u32 v{vT40}, {L_W}, v62
v_add_u32 v{vT40+1}, {L_W}, v63
v_add_u32 v{vT40+2}, {L_W+40960}, v62
v_add_u32 v{vT40+3}, {L_W+40960}, v63""")
    a(f"""s_mul_i32 s{sT2}, s{sCT}, {80*1280}
v_add_u32 v{vC}, s{sT2}, v45
v_add_u32 v{vC+1}, s{sT2}, v46
v_add_u32 v{vC+1}, {10240-1024}, v{vC+1}
v_add_u32 v{vC+2}, {2*(10240-1024)}, v{vC}
v_add_u32 v{vC+3}, {2*(10240-1024)}, v{vC+1}""")

def tag_ready():
    a(f"""s_waitcnt lgkmcnt(0)
s_add_u32 s{sTAG}, s{sTAG}, 0x9e3779b1""")
    a.lg = []

def set_flag(base, lab, vt):
    a(f"""s_cmp_lg_u32 s{sWV}, 0
s_cbranch_scc1 {lab}
s_lshl_b32 s{sT0}, s{sJ}, 4
s_add_u32 s{sT0}, s{sT0}, s{sR}
s_lshl_b32 s{sT0}, s{sT0}, 7
s_add_u32 s{sT0}, s{sT0}, {base}
v_mov_b32 v{vt}, s{sT0}
v_mov_b32 v{vt+1}, s{sTAG}
s_mov_b64 exec, 1""")
    a.vmem(f"buffer_atomic_swap v{vt+1}, v{vt}, {srd(SWS)}, 0 offen sc1", "fl", certain=False)
    a(f"s_mov_b64 exec, -1\n{lab}:")

def pk_cmul_acc(d, l, p, acc):
    a(f"""v_pk_fma_f32 {v2(d)}, {v2(p)}, {v2(l)}, {v2(acc)} op_sel_hi:[1,0,1]
v_pk_fma_f32 {v2(d)}, {v2(p)}, {v2(l)}, {v2(d)} op_sel:[1,1,0] op_sel_hi:[0,1,1] neg_lo:[0,1,0]""")

M0 = [None]
def set_m0(sreg, imm):
    if M0[0] != (sreg, imm):
        a(f"s_add_u32 m0, s{sreg}, {imm}")
        M0[0] = (sreg, imm)
def dma_x(s):
    ops = [("s", lambda: set_m0(sXB, (s%4)*4096))]
    for i in range(4):
        def f(i=i):
            set_m0(sXB, (s%4)*4096)
            a.vmem(f"buffer_load_dwordx4 v{vX+i}, {srd(SX)}, s{sKA+s} offen offset:{i*1024} lds", ("st", s))
        ops.append(("d", f))
    return ops
def dma_w(s, vaddr, rsrc, soff):
    ops = [("s", lambda: set_m0(sWB, (s%4)*20480))]
    for i in range(4):
        def f(i=i):
            set_m0(sWB, (s%4)*20480)
            a.vmem(f"buffer_load_dwordx4 v{vaddr+i}, {srd(rsrc)}, s{soff} offen offset:{i*1024} lds", ("st", s))
        ops.append(("d", f))
    ops.append(("s", lambda: set_m0(sWB, (s%4)*20480+4096)))
    def g():
        set_m0(sWB, (s%4)*20480+4096)
        a.vmem(f"buffer_load_dwordx4 v{vaddr+4}, {srd(rsrc)}, s{soff} offen lds", ("st", s))
    ops.append(("d", g))
    return ops
def dma_c(slot, sbase, ldsoff):
    ops = []
    def setup():
        a(f"""s_cmp_ge_u32 s{sLC+slot}, 10
s_cselect_b32 s{SW}, s{pCIM}, s{pCRE}
s_cselect_b32 s{SW+1}, s{pCIM+1}, s{pCRE+1}
s_cselect_b32 s{sM1}, 1280, 0
s_and_b32 s{SW+1}, s{SW+1}, 0xffff
s_lshl_b32 s{sM0}, s{sLC+slot}, 7
s_sub_u32 s{sM0}, s{sM0}, s{sM1}""")
    ops.append(("s", setup))
    for g in range(3):
        def m0(g=g):
            set_m0(sbase, ldsoff + g*4096)
            if g: a(f"s_add_u32 s{sM0}, s{sM0}, 40960")
        ops.append(("s", m0))
        for i in range(4 if g < 2 else 2):
            def f(i=i, g=g):
                set_m0(sbase, ldsoff + g*4096)
                a.vmem(f"buffer_load_dwordx4 v{vC+i}, {srd(SW)}, s{sM0} offen offset:{i*1024} lds", ("c", slot))
            ops.append(("d", f))
    return ops
CHOME = [160, 200, 0, 40, 80]
def c_reads(slot, vbase, ldsoff):
    ops = []
    for ks in range(2):
        for nt in range(5):
            def f(ks=ks, nt=nt):
                a.lds(f"ds_read_b128 {a4(CHOME[slot] + (ks*5+nt)*4)}, v{vbase+ks} offset:{ldsoff + nt*2048}", ("cr", slot))
            ops.append(("r", f))
    return ops

class BG:
    def __init__(self): self.q = []; self.keys = {}; self.fast = False
    def add(self, ops, key=None):
        self.q.extend(ops)
        if key is not None: self.keys[key] = ops[-1]
    def require(self, key):
        last = self.keys.get(key)
        while last in self.q:
            print("note: forced flush for", key)
            self.q.pop(0)[1]()
    def tick(self, n=1):
        while n > 0 and self.q:
            k, f = self.q.pop(0)
            f()
            if k != "s": n -= 1
    def tick_s(self):
        while self.q and self.q[0][0] == "s":
            self.q.pop(0)[1]()
    def flush(self):
        while self.q: self.q.pop(0)[1]()

def run_ops(ops):
    for k, f in ops: f()

def gemm_loop(nstage, frags_per_stage, read_frag, mfmas, x_reads, stage_dma, bg, ring, LOOK, hooks, first_stage=0, pre_issued=2):
    F = frags_per_stage
    total = nstage * F
    NR = len(ring)
    def sid(f): return first_stage + f // F, f % F
    rq = []; last = []
    for f in range(total):
        s, i = sid(f)
        ops = []
        xr = x_reads(s)
        if i in xr: ops += xr[i]
        ops += read_frag(s, i, ring[f % NR])
        if i == 0:
            def first(s=s, e=ops[0]):
                bg.require(s)
                a.wait(vm=[("st", s)])
                a("s_barrier")
                if STGST: stamp(16 + s)
                d = stage_dma(s + 2)
                if d and s + 2 >= pre_issued and not NODMA: bg.add(d, s + 2)
                e()
            ops[0] = first
        rq += ops
        last.append(len(rq))
    issued = [0]
    def pop(n):
        for _ in range(n):
            rq[issued[0]](); issued[0] += 1
    pop(last[LOOK - 1])
    gap = 0
    for f in range(total):
        s, i = sid(f)
        if (s, i) in hooks: hooks[(s, i)]()
        a.wait(lg=[("w", s, i)])
        ms = mfmas(s, i, ring[f % NR])
        need = last[min(f + LOOK - 1, total - 1)]
        for half, m in enumerate(ms):
            m()
            maxi = last[min(f + LOOK, f + NR - 1 + (1 if half == len(ms) - 1 else 0), total - 1)]
            period = 2 if bg.fast else 4
            due = lambda g: bool(bg.q) and g % period == 1
            if due(gap):
                bg.tick(1)
                if half == len(ms) - 1 and need > issued[0]: pop(need - issued[0])
            else:
                usable = 1 + sum(1 for g in range(gap + 1, gap + len(ms) - half) if not due(g))
                n = max(1, -(-(need - issued[0]) // usable))
                if due(gap + 1) and half == len(ms) - 1: pass
                pop(max(0, min(n, maxi - issued[0])))
                if due(gap + 1): bg.tick_s()
            gap += 1

LOG2E = 0x3fb8aa3b
def phi(regs, sconst_log2e, tmp, NT=4):
    for n, r in enumerate(regs):
        t = tmp + (n % NT) * 2
        a(f"v_pk_mul_f32 {v2(t)}, {v2(r)}, {sp(sconst_log2e)} op_sel_hi:[1,0]")
        a(f"v_max_f32 v{r}, 0x358637bd, v{r}\nv_max_f32 v{r+1}, 0x358637bd, v{r+1}")
        a(f"v_exp_f32_e64 v{t}, v{t} clamp\nv_exp_f32_e64 v{t+1}, v{t+1} clamp")
        if n > 0:
            rp = regs[n-1]; tp = tmp + ((n-1) % NT) * 2
            a(f"v_pk_add_f32 {v2(rp)}, {v2(rp)}, {v2(tp)}")
    rp = regs[-1]; tp = tmp + ((len(regs)-1) % NT) * 2
    a(f"v_pk_add_f32 {v2(rp)}, {v2(rp)}, {v2(tp)}")

def cmul_acc(dr, di, lr, li, pr, pi, ar, ai):
    a(f"""v_fma_f32 v{dr}, v{lr}, v{pr}, v{ar}
v_fma_f32 v{di}, v{lr}, v{pi}, v{ai}
v_fma_f32 v{dr}, -v{li}, v{pi}, v{dr}
v_fma_f32 v{di}, v{li}, v{pr}, v{di}""")

K_AH = 32
K_AB = [112, 132]
K_vA, K_vM = 2, 6
K_vFB, K_vFM, K_vGA, K_vRW, K_vTmp = 11, 12, 13, 14, 15
K_vG = 18
K_FO, K_FL = 246, 247
K_sMT = sKQ + 5
def time_base(dst, srt, tmp):
    a(f"""s_lshr_b32 s{dst}, s{srt}, 1
s_lshl_b32 s{dst}, s{dst}, 5
s_and_b32 s{tmp}, s{srt}, 1
s_lshl_b32 s{tmp}, s{tmp}, 1
s_add_u32 s{dst}, s{dst}, s{tmp}""")
def skip_loads(t):
    mk_srd(SQ, pDSK, 1280)
    a(f"""s_add_u32 s{sT2}, s{sWV}, s{sCT}
s_and_b32 s{sT2}, s{sT2}, 3
s_lshl_b32 s{sT3}, s{sRB}, 2
s_add_u32 s{sT2}, s{sT2}, s{sT3}""")
    time_base(sT3, sT2, sT4)
    a(f"""s_mul_i32 s{sT3}, s{sT3}, 1280
s_mul_i32 s{sT4}, s{sCT}, 160
s_add_u32 s{sT3}, s{sT3}, s{sT4}
v_bfe_u32 v{t}, v{vLANE}, 5, 1
v_bfe_u32 v{t+1}, v{vLANE}, 4, 1
v_lshl_add_u32 v{t}, v{t+1}, 2, v{t}
v_mul_u32_u24 v{t}, 1280, v{t}
v_and_b32 v{t+1}, 15, v{vLANE}
v_lshl_add_u32 v{t}, v{t+1}, 4, v{t}
v_mov_b32 v{t+2}, {OOB}
v_cmp_gt_u32 vcc, 10, v{t+1}
v_cndmask_b32 v{t}, v{t+2}, v{t}, vcc
v_lshlrev_b32 v{t+1}, 4, v{vLANE}
v_cmp_gt_u32 vcc, 10, v{vLANE}
v_cndmask_b32 v{t+1}, v{t+2}, v{t+1}, vcc""")
    set_m0(sXB, 10240)
    for i in range(4):
        a.vmem(f"buffer_load_dwordx4 v{t}, {srd(SX)}, s{sT3} offen offset:{i*1024} lds", "fx")
        if i < 3: a(f"s_add_u32 s{sT3}, s{sT3}, {10240-1024}")
    set_m0(sXB, 10240+4096)
    a.vmem(f"buffer_load_dwordx4 v{t+1}, {srd(SQ)}, s{sT4} offen lds", "fx")
def skip_math(t):
    a(f"""v_lshrrev_b32 v{t}, 4, v{vLANE}
v_lshl_add_u32 v{t}, v{t}, 3, s{sXB}
v_and_b32 v{t+1}, 15, v{vLANE}
v_lshl_add_u32 v{t+1}, v{t+1}, 8, v{t}""")
    a.wait(vm="fx")
    for nt in range(5):
        a.lds(f"ds_read_b64 {v2(t+6+2*nt)}, v{t+1} offset:{10240 + nt*32}", ("sk", nt))
        a.lds(f"ds_read_b64 {v2(t+16+2*nt)}, v{t} offset:{10240 + 4096 + nt*32}", ("sk", nt))
    for n in range(10):
        d = K_AH + 2*n
        if n % 2 == 0: a.wait(lg=[("sk", n//2)])
        a(f"""v_lshlrev_b32 v{t+2}, 16, v{t+6+n}
v_and_b32 v{t+3}, 0xffff0000, v{t+6+n}
v_lshlrev_b32 v{t+4}, 16, v{t+16+n}
v_and_b32 v{t+5}, 0xffff0000, v{t+16+n}
v_pk_mul_f32 {v2(t+2)}, {v2(t+2)}, {v2(t+4)}
v_cvt_pk_bf16_f32 v{t+2}, v{t+2}, v{t+3}
v_lshlrev_b32 v{d}, 16, v{t+2}
v_and_b32 v{d+1}, 0xffff0000, v{t+2}""")
def k2_setup(t):
    vA, vM, sMT = K_vA, K_vM, K_sMT
    mk_srd(SOUT, pOUT, 2048*2560)
    a(f"s_add_u32 s{sT0}, s{sWV}, s{sCT}")
    a(f"v_lshlrev_b32 v{vM}, 4, v{vLANE}")
    for i in range(4):
        a(f"""s_add_u32 s{sMT+i}, s{sT0}, {i}
s_and_b32 s{sMT+i}, s{sMT+i}, 3
s_mul_i32 s{sT1}, s{sMT+i}, {RT}
v_add_u32 v{vA+i}, s{sT1}, v{vM}""")
    for nt in range(1, 5): a(f"v_add_u32 v{vM+nt}, {nt*20480}, v{vM}")
    a(f"s_mul_i32 s{sT0}, s{sRB}, {4*RT}\ns_mul_i32 s{sT1}, s{sCT}, {5*20480}\ns_add_u32 s{sT1}, s{sT1}, {WS_M}\ns_add_u32 s{sT3}, s{sT0}, 40960")
    for i in range(5):
        a(f"""s_lshl_b32 s{sT2}, s{sLC+i}, 11
s_add_u32 s{sKA+i}, s{sT0}, s{sT2}
s_lshl_b32 s{sT2}, s{sLC+i}, 10
s_add_u32 s{sKA+5+i}, s{sT3}, s{sT2}
s_add_u32 s{sKQ+i}, s{sT1}, s{sT2}""")
    a(f"s_lshl_b32 s{sT2}, s{sRB}, 2\ns_add_u32 s{sT2}, s{sT2}, s{sWV}")
    time_base(sT3, sT2, sT4)
    a(f"""s_mul_i32 s{sT4}, s{sCT}, 320
s_mul_i32 s{sT5}, s{sWV}, {16*320}
v_lshrrev_b32 v{t}, 4, v{vLANE}
v_lshlrev_b32 v{t}, 3, v{t}
v_bfe_u32 v{t+1}, v{vLANE}, 3, 1
v_add_u32 v{t}, v{t}, v{t+1}
v_bfe_u32 v{t+1}, v{vLANE}, 2, 1
v_lshl_add_u32 v{t}, v{t+1}, 2, v{t}
v_add_u32 v{t}, s{sT3}, v{t}
v_mul_u32_u24 v{t}, 2560, v{t}
v_and_b32 v{t+1}, 3, v{vLANE}
v_lshl_add_u32 v{t+2}, v{t+1}, 4, s{sT4}
v_add_u32 v{K_FO}, v{t}, v{t+2}
v_bfe_u32 v{t+2}, v{vLANE}, 3, 2
v_xor_b32 v{t+1}, v{t+1}, v{t+2}
v_lshrrev_b32 v{t}, 2, v{vLANE}
v_mul_u32_u24 v{t}, 320, v{t}
v_lshl_add_u32 v{t}, v{t+1}, 4, v{t}
v_add_u32 v{K_FL}, s{sT5}, v{t}""")
    a(f"""s_lshr_b32 s{sT2}, s{sRB}, 1
s_lshl_b32 s{sT2}, s{sT2}, 7
s_add_u32 s{sT3}, s{sT2}, {FB}
v_lshl_add_u32 v{K_vFB}, v{vLANE}, 11, s{sT3}
s_and_b32 s{sT3}, s{sRB}, 1
s_lshl_b32 s{sT3}, s{sT3}, 13
s_add_u32 s{sT2}, s{sT2}, s{sT3}
s_add_u32 s{sT2}, s{sT2}, {FM - 16*2048}
v_lshl_add_u32 v{t}, v{vLANE}, 11, s{sT2}
s_lshl_b32 s{sT2}, s{sCT}, 8
s_add_u32 s{sT2}, s{sT2}, {FM}
v_lshrrev_b32 v{K_vFM}, 1, v{vLANE}
v_lshl_add_u32 v{K_vFM}, v{K_vFM}, 11, s{sT2}
v_and_b32 v{t+1}, 1, v{vLANE}
v_lshl_add_u32 v{K_vFM}, v{t+1}, 7, v{K_vFM}
v_cmp_gt_u32 vcc, 16, v{vLANE}
v_cndmask_b32 v{K_vFM}, v{t}, v{K_vFM}, vcc
v_and_b32 v{t}, 15, v{vLANE}
v_lshlrev_b32 v{K_vGA}, 2, v{t}
v_lshrrev_b32 v{t+1}, 4, v{vLANE}
v_bfe_u32 v{t+2}, v{vLANE}, 1, 2
v_xor_b32 v{t+1}, v{t+1}, v{t+2}
v_mul_u32_u24 v{t}, 320, v{t}
v_lshl_add_u32 v{t}, v{t+1}, 4, v{t}
s_mul_i32 s{sT2}, s{sWV}, {64*320}
v_add_u32 v{K_vRW}, s{sT2}, v{t}""")

def warm_c(ptr, vt):
    def f():
        a(f"""s_mov_b32 s{SW}, s{ptr}
s_and_b32 s{SW+1}, s{ptr+1}, 0xffff
s_lshr_b32 s{sM0}, s2, 3
s_and_b32 s{sM0}, s{sM0}, 15
s_lshl_b32 s{sM0}, s{sM0}, 2
s_add_u32 s{sM0}, s{sM0}, s{sWV}
s_mul_i32 s{sM0}, s{sM0}, 12800
v_lshlrev_b32 v{vt}, 7, v{vLANE}""")
        a.vmem(f"buffer_load_dword v{vt+1}, v{vt}, {srd(SW)}, s{sM0} offen", "warm")
        a(f"s_add_u32 s{sM0}, s{sM0}, 8192\ns_mov_b32 exec_hi, 15")
        a.vmem(f"buffer_load_dword v{vt+1}, v{vt}, {srd(SW)}, s{sM0} offen", "warm")
        a("s_mov_b32 exec_hi, -1")
    return f

def type_A():
    bg = BG()
    AK, AG = ACC, ACC + 80
    RING = [128 + 4*i for i in range(8)]
    sZB, sKVB, sGA, sMa, sMb, sMc, sMd, sGB = 34, 35, 36, 37, 38, 39, 40, 41
    sMK = 60
    sGW = 46
    a(f"""s_lshr_b32 s{sT2}, s{sWV}, 1
s_add_u32 s{sT2}, s{sT2}, 1
s_mul_i32 s{sT2}, s{sT2}, 1280
s_mul_i32 s{sT3}, s{sJ}, 160
s_add_u32 s{sT2}, s{sT2}, s{sT3}
s_and_b32 s{sT3}, s{sWV}, 1
s_mul_i32 s{sT3}, s{sT3}, {32*3840}
s_add_u32 s{sT2}, s{sT2}, s{sT3}
s_mul_i32 s{sKQ}, s{sKA}, 1920
s_mul_i32 s{sKQ+1}, s{sKA+1}, 1920""")
    wq_pattern(vW, sT2)
    args_ready()
    a(f"s_mov_b32 s{SQ}, s{pQKV}\ns_and_b32 s{SQ+1}, s{pQKV+1}, 0xffff")
    def stage_dma(s):
        if s >= 10: return None
        return dma_x(s) + dma_w(s, vW, SQ, sKQ + s)
    run_ops(stage_dma(0))
    mk_srd(SW, pGW, 1280)
    a(f"""s_and_b32 s{sT2}, s{sWV}, 1
s_lshl_b32 s{sT2}, s{sT2}, 10
v_lshlrev_b32 v64, 4, v{vLANE}""")
    set_m0(sT2, L_GW)
    a.vmem(f"buffer_load_dwordx4 v64, {srd(SW)}, s{sT2} offen lds", ("st", 0))
    late_setup()
    a(f"""v_mov_b32 v68, 0
v_mov_b32 v69, 0
v_mov_b32 v70, 0
v_mov_b32 v71, 0
v_lshlrev_b32 v65, 4, v0
v_add_u32 v65, {L_KVB}, v65
v_cmp_gt_u32 vcc, 164, v0
s_and_saveexec_b64 {sp(sT2)}, vcc""")
    a.lds("ds_write_b128 v65, v[68:71]", "z0")
    a(f"s_mov_b64 exec, {sp(sT2)}")
    vXM = vQ + 1
    a(f"""v_lshlrev_b32 v61, 3, v60
v_add_u32 v62, v58, v61
v_add_u32 v63, v59, v61
v_add_u32 v{vWR}, {L_W}, v62
v_add_u32 v{vWR+1}, {L_W}, v63
v_add_u32 v{vWR+2}, {L_W+40960}, v62
v_add_u32 v{vWR+3}, {L_W+40960}, v63
v_lshrrev_b32 v{vQ}, 4, v{vLANE}
v_lshlrev_b32 v{vQ}, 4, v{vQ}
v_add_u32 v{vQ}, {L_GW}, v{vQ}
s_and_b32 s{sT2}, s{sJ}, 1
s_lshl_b32 s{sT2}, s{sT2}, 11
s_xor_b32 s{sT3}, s{sT2}, 2048
v_add_u32 v{vXM}, s{sT2}, v{vXR}
v_add_u32 v{vXM+1}, s{sT2}, v{vXR+1}
v_add_u32 v{vXM+2}, s{sT3}, v{vXR}
v_add_u32 v{vXM+3}, s{sT3}, v{vXR+1}""")
    mk_srd(SW, pWO, 640*1280)
    a(f"""s_and_b32 s{sT1}, s{sR}, 1
s_mul_i32 s{sT2}, s{sT1}, 40
s_mul_i32 s{sT3}, s{sJ}, 80
s_add_u32 s{sT2}, s{sT2}, s{sT3}
s_mul_i32 s{sT2}, s{sT2}, 1280
s_lshr_b32 s{sT3}, s{sR}, 1
s_mul_i32 s{sT3}, s{sT3}, 160
s_add_u32 s{sT2}, s{sT2}, s{sT3}
s_mov_b32 s{sM0}, s{sT2}
s_lshl_b32 s{sM1}, s{sWV}, 10
v_mov_b32 v211, {OOB}""")
    for n in range(2):
        a(f"""v_add_u32 v65, {256*n}, v0
v_mul_u32_u24 v66, 6554, v65
v_lshrrev_b32 v66, 16, v66
v_mul_u32_u24 v67, 10, v66
v_sub_u32 v67, v65, v67
v_mul_u32_u24 v66, 1280, v66
v_lshl_add_u32 v66, v67, 4, v66
v_cmp_gt_u32 vcc, 400, v65
v_cndmask_b32 v{72+n}, v211, v66, vcc""")
    def wo_dma():
        for n in range(2):
            set_m0(sM1, L_WO + 4096*n)
            if n == 1:
                a(f"s_cmp_eq_u32 s{sWV}, 3\ns_cbranch_scc1 LskipWo")
                a.vmem(f"buffer_load_dwordx4 v73, {srd(SW)}, s{sM0} offen lds", ("st", 1), certain=False)
                a("LskipWo:")
            else:
                a.vmem(f"buffer_load_dwordx4 v72, {srd(SW)}, s{sM0} offen lds", ("st", 1))
    vGS, vZ1, vZ2, vK1, vK2, vK3, vK4 = 212, 213, 214, 215, 216, 217, 218
    vXW, vR0, vR1, vKP, vKB = 219, 220, 221, 222, 223
    vOa0, vOa1, vOb0, vOb1, vOc0, vOc1 = 224, 225, 226, 227, 228, 229
    vWo = 230
    vMS, vMR, vONE, vTG = 234, 235, 236, 237
    ZR = L_KVB + 2560
    def precompute():
        a(f"""v_and_b32 v208, 15, v{vLANE}
v_lshrrev_b32 v209, 4, v{vLANE}
v_lshrrev_b32 v210, 2, v208
v_lshlrev_b32 v{vGS}, 4, v209
v_cmp_eq_u32 vcc, 0, v208
v_cndmask_b32 v{vGS}, v211, v{vGS}, vcc
s_lshl_b32 s{sGB}, s{sR}, 3
s_add_u32 s{sGB}, s{sGB}, s{sJ}
s_lshl_b32 s{sGB}, s{sGB}, 6
s_add_u32 s{sGB}, s{sGB}, {WS_G}
v_cmp_eq_u32 {sp(sMK)}, s{sWV}, v210
v_cmp_eq_u32 {sp(sT4)}, s{sWV}, v209
s_add_u32 s{sT2}, s{sWV}, 1
s_and_b32 s{sT2}, s{sT2}, 3
v_cmp_eq_u32 vcc, s{sT2}, v209
v_lshlrev_b32 v{vZ1}, 2, v208
v_and_b32 v240, 3, v208
v_add_u32 v241, 16, v240
v_lshlrev_b32 v{vZ2}, 2, v241
v_cndmask_b32 v{vZ1}, v211, v{vZ1}, vcc
v_cndmask_b32 v{vZ2}, v211, v{vZ2}, vcc
v_cndmask_b32 v{vZ2}, v211, v{vZ2}, {sp(sMK)}
s_lshl_b32 s{sT2}, s{sJ}, 4
s_add_u32 s{sT2}, s{sT2}, s{sR}
s_mul_i32 s{sZB}, s{sT2}, 640
s_mul_i32 s{sT3}, s{sWV}, 80
s_add_u32 s{sZB}, s{sZB}, s{sT3}
s_add_u32 s{sZB}, s{sZB}, {WS_ZP}
v_mul_u32_u24 v242, 320, v209
v_lshl_add_u32 v{vK1}, v208, 4, v242
v_lshlrev_b32 v{vK2}, 4, v208
v_cndmask_b32 v{vK2}, v211, v{vK2}, {sp(sT4)}
v_lshl_add_u32 v{vK3}, v241, 4, v242
v_cndmask_b32 v{vK3}, v211, v{vK3}, {sp(sMK)}
v_lshlrev_b32 v{vK4}, 4, v241
v_cndmask_b32 v{vK4}, v211, v{vK4}, {sp(sMK)}
v_cndmask_b32 v{vK4}, v211, v{vK4}, {sp(sT4)}
s_mul_i32 s{sKVB}, s{sT2}, 6400
s_mul_i32 s{sT3}, s{sWV}, 1600
s_add_u32 s{sKVB}, s{sKVB}, s{sT3}
s_add_u32 s{sKVB}, s{sKVB}, {WS_KVP}
v_lshlrev_b32 v{vR0}, 4, v{vLANE}
v_add_u32 v{vXW}, s{sXB}, v{vR0}
s_lshl_b32 s{sT2}, s{sWV}, 10
v_add_u32 v{vR1}, s{sT2}, v{vR0}
v_lshlrev_b32 v{vKP}, 4, v0
v_cmp_gt_u32 vcc, 200, v0
v_cndmask_b32 v{vKP}, v211, v{vKP}, vcc
s_mul_i32 s{sGA}, s{sJ}, {16*6400}
s_and_b32 s{sT1}, s{sR}, 1
s_mul_i32 s{sT2}, s{sT1}, 3200
s_add_u32 s{sGA}, s{sGA}, s{sT2}
s_add_u32 s{sGA}, s{sGA}, {WS_KVP}""")
        a(f"""v_cmp_le_u32 vcc, 100, v0
v_subrev_u32 v242, 100, v0
v_cndmask_b32 v242, v0, v242, vcc
v_mov_b32 v243, {L_KVB}
v_mov_b32 v244, {L_KVB + 1280}
v_cndmask_b32 v243, v243, v244, vcc
v_mul_u32_u24 v244, 3277, v242
v_lshrrev_b32 v244, 16, v244
v_mul_u32_u24 v245, 20, v244
v_sub_u32 v245, v242, v245
v_lshl_add_u32 v243, v245, 6, v243
v_lshl_add_u32 v{vKB}, v244, 3, v243""")
        a(f"""v_lshrrev_b32 v242, 1, v210
v_lshl_add_u32 v242, v242, 3, v240
v_lshlrev_b32 v242, 6, v242
v_lshl_add_u32 v242, v209, 4, v242
v_add_u32 v242, {L_KVB}, v242
v_add_u32 v243, 1280, v242
v_mov_b32 v244, {ZR - 256}
v_and_b32 v245, 1, v210
v_cmp_eq_u32 vcc, 0, v245
v_cndmask_b32 v{vOb0}, v244, v242, vcc
v_cndmask_b32 v{vOb1}, v243, v244, vcc
v_mov_b32 v244, {ZR}
v_cndmask_b32 v{vOa0}, v244, v242, vcc
v_cndmask_b32 v{vOa1}, v243, v244, vcc
v_lshlrev_b32 v242, 6, v240
v_lshl_add_u32 v242, v209, 4, v242
v_add_u32 v242, {L_KVB + 16*64}, v242
v_add_u32 v243, 1280, v242
v_cmp_eq_u32 vcc, 0, v210
v_cndmask_b32 v{vOc0}, v244, v242, vcc
v_cmp_eq_u32 vcc, 1, v210
v_cndmask_b32 v{vOc1}, v244, v243, vcc""")
        a(f"""v_bfe_u32 v242, v{vLANE}, 2, 2
v_lshl_add_u32 v242, v209, 3, v242
v_add_u32 v243, 4, v242
v_min_u32 v242, 19, v242
v_min_u32 v243, 19, v243
v_mul_u32_u24 v242, 160, v242
v_mul_u32_u24 v243, 160, v243
v_lshl_add_u32 v242, v240, 3, v242
v_lshl_add_u32 v243, v240, 3, v243
v_add_u32 v{vWo+2}, {L_WO}, v242
v_add_u32 v{vWo+3}, {L_WO}, v243
s_lshl_b32 s{sT2}, s{sWV}, 5
v_add_u32 v{vWo}, s{sT2}, v{vWo+2}
v_add_u32 v{vWo+1}, s{sT2}, v{vWo+3}""")
        a(f"""v_and_b32 v242, 1, v209
v_lshrrev_b32 v243, 1, v209
v_lshl_add_u32 v242, v243, 2, v242
v_lshlrev_b32 v242, 8, v242
v_lshl_add_u32 v{vMS}, v208, 4, v242
v_lshlrev_b32 v243, 3, v209
v_lshl_add_u32 v243, v208, 4, v243
v_cmp_gt_u32 vcc, 2, v209
v_cndmask_b32 v{vMR}, v211, v243, vcc
s_lshr_b32 s{sT0}, s{sR}, 1
s_mul_i32 s{sT0}, s{sT0}, {5*20480}
s_mul_i32 s{sT2}, s{sJ}, 2560
s_add_u32 s{sT0}, s{sT0}, s{sT2}
s_add_u32 s{sT0}, s{sT0}, {WS_M}
s_lshl_b32 s{sT2}, s{sT1}, 9
s_add_u32 s{sT2}, s{sT2}, s{sT0}
s_lshl_b32 s{sT3}, s{sT1}, 8
s_add_u32 s{sT3}, s{sT3}, s{sT0}
s_mul_i32 s{sT0}, s{sWV}, 20480
s_add_u32 s{sMa}, s{sT2}, s{sT0}
s_add_u32 s{sMb}, s{sT3}, s{sT0}
s_add_u32 s{sT2}, s{sT2}, {4*20480}
s_add_u32 s{sT3}, s{sT3}, {4*20480}
s_cmp_eq_u32 s{sWV}, 0
s_cselect_b32 s{sMc}, s{sT2}, {OOB}
s_cselect_b32 s{sMd}, s{sT3}, {OOB}
v_mov_b32 v{vONE}, 0x3f803f80""")
    precompute()
    stamp(34)
    run_ops(stage_dma(1))
    wo_dma()
    tag_ready()
    a(f"""s_and_b32 s{sT2}, s{sTAG}, 0xff
v_mov_b32 v{vTG}, s{sT2}
s_lshr_b32 s{sT2}, s{sJ}, 1
s_cmp_eq_u32 s{sT2}, s{sWV}
s_cselect_b64 {sp(sGW)}, -1, 0
s_mov_b64 vcc, {sp(sGW)}""")
    stamp(0)
    XA = lambda s, ks, m: (s % 2) * 16 + ks * 8 + m * 4 + 120
    def x_reads(s):
        def mk(ks):
            return [(lambda m=m: a.lds(f"ds_read_b128 {a4(XA(s, ks, m))}, v{vXM+2*m+ks} offset:{(s%4)*4096}", ("x", s, ks))) for m in range(2)]
        return {0: mk(0), 11: mk(1)}
    def read_frag(s, i, reg):
        ks, t = divmod(i, 11)
        sl = s % 4
        if t == 10:
            def g():
                if ks == 0: a(f"v_add_u32 v120, s{sKA+s}, v{vQ}")
                a.lds(f"ds_read_b128 {v4(reg)}, v120 offset:{ks*64}", ("w", s, i))
            return [g]
        seg, T = divmod(t, 5)
        off = (sl % 2) * 20480 + seg * 10240 + ks * 5120
        out = []
        for hh in range(2):
            if T < 4: va, o = vWR + (sl // 2) * 2 + hh, off + 40 * T
            else: va, o = vT40 + (sl // 2) * 2 + hh, off + 32
            out.append(lambda hh=hh, va=va, o=o: a.lds(f"ds_read_b64_tr_b16 {v2(reg + 2*hh)}, v{va} offset:{o}", ("w", s, i)))
        return out
    def mfmas(s, i, reg):
        ks, t = divmod(i, 11)
        first = (s == 0 and ks == 0)
        if t == 10:
            def g():
                L = a.label("Lng")
                a(f"s_cbranch_vccz {L}")
                mfma(v4(AG), a4(XA(s, ks, 0)), v4(reg), "0" if first else v4(AG))
                a(f"{L}:")
            return [g]
        out = []
        for m in range(2):
            d = ACC + t * 8 + m * 4
            c = "0" if first else v4(d)
            out.append(lambda d=d, m=m, c=c: mfma(v4(d), a4(XA(s, ks, m)), v4(reg), c))
        return out
    gemm_loop(10, 22, read_frag, mfmas, x_reads, stage_dma, bg, RING, 7, {(8, 2): warm_c(pCIM, 122)})
    bg.flush()
    stamp(1)
    a(f"s_mov_b32 s{sT2}, {LOG2E}\ns_movk_i32 s{sT3}, 0xff")
    T = 160
    PKR = 168
    def pack(t):
        dst = PKR + 4*t
        for q in range(4):
            a(f"v_cvt_pk_bf16_f32 v{dst+q}, v{ACC + t*8 + 2*q}, v{ACC + t*8 + 2*q + 1}")
        a.lds(f"ds_write_b128 v{vXW}, {v4(dst)} offset:{t*1024}", "kvx")
    for t in range(5):
        phi([AK + 8*t + 2*n for n in range(2)], sT2, T)
        pack(5 + t)
        phi([AK + 8*t + 2*n for n in range(2, 4)], sT2, T)
        pack(t)
    a.wait(lg="all")
    a("s_barrier")
    F0 = 32
    for w in range(4):
        b = F0 + w * 16
        a.lds(f"ds_read_b128 {v4(b+12)}, v{vR0} offset:{w*16384 + 9216}", ("kr", w))
        a.lds(f"ds_read_b128 {v4(b)}, v{vR1} offset:{w*16384}", ("kr", w))
        a.lds(f"ds_read_b128 {v4(b+4)}, v{vR0} offset:{w*16384 + 4096}", ("kr", w))
        a.lds(f"ds_read_b128 {v4(b+8)}, v{vR1} offset:{w*16384 + 5120}", ("kr", w))
    P = 96
    for w in range(4):
        b = F0 + w * 16
        a.wait(lg=[("kr", w)])
        for q in range(4): a(f"v_cndmask_b32 v{b+12+q}, v{vONE}, v{b+12+q}, {sp(sMK)}")
        c = lambda n: "0" if w == 0 else v4(P + 4*n)
        mfma(v4(P), v4(b+8), v4(b), c(0))
        mfma(v4(P+8), v4(b+8), v4(b+4), c(2))
        mfma(v4(P+4), v4(b+12), v4(b), c(1))
        mfma(v4(P+12), v4(b+12), v4(b+4), c(3))
    a(f"s_mov_b32 s{SW+2}, {640*1280}")
    for n in (0, 2, 1, 3):
        for q in (0, 2):
            a(f"v_bfi_b32 v{P+4*n+q}, s{sT3}, v{vTG}, v{P+4*n+q}")
    a.vmem(f"buffer_store_dword v{P+4}, v{vZ1}, {srd(SWS)}, s{sZB} offen sc1", "zst")
    a.vmem(f"buffer_store_dword v{P+12}, v{vZ2}, {srd(SWS)}, s{sZB} offen sc1", "zst")
    a.vmem(f"buffer_store_dwordx4 {v4(P)}, v{vK1}, {srd(SWS)}, s{sKVB} offen sc1", "kvst")
    a.vmem(f"buffer_store_dwordx4 {v4(P+4)}, v{vK2}, {srd(SWS)}, s{sKVB} offen offset:1280 sc1", "kvst")
    a.vmem(f"buffer_store_dwordx4 {v4(P+8)}, v{vK3}, {srd(SWS)}, s{sKVB} offen sc1", "kvst")
    a.vmem(f"buffer_store_dwordx4 {v4(P+12)}, v{vK4}, {srd(SWS)}, s{sKVB} offen offset:1280 sc1", "kvst")
    stamp(2)
    run_ops(dma_c(3, sCW, 0))
    a("s_cbranch_vccz LA_ng")
    for q in range(2):
        r = AG + 2*q
        a(f"""v_cvt_pk_bf16_f32 v{T+1}, v{r}, v{r+1}
v_lshlrev_b32 v{r}, 16, v{T+1}
v_and_b32 v{r+1}, 0xffff0000, v{T+1}
v_mul_f32 v{r}, 0xbfb8aa3b, v{r}
v_mul_f32 v{r+1}, 0xbfb8aa3b, v{r+1}
v_exp_f32 v{r}, v{r}
v_exp_f32 v{r+1}, v{r+1}
s_nop 0
v_add_f32 v{r}, 1.0, v{r}
v_add_f32 v{r+1}, 1.0, v{r+1}
v_rcp_f32 v{r}, v{r}
v_rcp_f32 v{r+1}, v{r+1}
s_nop 0
v_cvt_pk_bf16_f32 v{T+1}, v{r}, v{r+1}
v_lshlrev_b32 v{r}, 16, v{T+1}
v_and_b32 v{r+1}, 0xffff0000, v{T+1}""")
    a.vmem(f"buffer_store_dwordx4 {v4(AG)}, v{vGS}, {srd(SWS)}, s{sGB} offen sc1", "gst", certain=False)
    a("LA_ng:")
    WOF = 128
    for ts in range(2):
        for hd in range(2):
            r = WOF + (ts*2 + hd) * 4
            for hh in range(2):
                a.lds(f"ds_read_b64_tr_b16 {v2(r + 2*hh)}, v{vWo + 2*ts + hh} offset:{hd*3200 + (128 if ts else 0)}", "wof")
    run_ops(dma_c(4, sCW, 10240))
    skip_loads(160)
    k2_setup(160)
    a(f"""v_cmp_gt_u32 vcc, 200, v0
s_mov_b32 s{sSPIN}, 0
s_mov_b64 {sp(sT4)}, vcc
LA_gr:
s_mov_b32 s{sT0}, s{sGA}""")
    for n in range(16):
        a.vmem(f"buffer_load_dwordx4 {v4(32 + 4*n)}, v{vKP}, {srd(SWS)}, s{sT0} offen sc1", ("kp", n))
        if n < 15: a(f"s_add_u32 s{sT0}, s{sT0}, 6400")
    a(f"s_cmp_lg_u32 s{sSPIN}, 0\ns_cbranch_scc1 LA_g2")
    a.wait(vm=[("c", 4)], lg="all")
    run_ops(c_reads(3, vCR, 0))
    run_ops(c_reads(4, vCR, 10240))
    a.wait(lg="all")
    a("LA_g2:")
    a.wait(vm=[("kp", 0)])
    a(f"v_xor_b32 v32, v32, v{vTG}\nv_xor_b32 v34, v34, v{vTG}\nv_or_b32 v{T}, v32, v34")
    for n in range(1, 16):
        a.wait(vm=[("kp", n)])
        a(f"""v_xor_b32 v{32+4*n}, v{32+4*n}, v{vTG}
v_xor_b32 v{34+4*n}, v{34+4*n}, v{vTG}
v_pk_add_f32 v[32:33], v[32:33], {v2(32+4*n)}
v_or3_b32 v{T}, v{T}, v{32+4*n}, v{34+4*n}
v_pk_add_f32 v[34:35], v[34:35], {v2(34+4*n)}""")
    a(f"""v_and_b32 v{T}, 0xff, v{T}
v_cmp_ne_u32 vcc, 0, v{T}
s_add_u32 s{sSPIN}, s{sSPIN}, 1
s_and_b64 vcc, vcc, {sp(sT4)}
s_cmp_gt_u32 s{sSPIN}, 0x20000
s_cbranch_scc1 LA_gd
s_cbranch_vccnz LA_gr
LA_gd:
v_cvt_pk_bf16_f32 v36, v32, v33
v_cvt_pk_bf16_f32 v37, v34, v35
s_mov_b64 exec, {sp(sT4)}""")
    a.lds(f"ds_write_b64 v{vKB}, v[36:37]", "kvb")
    a("s_mov_b64 exec, -1")
    if E2("AC0", 1): run_ops(dma_c(0, sCW, 0))
    a.wait(lg="all")
    a("s_barrier")
    stamp(3)
    KF = 40
    a.lds(f"ds_read_b128 {v4(KF)}, v{vOa0}", "kf")
    a.lds(f"ds_read_b128 {v4(KF+8)}, v{vOb0} offset:256", "kf")
    a.lds(f"ds_read_b128 {v4(KF+16)}, v{vOc0}", "kf")
    a.lds(f"ds_read_b128 {v4(KF+4)}, v{vOa1}", "kf")
    a.lds(f"ds_read_b128 {v4(KF+12)}, v{vOb1} offset:256", "kf")
    a.lds(f"ds_read_b128 {v4(KF+20)}, v{vOc1}", "kf")
    a.wait(lg="all")
    MD = 64
    for hd in range(2):
        for ts in range(2):
            for tl in range(3):
                d = MD + (ts*3 + tl) * 4
                mfma(v4(d), v4(KF + tl*8 + hd*4), v4(WOF + (ts*2+hd)*4), "0" if hd == 0 else v4(d))
    for ts in range(2):
        d = MD + ts*12; o = 88 + ts*8
        for q in range(6):
            a(f"v_cvt_pk_bf16_f32 v{o+q}, v{d+2*q}, v{d+2*q+1}")
        a.vmem(f"buffer_store_dwordx4 {v4(o)}, v{vMS}, {srd(SWS)}, s{sMa if ts == 0 else sMc} offen sc1", "mst")
        a.vmem(f"buffer_store_dwordx2 {v2(o+4)}, v{vMR}, {srd(SWS)}, s{sMb if ts == 0 else sMd} offen offset:2048 sc1", "mst")
    a.wait(vm="all", lg="all")
    a("s_barrier")
    set_flag(FM, "LA_nf2", 240)
    stamp(4)
    if not E2("AC0", 1): run_ops(dma_c(0, sCW, 0))
    run_ops(dma_c(1, sCW, 10240))
    run_ops(dma_c(2, sXB, 0))
    a.wait(vm=[("c", 0)])
    run_ops(c_reads(0, vCR, 0))
    a.wait(vm=[("c", 1)], lg="all")
    run_ops(c_reads(1, vCR, 10240))
    a("s_branch LK2")

def type_B():
    a("LtypeB:")
    M0[0] = None
    a.vm = []; a.lg = []
    bg = BG()
    U = ACC; Q = ACC + 80
    RING = [152 + 4*i for i in range(6)]
    LAM = 176
    XR = 216
    COEF = 216
    L8, L128 = 250, 248
    T = 176
    sSa, sSb, sSc, sSd = 54, 55, 56, 57
    sSS, sXCn, sPEND, sC1, sC2 = 60, 61, 40, 41, 46
    SXR = 36
    sVAL = 34
    sTGN = [sKA + n for n in range(10)] + [sKQ + 5 + n for n in range(5)] + [47]
    a(f"""s_and_b32 s{sT2}, s{sWV}, 1
s_mul_i32 s{sT3}, s{sT2}, 40
s_mul_i32 s{sT4}, s{sJ}, 80
s_add_u32 s{sT3}, s{sT3}, s{sT4}
s_mul_i32 s{sT3}, s{sT3}, 1280
s_lshl_b32 s{sT4}, s{sT2}, 6
v_xor_b32 v64, s{sT4}, v45
v_xor_b32 v65, s{sT4}, v46
v_add_u32 v{vW}, s{sT3}, v64
v_add_u32 v65, s{sT3}, v65
v_add_u32 v{vW+1}, {10240-1024}, v65
v_add_u32 v{vW+2}, {2*(10240-1024)}, v{vW}
v_add_u32 v{vW+3}, {3*(10240-1024)}, v65
v_add_u32 v{vW+4}, {4*10240}, v{vW}
s_mul_i32 s{sT4}, s{sJ}, 160
v_min_u32 v66, 79, v0
v_lshl_add_u32 v66, v66, 1, s{sT4}
v_mov_b32 v{T}, 0
v_mov_b32 v{T+1}, 0
v_mov_b32 v{T+2}, 0
s_mul_i32 s{sKQ}, s{sKA}, 1920
s_mul_i32 s{sKQ+1}, s{sKA+1}, 1920
s_mul_i32 s{sT5}, s{sT2}, {32*3840}
s_add_u32 s{sT5}, s{sT5}, s{sT4}""")
    args_ready()
    a(f"""s_cmp_ge_u32 s{sWV}, 2
s_cselect_b32 s{SW}, s{pBIM}, s{pBRE}
s_cselect_b32 s{SW+1}, s{pBIM+1}, s{pBRE+1}
s_and_b32 s{SW+1}, s{SW+1}, 0xffff""")
    def stage_dma(s):
        if s < 10: return dma_x(s) + dma_w(s, vW, SW, sKA + s)
        if s < 15: return dma_w(s, vQ, SQ, sKQ + (s - 10))
        return None
    a.vmem(f"global_load_short_d16_hi v{T}, v66, {sp(pLRE)}", "par")
    a.vmem(f"global_load_short_d16_hi v{T+1}, v66, {sp(pLIM)}", "par")
    a.vmem(f"global_load_short_d16_hi v{T+2}, v66, {sp(pLDT)}", "par")
    run_ops(stage_dma(0))
    a(f"s_mov_b32 s{SQ}, s{pQKV}\ns_and_b32 s{SQ+1}, s{pQKV+1}, 0xffff")
    wq_pattern(vQ, sT5)
    late_setup()
    a(f"s_cmp_ge_u32 s{sWV}, 2")
    for q in range(5): a(f"s_cselect_b32 s{sKQ+q}, s{sKQ+2*q+1}, s{sKQ+2*q}")
    a(f"""v_add_u32 v{vWR}, {L_W}, v56
v_add_u32 v{vWR+1}, {L_W}, v57
v_add_u32 v{vWR+2}, {L_W+40960}, v56
v_add_u32 v{vWR+3}, {L_W+40960}, v57""")
    aTW, aTR0, aTR1, aST, aEA, aPT, aSA, aXA, aXW, aHR, aZR, aLT, aSX, aSD = range(240, 254)
    def params():
        a.wait(vm="par")
        stamp(34)
        bg.tick(2)
        P = T + 4
        t0, t1, t2, t3 = T+16, T+17, T+18, T+19
        C = P + 8
        a(f"""v_mul_f32 v{T+2}, {LOG2E}, v{T+2}
v_exp_f32 v{T+2}, v{T+2}
s_nop 0
v_cvt_pk_bf16_f32 v{T+2}, v{T+2}, v{T+2}
v_lshlrev_b32 v{T+2}, 16, v{T+2}
v_mul_f32 v{t0}, v{T+2}, v{T}
v_mul_f32 v{t1}, v{T+2}, v{T+1}
v_mul_f32 v{t0}, {LOG2E}, v{t0}
v_mul_f32 v{t1}, 0.15915494, v{t1}
v_exp_f32 v{t0}, v{t0}
v_fract_f32 v{t1}, v{t1}
v_cos_f32 v{t2}, v{t1}
v_sin_f32 v{t3}, v{t1}
s_nop 0
v_mul_f32 v{P}, v{t0}, v{t2}
v_mul_f32 v{t3}, v{t0}, v{t3}
v_sub_f32 v{P+1}, 0, v{t3}
v_add_f32 v{t0}, -1.0, v{P}
v_mul_f32 v{t1}, v{T}, v{T}
v_fma_f32 v{t1}, v{T+1}, v{T+1}, v{t1}
v_rcp_f32 v{t1}, v{t1}
v_mul_f32 v{C}, v{t0}, v{T}
v_fma_f32 v{C}, v{t3}, v{T+1}, v{C}
v_mul_f32 v{C+1}, v{t3}, v{T}
v_fma_f32 v{C+1}, -v{t0}, v{T+1}, v{C+1}
v_add_f32 v{t1}, v{t1}, v{t1}
v_mul_f32 v{C}, v{C}, v{t1}
v_mul_f32 v{C+1}, v{C+1}, v{t1}""")
        def cmul(d, l, p):
            a(f"""v_pk_mul_f32 {v2(d)}, {v2(p)}, {v2(l)} op_sel_hi:[1,0]
v_pk_fma_f32 {v2(d)}, {v2(p)}, {v2(l)}, {v2(d)} op_sel:[1,1,0] op_sel_hi:[0,1,1] neg_lo:[0,1,0]""")
        bg.tick(3)
        cmul(P+2, P, P); cmul(P+4, P+2, P); cmul(P+6, P+2, P+2); cmul(L8, P+6, P+6)
        bg.tick(2)
        a(f"""v_mul_u32_u24 v{t0}, 48, v0
v_add_u32 v{t0}, {L_PT}, v{t0}
v_lshlrev_b32 v{t1}, 3, v0
v_add_u32 v{t1}, {L_LT}, v{t1}
v_mov_b32 v{T+20}, 1.0
v_mov_b32 v{T+21}, 0
v_cmp_gt_u32 vcc, 80, v0
s_and_saveexec_b64 {sp(sT2)}, vcc
s_cbranch_execz LB_nopar""")
        for q in range(3): a.lds(f"ds_write_b128 v{t0}, {v4(P+4*q)} offset:{16*q}", "pt", certain=False)
        a.lds(f"ds_write_b64 v{t1}, {v2(T+20)}", "pt", certain=False)
        a.lds(f"ds_write_b64 v{t1}, {v2(L8)} offset:640", "pt", certain=False)
        prev = L8
        for s in range(2, 17):
            d = (T + 22 + 2*(s % 2)) if s < 16 else L128
            cmul(d, L8, prev)
            if s < 16: a.lds(f"ds_write_b64 v{t1}, {v2(d)} offset:{s*640}", "pt", certain=False)
            prev = d
        a(f"""LB_nopar:
s_mov_b64 exec, {sp(sT2)}""")
        a(f"""s_cmp_lt_u32 s{sWV}, 2
s_cbranch_scc1 LB_l128
v_mov_b32 v{L128}, 1.0
v_mov_b32 v{L128+1}, 0
LB_l128:""")
    def stash():
        t0, t1 = T+16, T+17
        a(f"""s_lshl_b32 s{sT2}, s{sJ}, 4
s_add_u32 s{sT3}, s{sT2}, 15
s_sub_u32 s{sT3}, s{sT3}, s{sR}
s_mul_i32 s{sSS}, s{sT3}, 640
s_add_u32 s{sSS}, s{sSS}, {WS_SP}
s_add_u32 s{sT3}, s{sSS}, 640
s_mul_i32 s{sT2}, s{sT2}, 640
s_add_u32 s{sT2}, s{sT2}, {WS_ZP}
s_cmp_eq_u32 s{sWV}, 2
s_cselect_b32 s{sT4}, 16, 0
s_cmp_ge_u32 s{sWV}, 2
s_cselect_b32 s{sT2}, s{sT2}, s{sT3}
s_cselect_b32 s{sXCn}, s{sT4}, s{sR}
s_add_u32 s{SXR}, s{pWS}, s{sT2}
s_addc_u32 s{SXR+1}, s{pWS+1}, 0
s_and_b32 s{SXR+1}, s{SXR+1}, 0xffff
s_mul_i32 s{SXR+2}, s{sXCn}, 640
s_mov_b32 s{SXR+3}, 0x20000
s_movk_i32 s{sC1}, 3840
s_movk_i32 s{sC2}, 7680
s_cmp_ge_u32 s{sWV}, 2
s_movk_i32 s{sT2}, 80
s_cmov_b32 s{sT2}, {128+40}
s_cselect_b32 s{sT3}, 128, 0
s_mov_b32 s{sT4}, {L_HB}
s_cmov_b32 s{sT4}, {L_ZB}
v_cmp_gt_u32 {sp(sVAL)}, s{sT2}, v0
v_subrev_u32 v{t0}, s{sT3}, v0
v_lshlrev_b32 v{t0}, 3, v{t0}
v_add_u32 v{t1}, s{sT4}, v{t0}
v_accvgpr_write_b32 a{aXW}, v{t1}
v_mov_b32 v{t1}, {OOB}
v_cndmask_b32 v{t0}, v{t1}, v{t0}, {sp(sVAL)}
v_accvgpr_write_b32 a{aXA}, v{t0}
v_min_u32 v{t0}, 79, v0
v_lshlrev_b32 v{t0}, 3, v{t0}
v_add_u32 v{t0}, {L_EB}, v{t0}
v_accvgpr_write_b32 a{aSA}, v{t0}""")
        c_, g_, u0, u1, u2, u3 = T+8, T+9, T+10, T+11, T+12, T+13
        a(f"""v_and_b32 v{c_}, 15, v{vLANE}
v_lshrrev_b32 v{g_}, 4, v{vLANE}
v_mul_u32_u24 v{u0}, 48, v{c_}
v_add_u32 v{u0}, {L_PT}, v{u0}
v_accvgpr_write_b32 a{aPT}, v{u0}
v_lshrrev_b32 v{u0}, 4, v0
v_mul_u32_u24 v{u0}, 640, v{u0}
v_lshl_add_u32 v{u0}, v{c_}, 3, v{u0}
v_add_u32 v{u0}, {L_LT}, v{u0}
v_accvgpr_write_b32 a{aLT}, v{u0}
v_mul_u32_u24 v{u0}, 640, v{g_}
v_lshl_add_u32 v{u0}, v{c_}, 3, v{u0}
v_add_u32 v{u0}, s{sXB}, v{u0}
v_accvgpr_write_b32 a{aEA}, v{u0}
v_lshlrev_b32 v{u0}, 3, v{c_}
v_add_u32 v{u0}, {L_HB}, v{u0}
v_accvgpr_write_b32 a{aHR}, v{u0}
v_mul_u32_u24 v{u0}, 80, v{g_}
v_add_u32 v{u0}, {L_ZB}, v{u0}
v_accvgpr_write_b32 a{aZR}, v{u0}
v_bfe_u32 v{u0}, v{c_}, 1, 2
v_xor_b32 v{u0}, v{u0}, v{g_}
v_lshlrev_b32 v{u0}, 4, v{u0}
v_lshl_add_u32 v{u0}, v{c_}, 6, v{u0}
s_add_u32 s{sT2}, s{sXB}, 10240
v_add_u32 v{u0}, s{sT2}, v{u0}
v_accvgpr_write_b32 a{aTW}, v{u0}
v_bfe_u32 v{u0}, v{vLANE}, 2, 2
v_lshrrev_b32 v{u1}, 1, v{g_}
v_lshl_add_u32 v{u2}, v{u1}, 3, v{u0}
v_lshlrev_b32 v{u2}, 6, v{u2}
v_and_b32 v{u3}, 1, v{g_}
v_lshl_add_u32 v{u2}, v{u3}, 3, v{u2}
v_add_u32 v{u2}, s{sT2}, v{u2}
v_lshrrev_b32 v{u0}, 1, v{u0}
v_and_b32 v{g_}, 3, v{vLANE}
v_xor_b32 v{u0}, v{u0}, v{g_}
v_lshl_add_u32 v{g_}, v{u0}, 4, v{u2}
v_accvgpr_write_b32 a{aTR0}, v{g_}
v_xor_b32 v{u0}, 2, v{u0}
v_lshl_add_u32 v{g_}, v{u0}, 4, v{u2}
v_add_u32 v{g_}, 256, v{g_}
v_accvgpr_write_b32 a{aTR1}, v{g_}
v_mul_u32_u24 v{u3}, {RT}, v{u3}
v_lshl_add_u32 v{u3}, v{u1}, 8, v{u3}
v_lshl_add_u32 v{u3}, v{c_}, 4, v{u3}
v_accvgpr_write_b32 a{aST}, v{u3}
s_lshl_b32 s{sT2}, s{sR}, 3
s_lshl_b32 s{sT3}, s{sWV}, 1
s_add_u32 s{sT2}, s{sT2}, s{sT3}
s_mul_i32 s{sT2}, s{sT2}, {RT}
s_mul_i32 s{sT3}, s{sJ}, 2560
s_add_u32 s{sSa}, s{sT2}, s{sT3}
s_add_u32 s{sSb}, s{sSa}, 20480
s_add_u32 s{sSc}, s{sSa}, 40960
s_add_u32 s{sSd}, s{sSc}, {RT}""")
    stash()
    tag_ready()
    bg.add(stage_dma(1))
    stamp(0)
    params()
    bg.flush()
    a.wait(lg="all")
    stamp(35)
    XA = lambda s, ks, m: s * 16 + ks * 8 + m * 4
    def x_reads(s):
        if s >= 10: return {}
        def mk(ks):
            return [(lambda m=m: a.lds(f"ds_read_b128 {a4(XA(s, ks, m))}, v{vXR+ks} offset:{(s%4)*4096 + m*2048}", ("x", s, ks))) for m in range(2)]
        return {0: mk(0), 10: mk(1)}
    def read_frag(s, i, reg):
        sl = s % 4
        if s < 10:
            ks, t = divmod(i, 10)
            c5, part = divmod(t, 2)
            return [lambda: a.lds(f"ds_read_b128 {v4(reg)}, v{vWR + (sl//2)*2 + ks} offset:{(sl%2)*20480 + part*10240 + c5*2048}", ("w", s, i))]
        else:
            k4, Tt = divmod(i, 5)
            return [(lambda hh=hh: a.lds(f"ds_read_b64_tr_b16 {v2(reg+2*hh)}, v{vT40 + (sl//2)*2 + hh} offset:{(sl%2)*20480 + k4*5120 + 8*Tt}", ("w", s, i))) for hh in range(2)]
    def mfmas(s, i, reg):
        out = []
        if s < 10:
            ks, t = divmod(i, 10)
            for m in range(2):
                d = U + t*8 + m*4
                c = "0" if (s == 0 and ks == 0) else v4(d)
                out.append(lambda d=d, m=m, c=c: mfma(v4(d), a4(XA(s, ks, m)), v4(reg), c))
        else:
            k4, Tt = divmod(i, 5)
            xs, ks = 2*(s-10) + k4//2, k4 % 2
            for m in range(2):
                d = Q + Tt*8 + m*4
                c = "0" if (s == 10 and k4 == 0) else v4(d)
                out.append(lambda d=d, m=m, c=c: mfma(v4(d), v4(reg), a4(XA(xs, ks, m)), c))
        return out
    def ur(c5, i): return U + (2*c5)*8 + 2*i
    def ui(c5, i): return U + (2*c5+1)*8 + 2*i
    LO = "op_sel_hi:[1,0,1]"
    HI = "op_sel:[0,1,0] op_sel_hi:[1,1,1]"
    NEG = "neg_lo:[0,1,0] neg_hi:[0,1,0]"
    vEA, vSA, vXA, vPT = vX, vX+1, vX+2, vX+3
    vTW, vTR0, vTR1, vST, vL16 = vW, vW+1, vW+2, vW+3, vW+4
    vXW, vHR, vZR, vLT = vWR, vWR+1, vWR+2, vWR+3
    def mk_ptread(c5):
        def f():
            if c5 == 0: a(f"v_accvgpr_read_b32 v{vPT}, a{aPT}")
            a.lds(f"ds_read_b128 {v4(LAM + c5*8)}, v{vPT} offset:{c5*768}", "ptr")
            a.lds(f"ds_read_b128 {v4(LAM + c5*8 + 4)}, v{vPT} offset:{c5*768 + 16}", "ptr")
            a.lds(f"ds_read_b64 {v2(COEF + c5*2)}, v{vPT} offset:{c5*768 + 32}", "ptr")
            if c5 == 4: a(f"v_accvgpr_read_b32 v{vEA}, a{aEA}\nv_accvgpr_read_b32 v{vSA}, a{aSA}\nv_accvgpr_read_b32 v{vXA}, a{aXA}")
        return f
    def scan1():
        stamp(1)
        tA, tB = 228, 230
        for c5 in range(5):
            c = COEF + c5*2
            for i in range(4):
                r_, i_ = ur(c5, i), ui(c5, i)
                a(f"""v_pk_mul_f32 {v2(tA)}, {v2(r_)}, {v2(c)} op_sel_hi:[1,0]
v_pk_mul_f32 {v2(tB)}, {v2(r_)}, {v2(c)} op_sel:[0,1] op_sel_hi:[1,1] neg_lo:[0,1] neg_hi:[0,1]
v_pk_fma_f32 {v2(r_)}, {v2(i_)}, {v2(c)}, {v2(tA)} {HI} {NEG}
v_pk_fma_f32 {v2(i_)}, {v2(i_)}, {v2(c)}, {v2(tB)} {LO} {NEG}""")
            l = LAM + c5*8
            for i in range(1, 4):
                a(f"""v_pk_fma_f32 {v2(ur(c5,i))}, {v2(ur(c5,i-1))}, {v2(l)}, {v2(ur(c5,i))} {LO}
v_pk_fma_f32 {v2(ui(c5,i))}, {v2(ui(c5,i-1))}, {v2(l)}, {v2(ui(c5,i))} {LO}
v_pk_fma_f32 {v2(ur(c5,i))}, {v2(ui(c5,i-1))}, {v2(l)}, {v2(ur(c5,i))} {HI} {NEG}
v_pk_fma_f32 {v2(ui(c5,i))}, {v2(ur(c5,i-1))}, {v2(l)}, {v2(ui(c5,i))} {HI}""")
            l4 = l + 6
            cmul_acc(c, c+1, l4, l4+1, ur(c5,3), ui(c5,3), ur(c5,3)+1, ui(c5,3)+1)
            a.lds(f"ds_write_b64 v{vEA}, {v2(c)} offset:{L_EB + c5*128}", "ew")
            bg.tick(2)
            if c5 == E2("WARMAT", 2): bg.flush(); warm_c(pCRE, vWR)()
        a.wait(lg="all")
        a("s_barrier")
        a(f"s_cmp_ge_u32 s{sWV}, 2\ns_cbranch_scc1 LB_nocarry1")
        E0 = XR
        tA, tB = 252, vPT
        for s in range(0, 16, 2):
            a(f"ds_read2_b64 {v4(E0 + 2*s)}, v{vSA} offset0:{(s%4)*80} offset1:{(s%4)*80+80}")
            if s % 4 == 2 and s < 14: a(f"v_add_u32 v{vSA}, 16384, v{vSA}")
        a(f"""v_mov_b32 v{tA}, 0
v_mov_b32 v{tA+1}, 0
v_mov_b32 v{tB}, s{sTAG}
s_movk_i32 s{sT3}, 0xff
v_subrev_u32 v{vSA}, {3*16384}, v{vSA}""")
        for s in range(1, 16):
            if s % 2 == 0 or s == 1: a(f"s_waitcnt lgkmcnt({7 - s//2})")
            pk_cmul_acc(E0+2*s, L8, E0+2*s-2, E0+2*s)
        a(f"""v_bfi_b32 v{E0+30}, s{sT3}, v{tB}, v{E0+30}
v_bfi_b32 v{E0+31}, s{sT3}, v{tB}, v{E0+31}""")
        a.vmem(f"buffer_store_dwordx2 {v2(E0+30)}, v{vXA}, {srd(SWS)}, s{sSS} offen sc1", "sst", certain=False)
        a(f"s_mov_b64 exec, {sp(sVAL)}\nds_write_b64 v{vSA}, {v2(tA)}")
        for s in range(15):
            a(f"ds_write_b64 v{vSA}, {v2(E0+2*s)} offset:{((s+1)//4)*16384 + ((s+1)%4)*640}")
        a("s_mov_b64 exec, -1\nLB_nocarry1:")
        stamp(2)
    def x_loads(tracked):
        ops = []
        for n in range(16):
            def f(n=n):
                so = ["0", f"s{sC1}", f"s{sC2}"][n // 6]
                t = f"buffer_load_dwordx2 {v2(XR + 2*n)}, v{vXA}, {srd(SXR)}, {so} offen offset:{(n % 6)*640} sc1"
                if tracked: a.vmem(t, "xl")
                else: a(t)
            ops.append(("d", f))
        return ops
    def x_tags():
        ops = [("d", lambda: a(f"s_and_b32 s{sT2}, s{sTAG}, 0xff"))]
        for n in range(16):
            ops.append(("d", lambda n=n: a(f"s_cmp_gt_u32 s{sXCn}, {n}\ns_cselect_b32 s{sTGN[n]}, s{sT2}, 0")))
        return ops
    def x_check(sfx, defer):
        a(f"s_mov_b32 s{sSPIN}, 0\nLB_xt{sfx}:")
        for n in range(15, -1, -1):
            r = XR + 2*n
            a(f"v_xor_b32 v{r}, s{sTGN[n]}, v{r}\nv_xor_b32 v{r+1}, s{sTGN[n]}, v{r+1}")
            if n == 15: a(f"v_or_b32 v250, v{r}, v{r+1}")
            else:
                a(f"v_or3_b32 v250, v250, v{r}, v{r+1}")
                pk_cmul_acc(r, L128, r+2, r)
        a(f"""v_and_b32 v250, 0xff, v250
v_cmp_ne_u32 vcc, 0, v250
s_add_u32 s{sSPIN}, s{sSPIN}, 1
s_and_b64 vcc, vcc, {sp(sVAL)}
s_cmp_gt_u32 s{sSPIN}, 0x20000
s_cbranch_scc1 LB_xok{sfx}
s_cbranch_vccz LB_xok{sfx}""")
        run_ops(x_loads(False))
        if defer:
            a(f"s_mov_b32 s{sPEND}, 1\ns_cmp_eq_u32 s{sWV}, 2\ns_cbranch_scc1 LB_xe{sfx}")
        a(f"""s_waitcnt vmcnt(0)
s_branch LB_xt{sfx}
LB_xok{sfx}:
s_mov_b32 s{sPEND}, 0
s_cmp_lg_u32 s{sWV}, 2
s_cbranch_scc1 LB_xw{sfx}
v_cvt_pk_bf16_f32 v250, v{XR}, v{XR+1}
v_lshlrev_b32 v{XR}, 16, v250
v_and_b32 v{XR+1}, 0xffff0000, v250
LB_xw{sfx}:
s_mov_b64 exec, {sp(sVAL)}
ds_write_b64 v{vXW}, {v2(XR)}
s_mov_b64 exec, -1
LB_xe{sfx}:""")
    def start_x():
        bg.add(x_loads(True)); bg.fast = True
    def c_start(slot):
        def f():
            a.wait(lg=[("cr", 0)])
            bg.add(dma_c(slot, sXB, 0)); bg.fast = True
        return f
    def c_read(slot):
        def f():
            bg.flush()
            a.wait(vm=[("c", slot)])
            bg.add(c_reads(slot, vXR, 0)); bg.fast = True
        return f
    hooks = {(10, 0): scan1, (12, E2('C0S', 14)): c_start(0), (13, 12): c_read(0), (14, 2): start_x}
    for c5 in range(5): hooks[(9, 2*c5 + 1)] = mk_ptread(c5)
    for n, (_, f) in enumerate(x_tags()): hooks[(10 + (2*n+1)//20, (2*n+1) % 20)] = f
    gemm_loop(15, 20, read_frag, mfmas, x_reads, stage_dma, bg, RING, 6, hooks)
    bg.flush()
    stamp(3)
    if E("NOXL"): run_ops(x_loads(True))
    a("s_barrier")
    bg.add(dma_c(1, sXB, 0)); bg.add(dma_c(3, sCW, 0)); bg.add(dma_c(4, sCW, 10240))
    bg.tick(E2("PT0", 3))
    for vr, ar in ((vTW, aTW), (vTR0, aTR0), (vTR1, aTR1), (vST, aST), (vXW, aXW), (vHR, aHR), (vZR, aZR), (vLT, aLT)):
        a(f"v_accvgpr_read_b32 v{vr}, a{ar}")
    a(f"v_lshlrev_b32 v{vL16}, 4, v{vLANE}")
    H = 152
    for c5 in range(5):
        a.lds(f"ds_read_b64 {v2(H+4*c5)}, v{vEA} offset:{L_EB + c5*128}", "pl")
        a.lds(f"ds_read_b64 {v2(H+4*c5+2)}, v{vLT} offset:{c5*128}", "pl")
    a(f"s_mov_b32 s{sT4}, {LOG2E}")
    for n in range(10):
        phi([Q + 4*n, Q + 4*n + 2], sT4, 172, NT=2)
        bg.tick(1)
    bg.tick(E2("PT1", 7))
    a.wait(vm="xl")
    x_check("1", True)
    a.vm.append(("xr", False))
    a.wait(lg="all")
    a("s_barrier")
    stamp(4)
    HR = vQ + 1
    HRS = [12, 14, 22, 24, 172]
    for c5 in range(5):
        a.lds(f"ds_read_b64 {v2(HRS[c5])}, v{vHR} offset:{c5*128}", ("hin", c5))
    def trd(c5, part):
        for hh in range(2):
            a.lds(f"ds_read_b64_tr_b16 {v2(U + (2*c5+part)*8 + 4 + 2*hh)}, v{vTR0+hh} offset:{((c5%3)*2+part)*1024}", ("tr", c5, part))
    def tst(c5, part):
        a.wait(lg=[("tr", c5, part)])
        a.vmem(f"buffer_store_dwordx4 {v4(U + (2*c5+part)*8 + 4)}, v{vST}, {srd(SWS)}, s{sSa if part == 0 else sSb} offen offset:{c5*512} sc1", "ast")
    for c5 in range(5):
        h = H + 4*c5; lam = LAM + c5*8
        a.wait(lg=[("hin", c5)])
        pk_cmul_acc(h, h+2, HRS[c5], h)
        a(f"v_mov_b32 v{h+2}, v{h+1}")
        cmul_acc(h+1, h+3, lam+6, lam+7, h, h+2, ur(c5,3), ui(c5,3))
        for part in range(2):
            for i in range(4):
                l = lam + 2*i
                if part == 0: a(f"v_pk_fma_f32 {v2(ur(c5,i))}, {v2(h)}, {v2(l)}, {v2(ur(c5,i))} {LO}")
                else: a(f"v_pk_fma_f32 {v2(ui(c5,i))}, {v2(h+2)}, {v2(l)}, {v2(ui(c5,i))} {LO}")
            k = 2*c5 + part
            if k >= 1: trd((k-1)//2, (k-1) % 2)
            for i in range(4):
                l = lam + 2*i
                if part == 0: a(f"v_pk_fma_f32 {v2(ur(c5,i))}, {v2(h+2)}, {v2(l)}, {v2(ur(c5,i))} {HI} {NEG}")
                else: a(f"v_pk_fma_f32 {v2(ui(c5,i))}, {v2(h)}, {v2(l)}, {v2(ui(c5,i))} {HI}")
            if k >= 2: tst((k-2)//2, (k-2) % 2)
            src = U + k*8
            for q in range(4): a(f"v_cvt_pk_bf16_f32 v{src+q}, v{src+2*q}, v{src+2*q+1}")
            a.lds(f"ds_write_b128 v{vTW}, {v4(src)} offset:{((c5%3)*2+part)*1024}", ("tw", c5))
    trd(4, 1)
    tst(4, 0)
    tst(4, 1)
    stamp(32)
    a(f"s_cmp_eq_u32 s{sPEND}, 0\ns_cbranch_scc1 LB_xe2\ns_waitcnt vmcnt({a._cnt(a.vm, 'xr')[0]})")
    x_check("2", False)
    a.wait(lg="all")
    a("s_barrier")
    stamp(33)
    Z = 176
    for q in range(5): a.lds(f"ds_read_b128 {v4(Z+4*q)}, v{vZR} offset:{16*q}", ("zr", q))
    DN = 196
    for Tt in range(5):
        a.wait(lg=[("zr", Tt)])
        for q in range(2):
            for m in range(2):
                d = DN + 2*m
                r = Q + Tt*8 + m*4 + 2*q; z = Z + Tt*4 + 2*q
                if Tt == 0 and q == 0: a(f"v_pk_mul_f32 {v2(d)}, {v2(r)}, {v2(z)}")
                else: a(f"v_pk_fma_f32 {v2(d)}, {v2(r)}, {v2(z)}, {v2(d)}")
    a(f"""v_add_f32 v{DN}, v{DN}, v{DN+1}
v_add_f32 v{DN+2}, v{DN+2}, v{DN+3}
v_add_f32 v{DN}, 0x358637bd, v{DN}
v_add_f32 v{DN+2}, 0x358637bd, v{DN+2}
v_rcp_f32 v{DN}, v{DN}
v_rcp_f32 v{DN+2}, v{DN+2}""")
    WP = 200
    for m in range(2):
        d = DN + 2*m
        for hf in range(3):
            for Tt in ((0, 1), (2, 3), (4,))[hf]:
                for q in range(2):
                    r = Q + Tt*8 + m*4 + 2*q
                    a(f"v_pk_mul_f32 {v2(r)}, {v2(r)}, {v2(d)} op_sel_hi:[1,0]")
            for Tt in ((0, 1), (2, 3), (4,))[hf]:
                for q in range(2):
                    r = Q + Tt*8 + m*4 + 2*q
                    dst = (WP + m*8 + Tt*2 + q) if Tt < 4 else (216 + m*2 + q)
                    a(f"v_cvt_pk_bf16_f32 v{dst}, v{r}, v{r+1}")
            if hf < 2:
                a.vmem(f"buffer_store_dwordx4 {v4(WP + m*8 + hf*4)}, v{vL16}, {srd(SWS)}, s{sSc if m == 0 else sSd} offen offset:{hf*1024} sc1", "ast")
    a("v_permlane16_swap_b32 v216, v218\nv_permlane16_swap_b32 v217, v219")
    a.vmem(f"buffer_store_dwordx4 v[216:219], v{vST}, {srd(SWS)}, s{sSc} offen offset:2048 sc1", "ast")
    stamp(5)
    left = [k for k, _ in bg.q if k != "s"]
    assert len(left) == 10
    a.wait(vm=[("c", 1), ("c", 3)])
    run_ops(c_reads(1, vXR, 0))
    k2_setup(160)
    a.wait(lg="all")
    run_ops(c_reads(3, vCR, 0))
    a.wait(vm="all")
    a("s_barrier")
    set_flag(FB, "LB_nf", 240)
    stamp(6)
    skip_loads(160)
    bg.flush()
    run_ops(dma_c(2, sXB, 0))
    a.wait(vm=[("c", 4)], lg="all")
    run_ops(c_reads(4, vCR, 10240))

def k2():
    a("LK2:")
    a.vm = [(("c", 2), True)]*10; a.lg = []; M0[0] = None
    AH, AB = K_AH, K_AB
    NS = 12
    STG = [196 + 4*i for i in range(NS)]
    vA, vM, vFB, vFM, vGA, vRW, vTmp, vG, sMT = K_vA, K_vM, K_vFB, K_vFM, K_vGA, K_vRW, K_vTmp, K_vG, K_sMT
    MH = [f"a[{120+4*n}:{123+4*n}]" for n in range(10)] + [f"a[{240+4*n}:{243+4*n}]" for n in range(4)] + [v4(152+4*n) for n in range(11)]
    stamp(7)
    poll_issue(vFB, vTmp, "0xff", "p2")
    a.wait(lg="all")
    skip_math(196)
    a.wait(vm=[("c", 2)])
    run_ops(c_reads(2, vXR, 0))
    a.wait(lg="all")
    stamp(13)
    poll_finish(vFB, vTmp, "0xff", "p2")
    stamp(8)
    extra = []
    def g_load(i):
        a(f"""s_lshl_b32 s{sT2}, s{sRB}, 2
s_add_u32 s{sT2}, s{sT2}, s{sMT+i}
s_lshl_b32 s{sT2}, s{sT2}, 6
s_add_u32 s{sT2}, s{sT2}, {WS_G}""")
        a.vmem(f"buffer_load_dword v{vG+2*i}, v{vGA}, {srd(SWS)}, s{sT2} offen sc1", "g")
    for i in range(5):
        for nt in range(5):
            extra.append(lambda i=i, nt=nt: a.vmem(f"buffer_load_dwordx4 {MH[i*5+nt]}, v{vM+nt}, {srd(SWS)}, s{sKQ+i} offen sc1", "M"))
    for i in range(4): extra.append(lambda i=i: g_load(i))
    def fm_issue():
        a("s_mov_b64 exec, 0xfffff")
        a.vmem(f"buffer_load_dword v{vTmp}, v{vFM}, {srd(SWS)}, 0 offen sc1", "pfm")
        a("s_mov_b64 exec, -1")
    def fm_check():
        a.wait(vm="pfm")
        a(f"""s_mov_b64 exec, 0xfffff
s_mov_b32 s{sSPIN}, 0
s_branch LK_fc
LK_fl:
buffer_load_dword v{vTmp}, v{vFM}, {srd(SWS)}, 0 offen sc1
s_add_u32 s{sSPIN}, s{sSPIN}, 1
s_waitcnt vmcnt(0)
LK_fc:
v_cmp_ne_u32 vcc, s{sTAG}, v{vTmp}
s_cmp_gt_u32 s{sSPIN}, 0x20000
s_cbranch_scc1 LK_fe
s_cbranch_vccnz LK_fl
LK_fe:
s_mov_b64 exec, -1""")
    frags = [("h", i, ks, mt) for i in range(5) for ks in range(2) for mt in range(4)] + [("w", i, 0, mt) for mt in range(4) for i in range(5)]
    def issueA(n):
        kind, i, ks, mt = frags[n]
        r = STG[n % NS]
        if kind == "h": a.vmem(f"buffer_load_dwordx4 {v4(r)}, v{vA+mt}, {srd(SWS)}, s{sKA+i} offen offset:{ks*1024} sc1", ("A", n))
        else: a.vmem(f"buffer_load_dwordx4 {v4(r)}, v{vA+mt}, {srd(SWS)}, s{sKA+5+i} offen sc1", ("A", n))
    fm_issue()
    for n in range(NS): issueA(n)
    fm_check()
    def g_prep():
        a.wait(vm="g")
        for i in range(4):
            g = vG + 2*i
            a(f"""v_sub_f32 v{g+1}, 1.0, v{g}
v_cvt_pk_bf16_f32 v{g+1}, v{g+1}, v{g+1}
v_lshlrev_b32 v{g+1}, 16, v{g+1}
s_mul_i32 s{sMT+i}, s{sMT+i}, {16*320}""")
    def scale_ops(mt, nt):
        g = vG + 2*mt; h = AH + (mt*5+nt)*4
        return [(lambda q=q: a(f"v_mul_f32 v{h+q}, v{g}, v{h+q}\nv_mul_f32 v{h+q+1}, v{g}, v{h+q+1}")) for q in (0, 2)]
    def fin_ops(mt, nt, pk=False):
        g = vG + 2*mt; h = AH + (mt*5+nt)*4; b = AB[mt % 2] + nt*4
        if pk: ops = [(lambda q=q: a(f"v_pk_fma_f32 {v2(h+q)}, {v2(b+q)}, {v2(g)}, {v2(h+q)} op_sel:[0,1,0] op_sel_hi:[1,1,1]")) for q in (0, 2)]
        else: ops = [(lambda q=q: a(f"v_fmac_f32 v{h+q}, v{g+1}, v{b+q}\nv_fmac_f32 v{h+q+1}, v{g+1}, v{b+q+1}")) for q in (0, 2)]
        def w():
            if nt == 0: a(f"v_add_u32 v{vTmp}, s{sMT+mt}, v{vRW}")
            a.lds(f"ds_write_b128 v{vTmp}, {v4(h)} offset:{nt*64}", "red")
        return ops + [w]
    for n in range(60):
        kind, i, ks, mt = frags[n]
        a.wait(vm=[("A", n)])
        if n == 0: stamp(14)
        if n == 40:
            stamp(15)
            assert not extra
            g_prep()
        fill = []
        if kind == "h" and extra and n >= E2("MS", 0):
            fill = [lambda: None, extra.pop(0)]
            if n < E2("MS", 0) + E2("M2", 5): fill += [lambda: None, extra.pop(0)]
        if kind == "w":
            fill = scale_ops(mt, i) + (fin_ops(mt-1, i) if mt > 0 else [])
        for nt in range(5):
            if kind == "h":
                d = AH + (mt*5 + nt)*4
                first = (i == 0 and ks == 0 and mt != 0)
                fa = a4(CHOME[i] + (ks*5+nt)*4)
            else:
                d = AB[mt % 2] + nt*4
                first = (i == 0)
                fa = MH[i*5 + nt]
            mfma(v4(d), fa, v4(STG[n % NS]), "0" if first else v4(d))
            if fill: fill.pop(0)()
        if n + NS < 60: issueA(n + NS)
    stamp(9)
    for nt in range(5):
        for f in fin_ops(3, nt, True): f()
    a(f"""s_cmp_lg_u32 s2, 255
s_cbranch_scc1 LK_ne
s_cmp_lg_u32 s{sWV}, 0
s_cbranch_scc1 LK_ne
v_mov_b32 v196, {WS_EPOCH}
v_mov_b32 v197, s{sTAG}
s_mov_b64 exec, 1
buffer_store_dword v197, v196, {srd(SWS)}, 0 offen sc1
s_mov_b64 exec, -1
LK_ne:""")
    a.wait(lg="all")
    a("s_barrier")
    R = 32
    for n in range(5):
        for w in range(4):
            a.lds(f"ds_read_b128 {v4(R + (n*4+w)*4)}, v{K_FL} offset:{w*64*320 + n*64}", ("rr", n))
    for n in range(5):
        a.wait(lg=[("rr", n)])
        r = R + n*16
        a(f"""v_pk_add_f32 {v2(r)}, {v2(r)}, {v2(r+4)}
v_pk_add_f32 {v2(r+2)}, {v2(r+2)}, {v2(r+6)}
v_pk_add_f32 {v2(r+8)}, {v2(r+8)}, {v2(r+12)}
v_pk_add_f32 {v2(r+10)}, {v2(r+10)}, {v2(r+14)}
v_pk_add_f32 {v2(r)}, {v2(r)}, {v2(r+8)}
v_pk_add_f32 {v2(r+2)}, {v2(r+2)}, {v2(r+10)}""")
        a.vmem(f"buffer_store_dwordx4 {v4(r)}, v{K_FO}, {srd(SOUT)}, 0 offen offset:{n*64}", "ost")
    stamp(10)
    stamp_flush()
    a("Lend:\ns_endpgm\nLcode_end:\n.fill 320, 4, 0xbf800000")

prologue()
type_A()
type_B()
k2()
body = a.text()
hdr = open("gated_mix__ssm_conv_s5__linear_attn_block__prompt.s.ref").read().split("; Override launch")[0]
src = hdr + f"; @launch grid=(256,1,1) block=(256,1,1) lds={LDS_BYTES}\n" + HEADER + kernel_begin(NAME) + body + kernel_desc(NAME, 512, 102, 256)
out = sys.argv[1] if len(sys.argv) > 1 else "k.s"
open(out, "w").write(src)
print("written", out, "nops inserted:", a.nnop, "lines", src.count("\n"))
```

```python
import re
NAME = "gated_mix__ssm_conv_s5__linear_attn_block__prompt_kernel"

def regs_of(op):
    op = op.strip()
    op = re.sub(r"^-", "", op)
    m = re.match(r"^abs\((.*)\)$", op)
    if m: op = m.group(1)
    m = re.match(r"^\|(.*)\|$", op)
    if m: op = m.group(1)
    if op == "vcc": return {("s", "vcc_lo"), ("s", "vcc_hi")}
    if op in ("vcc_lo", "vcc_hi"): return {("s", op)}
    if op == "exec": return {("s", "exec")}
    if op == "m0": return {("s", "m0")}
    m = re.match(r"^([vas])(\d+)$", op)
    if m: return {(m.group(1), int(m.group(2)))}
    m = re.match(r"^([vas])\[(\d+):(\d+)\]$", op)
    if m: return {(m.group(1), i) for i in range(int(m.group(2)), int(m.group(3)) + 1)}
    return set()

TRANS = ("v_exp_f32", "v_log_f32", "v_rcp_f32", "v_rsq_f32", "v_sqrt_f32", "v_sin_f32", "v_cos_f32", "v_rcp_iflag_f32")

class Ins:
    def __init__(self, text):
        self.text = text
        t = text.split(";")[0].strip()
        parts = t.split(None, 1)
        self.mn = parts[0]
        rest = parts[1] if len(parts) > 1 else ""
        ops = [o.strip() for o in rest.split(",")] if rest else []
        clean = []
        for o in ops:
            clean.append(o.split()[0] if o.split() else o)
        self.ops = clean
        self.rest = rest
        mn = self.mn
        self.kind = None
        self.defs = set(); self.uses = set()
        self.mfma_c = set(); self.mfma_ab = set()
        self.store_data = set()
        self.slots = 1
        R = regs_of
        if mn.startswith("v_mfma"):
            self.kind = "mfma"
            self.defs = R(clean[0]); self.mfma_ab = R(clean[1]) | R(clean[2]); self.mfma_c = R(clean[3])
            self.uses = self.mfma_ab | self.mfma_c
            self.passes = 8 if "32x32" in mn else 4
        elif mn.startswith("v_"):
            self.kind = "valu"
            self.defs = R(clean[0])
            srcs = clean[1:]
            if mn.startswith(("v_add_co", "v_sub_co", "v_addc_co", "v_subb_co", "v_subrev_co", "v_div_scale", "v_mad_u64_u32")):
                self.defs |= R(clean[1]); srcs = clean[2:]
            for s in srcs: self.uses |= R(s)
            if mn.startswith(("v_fmac", "v_pk_fmac", "v_dot2c", "v_writelane")) or "d16" in mn: self.uses |= R(clean[0])
            if mn.startswith("v_permlane") and "swap" in mn:
                self.defs |= R(clean[1]); self.uses |= R(clean[0])
            if mn.startswith("v_cmpx"): self.defs |= {("s", "exec")}
            if mn.startswith("v_cndmask") and len(clean) == 3: self.uses |= R("vcc")
        elif mn.startswith("ds_"):
            self.kind = "ds"
            if mn.startswith(("ds_read", "ds_bpermute", "ds_permute", "ds_swizzle")):
                self.defs = R(clean[0])
                for s in clean[1:]: self.uses |= R(s)
            else:
                for s in clean: self.uses |= R(s)
        elif mn.startswith(("buffer_", "global_")):
            self.kind = "vmem"
            islds = bool(re.search(r"\blds\b", rest)) or "load_lds" in mn
            self.islds = islds
            if "load" in mn:
                if islds:
                    for s in clean: self.uses |= R(s)
                    self.uses |= {("s", "m0")}
                else:
                    self.defs = R(clean[0])
                    for s in clean[1:]: self.uses |= R(s)
                    if "d16" in mn: self.uses |= R(clean[0])
            elif "store" in mn:
                for s in clean: self.uses |= R(s)
                if "x4" in mn or "x3" in mn:
                    self.store_data = R(clean[0]) if mn.startswith("buffer") else R(clean[1])
            else:
                for s in clean: self.uses |= R(s)
        elif mn.startswith("s_"):
            self.kind = "salu"
            if mn == "s_nop":
                self.slots = int(clean[0], 0) + 1
            elif mn.startswith(("s_cmp", "s_cbranch", "s_branch", "s_waitcnt", "s_barrier", "s_endpgm", "s_sleep", "s_setprio", "s_bitcmp")):
                for s in clean: self.uses |= R(s)
            else:
                self.defs = R(clean[0])
                for s in clean[1:]: self.uses |= R(s)
                if "saveexec" in mn: self.defs |= {("s", "exec")}
        else:
            raise ValueError("unknown instr " + text)

def need_between(p, c):
    n = 0
    vec = lambda s: {r for r in s if r[0] in "va"}
    sca = lambda s: {r for r in s if r[0] == "s"}
    if p.kind == "valu":
        dv = vec(p.defs); ds_ = sca(p.defs)
        if c.kind == "mfma" and dv & c.uses: n = max(n, 2)
        if c.kind == "mfma" and ("s", "exec") in p.defs: n = max(n, 4)
        if c.kind == "valu":
            if c.mn.startswith(("v_readlane", "v_readfirstlane")) and dv & c.uses: n = max(n, 1)
            if c.mn.startswith("v_permlane") and dv & c.uses: n = max(n, 2)
            if ("dpp" in c.mn or "row_" in c.rest or "quad_perm" in c.rest) and dv & c.uses: n = max(n, 2)
            if p.mn.startswith(TRANS) and dv & c.uses and not c.mn.startswith(TRANS): n = max(n, 1)
            if ds_ & c.uses: n = max(n, 4 if c.mn.startswith(("v_readlane", "v_writelane", "v_div_fmas")) else 2)
            if ("s", "exec") in p.defs and c.mn.startswith(("v_readlane", "v_readfirstlane", "v_writelane", "v_permlane")): n = max(n, 4)
            if "op_sel" in p.rest and not p.mn.startswith("v_pk") and dv & (c.uses | c.defs): n = max(n, 1)
        if c.kind == "vmem" and ds_ & c.uses: n = max(n, 5)
        if c.kind == "salu" and ds_ & c.uses: n = max(n, 1)
        if c.kind == "salu" and c.mn.startswith(("s_cbranch_vcc",)) and ds_ & {("s","vcc_lo"),("s","vcc_hi")}: n = max(n, 1)
    if p.kind == "mfma":
        big = {4: 8, 8: 12}[p.passes]; ovl = {4: 6, 8: 10}[p.passes]; war = {4: 3, 8: 7}[p.passes]
        if c.kind == "mfma":
            if p.defs & c.mfma_ab: n = max(n, big)
            if p.defs & c.mfma_c and not (p.defs == c.mfma_c and p.passes == c.passes): n = max(n, ovl)
            if p.defs & c.defs and not (p.defs & c.mfma_c): n = max(n, big)
        elif c.kind == "valu":
            if p.defs & (c.uses | c.defs): n = max(n, big)
            if p.mfma_c & c.defs: n = max(n, war)
        elif c.kind in ("ds", "vmem"):
            if p.defs & (c.uses | c.defs): n = max(n, big)
    if p.kind == "salu":
        if ("s", "m0") in p.defs and c.kind == "vmem" and getattr(c, "islds", False): n = max(n, 1)
    if p.kind == "vmem" and p.store_data:
        if c.kind in ("valu", "mfma") and p.store_data & c.defs: n = max(n, 2)
        elif p.store_data & c.defs: n = max(n, 1)
    return n

class Asm:
    def __init__(self):
        self.items = []
        self.lab = 0
        self.vm = []
        self.lg = []
    def __call__(self, s):
        for l in s.split("\n"):
            l = l.strip()
            if l: self.items.append(l)
    def label(self, prefix="L"):
        self.lab += 1
        return f"{prefix}_{self.lab}"
    def vmem(self, text, tag=None, certain=True):
        import os
        if tag == "ast":
            if os.environ.get("NOST"): return
            if os.environ.get("PLAINST"): text = text.replace(" sc1", os.environ.get("PLAINST").replace("_", " ").replace("none", ""))
        self(text); self.vm.append((tag, certain))
    def lds(self, text, tag=None, certain=True):
        self(text); self.lg.append((tag, certain))
    def _cnt(self, lst, tags):
        if not isinstance(tags, (list, tuple, set)): tags = [tags]
        last = -1
        for i, (t, c) in enumerate(lst):
            if t in tags: last = i
        if last < 0: return None
        return sum(1 for (t, c) in lst[last+1:] if c), last
    def wait(self, vm=None, lg=None, keep=False):
        parts = []
        if vm is not None:
            if vm == "all":
                parts.append("vmcnt(0)"); self.vm = []
            else:
                r = self._cnt(self.vm, vm)
                if r is not None:
                    n, last = r
                    parts.append(f"vmcnt({min(n, 63)})"); self.vm = self.vm[last+1:]
        if lg is not None:
            if lg == "all":
                parts.append("lgkmcnt(0)"); self.lg = []
            else:
                r = self._cnt(self.lg, lg)
                if r is not None:
                    n, last = r
                    parts.append(f"lgkmcnt({min(n, 15)})"); self.lg = self.lg[last+1:]
        if parts: self("s_waitcnt " + " ".join(parts))
    def text(self, hazards=True):
        out = []
        hists = [[]]
        saved = {}
        nnop = 0
        for l in self.items:
            if l.startswith(";") or l.startswith("."):
                out.append(l); continue
            if l.endswith(":"):
                out.append(l)
                for h in saved.pop(l[:-1], []): hists.append(h)
                continue
            ins = Ins(l)
            need = 0
            if hazards:
                for h in hists:
                    d = 0
                    for p in reversed(h):
                        n = need_between(p, ins)
                        if n > d: need = max(need, n - d)
                        d += p.slots
                        if d >= 12: break
            if need > 0:
                nop = Ins(f"s_nop {need-1}")
                out.append("    " + nop.text); nnop += 1
                for h in hists: h.append(nop)
            out.append("    " + l)
            for h in hists: h.append(ins)
            hists = [h[-14:] for h in hists]
            uniq = []
            for h in hists:
                if not any(len(h) == len(u) and all(x is y for x, y in zip(h, u)) for u in uniq): uniq.append(h)
            hists = uniq
            if ins.mn.startswith(("s_cbranch", "s_branch")):
                saved.setdefault(ins.ops[0], []).extend([list(h) for h in hists])
                if ins.mn == "s_branch": hists = [[]]
            if ins.mn == "s_endpgm": hists = [[]]
        self.nnop = nnop
        return "\n".join(out) + "\n"

def kernel_begin(name):
    return f""".text
.globl {name}
.p2align 8
.type {name},@function
{name}:
"""
def kernel_desc(name, vgpr, sgpr=102, accum=None):
    if accum is None:
        accum = min(256, (vgpr + 3)//4*4)
    return f""".section .rodata,"a"
.p2align 6
.amdhsa_kernel {name}
  .amdhsa_next_free_vgpr {vgpr}
  .amdhsa_next_free_sgpr {sgpr}
  .amdhsa_accum_offset {accum}
  .amdhsa_group_segment_fixed_size 0
  .amdhsa_kernarg_size 128
  .amdhsa_user_sgpr_count 2
  .amdhsa_user_sgpr_kernarg_segment_ptr 1
  .amdhsa_system_sgpr_workgroup_id_x 1
  .amdhsa_float_denorm_mode_32 3
.end_amdhsa_kernel
"""
HEADER = '.amdgcn_target "amdgcn-amd-amdhsa--gfx950"\n'
```

```python
import sys, os
sys.path.insert(0, "work")
from asmlib import *

STAMPS = int(os.environ.get("STAMPS", "0"))
E = lambda k: int(os.environ.get(k, "0"))
E2 = lambda k, d: int(os.environ.get(k, str(d)))
STGST = int(os.environ.get("STGST", "0"))
NODMA = int(os.environ.get("NODMA", "0"))
NOMFMA = int(os.environ.get("NOMFMA", "0"))
NOREAD = int(os.environ.get("NOREAD", "0"))
LOOKA = int(os.environ.get("LOOK", "5"))

WS_A = 0
WS_M = 0x800000
WS_KVP = 0x900000
WS_ZP = 0xA00000
WS_SP = 0xA40000
WS_G = 0xA80000
WS_FL = 0xA90000
FKV, FM, FB = WS_FL, WS_FL + 0x4000, WS_FL + 0x8000
WS_EPOCH = 0xAC0000
WS_SIZE = 0xAD0000
WS_STAMP = 0xC000000
OOB = 0x40000000
RT = 61440
L_W = 65536
L_SCR = 147456
L_PT = L_SCR
L_LT = L_SCR + 3840
L_ZB = L_LT + 10240
L_HB = L_ZB + 320
L_EB = 10240
L_GW = L_SCR
L_WO = L_SCR + 2048
L_KVB = L_WO + 7168
LDS_BYTES = 163840
sWV, sR, sJ, sTAG, sT0 = 3, 4, 5, 6, 7
SX, SW, SQ, SWS, SOUT = 8, 12, 16, 20, 24
sRB, sCT, sOFF, sT1 = 28, 29, 30, 31
pX, pLRE, pLIM, pBRE, pBIM, pCRE, pCIM, pLDT, pDSK, pBX, pQKV, pWO, pGW, pOUT, pDBG, pWS = range(32, 64, 2)
sKA = 64
sKQ = 74
sLC = 84
sXB, sWB, sCW = 89, 90, 91
sT2, sT3, sT4, sT5 = 92, 93, 94, 95
sSPIN = 96
sJL = 101
sST = 98
sM0, sM1 = 50, 51
vTID, vLANE = 0, 1
vX = 2
vW = 6
vQ = 11
vXR = 16
vWR = 18
vT40 = 22
vC = 26
vCR = 30
ACC = 32

def srd(n): return f"s[{n}:{n+3}]"
def sp(n): return f"s[{n}:{n+1}]"
def v4(n): return f"v[{n}:{n+3}]"
def v2(n): return f"v[{n}:{n+1}]"
def a4(n): return f"a[{n}:{n+3}]"

a = Asm()
nstamp = [0]
def stamp(idx, existing=False):
    if not STAMPS: return
    if not existing: a(f"s_memrealtime {sp(sST)}\ns_memtime s[96:97]")
    a(f"""s_waitcnt lgkmcnt(0)
v_writelane_b32 v254, s{sST}, {idx}
v_writelane_b32 v255, s96, {idx}""")
    a.lg = []

def stamp_flush():
    if not STAMPS: return
    a(f"""s_lshl_b32 s100, s2, 2
s_add_u32 s100, s100, s{sWV}
s_lshl_b32 s100, s100, 9
v_lshl_add_u32 v253, v{vLANE}, 3, s100
s_add_u32 s{sST}, s{pWS}, {WS_STAMP}
s_addc_u32 s{sST+1}, s{pWS+1}, 0
global_store_dwordx2 v253, v[254:255], {sp(sST)}""")

def mfma(d, A, B, C):
    a(f"v_mfma_f32_16x16x32_bf16 {d}, {A}, {B}, {C}")

def mk_srd(n, ptr, size):
    a(f"s_mov_b32 s{n}, s{ptr}\ns_and_b32 s{n+1}, s{ptr+1}, 0xffff\ns_mov_b32 s{n+2}, {size}\ns_mov_b32 s{n+3}, 0x20000")

def poll_issue(vaddr, vtmp, execmask, tag):
    L = a.label("Lpi")
    a(f"s_cmp_lg_u32 s{sWV}, 0\ns_cbranch_scc1 {L}\ns_mov_b64 exec, {execmask}\nv_mov_b32 v{vtmp}, 0")
    a.vmem(f"buffer_atomic_add v{vtmp}, v{vaddr}, {srd(SWS)}, 0 offen sc0 sc1", tag, certain=False)
    a(f"s_mov_b64 exec, -1\n{L}:")
def poll_finish(vaddr, vtmp, execmask, tag):
    L = a.label("Lpoll"); E_ = a.label("Lpolle"); C = a.label("Lpollc"); S = a.label("Lpolls")
    n = a._cnt(a.vm, tag)[0]
    a(f"""s_cmp_lg_u32 s{sWV}, 0
s_cbranch_scc1 {S}
s_mov_b64 exec, {execmask}
s_mov_b32 s{sSPIN}, 0
s_waitcnt vmcnt({min(n, 63)})
s_branch {C}
{L}:
v_mov_b32 v{vtmp}, 0
buffer_atomic_add v{vtmp}, v{vaddr}, {srd(SWS)}, 0 offen sc0 sc1
s_add_u32 s{sSPIN}, s{sSPIN}, 1
s_waitcnt vmcnt(0)
{C}:
v_cmp_ne_u32 vcc, s{sTAG}, v{vtmp}
s_cmp_gt_u32 s{sSPIN}, 0x20000
s_cbranch_scc1 {E_}
s_cbranch_vccnz {L}
{E_}:
s_mov_b64 exec, -1
{S}:
s_barrier""")

def wq_pattern(dst, sadd):
    for i in range(5):
        a(f"""v_add_u32 v52, {64*i}, v{vLANE}
v_mul_u32_u24 v53, 6554, v52
v_lshrrev_b32 v53, 16, v53
v_mul_u32_u24 v54, 10, v53
v_sub_u32 v54, v52, v54
v_lshrrev_b32 v55, 1, v53
v_and_b32 v55, 4, v55
v_xor_b32 v53, v53, v55
v_mul_u32_u24 v53, 3840, v53
v_lshl_add_u32 v54, v54, 4, s{sadd}""")
        if i & 3: a(f"v_subrev_u32 v53, {(i&3)*1024}, v53")
        a(f"v_add_u32 v{dst+i}, v53, v54")

def prologue():
    if STAMPS: a(f"s_memrealtime {sp(sST)}\ns_memtime s[96:97]")
    a(f"""s_cmp_ge_u32 s2, 256
s_cbranch_scc1 Lend
s_load_dwordx16 s[32:47], s[0:1], 0
s_load_dwordx16 s[48:63], s[0:1], 64
v_and_b32 v{vLANE}, 63, v0
v_lshrrev_b32 v32, 6, v0
s_and_b32 s{sT0}, s2, 7
s_lshr_b32 s{sT1}, s2, 3
v_readfirstlane_b32 s{sWV}, v32""")
    a(f"""s_getpc_b64 s[92:93]
Lpc:
s_lshl_b32 s{sT4}, s{sWV}, 5
s_add_u32 s{sT4}, s{sT4}, s{sT1}
s_lshl_b32 s{sT4}, s{sT4}, 10
s_cmp_ge_u32 s{sT4}, Lcode_end-Lpc
s_cbranch_scc1 Lnopf
v_lshl_add_u32 v33, v{vLANE}, 4, s{sT4}""")
    a.vmem(f"global_load_dwordx4 v[36:39], v33, s[92:93]", "pf", certain=False)
    a("Lnopf:")
    a(f"""s_lshr_b32 s{sR}, s{sT0}, 2
s_lshl_b32 s{sR}, s{sR}, 3
s_and_b32 s{sCT}, s{sT1}, 7
s_add_u32 s{sR}, s{sR}, s{sCT}
s_lshr_b32 s{sJL}, s{sT1}, 3
s_and_b32 s{sJ}, s{sT0}, 3
s_lshl_b32 s{sJ}, s{sJ}, 1
s_and_b32 s{sT3}, s{sJL}, 1
s_add_u32 s{sJ}, s{sJ}, s{sT3}
s_lshl_b32 s{sRB}, s{sT0}, 2
s_add_u32 s{sRB}, s{sRB}, s{sJL}
s_lshr_b32 s{sT2}, s{sCT}, 2
s_add_u32 s{sT2}, s{sT2}, s{sCT}
s_mul_i32 s{sT3}, s{sJL}, 5
s_add_u32 s{sT3}, s{sT3}, 1
s_lshr_b32 s{sT3}, s{sT3}, 1
s_add_u32 s{sT2}, s{sT2}, s{sT3}
s_sub_u32 s{sT3}, s{sT2}, 10
s_cmp_ge_u32 s{sT2}, 10
s_cselect_b32 s{sT2}, s{sT3}, s{sT2}
s_lshl_b32 s{sKA}, s{sT2}, 7
s_add_u32 s{sKA+1}, s{sKA}, 128
s_cmp_eq_u32 s{sKA+1}, 1280
s_cselect_b32 s{sKA+1}, 0, s{sKA+1}
s_lshl_b32 s{sXB}, s{sWV}, 14
s_mul_i32 s{sWB}, s{sWV}, 5120
s_add_u32 s{sWB}, s{sWB}, {L_W}""")
    a(f"""v_lshrrev_b32 v40, 3, v{vLANE}
v_and_b32 v41, 7, v{vLANE}
v_lshrrev_b32 v43, 1, v40
v_xor_b32 v41, v41, v43
v_lshlrev_b32 v41, 4, v41
v_lshrrev_b32 v42, 2, v40
v_lshlrev_b32 v42, 3, v42
v_and_b32 v43, 1, v43
v_add_u32 v42, v42, v43
v_and_b32 v43, 1, v40
v_lshl_add_u32 v42, v43, 2, v42
s_lshl_b32 s{sT2}, s{sR}, 7
s_lshl_b32 s{sT3}, s{sWV}, 5
s_add_u32 s{sT2}, s{sT2}, s{sT3}
v_add_u32 v42, s{sT2}, v42
v_mul_u32_u24 v42, 1280, v42
v_add_u32 v{vX}, v42, v41
v_xor_b32 v44, 64, v41
v_add_u32 v{vX+1}, v42, v44
v_add_u32 v{vX+1}, {16*1280-1024}, v{vX+1}
v_add_u32 v{vX+2}, 512, v{vX}
v_add_u32 v{vX+3}, 512, v{vX+1}
v_mul_u32_u24 v43, 1280, v40
v_add_u32 v45, v43, v41
v_add_u32 v46, v43, v44
s_mov_b32 s{SX+2}, {2048*1280}
s_mov_b32 s{SX+3}, 0x20000
s_mov_b32 s{SW+2}, {640*1280}
s_mov_b32 s{SW+3}, 0x20000
s_mov_b32 s{SQ+2}, {640*3840}
s_mov_b32 s{SQ+3}, 0x20000
s_cmp_lt_u32 s{sJL}, 2
s_cbranch_scc1 LtypeB""")

def args_ready():
    a("s_waitcnt lgkmcnt(0)")
    stamp(11, True)
    stamp(12)
    a(f"s_mov_b32 s{SX}, s{pX}\ns_and_b32 s{SX+1}, s{pX+1}, 0xffff")

def late_setup():
    mk_srd(SWS, pWS, WS_SIZE)
    a(f"""s_add_u32 s{sT2}, s{pWS}, {WS_EPOCH}
s_addc_u32 s{sT3}, s{pWS+1}, 0
s_load_dword s{sTAG}, s[{sT2}:{sT3}], 0""")
    if E("TOUCH"):
        sh = E("TOUCH")
        L = a.label("Ltouch")
        mk_srd(SOUT, pOUT, 2048*2560)
        a(f"""s_cmp_lg_u32 s{sWV}, 3
s_cbranch_scc1 {L}
v_lshlrev_b32 v34, {sh}, v{vLANE}
v_mov_b32 v35, 0""")
        a.vmem(f"buffer_load_dword v36, v34, {srd(SWS)}, 0 offen", "touch", certain=False)
        a.vmem(f"buffer_load_dword v36, v34, {srd(SOUT)}, 0 offen", "touch", certain=False)
        a("s_mov_b64 exec, 1")
        for p in (pCRE, pCIM, pWO, pDSK, pQKV):
            a.vmem(f"global_load_dword v36, v35, {sp(p)}", "touch", certain=False)
        a(f"s_mov_b64 exec, -1\n{L}:")
    for s in range(2, 10):
        a(f"s_add_u32 s{sKA+s}, s{sKA+s-1}, 128\ns_cmp_eq_u32 s{sKA+s}, 1280\ns_cselect_b32 s{sKA+s}, 0, s{sKA+s}")
    for s in range(2, 10):
        a(f"s_mul_i32 s{sKQ+s}, s{sKA+s}, 1920")
    a(f"""s_lshl_b32 s{sOFF}, s{sJL}, 1
s_add_u32 s{sOFF}, s{sOFF}, s{sCT}
s_sub_u32 s{sT3}, s{sOFF}, 10
s_cmp_ge_u32 s{sOFF}, 10
s_cselect_b32 s{sOFF}, s{sT3}, s{sOFF}
s_sub_u32 s{sT3}, s{sOFF}, 5
s_cmp_ge_u32 s{sOFF}, 5
s_cselect_b32 s{sOFF}, s{sT3}, s{sOFF}
s_mul_i32 s{sT2}, s{sWV}, 5
s_add_u32 s{sT2}, s{sT2}, s{sOFF}""")
    for i in range(5):
        a(f"s_add_u32 s{sLC+i}, s{sT2}, {i}\ns_sub_u32 s{sT3}, s{sLC+i}, 20\ns_cmp_ge_u32 s{sLC+i}, 20\ns_cselect_b32 s{sLC+i}, s{sT3}, s{sLC+i}")
    a(f"""s_mul_i32 s{sCW}, s{sWV}, 20480
s_add_u32 s{sCW}, s{sCW}, {L_W}""")
    a(f"""v_and_b32 v52, 15, v{vLANE}
v_lshrrev_b32 v53, 4, v{vLANE}
v_lshrrev_b32 v54, 1, v52
v_xor_b32 v54, v54, v53
v_lshlrev_b32 v54, 4, v54
v_lshl_add_u32 v56, v52, 7, v54
v_xor_b32 v57, 64, v56
v_add_u32 v{vXR}, s{sXB}, v56
v_add_u32 v{vXR+1}, s{sXB}, v57
v_add_u32 v{vCR}, s{sCW}, v56
v_add_u32 v{vCR+1}, s{sCW}, v57""")
    a(f"""v_bfe_u32 v54, v{vLANE}, 2, 2
v_lshl_add_u32 v54, v53, 3, v54
v_and_b32 v55, 1, v53
v_lshlrev_b32 v55, 2, v55
v_add_u32 v58, v54, v55
v_xor_b32 v55, 4, v55
v_add_u32 v59, v54, v55
v_mul_u32_u24 v58, 160, v58
v_mul_u32_u24 v59, 160, v59
v_and_b32 v60, 3, v{vLANE}
v_mul_u32_u24 v61, 40, v60
v_add_u32 v62, v58, v61
v_add_u32 v63, v59, v61
v_add_u32 v{vT40}, {L_W}, v62
v_add_u32 v{vT40+1}, {L_W}, v63
v_add_u32 v{vT40+2}, {L_W+40960}, v62
v_add_u32 v{vT40+3}, {L_W+40960}, v63""")
    a(f"""s_mul_i32 s{sT2}, s{sCT}, {80*1280}
v_add_u32 v{vC}, s{sT2}, v45
v_add_u32 v{vC+1}, s{sT2}, v46
v_add_u32 v{vC+1}, {10240-1024}, v{vC+1}
v_add_u32 v{vC+2}, {2*(10240-1024)}, v{vC}
v_add_u32 v{vC+3}, {2*(10240-1024)}, v{vC+1}""")

def tag_ready():
    a(f"""s_waitcnt lgkmcnt(0)
s_add_u32 s{sTAG}, s{sTAG}, 0x9e3779b1""")
    a.lg = []

def set_flag(base, lab, vt):
    a(f"""s_cmp_lg_u32 s{sWV}, 0
s_cbranch_scc1 {lab}
s_lshl_b32 s{sT0}, s{sJ}, 4
s_add_u32 s{sT0}, s{sT0}, s{sR}
s_lshl_b32 s{sT0}, s{sT0}, 7
s_add_u32 s{sT0}, s{sT0}, {base}
v_mov_b32 v{vt}, s{sT0}
v_mov_b32 v{vt+1}, s{sTAG}
s_mov_b64 exec, 1""")
    a.vmem(f"buffer_atomic_swap v{vt+1}, v{vt}, {srd(SWS)}, 0 offen sc1", "fl", certain=False)
    a(f"s_mov_b64 exec, -1\n{lab}:")

def pk_cmul_acc(d, l, p, acc):
    a(f"""v_pk_fma_f32 {v2(d)}, {v2(p)}, {v2(l)}, {v2(acc)} op_sel_hi:[1,0,1]
v_pk_fma_f32 {v2(d)}, {v2(p)}, {v2(l)}, {v2(d)} op_sel:[1,1,0] op_sel_hi:[0,1,1] neg_lo:[0,1,0]""")

M0 = [None]
def set_m0(sreg, imm):
    if M0[0] != (sreg, imm):
        a(f"s_add_u32 m0, s{sreg}, {imm}")
        M0[0] = (sreg, imm)
def dma_x(s):
    ops = [("s", lambda: set_m0(sXB, (s%4)*4096))]
    for i in range(4):
        def f(i=i):
            set_m0(sXB, (s%4)*4096)
            a.vmem(f"buffer_load_dwordx4 v{vX+i}, {srd(SX)}, s{sKA+s} offen offset:{i*1024} lds", ("st", s))
        ops.append(("d", f))
    return ops
def dma_w(s, vaddr, rsrc, soff):
    ops = [("s", lambda: set_m0(sWB, (s%4)*20480))]
    for i in range(4):
        def f(i=i):
            set_m0(sWB, (s%4)*20480)
            a.vmem(f"buffer_load_dwordx4 v{vaddr+i}, {srd(rsrc)}, s{soff} offen offset:{i*1024} lds", ("st", s))
        ops.append(("d", f))
    ops.append(("s", lambda: set_m0(sWB, (s%4)*20480+4096)))
    def g():
        set_m0(sWB, (s%4)*20480+4096)
        a.vmem(f"buffer_load_dwordx4 v{vaddr+4}, {srd(rsrc)}, s{soff} offen lds", ("st", s))
    ops.append(("d", g))
    return ops
def dma_c(slot, sbase, ldsoff):
    ops = []
    def setup():
        a(f"""s_cmp_ge_u32 s{sLC+slot}, 10
s_cselect_b32 s{SW}, s{pCIM}, s{pCRE}
s_cselect_b32 s{SW+1}, s{pCIM+1}, s{pCRE+1}
s_cselect_b32 s{sM1}, 1280, 0
s_and_b32 s{SW+1}, s{SW+1}, 0xffff
s_lshl_b32 s{sM0}, s{sLC+slot}, 7
s_sub_u32 s{sM0}, s{sM0}, s{sM1}""")
    ops.append(("s", setup))
    for g in range(3):
        def m0(g=g):
            set_m0(sbase, ldsoff + g*4096)
            if g: a(f"s_add_u32 s{sM0}, s{sM0}, 40960")
        ops.append(("s", m0))
        for i in range(4 if g < 2 else 2):
            def f(i=i, g=g):
                set_m0(sbase, ldsoff + g*4096)
                a.vmem(f"buffer_load_dwordx4 v{vC+i}, {srd(SW)}, s{sM0} offen offset:{i*1024} lds", ("c", slot))
            ops.append(("d", f))
    return ops
CHOME = [160, 200, 0, 40, 80]
def c_reads(slot, vbase, ldsoff):
    ops = []
    for ks in range(2):
        for nt in range(5):
            def f(ks=ks, nt=nt):
                a.lds(f"ds_read_b128 {a4(CHOME[slot] + (ks*5+nt)*4)}, v{vbase+ks} offset:{ldsoff + nt*2048}", ("cr", slot))
            ops.append(("r", f))
    return ops

class BG:
    def __init__(self): self.q = []; self.keys = {}; self.fast = False
    def add(self, ops, key=None):
        self.q.extend(ops)
        if key is not None: self.keys[key] = ops[-1]
    def require(self, key):
        last = self.keys.get(key)
        while last in self.q:
            print("note: forced flush for", key)
            self.q.pop(0)[1]()
    def tick(self, n=1):
        while n > 0 and self.q:
            k, f = self.q.pop(0)
            f()
            if k != "s": n -= 1
    def tick_s(self):
        while self.q and self.q[0][0] == "s":
            self.q.pop(0)[1]()
    def flush(self):
        while self.q: self.q.pop(0)[1]()

def run_ops(ops):
    for k, f in ops: f()

def gemm_loop(nstage, frags_per_stage, read_frag, mfmas, x_reads, stage_dma, bg, ring, LOOK, hooks, first_stage=0, pre_issued=2):
    F = frags_per_stage
    total = nstage * F
    NR = len(ring)
    def sid(f): return first_stage + f // F, f % F
    rq = []; last = []
    for f in range(total):
        s, i = sid(f)
        ops = []
        xr = x_reads(s)
        if i in xr: ops += xr[i]
        ops += read_frag(s, i, ring[f % NR])
        if i == 0:
            def first(s=s, e=ops[0]):
                bg.require(s)
                a.wait(vm=[("st", s)])
                a("s_barrier")
                if STGST: stamp(16 + s)
                d = stage_dma(s + 2)
                if d and s + 2 >= pre_issued and not NODMA: bg.add(d, s + 2)
                e()
            ops[0] = first
        rq += ops
        last.append(len(rq))
    issued = [0]
    def pop(n):
        for _ in range(n):
            rq[issued[0]](); issued[0] += 1
    pop(last[LOOK - 1])
    gap = 0
    for f in range(total):
        s, i = sid(f)
        if (s, i) in hooks: hooks[(s, i)]()
        a.wait(lg=[("w", s, i)])
        ms = mfmas(s, i, ring[f % NR])
        need = last[min(f + LOOK - 1, total - 1)]
        for half, m in enumerate(ms):
            m()
            maxi = last[min(f + LOOK, f + NR - 1 + (1 if half == len(ms) - 1 else 0), total - 1)]
            period = 2 if bg.fast else 4
            due = lambda g: bool(bg.q) and g % period == 1
            if due(gap):
                bg.tick(1)
                if half == len(ms) - 1 and need > issued[0]: pop(need - issued[0])
            else:
                usable = 1 + sum(1 for g in range(gap + 1, gap + len(ms) - half) if not due(g))
                n = max(1, -(-(need - issued[0]) // usable))
                if due(gap + 1) and half == len(ms) - 1: pass
                pop(max(0, min(n, maxi - issued[0])))
                if due(gap + 1): bg.tick_s()
            gap += 1

LOG2E = 0x3fb8aa3b
def phi(regs, sconst_log2e, tmp, NT=4):
    for n, r in enumerate(regs):
        t = tmp + (n % NT) * 2
        a(f"v_pk_mul_f32 {v2(t)}, {v2(r)}, {sp(sconst_log2e)} op_sel_hi:[1,0]")
        a(f"v_max_f32 v{r}, 0x358637bd, v{r}\nv_max_f32 v{r+1}, 0x358637bd, v{r+1}")
        a(f"v_exp_f32_e64 v{t}, v{t} clamp\nv_exp_f32_e64 v{t+1}, v{t+1} clamp")
        if n > 0:
            rp = regs[n-1]; tp = tmp + ((n-1) % NT) * 2
            a(f"v_pk_add_f32 {v2(rp)}, {v2(rp)}, {v2(tp)}")
    rp = regs[-1]; tp = tmp + ((len(regs)-1) % NT) * 2
    a(f"v_pk_add_f32 {v2(rp)}, {v2(rp)}, {v2(tp)}")

def cmul_acc(dr, di, lr, li, pr, pi, ar, ai):
    a(f"""v_fma_f32 v{dr}, v{lr}, v{pr}, v{ar}
v_fma_f32 v{di}, v{lr}, v{pi}, v{ai}
v_fma_f32 v{dr}, -v{li}, v{pi}, v{dr}
v_fma_f32 v{di}, v{li}, v{pr}, v{di}""")

K_AH = 32
K_AB = [112, 132]
K_vA, K_vM = 2, 6
K_vFB, K_vFM, K_vGA, K_vRW, K_vTmp = 11, 12, 13, 14, 15
K_vG = 18
K_FO, K_FL = 246, 247
K_sMT = sKQ + 5
def time_base(dst, srt, tmp):
    a(f"""s_lshr_b32 s{dst}, s{srt}, 1
s_lshl_b32 s{dst}, s{dst}, 5
s_and_b32 s{tmp}, s{srt}, 1
s_lshl_b32 s{tmp}, s{tmp}, 1
s_add_u32 s{dst}, s{dst}, s{tmp}""")
def skip_loads(t):
    mk_srd(SQ, pDSK, 1280)
    a(f"""s_add_u32 s{sT2}, s{sWV}, s{sCT}
s_and_b32 s{sT2}, s{sT2}, 3
s_lshl_b32 s{sT3}, s{sRB}, 2
s_add_u32 s{sT2}, s{sT2}, s{sT3}""")
    time_base(sT3, sT2, sT4)
    a(f"""s_mul_i32 s{sT3}, s{sT3}, 1280
s_mul_i32 s{sT4}, s{sCT}, 160
s_add_u32 s{sT3}, s{sT3}, s{sT4}
v_bfe_u32 v{t}, v{vLANE}, 5, 1
v_bfe_u32 v{t+1}, v{vLANE}, 4, 1
v_lshl_add_u32 v{t}, v{t+1}, 2, v{t}
v_mul_u32_u24 v{t}, 1280, v{t}
v_and_b32 v{t+1}, 15, v{vLANE}
v_lshl_add_u32 v{t}, v{t+1}, 4, v{t}
v_mov_b32 v{t+2}, {OOB}
v_cmp_gt_u32 vcc, 10, v{t+1}
v_cndmask_b32 v{t}, v{t+2}, v{t}, vcc
v_lshlrev_b32 v{t+1}, 4, v{vLANE}
v_cmp_gt_u32 vcc, 10, v{vLANE}
v_cndmask_b32 v{t+1}, v{t+2}, v{t+1}, vcc""")
    set_m0(sXB, 10240)
    for i in range(4):
        a.vmem(f"buffer_load_dwordx4 v{t}, {srd(SX)}, s{sT3} offen offset:{i*1024} lds", "fx")
        if i < 3: a(f"s_add_u32 s{sT3}, s{sT3}, {10240-1024}")
    set_m0(sXB, 10240+4096)
    a.vmem(f"buffer_load_dwordx4 v{t+1}, {srd(SQ)}, s{sT4} offen lds", "fx")
def skip_math(t):
    a(f"""v_lshrrev_b32 v{t}, 4, v{vLANE}
v_lshl_add_u32 v{t}, v{t}, 3, s{sXB}
v_and_b32 v{t+1}, 15, v{vLANE}
v_lshl_add_u32 v{t+1}, v{t+1}, 8, v{t}""")
    a.wait(vm="fx")
    for nt in range(5):
        a.lds(f"ds_read_b64 {v2(t+6+2*nt)}, v{t+1} offset:{10240 + nt*32}", ("sk", nt))
        a.lds(f"ds_read_b64 {v2(t+16+2*nt)}, v{t} offset:{10240 + 4096 + nt*32}", ("sk", nt))
    for n in range(10):
        d = K_AH + 2*n
        if n % 2 == 0: a.wait(lg=[("sk", n//2)])
        a(f"""v_lshlrev_b32 v{t+2}, 16, v{t+6+n}
v_and_b32 v{t+3}, 0xffff0000, v{t+6+n}
v_lshlrev_b32 v{t+4}, 16, v{t+16+n}
v_and_b32 v{t+5}, 0xffff0000, v{t+16+n}
v_pk_mul_f32 {v2(t+2)}, {v2(t+2)}, {v2(t+4)}
v_cvt_pk_bf16_f32 v{t+2}, v{t+2}, v{t+3}
v_lshlrev_b32 v{d}, 16, v{t+2}
v_and_b32 v{d+1}, 0xffff0000, v{t+2}""")
def k2_setup(t):
    vA, vM, sMT = K_vA, K_vM, K_sMT
    mk_srd(SOUT, pOUT, 2048*2560)
    a(f"s_add_u32 s{sT0}, s{sWV}, s{sCT}")
    a(f"v_lshlrev_b32 v{vM}, 4, v{vLANE}")
    for i in range(4):
        a(f"""s_add_u32 s{sMT+i}, s{sT0}, {i}
s_and_b32 s{sMT+i}, s{sMT+i}, 3
s_mul_i32 s{sT1}, s{sMT+i}, {RT}
v_add_u32 v{vA+i}, s{sT1}, v{vM}""")
    for nt in range(1, 5): a(f"v_add_u32 v{vM+nt}, {nt*20480}, v{vM}")
    a(f"s_mul_i32 s{sT0}, s{sRB}, {4*RT}\ns_mul_i32 s{sT1}, s{sCT}, {5*20480}\ns_add_u32 s{sT1}, s{sT1}, {WS_M}\ns_add_u32 s{sT3}, s{sT0}, 40960")
    for i in range(5):
        a(f"""s_lshl_b32 s{sT2}, s{sLC+i}, 11
s_add_u32 s{sKA+i}, s{sT0}, s{sT2}
s_lshl_b32 s{sT2}, s{sLC+i}, 10
s_add_u32 s{sKA+5+i}, s{sT3}, s{sT2}
s_add_u32 s{sKQ+i}, s{sT1}, s{sT2}""")
    a(f"s_lshl_b32 s{sT2}, s{sRB}, 2\ns_add_u32 s{sT2}, s{sT2}, s{sWV}")
    time_base(sT3, sT2, sT4)
    a(f"""s_mul_i32 s{sT4}, s{sCT}, 320
s_mul_i32 s{sT5}, s{sWV}, {16*320}
v_lshrrev_b32 v{t}, 4, v{vLANE}
v_lshlrev_b32 v{t}, 3, v{t}
v_bfe_u32 v{t+1}, v{vLANE}, 3, 1
v_add_u32 v{t}, v{t}, v{t+1}
v_bfe_u32 v{t+1}, v{vLANE}, 2, 1
v_lshl_add_u32 v{t}, v{t+1}, 2, v{t}
v_add_u32 v{t}, s{sT3}, v{t}
v_mul_u32_u24 v{t}, 2560, v{t}
v_and_b32 v{t+1}, 3, v{vLANE}
v_lshl_add_u32 v{t+2}, v{t+1}, 4, s{sT4}
v_add_u32 v{K_FO}, v{t}, v{t+2}
v_bfe_u32 v{t+2}, v{vLANE}, 3, 2
v_xor_b32 v{t+1}, v{t+1}, v{t+2}
v_lshrrev_b32 v{t}, 2, v{vLANE}
v_mul_u32_u24 v{t}, 320, v{t}
v_lshl_add_u32 v{t}, v{t+1}, 4, v{t}
v_add_u32 v{K_FL}, s{sT5}, v{t}""")
    a(f"""s_lshr_b32 s{sT2}, s{sRB}, 1
s_lshl_b32 s{sT2}, s{sT2}, 7
s_add_u32 s{sT3}, s{sT2}, {FB}
v_lshl_add_u32 v{K_vFB}, v{vLANE}, 11, s{sT3}
s_and_b32 s{sT3}, s{sRB}, 1
s_lshl_b32 s{sT3}, s{sT3}, 13
s_add_u32 s{sT2}, s{sT2}, s{sT3}
s_add_u32 s{sT2}, s{sT2}, {FM - 16*2048}
v_lshl_add_u32 v{t}, v{vLANE}, 11, s{sT2}
s_lshl_b32 s{sT2}, s{sCT}, 8
s_add_u32 s{sT2}, s{sT2}, {FM}
v_lshrrev_b32 v{K_vFM}, 1, v{vLANE}
v_lshl_add_u32 v{K_vFM}, v{K_vFM}, 11, s{sT2}
v_and_b32 v{t+1}, 1, v{vLANE}
v_lshl_add_u32 v{K_vFM}, v{t+1}, 7, v{K_vFM}
v_cmp_gt_u32 vcc, 16, v{vLANE}
v_cndmask_b32 v{K_vFM}, v{t}, v{K_vFM}, vcc
v_and_b32 v{t}, 15, v{vLANE}
v_lshlrev_b32 v{K_vGA}, 2, v{t}
v_lshrrev_b32 v{t+1}, 4, v{vLANE}
v_bfe_u32 v{t+2}, v{vLANE}, 1, 2
v_xor_b32 v{t+1}, v{t+1}, v{t+2}
v_mul_u32_u24 v{t}, 320, v{t}
v_lshl_add_u32 v{t}, v{t+1}, 4, v{t}
s_mul_i32 s{sT2}, s{sWV}, {64*320}
v_add_u32 v{K_vRW}, s{sT2}, v{t}""")

def warm_c(ptr, vt):
    def f():
        a(f"""s_mov_b32 s{SW}, s{ptr}
s_and_b32 s{SW+1}, s{ptr+1}, 0xffff
s_lshr_b32 s{sM0}, s2, 3
s_and_b32 s{sM0}, s{sM0}, 15
s_lshl_b32 s{sM0}, s{sM0}, 2
s_add_u32 s{sM0}, s{sM0}, s{sWV}
s_mul_i32 s{sM0}, s{sM0}, 12800
v_lshlrev_b32 v{vt}, 7, v{vLANE}""")
        a.vmem(f"buffer_load_dword v{vt+1}, v{vt}, {srd(SW)}, s{sM0} offen", "warm")
        a(f"s_add_u32 s{sM0}, s{sM0}, 8192\ns_mov_b32 exec_hi, 15")
        a.vmem(f"buffer_load_dword v{vt+1}, v{vt}, {srd(SW)}, s{sM0} offen", "warm")
        a("s_mov_b32 exec_hi, -1")
    return f

def type_A():
    bg = BG()
    AK, AG = ACC, ACC + 80
    RING = [128 + 4*i for i in range(8)]
    sZB, sKVB, sGA, sMa, sMb, sMc, sMd, sGB = 34, 35, 36, 37, 38, 39, 40, 41
    sMK = 60
    sGW = 46
    a(f"""s_lshr_b32 s{sT2}, s{sWV}, 1
s_add_u32 s{sT2}, s{sT2}, 1
s_mul_i32 s{sT2}, s{sT2}, 1280
s_mul_i32 s{sT3}, s{sJ}, 160
s_add_u32 s{sT2}, s{sT2}, s{sT3}
s_and_b32 s{sT3}, s{sWV}, 1
s_mul_i32 s{sT3}, s{sT3}, {32*3840}
s_add_u32 s{sT2}, s{sT2}, s{sT3}
s_mul_i32 s{sKQ}, s{sKA}, 1920
s_mul_i32 s{sKQ+1}, s{sKA+1}, 1920""")
    wq_pattern(vW, sT2)
    args_ready()
    a(f"s_mov_b32 s{SQ}, s{pQKV}\ns_and_b32 s{SQ+1}, s{pQKV+1}, 0xffff")
    def stage_dma(s):
        if s >= 10: return None
        return dma_x(s) + dma_w(s, vW, SQ, sKQ + s)
    run_ops(stage_dma(0))
    mk_srd(SW, pGW, 1280)
    a(f"""s_and_b32 s{sT2}, s{sWV}, 1
s_lshl_b32 s{sT2}, s{sT2}, 10
v_lshlrev_b32 v64, 4, v{vLANE}""")
    set_m0(sT2, L_GW)
    a.vmem(f"buffer_load_dwordx4 v64, {srd(SW)}, s{sT2} offen lds", ("st", 0))
    late_setup()
    a(f"""v_mov_b32 v68, 0
v_mov_b32 v69, 0
v_mov_b32 v70, 0
v_mov_b32 v71, 0
v_lshlrev_b32 v65, 4, v0
v_add_u32 v65, {L_KVB}, v65
v_cmp_gt_u32 vcc, 164, v0
s_and_saveexec_b64 {sp(sT2)}, vcc""")
    a.lds("ds_write_b128 v65, v[68:71]", "z0")
    a(f"s_mov_b64 exec, {sp(sT2)}")
    vXM = vQ + 1
    a(f"""v_lshlrev_b32 v61, 3, v60
v_add_u32 v62, v58, v61
v_add_u32 v63, v59, v61
v_add_u32 v{vWR}, {L_W}, v62
v_add_u32 v{vWR+1}, {L_W}, v63
v_add_u32 v{vWR+2}, {L_W+40960}, v62
v_add_u32 v{vWR+3}, {L_W+40960}, v63
v_lshrrev_b32 v{vQ}, 4, v{vLANE}
v_lshlrev_b32 v{vQ}, 4, v{vQ}
v_add_u32 v{vQ}, {L_GW}, v{vQ}
s_and_b32 s{sT2}, s{sJ}, 1
s_lshl_b32 s{sT2}, s{sT2}, 11
s_xor_b32 s{sT3}, s{sT2}, 2048
v_add_u32 v{vXM}, s{sT2}, v{vXR}
v_add_u32 v{vXM+1}, s{sT2}, v{vXR+1}
v_add_u32 v{vXM+2}, s{sT3}, v{vXR}
v_add_u32 v{vXM+3}, s{sT3}, v{vXR+1}""")
    mk_srd(SW, pWO, 640*1280)
    a(f"""s_and_b32 s{sT1}, s{sR}, 1
s_mul_i32 s{sT2}, s{sT1}, 40
s_mul_i32 s{sT3}, s{sJ}, 80
s_add_u32 s{sT2}, s{sT2}, s{sT3}
s_mul_i32 s{sT2}, s{sT2}, 1280
s_lshr_b32 s{sT3}, s{sR}, 1
s_mul_i32 s{sT3}, s{sT3}, 160
s_add_u32 s{sT2}, s{sT2}, s{sT3}
s_mov_b32 s{sM0}, s{sT2}
s_lshl_b32 s{sM1}, s{sWV}, 10
v_mov_b32 v211, {OOB}""")
    for n in range(2):
        a(f"""v_add_u32 v65, {256*n}, v0
v_mul_u32_u24 v66, 6554, v65
v_lshrrev_b32 v66, 16, v66
v_mul_u32_u24 v67, 10, v66
v_sub_u32 v67, v65, v67
v_mul_u32_u24 v66, 1280, v66
v_lshl_add_u32 v66, v67, 4, v66
v_cmp_gt_u32 vcc, 400, v65
v_cndmask_b32 v{72+n}, v211, v66, vcc""")
    def wo_dma():
        for n in range(2):
            set_m0(sM1, L_WO + 4096*n)
            if n == 1:
                a(f"s_cmp_eq_u32 s{sWV}, 3\ns_cbranch_scc1 LskipWo")
                a.vmem(f"buffer_load_dwordx4 v73, {srd(SW)}, s{sM0} offen lds", ("st", 1), certain=False)
                a("LskipWo:")
            else:
                a.vmem(f"buffer_load_dwordx4 v72, {srd(SW)}, s{sM0} offen lds", ("st", 1))
    vGS, vZ1, vZ2, vK1, vK2, vK3, vK4 = 212, 213, 214, 215, 216, 217, 218
    vXW, vR0, vR1, vKP, vKB = 219, 220, 221, 222, 223
    vOa0, vOa1, vOb0, vOb1, vOc0, vOc1 = 224, 225, 226, 227, 228, 229
    vWo = 230
    vMS, vMR, vONE, vTG = 234, 235, 236, 237
    ZR = L_KVB + 2560
    def precompute():
        a(f"""v_and_b32 v208, 15, v{vLANE}
v_lshrrev_b32 v209, 4, v{vLANE}
v_lshrrev_b32 v210, 2, v208
v_lshlrev_b32 v{vGS}, 4, v209
v_cmp_eq_u32 vcc, 0, v208
v_cndmask_b32 v{vGS}, v211, v{vGS}, vcc
s_lshl_b32 s{sGB}, s{sR}, 3
s_add_u32 s{sGB}, s{sGB}, s{sJ}
s_lshl_b32 s{sGB}, s{sGB}, 6
s_add_u32 s{sGB}, s{sGB}, {WS_G}
v_cmp_eq_u32 {sp(sMK)}, s{sWV}, v210
v_cmp_eq_u32 {sp(sT4)}, s{sWV}, v209
s_add_u32 s{sT2}, s{sWV}, 1
s_and_b32 s{sT2}, s{sT2}, 3
v_cmp_eq_u32 vcc, s{sT2}, v209
v_lshlrev_b32 v{vZ1}, 2, v208
v_and_b32 v240, 3, v208
v_add_u32 v241, 16, v240
v_lshlrev_b32 v{vZ2}, 2, v241
v_cndmask_b32 v{vZ1}, v211, v{vZ1}, vcc
v_cndmask_b32 v{vZ2}, v211, v{vZ2}, vcc
v_cndmask_b32 v{vZ2}, v211, v{vZ2}, {sp(sMK)}
s_lshl_b32 s{sT2}, s{sJ}, 4
s_add_u32 s{sT2}, s{sT2}, s{sR}
s_mul_i32 s{sZB}, s{sT2}, 640
s_mul_i32 s{sT3}, s{sWV}, 80
s_add_u32 s{sZB}, s{sZB}, s{sT3}
s_add_u32 s{sZB}, s{sZB}, {WS_ZP}
v_mul_u32_u24 v242, 320, v209
v_lshl_add_u32 v{vK1}, v208, 4, v242
v_lshlrev_b32 v{vK2}, 4, v208
v_cndmask_b32 v{vK2}, v211, v{vK2}, {sp(sT4)}
v_lshl_add_u32 v{vK3}, v241, 4, v242
v_cndmask_b32 v{vK3}, v211, v{vK3}, {sp(sMK)}
v_lshlrev_b32 v{vK4}, 4, v241
v_cndmask_b32 v{vK4}, v211, v{vK4}, {sp(sMK)}
v_cndmask_b32 v{vK4}, v211, v{vK4}, {sp(sT4)}
s_mul_i32 s{sKVB}, s{sT2}, 6400
s_mul_i32 s{sT3}, s{sWV}, 1600
s_add_u32 s{sKVB}, s{sKVB}, s{sT3}
s_add_u32 s{sKVB}, s{sKVB}, {WS_KVP}
v_lshlrev_b32 v{vR0}, 4, v{vLANE}
v_add_u32 v{vXW}, s{sXB}, v{vR0}
s_lshl_b32 s{sT2}, s{sWV}, 10
v_add_u32 v{vR1}, s{sT2}, v{vR0}
v_lshlrev_b32 v{vKP}, 4, v0
v_cmp_gt_u32 vcc, 200, v0
v_cndmask_b32 v{vKP}, v211, v{vKP}, vcc
s_mul_i32 s{sGA}, s{sJ}, {16*6400}
s_and_b32 s{sT1}, s{sR}, 1
s_mul_i32 s{sT2}, s{sT1}, 3200
s_add_u32 s{sGA}, s{sGA}, s{sT2}
s_add_u32 s{sGA}, s{sGA}, {WS_KVP}""")
        a(f"""v_cmp_le_u32 vcc, 100, v0
v_subrev_u32 v242, 100, v0
v_cndmask_b32 v242, v0, v242, vcc
v_mov_b32 v243, {L_KVB}
v_mov_b32 v244, {L_KVB + 1280}
v_cndmask_b32 v243, v243, v244, vcc
v_mul_u32_u24 v244, 3277, v242
v_lshrrev_b32 v244, 16, v244
v_mul_u32_u24 v245, 20, v244
v_sub_u32 v245, v242, v245
v_lshl_add_u32 v243, v245, 6, v243
v_lshl_add_u32 v{vKB}, v244, 3, v243""")
        a(f"""v_lshrrev_b32 v242, 1, v210
v_lshl_add_u32 v242, v242, 3, v240
v_lshlrev_b32 v242, 6, v242
v_lshl_add_u32 v242, v209, 4, v242
v_add_u32 v242, {L_KVB}, v242
v_add_u32 v243, 1280, v242
v_mov_b32 v244, {ZR - 256}
v_and_b32 v245, 1, v210
v_cmp_eq_u32 vcc, 0, v245
v_cndmask_b32 v{vOb0}, v244, v242, vcc
v_cndmask_b32 v{vOb1}, v243, v244, vcc
v_mov_b32 v244, {ZR}
v_cndmask_b32 v{vOa0}, v244, v242, vcc
v_cndmask_b32 v{vOa1}, v243, v244, vcc
v_lshlrev_b32 v242, 6, v240
v_lshl_add_u32 v242, v209, 4, v242
v_add_u32 v242, {L_KVB + 16*64}, v242
v_add_u32 v243, 1280, v242
v_cmp_eq_u32 vcc, 0, v210
v_cndmask_b32 v{vOc0}, v244, v242, vcc
v_cmp_eq_u32 vcc, 1, v210
v_cndmask_b32 v{vOc1}, v244, v243, vcc""")
        a(f"""v_bfe_u32 v242, v{vLANE}, 2, 2
v_lshl_add_u32 v242, v209, 3, v242
v_add_u32 v243, 4, v242
v_min_u32 v242, 19, v242
v_min_u32 v243, 19, v243
v_mul_u32_u24 v242, 160, v242
v_mul_u32_u24 v243, 160, v243
v_lshl_add_u32 v242, v240, 3, v242
v_lshl_add_u32 v243, v240, 3, v243
v_add_u32 v{vWo+2}, {L_WO}, v242
v_add_u32 v{vWo+3}, {L_WO}, v243
s_lshl_b32 s{sT2}, s{sWV}, 5
v_add_u32 v{vWo}, s{sT2}, v{vWo+2}
v_add_u32 v{vWo+1}, s{sT2}, v{vWo+3}""")
        a(f"""v_and_b32 v242, 1, v209
v_lshrrev_b32 v243, 1, v209
v_lshl_add_u32 v242, v243, 2, v242
v_lshlrev_b32 v242, 8, v242
v_lshl_add_u32 v{vMS}, v208, 4, v242
v_lshlrev_b32 v243, 3, v209
v_lshl_add_u32 v243, v208, 4, v243
v_cmp_gt_u32 vcc, 2, v209
v_cndmask_b32 v{vMR}, v211, v243, vcc
s_lshr_b32 s{sT0}, s{sR}, 1
s_mul_i32 s{sT0}, s{sT0}, {5*20480}
s_mul_i32 s{sT2}, s{sJ}, 2560
s_add_u32 s{sT0}, s{sT0}, s{sT2}
s_add_u32 s{sT0}, s{sT0}, {WS_M}
s_lshl_b32 s{sT2}, s{sT1}, 9
s_add_u32 s{sT2}, s{sT2}, s{sT0}
s_lshl_b32 s{sT3}, s{sT1}, 8
s_add_u32 s{sT3}, s{sT3}, s{sT0}
s_mul_i32 s{sT0}, s{sWV}, 20480
s_add_u32 s{sMa}, s{sT2}, s{sT0}
s_add_u32 s{sMb}, s{sT3}, s{sT0}
s_add_u32 s{sT2}, s{sT2}, {4*20480}
s_add_u32 s{sT3}, s{sT3}, {4*20480}
s_cmp_eq_u32 s{sWV}, 0
s_cselect_b32 s{sMc}, s{sT2}, {OOB}
s_cselect_b32 s{sMd}, s{sT3}, {OOB}
v_mov_b32 v{vONE}, 0x3f803f80""")
    precompute()
    stamp(34)
    run_ops(stage_dma(1))
    wo_dma()
    tag_ready()
    a(f"""s_and_b32 s{sT2}, s{sTAG}, 0xff
v_mov_b32 v{vTG}, s{sT2}
s_lshr_b32 s{sT2}, s{sJ}, 1
s_cmp_eq_u32 s{sT2}, s{sWV}
s_cselect_b64 {sp(sGW)}, -1, 0
s_mov_b64 vcc, {sp(sGW)}""")
    stamp(0)
    XA = lambda s, ks, m: (s % 2) * 16 + ks * 8 + m * 4 + 120
    def x_reads(s):
        def mk(ks):
            return [(lambda m=m: a.lds(f"ds_read_b128 {a4(XA(s, ks, m))}, v{vXM+2*m+ks} offset:{(s%4)*4096}", ("x", s, ks))) for m in range(2)]
        return {0: mk(0), 11: mk(1)}
    def read_frag(s, i, reg):
        ks, t = divmod(i, 11)
        sl = s % 4
        if t == 10:
            def g():
                if ks == 0: a(f"v_add_u32 v120, s{sKA+s}, v{vQ}")
                a.lds(f"ds_read_b128 {v4(reg)}, v120 offset:{ks*64}", ("w", s, i))
            return [g]
        seg, T = divmod(t, 5)
        off = (sl % 2) * 20480 + seg * 10240 + ks * 5120
        out = []
        for hh in range(2):
            if T < 4: va, o = vWR + (sl // 2) * 2 + hh, off + 40 * T
            else: va, o = vT40 + (sl // 2) * 2 + hh, off + 32
            out.append(lambda hh=hh, va=va, o=o: a.lds(f"ds_read_b64_tr_b16 {v2(reg + 2*hh)}, v{va} offset:{o}", ("w", s, i)))
        return out
    def mfmas(s, i, reg):
        ks, t = divmod(i, 11)
        first = (s == 0 and ks == 0)
        if t == 10:
            def g():
                L = a.label("Lng")
                a(f"s_cbranch_vccz {L}")
                mfma(v4(AG), a4(XA(s, ks, 0)), v4(reg), "0" if first else v4(AG))
                a(f"{L}:")
            return [g]
        out = []
        for m in range(2):
            d = ACC + t * 8 + m * 4
            c = "0" if first else v4(d)
            out.append(lambda d=d, m=m, c=c: mfma(v4(d), a4(XA(s, ks, m)), v4(reg), c))
        return out
    gemm_loop(10, 22, read_frag, mfmas, x_reads, stage_dma, bg, RING, 7, {(8, 2): warm_c(pCIM, 122)})
    bg.flush()
    stamp(1)
    a(f"s_mov_b32 s{sT2}, {LOG2E}\ns_movk_i32 s{sT3}, 0xff")
    T = 160
    PKR = 168
    def pack(t):
        dst = PKR + 4*t
        for q in range(4):
            a(f"v_cvt_pk_bf16_f32 v{dst+q}, v{ACC + t*8 + 2*q}, v{ACC + t*8 + 2*q + 1}")
        a.lds(f"ds_write_b128 v{vXW}, {v4(dst)} offset:{t*1024}", "kvx")
    for t in range(5):
        phi([AK + 8*t + 2*n for n in range(2)], sT2, T)
        pack(5 + t)
        phi([AK + 8*t + 2*n for n in range(2, 4)], sT2, T)
        pack(t)
    a.wait(lg="all")
    a("s_barrier")
    F0 = 32
    for w in range(4):
        b = F0 + w * 16
        a.lds(f"ds_read_b128 {v4(b+12)}, v{vR0} offset:{w*16384 + 9216}", ("kr", w))
        a.lds(f"ds_read_b128 {v4(b)}, v{vR1} offset:{w*16384}", ("kr", w))
        a.lds(f"ds_read_b128 {v4(b+4)}, v{vR0} offset:{w*16384 + 4096}", ("kr", w))
        a.lds(f"ds_read_b128 {v4(b+8)}, v{vR1} offset:{w*16384 + 5120}", ("kr", w))
    P = 96
    for w in range(4):
        b = F0 + w * 16
        a.wait(lg=[("kr", w)])
        for q in range(4): a(f"v_cndmask_b32 v{b+12+q}, v{vONE}, v{b+12+q}, {sp(sMK)}")
        c = lambda n: "0" if w == 0 else v4(P + 4*n)
        mfma(v4(P), v4(b+8), v4(b), c(0))
        mfma(v4(P+8), v4(b+8), v4(b+4), c(2))
        mfma(v4(P+4), v4(b+12), v4(b), c(1))
        mfma(v4(P+12), v4(b+12), v4(b+4), c(3))
    a(f"s_mov_b32 s{SW+2}, {640*1280}")
    for n in (0, 2, 1, 3):
        for q in (0, 2):
            a(f"v_bfi_b32 v{P+4*n+q}, s{sT3}, v{vTG}, v{P+4*n+q}")
    a.vmem(f"buffer_store_dword v{P+4}, v{vZ1}, {srd(SWS)}, s{sZB} offen sc1", "zst")
    a.vmem(f"buffer_store_dword v{P+12}, v{vZ2}, {srd(SWS)}, s{sZB} offen sc1", "zst")
    a.vmem(f"buffer_store_dwordx4 {v4(P)}, v{vK1}, {srd(SWS)}, s{sKVB} offen sc1", "kvst")
    a.vmem(f"buffer_store_dwordx4 {v4(P+4)}, v{vK2}, {srd(SWS)}, s{sKVB} offen offset:1280 sc1", "kvst")
    a.vmem(f"buffer_store_dwordx4 {v4(P+8)}, v{vK3}, {srd(SWS)}, s{sKVB} offen sc1", "kvst")
    a.vmem(f"buffer_store_dwordx4 {v4(P+12)}, v{vK4}, {srd(SWS)}, s{sKVB} offen offset:1280 sc1", "kvst")
    stamp(2)
    run_ops(dma_c(3, sCW, 0))
    a("s_cbranch_vccz LA_ng")
    for q in range(2):
        r = AG + 2*q
        a(f"""v_cvt_pk_bf16_f32 v{T+1}, v{r}, v{r+1}
v_lshlrev_b32 v{r}, 16, v{T+1}
v_and_b32 v{r+1}, 0xffff0000, v{T+1}
v_mul_f32 v{r}, 0xbfb8aa3b, v{r}
v_mul_f32 v{r+1}, 0xbfb8aa3b, v{r+1}
v_exp_f32 v{r}, v{r}
v_exp_f32 v{r+1}, v{r+1}
s_nop 0
v_add_f32 v{r}, 1.0, v{r}
v_add_f32 v{r+1}, 1.0, v{r+1}
v_rcp_f32 v{r}, v{r}
v_rcp_f32 v{r+1}, v{r+1}
s_nop 0
v_cvt_pk_bf16_f32 v{T+1}, v{r}, v{r+1}
v_lshlrev_b32 v{r}, 16, v{T+1}
v_and_b32 v{r+1}, 0xffff0000, v{T+1}""")
    a.vmem(f"buffer_store_dwordx4 {v4(AG)}, v{vGS}, {srd(SWS)}, s{sGB} offen sc1", "gst", certain=False)
    a("LA_ng:")
    WOF = 128
    for ts in range(2):
        for hd in range(2):
            r = WOF + (ts*2 + hd) * 4
            for hh in range(2):
                a.lds(f"ds_read_b64_tr_b16 {v2(r + 2*hh)}, v{vWo + 2*ts + hh} offset:{hd*3200 + (128 if ts else 0)}", "wof")
    run_ops(dma_c(4, sCW, 10240))
    skip_loads(160)
    k2_setup(160)
    a(f"""v_cmp_gt_u32 vcc, 200, v0
s_mov_b32 s{sSPIN}, 0
s_mov_b64 {sp(sT4)}, vcc
LA_gr:
s_mov_b32 s{sT0}, s{sGA}""")
    for n in range(16):
        a.vmem(f"buffer_load_dwordx4 {v4(32 + 4*n)}, v{vKP}, {srd(SWS)}, s{sT0} offen sc1", ("kp", n))
        if n < 15: a(f"s_add_u32 s{sT0}, s{sT0}, 6400")
    a(f"s_cmp_lg_u32 s{sSPIN}, 0\ns_cbranch_scc1 LA_g2")
    a.wait(vm=[("c", 4)], lg="all")
    run_ops(c_reads(3, vCR, 0))
    run_ops(c_reads(4, vCR, 10240))
    a.wait(lg="all")
    a("LA_g2:")
    a.wait(vm=[("kp", 0)])
    a(f"v_xor_b32 v32, v32, v{vTG}\nv_xor_b32 v34, v34, v{vTG}\nv_or_b32 v{T}, v32, v34")
    for n in range(1, 16):
        a.wait(vm=[("kp", n)])
        a(f"""v_xor_b32 v{32+4*n}, v{32+4*n}, v{vTG}
v_xor_b32 v{34+4*n}, v{34+4*n}, v{vTG}
v_pk_add_f32 v[32:33], v[32:33], {v2(32+4*n)}
v_or3_b32 v{T}, v{T}, v{32+4*n}, v{34+4*n}
v_pk_add_f32 v[34:35], v[34:35], {v2(34+4*n)}""")
    a(f"""v_and_b32 v{T}, 0xff, v{T}
v_cmp_ne_u32 vcc, 0, v{T}
s_add_u32 s{sSPIN}, s{sSPIN}, 1
s_and_b64 vcc, vcc, {sp(sT4)}
s_cmp_gt_u32 s{sSPIN}, 0x20000
s_cbranch_scc1 LA_gd
s_cbranch_vccnz LA_gr
LA_gd:
v_cvt_pk_bf16_f32 v36, v32, v33
v_cvt_pk_bf16_f32 v37, v34, v35
s_mov_b64 exec, {sp(sT4)}""")
    a.lds(f"ds_write_b64 v{vKB}, v[36:37]", "kvb")
    a("s_mov_b64 exec, -1")
    if E2("AC0", 1): run_ops(dma_c(0, sCW, 0))
    a.wait(lg="all")
    a("s_barrier")
    stamp(3)
    KF = 40
    a.lds(f"ds_read_b128 {v4(KF)}, v{vOa0}", "kf")
    a.lds(f"ds_read_b128 {v4(KF+8)}, v{vOb0} offset:256", "kf")
    a.lds(f"ds_read_b128 {v4(KF+16)}, v{vOc0}", "kf")
    a.lds(f"ds_read_b128 {v4(KF+4)}, v{vOa1}", "kf")
    a.lds(f"ds_read_b128 {v4(KF+12)}, v{vOb1} offset:256", "kf")
    a.lds(f"ds_read_b128 {v4(KF+20)}, v{vOc1}", "kf")
    a.wait(lg="all")
    MD = 64
    for hd in range(2):
        for ts in range(2):
            for tl in range(3):
                d = MD + (ts*3 + tl) * 4
                mfma(v4(d), v4(KF + tl*8 + hd*4), v4(WOF + (ts*2+hd)*4), "0" if hd == 0 else v4(d))
    for ts in range(2):
        d = MD + ts*12; o = 88 + ts*8
        for q in range(6):
            a(f"v_cvt_pk_bf16_f32 v{o+q}, v{d+2*q}, v{d+2*q+1}")
        a.vmem(f"buffer_store_dwordx4 {v4(o)}, v{vMS}, {srd(SWS)}, s{sMa if ts == 0 else sMc} offen sc1", "mst")
        a.vmem(f"buffer_store_dwordx2 {v2(o+4)}, v{vMR}, {srd(SWS)}, s{sMb if ts == 0 else sMd} offen offset:2048 sc1", "mst")
    a.wait(vm="all", lg="all")
    a("s_barrier")
    set_flag(FM, "LA_nf2", 240)
    stamp(4)
    if not E2("AC0", 1): run_ops(dma_c(0, sCW, 0))
    run_ops(dma_c(1, sCW, 10240))
    run_ops(dma_c(2, sXB, 0))
    a.wait(vm=[("c", 0)])
    run_ops(c_reads(0, vCR, 0))
    a.wait(vm=[("c", 1)], lg="all")
    run_ops(c_reads(1, vCR, 10240))
    a("s_branch LK2")

def type_B():
    a("LtypeB:")
    M0[0] = None
    a.vm = []; a.lg = []
    bg = BG()
    U = ACC; Q = ACC + 80
    RING = [152 + 4*i for i in range(6)]
    LAM = 176
    XR = 216
    COEF = 216
    L8, L128 = 250, 248
    T = 176
    sSa, sSb, sSc, sSd = 54, 55, 56, 57
    sSS, sXCn, sPEND, sC1, sC2 = 60, 61, 40, 41, 46
    SXR = 36
    sVAL = 34
    sTGN = [sKA + n for n in range(10)] + [sKQ + 5 + n for n in range(5)] + [47]
    a(f"""s_and_b32 s{sT2}, s{sWV}, 1
s_mul_i32 s{sT3}, s{sT2}, 40
s_mul_i32 s{sT4}, s{sJ}, 80
s_add_u32 s{sT3}, s{sT3}, s{sT4}
s_mul_i32 s{sT3}, s{sT3}, 1280
s_lshl_b32 s{sT4}, s{sT2}, 6
v_xor_b32 v64, s{sT4}, v45
v_xor_b32 v65, s{sT4}, v46
v_add_u32 v{vW}, s{sT3}, v64
v_add_u32 v65, s{sT3}, v65
v_add_u32 v{vW+1}, {10240-1024}, v65
v_add_u32 v{vW+2}, {2*(10240-1024)}, v{vW}
v_add_u32 v{vW+3}, {3*(10240-1024)}, v65
v_add_u32 v{vW+4}, {4*10240}, v{vW}
s_mul_i32 s{sT4}, s{sJ}, 160
v_min_u32 v66, 79, v0
v_lshl_add_u32 v66, v66, 1, s{sT4}
v_mov_b32 v{T}, 0
v_mov_b32 v{T+1}, 0
v_mov_b32 v{T+2}, 0
s_mul_i32 s{sKQ}, s{sKA}, 1920
s_mul_i32 s{sKQ+1}, s{sKA+1}, 1920
s_mul_i32 s{sT5}, s{sT2}, {32*3840}
s_add_u32 s{sT5}, s{sT5}, s{sT4}""")
    args_ready()
    a(f"""s_cmp_ge_u32 s{sWV}, 2
s_cselect_b32 s{SW}, s{pBIM}, s{pBRE}
s_cselect_b32 s{SW+1}, s{pBIM+1}, s{pBRE+1}
s_and_b32 s{SW+1}, s{SW+1}, 0xffff""")
    def stage_dma(s):
        if s < 10: return dma_x(s) + dma_w(s, vW, SW, sKA + s)
        if s < 15: return dma_w(s, vQ, SQ, sKQ + (s - 10))
        return None
    a.vmem(f"global_load_short_d16_hi v{T}, v66, {sp(pLRE)}", "par")
    a.vmem(f"global_load_short_d16_hi v{T+1}, v66, {sp(pLIM)}", "par")
    a.vmem(f"global_load_short_d16_hi v{T+2}, v66, {sp(pLDT)}", "par")
    run_ops(stage_dma(0))
    a(f"s_mov_b32 s{SQ}, s{pQKV}\ns_and_b32 s{SQ+1}, s{pQKV+1}, 0xffff")
    wq_pattern(vQ, sT5)
    late_setup()
    a(f"s_cmp_ge_u32 s{sWV}, 2")
    for q in range(5): a(f"s_cselect_b32 s{sKQ+q}, s{sKQ+2*q+1}, s{sKQ+2*q}")
    a(f"""v_add_u32 v{vWR}, {L_W}, v56
v_add_u32 v{vWR+1}, {L_W}, v57
v_add_u32 v{vWR+2}, {L_W+40960}, v56
v_add_u32 v{vWR+3}, {L_W+40960}, v57""")
    aTW, aTR0, aTR1, aST, aEA, aPT, aSA, aXA, aXW, aHR, aZR, aLT, aSX, aSD = range(240, 254)
    def params():
        a.wait(vm="par")
        stamp(34)
        bg.tick(2)
        P = T + 4
        t0, t1, t2, t3 = T+16, T+17, T+18, T+19
        C = P + 8
        a(f"""v_mul_f32 v{T+2}, {LOG2E}, v{T+2}
v_exp_f32 v{T+2}, v{T+2}
s_nop 0
v_cvt_pk_bf16_f32 v{T+2}, v{T+2}, v{T+2}
v_lshlrev_b32 v{T+2}, 16, v{T+2}
v_mul_f32 v{t0}, v{T+2}, v{T}
v_mul_f32 v{t1}, v{T+2}, v{T+1}
v_mul_f32 v{t0}, {LOG2E}, v{t0}
v_mul_f32 v{t1}, 0.15915494, v{t1}
v_exp_f32 v{t0}, v{t0}
v_fract_f32 v{t1}, v{t1}
v_cos_f32 v{t2}, v{t1}
v_sin_f32 v{t3}, v{t1}
s_nop 0
v_mul_f32 v{P}, v{t0}, v{t2}
v_mul_f32 v{t3}, v{t0}, v{t3}
v_sub_f32 v{P+1}, 0, v{t3}
v_add_f32 v{t0}, -1.0, v{P}
v_mul_f32 v{t1}, v{T}, v{T}
v_fma_f32 v{t1}, v{T+1}, v{T+1}, v{t1}
v_rcp_f32 v{t1}, v{t1}
v_mul_f32 v{C}, v{t0}, v{T}
v_fma_f32 v{C}, v{t3}, v{T+1}, v{C}
v_mul_f32 v{C+1}, v{t3}, v{T}
v_fma_f32 v{C+1}, -v{t0}, v{T+1}, v{C+1}
v_add_f32 v{t1}, v{t1}, v{t1}
v_mul_f32 v{C}, v{C}, v{t1}
v_mul_f32 v{C+1}, v{C+1}, v{t1}""")
        def cmul(d, l, p):
            a(f"""v_pk_mul_f32 {v2(d)}, {v2(p)}, {v2(l)} op_sel_hi:[1,0]
v_pk_fma_f32 {v2(d)}, {v2(p)}, {v2(l)}, {v2(d)} op_sel:[1,1,0] op_sel_hi:[0,1,1] neg_lo:[0,1,0]""")
        bg.tick(3)
        cmul(P+2, P, P); cmul(P+4, P+2, P); cmul(P+6, P+2, P+2); cmul(L8, P+6, P+6)
        bg.tick(2)
        a(f"""v_mul_u32_u24 v{t0}, 48, v0
v_add_u32 v{t0}, {L_PT}, v{t0}
v_lshlrev_b32 v{t1}, 3, v0
v_add_u32 v{t1}, {L_LT}, v{t1}
v_mov_b32 v{T+20}, 1.0
v_mov_b32 v{T+21}, 0
v_cmp_gt_u32 vcc, 80, v0
s_and_saveexec_b64 {sp(sT2)}, vcc
s_cbranch_execz LB_nopar""")
        for q in range(3): a.lds(f"ds_write_b128 v{t0}, {v4(P+4*q)} offset:{16*q}", "pt", certain=False)
        a.lds(f"ds_write_b64 v{t1}, {v2(T+20)}", "pt", certain=False)
        a.lds(f"ds_write_b64 v{t1}, {v2(L8)} offset:640", "pt", certain=False)
        prev = L8
        for s in range(2, 17):
            d = (T + 22 + 2*(s % 2)) if s < 16 else L128
            cmul(d, L8, prev)
            if s < 16: a.lds(f"ds_write_b64 v{t1}, {v2(d)} offset:{s*640}", "pt", certain=False)
            prev = d
        a(f"""LB_nopar:
s_mov_b64 exec, {sp(sT2)}""")
        a(f"""s_cmp_lt_u32 s{sWV}, 2
s_cbranch_scc1 LB_l128
v_mov_b32 v{L128}, 1.0
v_mov_b32 v{L128+1}, 0
LB_l128:""")
    def stash():
        t0, t1 = T+16, T+17
        a(f"""s_lshl_b32 s{sT2}, s{sJ}, 4
s_add_u32 s{sT3}, s{sT2}, 15
s_sub_u32 s{sT3}, s{sT3}, s{sR}
s_mul_i32 s{sSS}, s{sT3}, 640
s_add_u32 s{sSS}, s{sSS}, {WS_SP}
s_add_u32 s{sT3}, s{sSS}, 640
s_mul_i32 s{sT2}, s{sT2}, 640
s_add_u32 s{sT2}, s{sT2}, {WS_ZP}
s_cmp_eq_u32 s{sWV}, 2
s_cselect_b32 s{sT4}, 16, 0
s_cmp_ge_u32 s{sWV}, 2
s_cselect_b32 s{sT2}, s{sT2}, s{sT3}
s_cselect_b32 s{sXCn}, s{sT4}, s{sR}
s_add_u32 s{SXR}, s{pWS}, s{sT2}
s_addc_u32 s{SXR+1}, s{pWS+1}, 0
s_and_b32 s{SXR+1}, s{SXR+1}, 0xffff
s_mul_i32 s{SXR+2}, s{sXCn}, 640
s_mov_b32 s{SXR+3}, 0x20000
s_movk_i32 s{sC1}, 3840
s_movk_i32 s{sC2}, 7680
s_cmp_ge_u32 s{sWV}, 2
s_movk_i32 s{sT2}, 80
s_cmov_b32 s{sT2}, {128+40}
s_cselect_b32 s{sT3}, 128, 0
s_mov_b32 s{sT4}, {L_HB}
s_cmov_b32 s{sT4}, {L_ZB}
v_cmp_gt_u32 {sp(sVAL)}, s{sT2}, v0
v_subrev_u32 v{t0}, s{sT3}, v0
v_lshlrev_b32 v{t0}, 3, v{t0}
v_add_u32 v{t1}, s{sT4}, v{t0}
v_accvgpr_write_b32 a{aXW}, v{t1}
v_mov_b32 v{t1}, {OOB}
v_cndmask_b32 v{t0}, v{t1}, v{t0}, {sp(sVAL)}
v_accvgpr_write_b32 a{aXA}, v{t0}
v_min_u32 v{t0}, 79, v0
v_lshlrev_b32 v{t0}, 3, v{t0}
v_add_u32 v{t0}, {L_EB}, v{t0}
v_accvgpr_write_b32 a{aSA}, v{t0}""")
        c_, g_, u0, u1, u2, u3 = T+8, T+9, T+10, T+11, T+12, T+13
        a(f"""v_and_b32 v{c_}, 15, v{vLANE}
v_lshrrev_b32 v{g_}, 4, v{vLANE}
v_mul_u32_u24 v{u0}, 48, v{c_}
v_add_u32 v{u0}, {L_PT}, v{u0}
v_accvgpr_write_b32 a{aPT}, v{u0}
v_lshrrev_b32 v{u0}, 4, v0
v_mul_u32_u24 v{u0}, 640, v{u0}
v_lshl_add_u32 v{u0}, v{c_}, 3, v{u0}
v_add_u32 v{u0}, {L_LT}, v{u0}
v_accvgpr_write_b32 a{aLT}, v{u0}
v_mul_u32_u24 v{u0}, 640, v{g_}
v_lshl_add_u32 v{u0}, v{c_}, 3, v{u0}
v_add_u32 v{u0}, s{sXB}, v{u0}
v_accvgpr_write_b32 a{aEA}, v{u0}
v_lshlrev_b32 v{u0}, 3, v{c_}
v_add_u32 v{u0}, {L_HB}, v{u0}
v_accvgpr_write_b32 a{aHR}, v{u0}
v_mul_u32_u24 v{u0}, 80, v{g_}
v_add_u32 v{u0}, {L_ZB}, v{u0}
v_accvgpr_write_b32 a{aZR}, v{u0}
v_bfe_u32 v{u0}, v{c_}, 1, 2
v_xor_b32 v{u0}, v{u0}, v{g_}
v_lshlrev_b32 v{u0}, 4, v{u0}
v_lshl_add_u32 v{u0}, v{c_}, 6, v{u0}
s_add_u32 s{sT2}, s{sXB}, 10240
v_add_u32 v{u0}, s{sT2}, v{u0}
v_accvgpr_write_b32 a{aTW}, v{u0}
v_bfe_u32 v{u0}, v{vLANE}, 2, 2
v_lshrrev_b32 v{u1}, 1, v{g_}
v_lshl_add_u32 v{u2}, v{u1}, 3, v{u0}
v_lshlrev_b32 v{u2}, 6, v{u2}
v_and_b32 v{u3}, 1, v{g_}
v_lshl_add_u32 v{u2}, v{u3}, 3, v{u2}
v_add_u32 v{u2}, s{sT2}, v{u2}
v_lshrrev_b32 v{u0}, 1, v{u0}
v_and_b32 v{g_}, 3, v{vLANE}
v_xor_b32 v{u0}, v{u0}, v{g_}
v_lshl_add_u32 v{g_}, v{u0}, 4, v{u2}
v_accvgpr_write_b32 a{aTR0}, v{g_}
v_xor_b32 v{u0}, 2, v{u0}
v_lshl_add_u32 v{g_}, v{u0}, 4, v{u2}
v_add_u32 v{g_}, 256, v{g_}
v_accvgpr_write_b32 a{aTR1}, v{g_}
v_mul_u32_u24 v{u3}, {RT}, v{u3}
v_lshl_add_u32 v{u3}, v{u1}, 8, v{u3}
v_lshl_add_u32 v{u3}, v{c_}, 4, v{u3}
v_accvgpr_write_b32 a{aST}, v{u3}
s_lshl_b32 s{sT2}, s{sR}, 3
s_lshl_b32 s{sT3}, s{sWV}, 1
s_add_u32 s{sT2}, s{sT2}, s{sT3}
s_mul_i32 s{sT2}, s{sT2}, {RT}
s_mul_i32 s{sT3}, s{sJ}, 2560
s_add_u32 s{sSa}, s{sT2}, s{sT3}
s_add_u32 s{sSb}, s{sSa}, 20480
s_add_u32 s{sSc}, s{sSa}, 40960
s_add_u32 s{sSd}, s{sSc}, {RT}""")
    stash()
    tag_ready()
    bg.add(stage_dma(1))
    stamp(0)
    params()
    bg.flush()
    a.wait(lg="all")
    stamp(35)
    XA = lambda s, ks, m: s * 16 + ks * 8 + m * 4
    def x_reads(s):
        if s >= 10: return {}
        def mk(ks):
            return [(lambda m=m: a.lds(f"ds_read_b128 {a4(XA(s, ks, m))}, v{vXR+ks} offset:{(s%4)*4096 + m*2048}", ("x", s, ks))) for m in range(2)]
        return {0: mk(0), 10: mk(1)}
    def read_frag(s, i, reg):
        sl = s % 4
        if s < 10:
            ks, t = divmod(i, 10)
            c5, part = divmod(t, 2)
            return [lambda: a.lds(f"ds_read_b128 {v4(reg)}, v{vWR + (sl//2)*2 + ks} offset:{(sl%2)*20480 + part*10240 + c5*2048}", ("w", s, i))]
        else:
            k4, Tt = divmod(i, 5)
            return [(lambda hh=hh: a.lds(f"ds_read_b64_tr_b16 {v2(reg+2*hh)}, v{vT40 + (sl//2)*2 + hh} offset:{(sl%2)*20480 + k4*5120 + 8*Tt}", ("w", s, i))) for hh in range(2)]
    def mfmas(s, i, reg):
        out = []
        if s < 10:
            ks, t = divmod(i, 10)
            for m in range(2):
                d = U + t*8 + m*4
                c = "0" if (s == 0 and ks == 0) else v4(d)
                out.append(lambda d=d, m=m, c=c: mfma(v4(d), a4(XA(s, ks, m)), v4(reg), c))
        else:
            k4, Tt = divmod(i, 5)
            xs, ks = 2*(s-10) + k4//2, k4 % 2
            for m in range(2):
                d = Q + Tt*8 + m*4
                c = "0" if (s == 10 and k4 == 0) else v4(d)
                out.append(lambda d=d, m=m, c=c: mfma(v4(d), v4(reg), a4(XA(xs, ks, m)), c))
        return out
    def ur(c5, i): return U + (2*c5)*8 + 2*i
    def ui(c5, i): return U + (2*c5+1)*8 + 2*i
    LO = "op_sel_hi:[1,0,1]"
    HI = "op_sel:[0,1,0] op_sel_hi:[1,1,1]"
    NEG = "neg_lo:[0,1,0] neg_hi:[0,1,0]"
    vEA, vSA, vXA, vPT = vX, vX+1, vX+2, vX+3
    vTW, vTR0, vTR1, vST, vL16 = vW, vW+1, vW+2, vW+3, vW+4
    vXW, vHR, vZR, vLT = vWR, vWR+1, vWR+2, vWR+3
    def mk_ptread(c5):
        def f():
            if c5 == 0: a(f"v_accvgpr_read_b32 v{vPT}, a{aPT}")
            a.lds(f"ds_read_b128 {v4(LAM + c5*8)}, v{vPT} offset:{c5*768}", "ptr")
            a.lds(f"ds_read_b128 {v4(LAM + c5*8 + 4)}, v{vPT} offset:{c5*768 + 16}", "ptr")
            a.lds(f"ds_read_b64 {v2(COEF + c5*2)}, v{vPT} offset:{c5*768 + 32}", "ptr")
            if c5 == 4: a(f"v_accvgpr_read_b32 v{vEA}, a{aEA}\nv_accvgpr_read_b32 v{vSA}, a{aSA}\nv_accvgpr_read_b32 v{vXA}, a{aXA}")
        return f
    def scan1():
        stamp(1)
        tA, tB = 228, 230
        for c5 in range(5):
            c = COEF + c5*2
            for i in range(4):
                r_, i_ = ur(c5, i), ui(c5, i)
                a(f"""v_pk_mul_f32 {v2(tA)}, {v2(r_)}, {v2(c)} op_sel_hi:[1,0]
v_pk_mul_f32 {v2(tB)}, {v2(r_)}, {v2(c)} op_sel:[0,1] op_sel_hi:[1,1] neg_lo:[0,1] neg_hi:[0,1]
v_pk_fma_f32 {v2(r_)}, {v2(i_)}, {v2(c)}, {v2(tA)} {HI} {NEG}
v_pk_fma_f32 {v2(i_)}, {v2(i_)}, {v2(c)}, {v2(tB)} {LO} {NEG}""")
            l = LAM + c5*8
            for i in range(1, 4):
                a(f"""v_pk_fma_f32 {v2(ur(c5,i))}, {v2(ur(c5,i-1))}, {v2(l)}, {v2(ur(c5,i))} {LO}
v_pk_fma_f32 {v2(ui(c5,i))}, {v2(ui(c5,i-1))}, {v2(l)}, {v2(ui(c5,i))} {LO}
v_pk_fma_f32 {v2(ur(c5,i))}, {v2(ui(c5,i-1))}, {v2(l)}, {v2(ur(c5,i))} {HI} {NEG}
v_pk_fma_f32 {v2(ui(c5,i))}, {v2(ur(c5,i-1))}, {v2(l)}, {v2(ui(c5,i))} {HI}""")
            l4 = l + 6
            cmul_acc(c, c+1, l4, l4+1, ur(c5,3), ui(c5,3), ur(c5,3)+1, ui(c5,3)+1)
            a.lds(f"ds_write_b64 v{vEA}, {v2(c)} offset:{L_EB + c5*128}", "ew")
            bg.tick(2)
            if c5 == E2("WARMAT", 2): bg.flush(); warm_c(pCRE, vWR)()
        a.wait(lg="all")
        a("s_barrier")
        a(f"s_cmp_ge_u32 s{sWV}, 2\ns_cbranch_scc1 LB_nocarry1")
        E0 = XR
        tA, tB = 252, vPT
        for s in range(0, 16, 2):
            a(f"ds_read2_b64 {v4(E0 + 2*s)}, v{vSA} offset0:{(s%4)*80} offset1:{(s%4)*80+80}")
            if s % 4 == 2 and s < 14: a(f"v_add_u32 v{vSA}, 16384, v{vSA}")
        a(f"""v_mov_b32 v{tA}, 0
v_mov_b32 v{tA+1}, 0
v_mov_b32 v{tB}, s{sTAG}
s_movk_i32 s{sT3}, 0xff
v_subrev_u32 v{vSA}, {3*16384}, v{vSA}""")
        for s in range(1, 16):
            if s % 2 == 0 or s == 1: a(f"s_waitcnt lgkmcnt({7 - s//2})")
            pk_cmul_acc(E0+2*s, L8, E0+2*s-2, E0+2*s)
        a(f"""v_bfi_b32 v{E0+30}, s{sT3}, v{tB}, v{E0+30}
v_bfi_b32 v{E0+31}, s{sT3}, v{tB}, v{E0+31}""")
        a.vmem(f"buffer_store_dwordx2 {v2(E0+30)}, v{vXA}, {srd(SWS)}, s{sSS} offen sc1", "sst", certain=False)
        a(f"s_mov_b64 exec, {sp(sVAL)}\nds_write_b64 v{vSA}, {v2(tA)}")
        for s in range(15):
            a(f"ds_write_b64 v{vSA}, {v2(E0+2*s)} offset:{((s+1)//4)*16384 + ((s+1)%4)*640}")
        a("s_mov_b64 exec, -1\nLB_nocarry1:")
        stamp(2)
    def x_loads(tracked):
        ops = []
        for n in range(16):
            def f(n=n):
                so = ["0", f"s{sC1}", f"s{sC2}"][n // 6]
                t = f"buffer_load_dwordx2 {v2(XR + 2*n)}, v{vXA}, {srd(SXR)}, {so} offen offset:{(n % 6)*640} sc1"
                if tracked: a.vmem(t, "xl")
                else: a(t)
            ops.append(("d", f))
        return ops
    def x_tags():
        ops = [("d", lambda: a(f"s_and_b32 s{sT2}, s{sTAG}, 0xff"))]
        for n in range(16):
            ops.append(("d", lambda n=n: a(f"s_cmp_gt_u32 s{sXCn}, {n}\ns_cselect_b32 s{sTGN[n]}, s{sT2}, 0")))
        return ops
    def x_check(sfx, defer):
        a(f"s_mov_b32 s{sSPIN}, 0\nLB_xt{sfx}:")
        for n in range(15, -1, -1):
            r = XR + 2*n
            a(f"v_xor_b32 v{r}, s{sTGN[n]}, v{r}\nv_xor_b32 v{r+1}, s{sTGN[n]}, v{r+1}")
            if n == 15: a(f"v_or_b32 v250, v{r}, v{r+1}")
            else:
                a(f"v_or3_b32 v250, v250, v{r}, v{r+1}")
                pk_cmul_acc(r, L128, r+2, r)
        a(f"""v_and_b32 v250, 0xff, v250
v_cmp_ne_u32 vcc, 0, v250
s_add_u32 s{sSPIN}, s{sSPIN}, 1
s_and_b64 vcc, vcc, {sp(sVAL)}
s_cmp_gt_u32 s{sSPIN}, 0x20000
s_cbranch_scc1 LB_xok{sfx}
s_cbranch_vccz LB_xok{sfx}""")
        run_ops(x_loads(False))
        if defer:
            a(f"s_mov_b32 s{sPEND}, 1\ns_cmp_eq_u32 s{sWV}, 2\ns_cbranch_scc1 LB_xe{sfx}")
        a(f"""s_waitcnt vmcnt(0)
s_branch LB_xt{sfx}
LB_xok{sfx}:
s_mov_b32 s{sPEND}, 0
s_cmp_lg_u32 s{sWV}, 2
s_cbranch_scc1 LB_xw{sfx}
v_cvt_pk_bf16_f32 v250, v{XR}, v{XR+1}
v_lshlrev_b32 v{XR}, 16, v250
v_and_b32 v{XR+1}, 0xffff0000, v250
LB_xw{sfx}:
s_mov_b64 exec, {sp(sVAL)}
ds_write_b64 v{vXW}, {v2(XR)}
s_mov_b64 exec, -1
LB_xe{sfx}:""")
    def start_x():
        bg.add(x_loads(True)); bg.fast = True
    def c_start(slot):
        def f():
            a.wait(lg=[("cr", 0)])
            bg.add(dma_c(slot, sXB, 0)); bg.fast = True
        return f
    def c_read(slot):
        def f():
            bg.flush()
            a.wait(vm=[("c", slot)])
            bg.add(c_reads(slot, vXR, 0)); bg.fast = True
        return f
    hooks = {(10, 0): scan1, (12, E2('C0S', 14)): c_start(0), (13, 12): c_read(0), (14, 2): start_x}
    for c5 in range(5): hooks[(9, 2*c5 + 1)] = mk_ptread(c5)
    for n, (_, f) in enumerate(x_tags()): hooks[(10 + (2*n+1)//20, (2*n+1) % 20)] = f
    gemm_loop(15, 20, read_frag, mfmas, x_reads, stage_dma, bg, RING, 6, hooks)
    bg.flush()
    stamp(3)
    if E("NOXL"): run_ops(x_loads(True))
    a("s_barrier")
    bg.add(dma_c(1, sXB, 0)); bg.add(dma_c(3, sCW, 0)); bg.add(dma_c(4, sCW, 10240))
    bg.tick(E2("PT0", 3))
    for vr, ar in ((vTW, aTW), (vTR0, aTR0), (vTR1, aTR1), (vST, aST), (vXW, aXW), (vHR, aHR), (vZR, aZR), (vLT, aLT)):
        a(f"v_accvgpr_read_b32 v{vr}, a{ar}")
    a(f"v_lshlrev_b32 v{vL16}, 4, v{vLANE}")
    H = 152
    for c5 in range(5):
        a.lds(f"ds_read_b64 {v2(H+4*c5)}, v{vEA} offset:{L_EB + c5*128}", "pl")
        a.lds(f"ds_read_b64 {v2(H+4*c5+2)}, v{vLT} offset:{c5*128}", "pl")
    a(f"s_mov_b32 s{sT4}, {LOG2E}")
    for n in range(10):
        phi([Q + 4*n, Q + 4*n + 2], sT4, 172, NT=2)
        bg.tick(1)
    bg.tick(E2("PT1", 7))
    a.wait(vm="xl")
    x_check("1", True)
    a.vm.append(("xr", False))
    a.wait(lg="all")
    a("s_barrier")
    stamp(4)
    HR = vQ + 1
    HRS = [12, 14, 22, 24, 172]
    for c5 in range(5):
        a.lds(f"ds_read_b64 {v2(HRS[c5])}, v{vHR} offset:{c5*128}", ("hin", c5))
    def trd(c5, part):
        for hh in range(2):
            a.lds(f"ds_read_b64_tr_b16 {v2(U + (2*c5+part)*8 + 4 + 2*hh)}, v{vTR0+hh} offset:{((c5%3)*2+part)*1024}", ("tr", c5, part))
    def tst(c5, part):
        a.wait(lg=[("tr", c5, part)])
        a.vmem(f"buffer_store_dwordx4 {v4(U + (2*c5+part)*8 + 4)}, v{vST}, {srd(SWS)}, s{sSa if part == 0 else sSb} offen offset:{c5*512} sc1", "ast")
    for c5 in range(5):
        h = H + 4*c5; lam = LAM + c5*8
        a.wait(lg=[("hin", c5)])
        pk_cmul_acc(h, h+2, HRS[c5], h)
        a(f"v_mov_b32 v{h+2}, v{h+1}")
        cmul_acc(h+1, h+3, lam+6, lam+7, h, h+2, ur(c5,3), ui(c5,3))
        for part in range(2):
            for i in range(4):
                l = lam + 2*i
                if part == 0: a(f"v_pk_fma_f32 {v2(ur(c5,i))}, {v2(h)}, {v2(l)}, {v2(ur(c5,i))} {LO}")
                else: a(f"v_pk_fma_f32 {v2(ui(c5,i))}, {v2(h+2)}, {v2(l)}, {v2(ui(c5,i))} {LO}")
            k = 2*c5 + part
            if k >= 1: trd((k-1)//2, (k-1) % 2)
            for i in range(4):
                l = lam + 2*i
                if part == 0: a(f"v_pk_fma_f32 {v2(ur(c5,i))}, {v2(h+2)}, {v2(l)}, {v2(ur(c5,i))} {HI} {NEG}")
                else: a(f"v_pk_fma_f32 {v2(ui(c5,i))}, {v2(h)}, {v2(l)}, {v2(ui(c5,i))} {HI}")
            if k >= 2: tst((k-2)//2, (k-2) % 2)
            src = U + k*8
            for q in range(4): a(f"v_cvt_pk_bf16_f32 v{src+q}, v{src+2*q}, v{src+2*q+1}")
            a.lds(f"ds_write_b128 v{vTW}, {v4(src)} offset:{((c5%3)*2+part)*1024}", ("tw", c5))
    trd(4, 1)
    tst(4, 0)
    tst(4, 1)
    stamp(32)
    a(f"s_cmp_eq_u32 s{sPEND}, 0\ns_cbranch_scc1 LB_xe2\ns_waitcnt vmcnt({a._cnt(a.vm, 'xr')[0]})")
    x_check("2", False)
    a.wait(lg="all")
    a("s_barrier")
    stamp(33)
    Z = 176
    for q in range(5): a.lds(f"ds_read_b128 {v4(Z+4*q)}, v{vZR} offset:{16*q}", ("zr", q))
    DN = 196
    for Tt in range(5):
        a.wait(lg=[("zr", Tt)])
        for q in range(2):
            for m in range(2):
                d = DN + 2*m
                r = Q + Tt*8 + m*4 + 2*q; z = Z + Tt*4 + 2*q
                if Tt == 0 and q == 0: a(f"v_pk_mul_f32 {v2(d)}, {v2(r)}, {v2(z)}")
                else: a(f"v_pk_fma_f32 {v2(d)}, {v2(r)}, {v2(z)}, {v2(d)}")
    a(f"""v_add_f32 v{DN}, v{DN}, v{DN+1}
v_add_f32 v{DN+2}, v{DN+2}, v{DN+3}
v_add_f32 v{DN}, 0x358637bd, v{DN}
v_add_f32 v{DN+2}, 0x358637bd, v{DN+2}
v_rcp_f32 v{DN}, v{DN}
v_rcp_f32 v{DN+2}, v{DN+2}""")
    WP = 200
    for m in range(2):
        d = DN + 2*m
        for hf in range(3):
            for Tt in ((0, 1), (2, 3), (4,))[hf]:
                for q in range(2):
                    r = Q + Tt*8 + m*4 + 2*q
                    a(f"v_pk_mul_f32 {v2(r)}, {v2(r)}, {v2(d)} op_sel_hi:[1,0]")
            for Tt in ((0, 1), (2, 3), (4,))[hf]:
                for q in range(2):
                    r = Q + Tt*8 + m*4 + 2*q
                    dst = (WP + m*8 + Tt*2 + q) if Tt < 4 else (216 + m*2 + q)
                    a(f"v_cvt_pk_bf16_f32 v{dst}, v{r}, v{r+1}")
            if hf < 2:
                a.vmem(f"buffer_store_dwordx4 {v4(WP + m*8 + hf*4)}, v{vL16}, {srd(SWS)}, s{sSc if m == 0 else sSd} offen offset:{hf*1024} sc1", "ast")
    a("v_permlane16_swap_b32 v216, v218\nv_permlane16_swap_b32 v217, v219")
    a.vmem(f"buffer_store_dwordx4 v[216:219], v{vST}, {srd(SWS)}, s{sSc} offen offset:2048 sc1", "ast")
    stamp(5)
    left = [k for k, _ in bg.q if k != "s"]
    assert len(left) == 10
    a.wait(vm=[("c", 1), ("c", 3)])
    run_ops(c_reads(1, vXR, 0))
    k2_setup(160)
    a.wait(lg="all")
    run_ops(c_reads(3, vCR, 0))
    a.wait(vm="all")
    a("s_barrier")
    set_flag(FB, "LB_nf", 240)
    stamp(6)
    skip_loads(160)
    bg.flush()
    run_ops(dma_c(2, sXB, 0))
    a.wait(vm=[("c", 4)], lg="all")
    run_ops(c_reads(4, vCR, 10240))

def k2():
    a("LK2:")
    a.vm = [(("c", 2), True)]*10; a.lg = []; M0[0] = None
    AH, AB = K_AH, K_AB
    NS = 12
    STG = [196 + 4*i for i in range(NS)]
    vA, vM, vFB, vFM, vGA, vRW, vTmp, vG, sMT = K_vA, K_vM, K_vFB, K_vFM, K_vGA, K_vRW, K_vTmp, K_vG, K_sMT
    MH = [f"a[{120+4*n}:{123+4*n}]" for n in range(10)] + [f"a[{240+4*n}:{243+4*n}]" for n in range(4)] + [v4(152+4*n) for n in range(11)]
    stamp(7)
    poll_issue(vFB, vTmp, "0xff", "p2")
    a.wait(lg="all")
    skip_math(196)
    a.wait(vm=[("c", 2)])
    run_ops(c_reads(2, vXR, 0))
    a.wait(lg="all")
    stamp(13)
    poll_finish(vFB, vTmp, "0xff", "p2")
    stamp(8)
    extra = []
    def g_load(i):
        a(f"""s_lshl_b32 s{sT2}, s{sRB}, 2
s_add_u32 s{sT2}, s{sT2}, s{sMT+i}
s_lshl_b32 s{sT2}, s{sT2}, 6
s_add_u32 s{sT2}, s{sT2}, {WS_G}""")
        a.vmem(f"buffer_load_dword v{vG+2*i}, v{vGA}, {srd(SWS)}, s{sT2} offen sc1", "g")
    for i in range(5):
        for nt in range(5):
            extra.append(lambda i=i, nt=nt: a.vmem(f"buffer_load_dwordx4 {MH[i*5+nt]}, v{vM+nt}, {srd(SWS)}, s{sKQ+i} offen sc1", "M"))
    for i in range(4): extra.append(lambda i=i: g_load(i))
    def fm_issue():
        a("s_mov_b64 exec, 0xfffff")
        a.vmem(f"buffer_load_dword v{vTmp}, v{vFM}, {srd(SWS)}, 0 offen sc1", "pfm")
        a("s_mov_b64 exec, -1")
    def fm_check():
        a.wait(vm="pfm")
        a(f"""s_mov_b64 exec, 0xfffff
s_mov_b32 s{sSPIN}, 0
s_branch LK_fc
LK_fl:
buffer_load_dword v{vTmp}, v{vFM}, {srd(SWS)}, 0 offen sc1
s_add_u32 s{sSPIN}, s{sSPIN}, 1
s_waitcnt vmcnt(0)
LK_fc:
v_cmp_ne_u32 vcc, s{sTAG}, v{vTmp}
s_cmp_gt_u32 s{sSPIN}, 0x20000
s_cbranch_scc1 LK_fe
s_cbranch_vccnz LK_fl
LK_fe:
s_mov_b64 exec, -1""")
    frags = [("h", i, ks, mt) for i in range(5) for ks in range(2) for mt in range(4)] + [("w", i, 0, mt) for mt in range(4) for i in range(5)]
    def issueA(n):
        kind, i, ks, mt = frags[n]
        r = STG[n % NS]
        if kind == "h": a.vmem(f"buffer_load_dwordx4 {v4(r)}, v{vA+mt}, {srd(SWS)}, s{sKA+i} offen offset:{ks*1024} sc1", ("A", n))
        else: a.vmem(f"buffer_load_dwordx4 {v4(r)}, v{vA+mt}, {srd(SWS)}, s{sKA+5+i} offen sc1", ("A", n))
    fm_issue()
    for n in range(NS): issueA(n)
    fm_check()
    def g_prep():
        a.wait(vm="g")
        for i in range(4):
            g = vG + 2*i
            a(f"""v_sub_f32 v{g+1}, 1.0, v{g}
v_cvt_pk_bf16_f32 v{g+1}, v{g+1}, v{g+1}
v_lshlrev_b32 v{g+1}, 16, v{g+1}
s_mul_i32 s{sMT+i}, s{sMT+i}, {16*320}""")
    def scale_ops(mt, nt):
        g = vG + 2*mt; h = AH + (mt*5+nt)*4
        return [(lambda q=q: a(f"v_mul_f32 v{h+q}, v{g}, v{h+q}\nv_mul_f32 v{h+q+1}, v{g}, v{h+q+1}")) for q in (0, 2)]
    def fin_ops(mt, nt, pk=False):
        g = vG + 2*mt; h = AH + (mt*5+nt)*4; b = AB[mt % 2] + nt*4
        if pk: ops = [(lambda q=q: a(f"v_pk_fma_f32 {v2(h+q)}, {v2(b+q)}, {v2(g)}, {v2(h+q)} op_sel:[0,1,0] op_sel_hi:[1,1,1]")) for q in (0, 2)]
        else: ops = [(lambda q=q: a(f"v_fmac_f32 v{h+q}, v{g+1}, v{b+q}\nv_fmac_f32 v{h+q+1}, v{g+1}, v{b+q+1}")) for q in (0, 2)]
        def w():
            if nt == 0: a(f"v_add_u32 v{vTmp}, s{sMT+mt}, v{vRW}")
            a.lds(f"ds_write_b128 v{vTmp}, {v4(h)} offset:{nt*64}", "red")
        return ops + [w]
    for n in range(60):
        kind, i, ks, mt = frags[n]
        a.wait(vm=[("A", n)])
        if n == 0: stamp(14)
        if n == 40:
            stamp(15)
            assert not extra
            g_prep()
        fill = []
        if kind == "h" and extra and n >= E2("MS", 0):
            fill = [lambda: None, extra.pop(0)]
            if n < E2("MS", 0) + E2("M2", 5): fill += [lambda: None, extra.pop(0)]
        if kind == "w":
            fill = scale_ops(mt, i) + (fin_ops(mt-1, i) if mt > 0 else [])
        for nt in range(5):
            if kind == "h":
                d = AH + (mt*5 + nt)*4
                first = (i == 0 and ks == 0 and mt != 0)
                fa = a4(CHOME[i] + (ks*5+nt)*4)
            else:
                d = AB[mt % 2] + nt*4
                first = (i == 0)
                fa = MH[i*5 + nt]
            mfma(v4(d), fa, v4(STG[n % NS]), "0" if first else v4(d))
            if fill: fill.pop(0)()
        if n + NS < 60: issueA(n + NS)
    stamp(9)
    for nt in range(5):
        for f in fin_ops(3, nt, True): f()
    a(f"""s_cmp_lg_u32 s2, 255
s_cbranch_scc1 LK_ne
s_cmp_lg_u32 s{sWV}, 0
s_cbranch_scc1 LK_ne
v_mov_b32 v196, {WS_EPOCH}
v_mov_b32 v197, s{sTAG}
s_mov_b64 exec, 1
buffer_store_dword v197, v196, {srd(SWS)}, 0 offen sc1
s_mov_b64 exec, -1
LK_ne:""")
    a.wait(lg="all")
    a("s_barrier")
    R = 32
    for n in range(5):
        for w in range(4):
            a.lds(f"ds_read_b128 {v4(R + (n*4+w)*4)}, v{K_FL} offset:{w*64*320 + n*64}", ("rr", n))
    for n in range(5):
        a.wait(lg=[("rr", n)])
        r = R + n*16
        a(f"""v_pk_add_f32 {v2(r)}, {v2(r)}, {v2(r+4)}
v_pk_add_f32 {v2(r+2)}, {v2(r+2)}, {v2(r+6)}
v_pk_add_f32 {v2(r+8)}, {v2(r+8)}, {v2(r+12)}
v_pk_add_f32 {v2(r+10)}, {v2(r+10)}, {v2(r+14)}
v_pk_add_f32 {v2(r)}, {v2(r)}, {v2(r+8)}
v_pk_add_f32 {v2(r+2)}, {v2(r+2)}, {v2(r+10)}""")
        a.vmem(f"buffer_store_dwordx4 {v4(r)}, v{K_FO}, {srd(SOUT)}, 0 offen offset:{n*64} {os.environ.get('OST', '').replace('_', ' ')}", "ost")
    stamp(10)
    stamp_flush()
    a("Lend:\ns_endpgm\nLcode_end:\n.fill 320, 4, 0xbf800000")

prologue()
type_A()
type_B()
k2()
body = a.text()
hdr = open("gated_mix__ssm_conv_s5__linear_attn_block__prompt.s.ref").read().split("; Override launch")[0]
src = hdr + f"; @launch grid=(256,1,1) block=(256,1,1) lds={LDS_BYTES}\n" + HEADER + kernel_begin(NAME) + body + kernel_desc(NAME, 512, 102, 256)
out = sys.argv[1] if len(sys.argv) > 1 else "k.s"
open(out, "w").write(src)
print("written", out, "nops inserted:", a.nnop, "lines", src.count("\n"))
```

```python
import sys, os
sys.path.insert(0, "work")
from asmlib import *

STAMPS = int(os.environ.get("STAMPS", "0"))
E = lambda k: int(os.environ.get(k, "0"))
E2 = lambda k, d: int(os.environ.get(k, str(d)))
STGST = int(os.environ.get("STGST", "0"))
NODMA = int(os.environ.get("NODMA", "0"))
NOMFMA = int(os.environ.get("NOMFMA", "0"))
NOREAD = int(os.environ.get("NOREAD", "0"))
LOOKA = int(os.environ.get("LOOK", "5"))

WS_A = 0
WS_M = 0x800000
WS_KVP = 0x900000
WS_ZP = 0xA00000
WS_SP = 0xA40000
WS_G = 0xA80000
WS_FL = 0xA90000
FW, FM, FB = WS_FL, WS_FL + 0x4000, WS_FL + 0x8000
WS_EPOCH = 0xAC0000
WS_SIZE = 0xAD0000
WS_STAMP = 0xC000000
OOB = 0x40000000
RT = 61440
L_W = 65536
L_SCR = 147456
L_PT = L_SCR
L_LT = L_SCR + 3840
L_ZB = L_LT + 10240
L_HB = L_ZB + 320
L_EB = 10240
L_GW = L_SCR
L_WO = L_SCR + 2048
L_KVB = L_WO + 7168
LDS_BYTES = 163840
sWV, sR, sJ, sTAG, sT0 = 3, 4, 5, 6, 7
SX, SW, SQ, SWS, SOUT = 8, 12, 16, 20, 24
sRB, sCT, sOFF, sT1 = 28, 29, 30, 31
pX, pLRE, pLIM, pBRE, pBIM, pCRE, pCIM, pLDT, pDSK, pBX, pQKV, pWO, pGW, pOUT, pDBG, pWS = range(32, 64, 2)
sKA = 64
sKQ = 74
sLC = 84
sXB, sWB, sCW = 89, 90, 91
sT2, sT3, sT4, sT5 = 92, 93, 94, 95
sSPIN = 96
sJL = 101
sST = 98
sM0, sM1 = 50, 51
vTID, vLANE = 0, 1
vX = 2
vW = 6
vQ = 11
vXR = 16
vWR = 18
vT40 = 22
vC = 26
vCR = 30
ACC = 32

def srd(n): return f"s[{n}:{n+3}]"
def sp(n): return f"s[{n}:{n+1}]"
def v4(n): return f"v[{n}:{n+3}]"
def v2(n): return f"v[{n}:{n+1}]"
def a4(n): return f"a[{n}:{n+3}]"

a = Asm()
nstamp = [0]
def stamp(idx, existing=False):
    if not STAMPS: return
    if not existing: a(f"s_memrealtime {sp(sST)}\ns_memtime s[96:97]")
    a(f"""s_waitcnt lgkmcnt(0)
v_writelane_b32 v254, s{sST}, {idx}
v_writelane_b32 v255, s96, {idx}""")
    a.lg = []

def stamp_flush():
    if not STAMPS: return
    a(f"""s_lshl_b32 s100, s2, 2
s_add_u32 s100, s100, s{sWV}
s_lshl_b32 s100, s100, 9
v_lshl_add_u32 v253, v{vLANE}, 3, s100
s_add_u32 s{sST}, s{pWS}, {WS_STAMP}
s_addc_u32 s{sST+1}, s{pWS+1}, 0
global_store_dwordx2 v253, v[254:255], {sp(sST)}""")

def mfma(d, A, B, C):
    a(f"v_mfma_f32_16x16x32_bf16 {d}, {A}, {B}, {C}")

def mk_srd(n, ptr, size):
    a(f"s_mov_b32 s{n}, s{ptr}\ns_and_b32 s{n+1}, s{ptr+1}, 0xffff\ns_mov_b32 s{n+2}, {size}\ns_mov_b32 s{n+3}, 0x20000")

def poll_issue(vaddr, vtmp, execmask, tag):
    L = a.label("Lpi")
    a(f"s_cmp_lg_u32 s{sWV}, 0\ns_cbranch_scc1 {L}\ns_mov_b64 exec, {execmask}\nv_mov_b32 v{vtmp}, 0")
    a.vmem(f"buffer_atomic_add v{vtmp}, v{vaddr}, {srd(SWS)}, 0 offen sc0 sc1", tag, certain=False)
    a(f"s_mov_b64 exec, -1\n{L}:")
def poll_finish(vaddr, vtmp, execmask, tag):
    L = a.label("Lpoll"); E_ = a.label("Lpolle"); C = a.label("Lpollc"); S = a.label("Lpolls")
    n = a._cnt(a.vm, tag)[0]
    a(f"""s_cmp_lg_u32 s{sWV}, 0
s_cbranch_scc1 {S}
s_mov_b64 exec, {execmask}
s_mov_b32 s{sSPIN}, 0
s_waitcnt vmcnt({min(n, 63)})
s_branch {C}
{L}:
v_mov_b32 v{vtmp}, 0
buffer_atomic_add v{vtmp}, v{vaddr}, {srd(SWS)}, 0 offen sc0 sc1
s_add_u32 s{sSPIN}, s{sSPIN}, 1
s_waitcnt vmcnt(0)
{C}:
v_cmp_ne_u32 vcc, s{sTAG}, v{vtmp}
s_cmp_gt_u32 s{sSPIN}, 0x20000
s_cbranch_scc1 {E_}
s_cbranch_vccnz {L}
{E_}:
s_mov_b64 exec, -1
{S}:
s_barrier""")

def wq_pattern(dst, sadd):
    for i in range(5):
        a(f"""v_add_u32 v52, {64*i}, v{vLANE}
v_mul_u32_u24 v53, 6554, v52
v_lshrrev_b32 v53, 16, v53
v_mul_u32_u24 v54, 10, v53
v_sub_u32 v54, v52, v54
v_lshrrev_b32 v55, 1, v53
v_and_b32 v55, 4, v55
v_xor_b32 v53, v53, v55
v_mul_u32_u24 v53, 3840, v53
v_lshl_add_u32 v54, v54, 4, s{sadd}""")
        if i & 3: a(f"v_subrev_u32 v53, {(i&3)*1024}, v53")
        a(f"v_add_u32 v{dst+i}, v53, v54")

def prologue():
    if E("PADUS"): a(f"s_memrealtime {sp(sST)}")
    if STAMPS: a(f"s_memrealtime {sp(sST)}\ns_memtime s[96:97]")
    a(f"""s_cmp_ge_u32 s2, 256
s_cbranch_scc1 Lend
s_load_dwordx16 s[32:47], s[0:1], 0
s_load_dwordx16 s[48:63], s[0:1], 64
v_and_b32 v{vLANE}, 63, v0
v_lshrrev_b32 v32, 6, v0
s_and_b32 s{sT0}, s2, 7
s_lshr_b32 s{sT1}, s2, 3
v_readfirstlane_b32 s{sWV}, v32""")
    a(f"""s_getpc_b64 s[92:93]
Lpc:
s_lshl_b32 s{sT4}, s{sWV}, 5
s_add_u32 s{sT4}, s{sT4}, s{sT1}
s_lshl_b32 s{sT4}, s{sT4}, 10
s_cmp_ge_u32 s{sT4}, Lcode_end-Lpc
s_cbranch_scc1 Lnopf
v_lshl_add_u32 v33, v{vLANE}, 4, s{sT4}""")
    a.vmem(f"global_load_dwordx4 v[36:39], v33, s[92:93]", "pf", certain=False)
    a("Lnopf:")
    a(f"""s_lshr_b32 s{sR}, s{sT0}, 2
s_lshl_b32 s{sR}, s{sR}, 3
s_and_b32 s{sCT}, s{sT1}, 7
s_add_u32 s{sR}, s{sR}, s{sCT}
s_lshr_b32 s{sJL}, s{sT1}, 3
s_and_b32 s{sJ}, s{sT0}, 3
s_lshl_b32 s{sJ}, s{sJ}, 1
s_and_b32 s{sT3}, s{sJL}, 1
s_add_u32 s{sJ}, s{sJ}, s{sT3}
s_lshl_b32 s{sRB}, s{sT0}, 2
s_and_b32 s{sT3}, s{sCT}, 1
s_lshl_b32 s{sT3}, s{sT3}, 1
s_xor_b32 s{sT3}, s{sT3}, s{sJL}
s_add_u32 s{sRB}, s{sRB}, s{sT3}
s_lshr_b32 s{sT2}, s{sCT}, 2
s_add_u32 s{sT2}, s{sT2}, s{sCT}
s_mul_i32 s{sT3}, s{sJL}, 5
s_add_u32 s{sT3}, s{sT3}, 1
s_lshr_b32 s{sT3}, s{sT3}, 1
s_add_u32 s{sT2}, s{sT2}, s{sT3}
s_sub_u32 s{sT3}, s{sT2}, 10
s_cmp_ge_u32 s{sT2}, 10
s_cselect_b32 s{sT2}, s{sT3}, s{sT2}
s_lshl_b32 s{sKA}, s{sT2}, 7
s_add_u32 s{sKA+1}, s{sKA}, 128
s_cmp_eq_u32 s{sKA+1}, 1280
s_cselect_b32 s{sKA+1}, 0, s{sKA+1}
s_lshl_b32 s{sXB}, s{sWV}, 14
s_mul_i32 s{sWB}, s{sWV}, 5120
s_add_u32 s{sWB}, s{sWB}, {L_W}""")
    a(f"""v_lshrrev_b32 v40, 3, v{vLANE}
v_and_b32 v41, 7, v{vLANE}
v_lshrrev_b32 v43, 1, v40
v_xor_b32 v41, v41, v43
v_lshlrev_b32 v41, 4, v41
v_lshrrev_b32 v42, 2, v40
v_lshlrev_b32 v42, 3, v42
v_and_b32 v43, 1, v43
v_add_u32 v42, v42, v43
v_and_b32 v43, 1, v40
v_lshl_add_u32 v42, v43, 2, v42
s_lshl_b32 s{sT2}, s{sR}, 7
s_lshl_b32 s{sT3}, s{sWV}, 5
s_add_u32 s{sT2}, s{sT2}, s{sT3}
v_add_u32 v42, s{sT2}, v42
v_mul_u32_u24 v42, 1280, v42
v_add_u32 v{vX}, v42, v41
v_xor_b32 v44, 64, v41
v_add_u32 v{vX+1}, v42, v44
v_add_u32 v{vX+1}, {16*1280-1024}, v{vX+1}
v_add_u32 v{vX+2}, 512, v{vX}
v_add_u32 v{vX+3}, 512, v{vX+1}
v_mul_u32_u24 v43, 1280, v40
v_add_u32 v45, v43, v41
v_add_u32 v46, v43, v44
s_mov_b32 s{SX+2}, {2048*1280}
s_mov_b32 s{SX+3}, 0x20000
s_mov_b32 s{SW+2}, {640*1280}
s_mov_b32 s{SW+3}, 0x20000
s_mov_b32 s{SQ+2}, {640*3840}
s_mov_b32 s{SQ+3}, 0x20000
s_cmp_lt_u32 s{sJL}, 2
s_cbranch_scc1 LtypeB""")

def args_ready():
    a("s_waitcnt lgkmcnt(0)")
    stamp(11, True)
    stamp(12)
    a(f"s_mov_b32 s{SX}, s{pX}\ns_and_b32 s{SX+1}, s{pX+1}, 0xffff")

def late_setup():
    if E("WSOFF"): a(f"s_add_u32 s{pWS}, s{pWS}, {E('WSOFF') << 20}\ns_addc_u32 s{pWS+1}, s{pWS+1}, 0")
    mk_srd(SWS, pWS, WS_SIZE)
    a(f"""s_add_u32 s{sT2}, s{pWS}, {WS_EPOCH}
s_addc_u32 s{sT3}, s{pWS+1}, 0
s_load_dword s{sTAG}, s[{sT2}:{sT3}], 0""")
    if E("TOUCH"):
        sh = E("TOUCH")
        L = a.label("Ltouch")
        mk_srd(SOUT, pOUT, 2048*2560)
        a(f"""s_cmp_lg_u32 s{sWV}, 3
s_cbranch_scc1 {L}
v_lshlrev_b32 v34, {sh}, v{vLANE}
v_mov_b32 v35, 0""")
        a.vmem(f"buffer_load_dword v36, v34, {srd(SWS)}, 0 offen", "touch", certain=False)
        a.vmem(f"buffer_load_dword v36, v34, {srd(SOUT)}, 0 offen", "touch", certain=False)
        a("s_mov_b64 exec, 1")
        for p in (pCRE, pCIM, pWO, pDSK, pQKV):
            a.vmem(f"global_load_dword v36, v35, {sp(p)}", "touch", certain=False)
        a(f"s_mov_b64 exec, -1\n{L}:")
    for s in range(2, 10):
        a(f"s_add_u32 s{sKA+s}, s{sKA+s-1}, 128\ns_cmp_eq_u32 s{sKA+s}, 1280\ns_cselect_b32 s{sKA+s}, 0, s{sKA+s}")
    for s in range(2, 10):
        a(f"s_mul_i32 s{sKQ+s}, s{sKA+s}, 1920")
    a(f"""s_lshl_b32 s{sOFF}, s{sJL}, 1
s_add_u32 s{sOFF}, s{sOFF}, s{sCT}
s_sub_u32 s{sT3}, s{sOFF}, 10
s_cmp_ge_u32 s{sOFF}, 10
s_cselect_b32 s{sOFF}, s{sT3}, s{sOFF}
s_sub_u32 s{sT3}, s{sOFF}, 5
s_cmp_ge_u32 s{sOFF}, 5
s_cselect_b32 s{sOFF}, s{sT3}, s{sOFF}
s_mul_i32 s{sT2}, s{sWV}, 5
s_add_u32 s{sT2}, s{sT2}, s{sOFF}""")
    for i in range(5):
        a(f"s_add_u32 s{sLC+i}, s{sT2}, {i}\ns_sub_u32 s{sT3}, s{sLC+i}, 20\ns_cmp_ge_u32 s{sLC+i}, 20\ns_cselect_b32 s{sLC+i}, s{sT3}, s{sLC+i}")
    a(f"""s_mul_i32 s{sCW}, s{sWV}, 20480
s_add_u32 s{sCW}, s{sCW}, {L_W}""")
    a(f"""v_and_b32 v52, 15, v{vLANE}
v_lshrrev_b32 v53, 4, v{vLANE}
v_lshrrev_b32 v54, 1, v52
v_xor_b32 v54, v54, v53
v_lshlrev_b32 v54, 4, v54
v_lshl_add_u32 v56, v52, 7, v54
v_xor_b32 v57, 64, v56
v_add_u32 v{vXR}, s{sXB}, v56
v_add_u32 v{vXR+1}, s{sXB}, v57
v_add_u32 v{vCR}, s{sCW}, v56
v_add_u32 v{vCR+1}, s{sCW}, v57""")
    a(f"""v_bfe_u32 v54, v{vLANE}, 2, 2
v_lshl_add_u32 v54, v53, 3, v54
v_and_b32 v55, 1, v53
v_lshlrev_b32 v55, 2, v55
v_add_u32 v58, v54, v55
v_xor_b32 v55, 4, v55
v_add_u32 v59, v54, v55
v_mul_u32_u24 v58, 160, v58
v_mul_u32_u24 v59, 160, v59
v_and_b32 v60, 3, v{vLANE}
v_mul_u32_u24 v61, 40, v60
v_add_u32 v62, v58, v61
v_add_u32 v63, v59, v61
v_add_u32 v{vT40}, {L_W}, v62
v_add_u32 v{vT40+1}, {L_W}, v63
v_add_u32 v{vT40+2}, {L_W+40960}, v62
v_add_u32 v{vT40+3}, {L_W+40960}, v63""")
    a(f"""s_mul_i32 s{sT2}, s{sCT}, {80*1280}
v_add_u32 v{vC}, s{sT2}, v45
v_add_u32 v{vC+1}, s{sT2}, v46
v_add_u32 v{vC+1}, {10240-1024}, v{vC+1}
v_add_u32 v{vC+2}, {2*(10240-1024)}, v{vC}
v_add_u32 v{vC+3}, {2*(10240-1024)}, v{vC+1}""")

def tag_ready():
    a(f"""s_waitcnt lgkmcnt(0)
s_add_u32 s{sTAG}, s{sTAG}, 0x9e3779b1""")
    a.lg = []

def set_flag(base, lab, vt, wave=0):
    a(f"""s_cmp_lg_u32 s{sWV}, {wave}
s_cbranch_scc1 {lab}
s_lshl_b32 s{sT0}, s{sJ}, 4
s_add_u32 s{sT0}, s{sT0}, s{sR}
s_lshl_b32 s{sT0}, s{sT0}, 7
s_add_u32 s{sT0}, s{sT0}, {base}
v_mov_b32 v{vt}, s{sT0}
v_mov_b32 v{vt+1}, s{sTAG}
s_mov_b64 exec, 1""")
    a.vmem(f"buffer_atomic_swap v{vt+1}, v{vt}, {srd(SWS)}, 0 offen sc1", "fl", certain=False)
    a(f"s_mov_b64 exec, -1\n{lab}:")

def pk_cmul_acc(d, l, p, acc):
    a(f"""v_pk_fma_f32 {v2(d)}, {v2(p)}, {v2(l)}, {v2(acc)} op_sel_hi:[1,0,1]
v_pk_fma_f32 {v2(d)}, {v2(p)}, {v2(l)}, {v2(d)} op_sel:[1,1,0] op_sel_hi:[0,1,1] neg_lo:[0,1,0]""")

M0 = [None]
def set_m0(sreg, imm):
    if M0[0] != (sreg, imm):
        a(f"s_add_u32 m0, s{sreg}, {imm}")
        M0[0] = (sreg, imm)
def dma_x(s):
    ops = [("s", lambda: set_m0(sXB, (s%4)*4096))]
    for i in range(4):
        def f(i=i):
            set_m0(sXB, (s%4)*4096)
            a.vmem(f"buffer_load_dwordx4 v{vX+i}, {srd(SX)}, s{sKA+s} offen offset:{i*1024} lds", ("st", s))
        ops.append(("d", f))
    return ops
def dma_w(s, vaddr, rsrc, soff):
    ops = [("s", lambda: set_m0(sWB, (s%4)*20480))]
    for i in range(4):
        def f(i=i):
            set_m0(sWB, (s%4)*20480)
            a.vmem(f"buffer_load_dwordx4 v{vaddr+i}, {srd(rsrc)}, s{soff} offen offset:{i*1024} lds", ("st", s))
        ops.append(("d", f))
    ops.append(("s", lambda: set_m0(sWB, (s%4)*20480+4096)))
    def g():
        set_m0(sWB, (s%4)*20480+4096)
        a.vmem(f"buffer_load_dwordx4 v{vaddr+4}, {srd(rsrc)}, s{soff} offen lds", ("st", s))
    ops.append(("d", g))
    return ops
def dma_c(slot, sbase, ldsoff):
    ops = []
    def setup():
        a(f"""s_cmp_ge_u32 s{sLC+slot}, 10
s_cselect_b32 s{SW}, s{pCIM}, s{pCRE}
s_cselect_b32 s{SW+1}, s{pCIM+1}, s{pCRE+1}
s_cselect_b32 s{sM1}, 1280, 0
s_and_b32 s{SW+1}, s{SW+1}, 0xffff
s_lshl_b32 s{sM0}, s{sLC+slot}, 7
s_sub_u32 s{sM0}, s{sM0}, s{sM1}""")
    ops.append(("s", setup))
    for g in range(3):
        def m0(g=g):
            set_m0(sbase, ldsoff + g*4096)
            if g: a(f"s_add_u32 s{sM0}, s{sM0}, 40960")
        ops.append(("s", m0))
        for i in range(4 if g < 2 else 2):
            def f(i=i, g=g):
                set_m0(sbase, ldsoff + g*4096)
                a.vmem(f"buffer_load_dwordx4 v{vC+i}, {srd(SW)}, s{sM0} offen offset:{i*1024} lds", ("c", slot))
            ops.append(("d", f))
    return ops
CHOME = [160, 200, 0, 40, 80]
def c_reads(slot, vbase, ldsoff):
    ops = []
    for ks in range(2):
        for nt in range(5):
            def f(ks=ks, nt=nt):
                a.lds(f"ds_read_b128 {a4(CHOME[slot] + (ks*5+nt)*4)}, v{vbase+ks} offset:{ldsoff + nt*2048}", ("cr", slot))
            ops.append(("r", f))
    return ops

class BG:
    def __init__(self): self.q = []; self.keys = {}; self.fast = False
    def add(self, ops, key=None):
        self.q.extend(ops)
        if key is not None: self.keys[key] = ops[-1]
    def require(self, key):
        last = self.keys.get(key)
        while last in self.q:
            print("note: forced flush for", key)
            self.q.pop(0)[1]()
    def tick(self, n=1):
        while n > 0 and self.q:
            k, f = self.q.pop(0)
            f()
            if k != "s": n -= 1
    def tick_s(self):
        while self.q and self.q[0][0] == "s":
            self.q.pop(0)[1]()
    def flush(self):
        while self.q: self.q.pop(0)[1]()

def run_ops(ops):
    for k, f in ops: f()

def gemm_loop(nstage, frags_per_stage, read_frag, mfmas, x_reads, stage_dma, bg, ring, LOOK, hooks, first_stage=0, pre_issued=2):
    F = frags_per_stage
    total = nstage * F
    NR = len(ring)
    def sid(f): return first_stage + f // F, f % F
    rq = []; last = []
    for f in range(total):
        s, i = sid(f)
        ops = []
        xr = x_reads(s)
        if i in xr: ops += xr[i]
        ops += read_frag(s, i, ring[f % NR])
        if i == 0:
            def first(s=s, e=ops[0]):
                bg.require(s)
                a.wait(vm=[("st", s)])
                a("s_barrier")
                if STGST: stamp(16 + s)
                d = stage_dma(s + 2)
                if d and s + 2 >= pre_issued and not NODMA: bg.add(d, s + 2)
                e()
            ops[0] = first
        rq += ops
        last.append(len(rq))
    issued = [0]
    def pop(n):
        for _ in range(n):
            rq[issued[0]](); issued[0] += 1
    pop(last[LOOK - 1])
    gap = 0
    for f in range(total):
        s, i = sid(f)
        if (s, i) in hooks: hooks[(s, i)]()
        a.wait(lg=[("w", s, i)])
        ms = mfmas(s, i, ring[f % NR])
        need = last[min(f + LOOK - 1, total - 1)]
        for half, m in enumerate(ms):
            m()
            maxi = last[min(f + LOOK, f + NR - 1 + (1 if half == len(ms) - 1 else 0), total - 1)]
            period = 2 if bg.fast else 4
            due = lambda g: bool(bg.q) and g % period == 1
            if due(gap):
                bg.tick(1)
                if half == len(ms) - 1 and need > issued[0]: pop(need - issued[0])
            else:
                usable = 1 + sum(1 for g in range(gap + 1, gap + len(ms) - half) if not due(g))
                n = max(1, -(-(need - issued[0]) // usable))
                if due(gap + 1) and half == len(ms) - 1: pass
                pop(max(0, min(n, maxi - issued[0])))
                if due(gap + 1): bg.tick_s()
            gap += 1

LOG2E = 0x3fb8aa3b
def phi(regs, sconst_log2e, tmp, NT=4):
    for n, r in enumerate(regs):
        t = tmp + (n % NT) * 2
        a(f"v_pk_mul_f32 {v2(t)}, {v2(r)}, {sp(sconst_log2e)} op_sel_hi:[1,0]")
        a(f"v_max_f32 v{r}, 0x358637bd, v{r}\nv_max_f32 v{r+1}, 0x358637bd, v{r+1}")
        a(f"v_exp_f32_e64 v{t}, v{t} clamp\nv_exp_f32_e64 v{t+1}, v{t+1} clamp")
        if n > 0:
            rp = regs[n-1]; tp = tmp + ((n-1) % NT) * 2
            a(f"v_pk_add_f32 {v2(rp)}, {v2(rp)}, {v2(tp)}")
    rp = regs[-1]; tp = tmp + ((len(regs)-1) % NT) * 2
    a(f"v_pk_add_f32 {v2(rp)}, {v2(rp)}, {v2(tp)}")

def cmul_acc(dr, di, lr, li, pr, pi, ar, ai):
    a(f"""v_fma_f32 v{dr}, v{lr}, v{pr}, v{ar}
v_fma_f32 v{di}, v{lr}, v{pi}, v{ai}
v_fma_f32 v{dr}, -v{li}, v{pi}, v{dr}
v_fma_f32 v{di}, v{li}, v{pr}, v{di}""")

K_AH = 32
K_AB = [112, 132]
K_vA, K_vM = 2, 6
K_vFB, K_vFM, K_vGA, K_vRW, K_vTmp = 11, 12, 13, 14, 15
K_vG = 18
K_FO, K_FL = 246, 247
K_sMT = sKQ + 5
def time_base(dst, srt, tmp):
    a(f"""s_lshr_b32 s{dst}, s{srt}, 1
s_lshl_b32 s{dst}, s{dst}, 5
s_and_b32 s{tmp}, s{srt}, 1
s_lshl_b32 s{tmp}, s{tmp}, 1
s_add_u32 s{dst}, s{dst}, s{tmp}""")
def skip_setup(t, sx, sd):
    mk_srd(SOUT, pDSK, 1280)
    a(f"""s_add_u32 s{sT0}, s{sWV}, s{sCT}
s_and_b32 s{sT0}, s{sT0}, 3
s_lshl_b32 s{sx}, s{sRB}, 2
s_add_u32 s{sT0}, s{sT0}, s{sx}""")
    time_base(sx, sT0, sd)
    a(f"""s_mul_i32 s{sx}, s{sx}, 1280
s_mul_i32 s{sd}, s{sCT}, 160
s_add_u32 s{sx}, s{sx}, s{sd}
v_bfe_u32 v{t}, v{vLANE}, 5, 1
v_bfe_u32 v{t+1}, v{vLANE}, 4, 1
v_lshl_add_u32 v{t}, v{t+1}, 2, v{t}
v_mul_u32_u24 v{t}, 1280, v{t}
v_lshrrev_b32 v{t+1}, 4, v{vLANE}
v_mul_u32_u24 v{t+1}, 17, v{t+1}
v_sub_u32 v{t+1}, v{vLANE}, v{t+1}
v_med3_i32 v{t+1}, v{t+1}, 0, 9
v_lshl_add_u32 v{t}, v{t+1}, 4, v{t}""")
def skip_loads(t, sx, sd, sbase, off):
    ops = [("s", lambda: set_m0(sbase, off))]
    for i in range(4):
        def f(i=i):
            set_m0(sbase, off)
            a.vmem(f"buffer_load_dwordx4 v{t}, {srd(SX)}, s{sx} offen offset:{i*1088} lds", "fx")
        ops.append(("d", f))
        if i < 3: ops.append(("s", lambda: a(f"s_add_u32 s{sx}, s{sx}, {10240-1088}")))
    ops.append(("s", lambda: set_m0(sbase, off + 4288)))
    def g():
        set_m0(sbase, off + 4288)
        a("s_mov_b64 exec, 0x3ff")
        a.vmem(f"buffer_load_dwordx4 v{t}, {srd(SOUT)}, s{sd} offen lds", "fx")
        a("s_mov_b64 exec, -1")
    ops.append(("d", g))
    return ops
def skip_reads(t, sbase, off, AB):
    def setup():
        a(f"""s_add_u32 s{sT0}, s{sbase}, {off}
v_lshrrev_b32 v{t}, 4, v{vLANE}
v_lshl_add_u32 v{t}, v{t}, 3, s{sT0}
v_and_b32 v{t+1}, 15, v{vLANE}
v_mul_u32_u24 v{t+1}, 272, v{t+1}
v_add_u32 v{t+1}, v{t+1}, v{t}""")
        a.wait(vm="fx")
    ops = [("s", setup)]
    for nt in range(5):
        ops.append(("r", lambda nt=nt: a.lds(f"ds_read_b64 a[{AB+2*nt}:{AB+1+2*nt}], v{t+1} offset:{nt*32}", "sk")))
        ops.append(("r", lambda nt=nt: a.lds(f"ds_read_b64 a[{AB+10+2*nt}:{AB+11+2*nt}], v{t} offset:{4288 + nt*32}", "sk")))
    return ops
def skip_math(t, AB, bg=None):
    for n in range(10):
        d = K_AH + 2*n
        a(f"""v_accvgpr_read_b32 v{t+1}, a{AB+n}
v_accvgpr_read_b32 v{t+3}, a{AB+10+n}
v_lshlrev_b32 v{t}, 16, v{t+1}
v_and_b32 v{t+1}, 0xffff0000, v{t+1}
v_lshlrev_b32 v{t+2}, 16, v{t+3}
v_and_b32 v{t+3}, 0xffff0000, v{t+3}
v_pk_mul_f32 {v2(t)}, {v2(t)}, {v2(t+2)}
v_cvt_pk_bf16_f32 v{t}, v{t}, v{t+1}
v_lshlrev_b32 v{d}, 16, v{t}
v_and_b32 v{d+1}, 0xffff0000, v{t}""")
        if bg: bg.tick(1)
def k2_setup(t, bg=None):
    tk = (lambda n: bg.tick(n)) if bg else (lambda n: None)
    vA, vM, sMT = K_vA, K_vM, K_sMT
    mk_srd(SOUT, pOUT, 2048*2560)
    a(f"s_add_u32 s{sT0}, s{sWV}, s{sCT}")
    a(f"v_lshlrev_b32 v{vM}, 4, v{vLANE}")
    for i in range(4):
        a(f"""s_add_u32 s{sMT+i}, s{sT0}, {i}
s_and_b32 s{sMT+i}, s{sMT+i}, 3
s_mul_i32 s{sT1}, s{sMT+i}, {RT}
v_add_u32 v{vA+i}, s{sT1}, v{vM}""")
    tk(2)
    for nt in range(1, 5): a(f"v_add_u32 v{vM+nt}, {nt*20480}, v{vM}")
    a(f"s_mul_i32 s{sT0}, s{sRB}, {4*RT}\ns_mul_i32 s{sT1}, s{sCT}, {5*20480}\ns_add_u32 s{sT1}, s{sT1}, {WS_M}\ns_add_u32 s{sT3}, s{sT0}, 40960")
    for i in range(5):
        a(f"""s_lshl_b32 s{sT2}, s{sLC+i}, 11
s_add_u32 s{sKA+i}, s{sT0}, s{sT2}
s_lshl_b32 s{sT2}, s{sLC+i}, 10
s_add_u32 s{sKA+5+i}, s{sT3}, s{sT2}
s_add_u32 s{sKQ+i}, s{sT1}, s{sT2}""")
    tk(2)
    a(f"s_lshl_b32 s{sT2}, s{sRB}, 2\ns_add_u32 s{sT2}, s{sT2}, s{sWV}")
    time_base(sT3, sT2, sT4)
    a(f"""s_mul_i32 s{sT4}, s{sCT}, 320
s_mul_i32 s{sT5}, s{sWV}, {16*320}
v_lshrrev_b32 v{t}, 4, v{vLANE}
v_lshlrev_b32 v{t}, 3, v{t}
v_bfe_u32 v{t+1}, v{vLANE}, 3, 1
v_add_u32 v{t}, v{t}, v{t+1}
v_bfe_u32 v{t+1}, v{vLANE}, 2, 1
v_lshl_add_u32 v{t}, v{t+1}, 2, v{t}
v_add_u32 v{t}, s{sT3}, v{t}
v_mul_u32_u24 v{t}, 2560, v{t}
v_and_b32 v{t+1}, 3, v{vLANE}
v_lshl_add_u32 v{t+2}, v{t+1}, 4, s{sT4}
v_add_u32 v{K_FO}, v{t}, v{t+2}
v_bfe_u32 v{t+2}, v{vLANE}, 3, 2
v_xor_b32 v{t+1}, v{t+1}, v{t+2}
v_lshrrev_b32 v{t}, 2, v{vLANE}
v_mul_u32_u24 v{t}, 320, v{t}
v_lshl_add_u32 v{t}, v{t+1}, 4, v{t}
v_add_u32 v{K_FL}, s{sT5}, v{t}""")
    tk(2)
    a(f"""s_lshr_b32 s{sT2}, s{sRB}, 1
s_lshl_b32 s{sT2}, s{sT2}, 7
s_add_u32 s{sT3}, s{sT2}, {FB}
v_lshl_add_u32 v{K_vFB}, v{vLANE}, 11, s{sT3}
s_and_b32 s{sT3}, s{sRB}, 1
s_lshl_b32 s{sT3}, s{sT3}, 13
s_add_u32 s{sT2}, s{sT2}, s{sT3}
s_add_u32 s{sT2}, s{sT2}, {FM - 16*2048}
v_lshl_add_u32 v{t}, v{vLANE}, 11, s{sT2}
s_lshl_b32 s{sT2}, s{sCT}, 8
s_add_u32 s{sT2}, s{sT2}, {FM}
v_lshrrev_b32 v{K_vFM}, 1, v{vLANE}
v_lshl_add_u32 v{K_vFM}, v{K_vFM}, 11, s{sT2}
v_and_b32 v{t+1}, 1, v{vLANE}
v_lshl_add_u32 v{K_vFM}, v{t+1}, 7, v{K_vFM}
v_cmp_gt_u32 vcc, 16, v{vLANE}
v_cndmask_b32 v{K_vFM}, v{t}, v{K_vFM}, vcc
v_and_b32 v{t}, 15, v{vLANE}
v_lshlrev_b32 v{K_vGA}, 2, v{t}
v_lshrrev_b32 v{t+1}, 4, v{vLANE}
v_bfe_u32 v{t+2}, v{vLANE}, 1, 2
v_xor_b32 v{t+1}, v{t+1}, v{t+2}
v_mul_u32_u24 v{t}, 320, v{t}
v_lshl_add_u32 v{t}, v{t+1}, 4, v{t}
s_mul_i32 s{sT2}, s{sWV}, {64*320}
v_add_u32 v{K_vRW}, s{sT2}, v{t}""")

def warm_c(ptr, vt):
    def f():
        a(f"""s_mov_b32 s{SW}, s{ptr}
s_and_b32 s{SW+1}, s{ptr+1}, 0xffff
s_lshr_b32 s{sM0}, s2, 3
s_and_b32 s{sM0}, s{sM0}, 15
s_lshl_b32 s{sM0}, s{sM0}, 2
s_add_u32 s{sM0}, s{sM0}, s{sWV}
s_mul_i32 s{sM0}, s{sM0}, 12800
v_lshlrev_b32 v{vt}, 7, v{vLANE}""")
        a.vmem(f"buffer_load_dword v{vt+1}, v{vt}, {srd(SW)}, s{sM0} offen", "warm")
        a(f"s_add_u32 s{sM0}, s{sM0}, 8192\ns_mov_b32 exec_hi, 15")
        a.vmem(f"buffer_load_dword v{vt+1}, v{vt}, {srd(SW)}, s{sM0} offen", "warm")
        a("s_mov_b32 exec_hi, -1")
    return f

def type_A():
    bg = BG()
    AK, AG = ACC, ACC + 80
    RING = [128 + 4*i for i in range(8)]
    sZB, sKVB, sGA, sMa, sMb, sMc, sMd, sGB = 34, 35, 36, 37, 38, 39, 40, 41
    sMK = 60
    sGW = 46
    a(f"""s_lshr_b32 s{sT2}, s{sWV}, 1
s_add_u32 s{sT2}, s{sT2}, 1
s_mul_i32 s{sT2}, s{sT2}, 1280
s_mul_i32 s{sT3}, s{sJ}, 160
s_add_u32 s{sT2}, s{sT2}, s{sT3}
s_and_b32 s{sT3}, s{sWV}, 1
s_mul_i32 s{sT3}, s{sT3}, {32*3840}
s_add_u32 s{sT2}, s{sT2}, s{sT3}
s_mul_i32 s{sKQ}, s{sKA}, 1920
s_mul_i32 s{sKQ+1}, s{sKA+1}, 1920""")
    wq_pattern(vW, sT2)
    args_ready()
    a(f"s_mov_b32 s{SQ}, s{pQKV}\ns_and_b32 s{SQ+1}, s{pQKV+1}, 0xffff")
    def stage_dma(s):
        if s >= 10: return None
        return dma_x(s) + dma_w(s, vW, SQ, sKQ + s)
    run_ops(stage_dma(0))
    mk_srd(SW, pGW, 1280)
    a(f"""s_and_b32 s{sT2}, s{sWV}, 1
s_lshl_b32 s{sT2}, s{sT2}, 10
v_lshlrev_b32 v64, 4, v{vLANE}""")
    set_m0(sT2, L_GW)
    a.vmem(f"buffer_load_dwordx4 v64, {srd(SW)}, s{sT2} offen lds", ("st", 0))
    late_setup()
    a(f"""v_mov_b32 v68, 0
v_mov_b32 v69, 0
v_mov_b32 v70, 0
v_mov_b32 v71, 0
v_lshlrev_b32 v65, 4, v0
v_add_u32 v65, {L_KVB}, v65
v_cmp_gt_u32 vcc, 164, v0
s_and_saveexec_b64 {sp(sT2)}, vcc""")
    a.lds("ds_write_b128 v65, v[68:71]", "z0")
    a(f"s_mov_b64 exec, {sp(sT2)}")
    vXM = vQ + 1
    a(f"""v_lshlrev_b32 v61, 3, v60
v_add_u32 v62, v58, v61
v_add_u32 v63, v59, v61
v_add_u32 v{vWR}, {L_W}, v62
v_add_u32 v{vWR+1}, {L_W}, v63
v_add_u32 v{vWR+2}, {L_W+40960}, v62
v_add_u32 v{vWR+3}, {L_W+40960}, v63
v_lshrrev_b32 v{vQ}, 4, v{vLANE}
v_lshlrev_b32 v{vQ}, 4, v{vQ}
v_add_u32 v{vQ}, {L_GW}, v{vQ}
s_and_b32 s{sT2}, s{sJ}, 1
s_lshl_b32 s{sT2}, s{sT2}, 11
s_xor_b32 s{sT3}, s{sT2}, 2048
v_add_u32 v{vXM}, s{sT2}, v{vXR}
v_add_u32 v{vXM+1}, s{sT2}, v{vXR+1}
v_add_u32 v{vXM+2}, s{sT3}, v{vXR}
v_add_u32 v{vXM+3}, s{sT3}, v{vXR+1}""")
    mk_srd(SW, pWO, 640*1280)
    a(f"""s_and_b32 s{sT1}, s{sR}, 1
s_mul_i32 s{sT2}, s{sT1}, 40
s_mul_i32 s{sT3}, s{sJ}, 80
s_add_u32 s{sT2}, s{sT2}, s{sT3}
s_mul_i32 s{sT2}, s{sT2}, 1280
s_lshr_b32 s{sT3}, s{sR}, 1
s_mul_i32 s{sT3}, s{sT3}, 160
s_add_u32 s{sT2}, s{sT2}, s{sT3}
s_mov_b32 s{sM0}, s{sT2}
s_lshl_b32 s{sM1}, s{sWV}, 10
v_mov_b32 v211, {OOB}""")
    for n in range(2):
        a(f"""v_add_u32 v65, {256*n}, v0
v_mul_u32_u24 v66, 6554, v65
v_lshrrev_b32 v66, 16, v66
v_mul_u32_u24 v67, 10, v66
v_sub_u32 v67, v65, v67
v_mul_u32_u24 v66, 1280, v66
v_lshl_add_u32 v66, v67, 4, v66
v_cmp_gt_u32 vcc, 400, v65
v_cndmask_b32 v{72+n}, v211, v66, vcc""")
    def wo_dma():
        for n in range(2):
            set_m0(sM1, L_WO + 4096*n)
            if n == 1:
                a(f"s_cmp_eq_u32 s{sWV}, 3\ns_cbranch_scc1 LskipWo")
                a.vmem(f"buffer_load_dwordx4 v73, {srd(SW)}, s{sM0} offen lds", ("st", 1), certain=False)
                a("LskipWo:")
            else:
                a.vmem(f"buffer_load_dwordx4 v72, {srd(SW)}, s{sM0} offen lds", ("st", 1))
    vGS, vZ1, vZ2, vK1, vK2, vK3, vK4 = 212, 213, 214, 215, 216, 217, 218
    vXW, vR0, vR1, vKP, vKB = 219, 220, 221, 222, 223
    vOa0, vOa1, vOb0, vOb1, vOc0, vOc1 = 224, 225, 226, 227, 228, 229
    vWo = 230
    vMS, vMR, vONE, vTG = 234, 235, 236, 237
    ZR = L_KVB + 2560
    def precompute():
        a(f"""v_and_b32 v208, 15, v{vLANE}
v_lshrrev_b32 v209, 4, v{vLANE}
v_lshrrev_b32 v210, 2, v208
v_lshlrev_b32 v{vGS}, 4, v209
v_cmp_eq_u32 vcc, 0, v208
v_cndmask_b32 v{vGS}, v211, v{vGS}, vcc
s_lshl_b32 s{sGB}, s{sR}, 3
s_add_u32 s{sGB}, s{sGB}, s{sJ}
s_lshl_b32 s{sGB}, s{sGB}, 6
s_add_u32 s{sGB}, s{sGB}, {WS_G}
v_cmp_eq_u32 {sp(sMK)}, s{sWV}, v210
v_cmp_eq_u32 {sp(sT4)}, s{sWV}, v209
s_add_u32 s{sT2}, s{sWV}, 1
s_and_b32 s{sT2}, s{sT2}, 3
v_cmp_eq_u32 vcc, s{sT2}, v209
v_lshlrev_b32 v{vZ1}, 2, v208
v_and_b32 v240, 3, v208
v_add_u32 v241, 16, v240
v_lshlrev_b32 v{vZ2}, 2, v241
v_cndmask_b32 v{vZ1}, v211, v{vZ1}, vcc
v_cndmask_b32 v{vZ2}, v211, v{vZ2}, vcc
v_cndmask_b32 v{vZ2}, v211, v{vZ2}, {sp(sMK)}
s_lshl_b32 s{sT2}, s{sJ}, 4
s_add_u32 s{sT2}, s{sT2}, s{sR}
s_mul_i32 s{sZB}, s{sT2}, 640
s_mul_i32 s{sT3}, s{sWV}, 80
s_add_u32 s{sZB}, s{sZB}, s{sT3}
s_add_u32 s{sZB}, s{sZB}, {WS_ZP}
v_mul_u32_u24 v242, 320, v209
v_lshl_add_u32 v{vK1}, v208, 4, v242
v_lshlrev_b32 v{vK2}, 4, v208
v_cndmask_b32 v{vK2}, v211, v{vK2}, {sp(sT4)}
v_lshl_add_u32 v{vK3}, v241, 4, v242
v_cndmask_b32 v{vK3}, v211, v{vK3}, {sp(sMK)}
v_lshlrev_b32 v{vK4}, 4, v241
v_cndmask_b32 v{vK4}, v211, v{vK4}, {sp(sMK)}
v_cndmask_b32 v{vK4}, v211, v{vK4}, {sp(sT4)}
s_mul_i32 s{sKVB}, s{sT2}, 6400
s_mul_i32 s{sT3}, s{sWV}, 1600
s_add_u32 s{sKVB}, s{sKVB}, s{sT3}
s_add_u32 s{sKVB}, s{sKVB}, {WS_KVP}
v_lshlrev_b32 v{vR0}, 4, v{vLANE}
v_add_u32 v{vXW}, s{sXB}, v{vR0}
s_lshl_b32 s{sT2}, s{sWV}, 10
v_add_u32 v{vR1}, s{sT2}, v{vR0}
v_lshlrev_b32 v{vKP}, 4, v0
v_cmp_gt_u32 vcc, 200, v0
v_cndmask_b32 v{vKP}, v211, v{vKP}, vcc
s_mul_i32 s{sGA}, s{sJ}, {16*6400}
s_and_b32 s{sT1}, s{sR}, 1
s_mul_i32 s{sT2}, s{sT1}, 3200
s_add_u32 s{sGA}, s{sGA}, s{sT2}
s_add_u32 s{sGA}, s{sGA}, {WS_KVP}""")
        a(f"""v_cmp_le_u32 vcc, 100, v0
v_subrev_u32 v242, 100, v0
v_cndmask_b32 v242, v0, v242, vcc
v_mov_b32 v243, {L_KVB}
v_mov_b32 v244, {L_KVB + 1280}
v_cndmask_b32 v243, v243, v244, vcc
v_mul_u32_u24 v244, 3277, v242
v_lshrrev_b32 v244, 16, v244
v_mul_u32_u24 v245, 20, v244
v_sub_u32 v245, v242, v245
v_lshl_add_u32 v243, v245, 6, v243
v_lshl_add_u32 v{vKB}, v244, 3, v243""")
        a(f"""v_lshrrev_b32 v242, 1, v210
v_lshl_add_u32 v242, v242, 3, v240
v_lshlrev_b32 v242, 6, v242
v_lshl_add_u32 v242, v209, 4, v242
v_add_u32 v242, {L_KVB}, v242
v_add_u32 v243, 1280, v242
v_mov_b32 v244, {ZR - 256}
v_and_b32 v245, 1, v210
v_cmp_eq_u32 vcc, 0, v245
v_cndmask_b32 v{vOb0}, v244, v242, vcc
v_cndmask_b32 v{vOb1}, v243, v244, vcc
v_mov_b32 v244, {ZR}
v_cndmask_b32 v{vOa0}, v244, v242, vcc
v_cndmask_b32 v{vOa1}, v243, v244, vcc
v_lshlrev_b32 v242, 6, v240
v_lshl_add_u32 v242, v209, 4, v242
v_add_u32 v242, {L_KVB + 16*64}, v242
v_add_u32 v243, 1280, v242
v_cmp_eq_u32 vcc, 0, v210
v_cndmask_b32 v{vOc0}, v244, v242, vcc
v_cmp_eq_u32 vcc, 1, v210
v_cndmask_b32 v{vOc1}, v244, v243, vcc""")
        a(f"""v_bfe_u32 v242, v{vLANE}, 2, 2
v_lshl_add_u32 v242, v209, 3, v242
v_add_u32 v243, 4, v242
v_min_u32 v242, 19, v242
v_min_u32 v243, 19, v243
v_mul_u32_u24 v242, 160, v242
v_mul_u32_u24 v243, 160, v243
v_lshl_add_u32 v242, v240, 3, v242
v_lshl_add_u32 v243, v240, 3, v243
v_add_u32 v{vWo+2}, {L_WO}, v242
v_add_u32 v{vWo+3}, {L_WO}, v243
s_lshl_b32 s{sT2}, s{sWV}, 5
v_add_u32 v{vWo}, s{sT2}, v{vWo+2}
v_add_u32 v{vWo+1}, s{sT2}, v{vWo+3}""")
        a(f"""v_and_b32 v242, 1, v209
v_lshrrev_b32 v243, 1, v209
v_lshl_add_u32 v242, v243, 2, v242
v_lshlrev_b32 v242, 8, v242
v_lshl_add_u32 v{vMS}, v208, 4, v242
v_lshlrev_b32 v243, 3, v209
v_lshl_add_u32 v243, v208, 4, v243
v_cmp_gt_u32 vcc, 2, v209
v_cndmask_b32 v{vMR}, v211, v243, vcc
s_lshr_b32 s{sT0}, s{sR}, 1
s_mul_i32 s{sT0}, s{sT0}, {5*20480}
s_mul_i32 s{sT2}, s{sJ}, 2560
s_add_u32 s{sT0}, s{sT0}, s{sT2}
s_add_u32 s{sT0}, s{sT0}, {WS_M}
s_lshl_b32 s{sT2}, s{sT1}, 9
s_add_u32 s{sT2}, s{sT2}, s{sT0}
s_lshl_b32 s{sT3}, s{sT1}, 8
s_add_u32 s{sT3}, s{sT3}, s{sT0}
s_mul_i32 s{sT0}, s{sWV}, 20480
s_add_u32 s{sMa}, s{sT2}, s{sT0}
s_add_u32 s{sMb}, s{sT3}, s{sT0}
s_add_u32 s{sT2}, s{sT2}, {4*20480}
s_add_u32 s{sT3}, s{sT3}, {4*20480}
s_cmp_eq_u32 s{sWV}, 0
s_cselect_b32 s{sMc}, s{sT2}, {OOB}
s_cselect_b32 s{sMd}, s{sT3}, {OOB}
v_mov_b32 v{vONE}, 0x3f803f80""")
    precompute()
    skip_setup(238, 56, 57)
    stamp(34)
    run_ops(stage_dma(1))
    wo_dma()
    tag_ready()
    a(f"""s_and_b32 s{sT2}, s{sTAG}, 0xff
v_mov_b32 v{vTG}, s{sT2}
s_lshr_b32 s{sT2}, s{sJ}, 1
s_cmp_eq_u32 s{sT2}, s{sWV}
s_cselect_b64 {sp(sGW)}, -1, 0
s_mov_b64 vcc, {sp(sGW)}""")
    stamp(0)
    XA = lambda s, ks, m: (s % 2) * 16 + ks * 8 + m * 4 + 120
    def x_reads(s):
        def mk(ks):
            return [(lambda m=m: a.lds(f"ds_read_b128 {a4(XA(s, ks, m))}, v{vXM+2*m+ks} offset:{(s%4)*4096}", ("x", s, ks))) for m in range(2)]
        return {0: mk(0), 11: mk(1)}
    def read_frag(s, i, reg):
        ks, t = divmod(i, 11)
        sl = s % 4
        if t == 10:
            def g():
                if ks == 0: a(f"v_add_u32 v120, s{sKA+s}, v{vQ}")
                a.lds(f"ds_read_b128 {v4(reg)}, v120 offset:{ks*64}", ("w", s, i))
            return [g]
        seg, T = divmod(t, 5)
        off = (sl % 2) * 20480 + seg * 10240 + ks * 5120
        out = []
        for hh in range(2):
            if T < 4: va, o = vWR + (sl // 2) * 2 + hh, off + 40 * T
            else: va, o = vT40 + (sl // 2) * 2 + hh, off + 32
            out.append(lambda hh=hh, va=va, o=o: a.lds(f"ds_read_b64_tr_b16 {v2(reg + 2*hh)}, v{va} offset:{o}", ("w", s, i)))
        return out
    def mfmas(s, i, reg):
        ks, t = divmod(i, 11)
        first = (s == 0 and ks == 0)
        if t == 10:
            def g():
                L = a.label("Lng")
                a(f"s_cbranch_vccz {L}")
                mfma(v4(AG), a4(XA(s, ks, 0)), v4(reg), "0" if first else v4(AG))
                a(f"{L}:")
            return [g]
        out = []
        for m in range(2):
            d = ACC + t * 8 + m * 4
            c = "0" if first else v4(d)
            out.append(lambda d=d, m=m, c=c: mfma(v4(d), a4(XA(s, ks, m)), v4(reg), c))
        return out
    gemm_loop(10, 22, read_frag, mfmas, x_reads, stage_dma, bg, RING, 7, {(8, 0): (lambda: (bg.add(skip_loads(238, 56, 57, sXB, 10240) + [('d', warm_c(pCIM, 122))]), setattr(bg, 'fast', True)))})
    bg.flush()
    stamp(1)
    a(f"s_mov_b32 s{sT2}, {LOG2E}\ns_movk_i32 s{sT3}, 0xff")
    T = 160
    PKR = 168
    def pack(t):
        dst = PKR + 4*t
        for q in range(4):
            a(f"v_cvt_pk_bf16_f32 v{dst+q}, v{ACC + t*8 + 2*q}, v{ACC + t*8 + 2*q + 1}")
        a.lds(f"ds_write_b128 v{vXW}, {v4(dst)} offset:{t*1024}", "kvx")
    for t in range(5):
        phi([AK + 8*t + 2*n for n in range(2)], sT2, T)
        pack(5 + t)
        phi([AK + 8*t + 2*n for n in range(2, 4)], sT2, T)
        pack(t)
    a.wait(lg="all")
    a("s_barrier")
    F0 = 32
    a(f"s_mov_b32 s{SW+2}, {640*1280}")
    bg.add(dma_c(3, sCW, 0)); bg.add(dma_c(4, sCW, 10240))
    for w in range(4):
        b = F0 + w * 16
        a.lds(f"ds_read_b128 {v4(b+12)}, v{vR0} offset:{w*16384 + 9216}", ("kr", w))
        a.lds(f"ds_read_b128 {v4(b)}, v{vR1} offset:{w*16384}", ("kr", w))
        a.lds(f"ds_read_b128 {v4(b+4)}, v{vR0} offset:{w*16384 + 4096}", ("kr", w))
        a.lds(f"ds_read_b128 {v4(b+8)}, v{vR1} offset:{w*16384 + 5120}", ("kr", w))
    P = 96
    bg.tick(E2("AE", 4))
    for w in range(4):
        b = F0 + w * 16
        if w and E2("AE", 4): bg.tick(1)
        a.wait(lg=[("kr", w)])
        for q in range(4): a(f"v_cndmask_b32 v{b+12+q}, v{vONE}, v{b+12+q}, {sp(sMK)}")
        c = lambda n: "0" if w == 0 else v4(P + 4*n)
        mfma(v4(P), v4(b+8), v4(b), c(0))
        mfma(v4(P+8), v4(b+8), v4(b+4), c(2))
        mfma(v4(P+4), v4(b+12), v4(b), c(1))
        mfma(v4(P+12), v4(b+12), v4(b+4), c(3))
    for n in (0, 2, 1, 3):
        for q in (0, 2):
            a(f"v_bfi_b32 v{P+4*n+q}, s{sT3}, v{vTG}, v{P+4*n+q}")
    a.vmem(f"buffer_store_dword v{P+4}, v{vZ1}, {srd(SWS)}, s{sZB} offen sc1", "zst")
    a.vmem(f"buffer_store_dword v{P+12}, v{vZ2}, {srd(SWS)}, s{sZB} offen sc1", "zst")
    a.vmem(f"buffer_store_dwordx4 {v4(P)}, v{vK1}, {srd(SWS)}, s{sKVB} offen sc1", "kvst")
    a.vmem(f"buffer_store_dwordx4 {v4(P+4)}, v{vK2}, {srd(SWS)}, s{sKVB} offen offset:1280 sc1", "kvst")
    a.vmem(f"buffer_store_dwordx4 {v4(P+8)}, v{vK3}, {srd(SWS)}, s{sKVB} offen sc1", "kvst")
    a.vmem(f"buffer_store_dwordx4 {v4(P+12)}, v{vK4}, {srd(SWS)}, s{sKVB} offen offset:1280 sc1", "kvst")
    stamp(2)
    bg.tick(3)
    run_ops(skip_reads(160, sXB, 10240, 120))
    a("s_cbranch_vccz LA_ng")
    for q in range(2):
        r = AG + 2*q
        a(f"""v_cvt_pk_bf16_f32 v{T+1}, v{r}, v{r+1}
v_lshlrev_b32 v{r}, 16, v{T+1}
v_and_b32 v{r+1}, 0xffff0000, v{T+1}
v_mul_f32 v{r}, 0xbfb8aa3b, v{r}
v_mul_f32 v{r+1}, 0xbfb8aa3b, v{r+1}
v_exp_f32 v{r}, v{r}
v_exp_f32 v{r+1}, v{r+1}
s_nop 0
v_add_f32 v{r}, 1.0, v{r}
v_add_f32 v{r+1}, 1.0, v{r+1}
v_rcp_f32 v{r}, v{r}
v_rcp_f32 v{r+1}, v{r+1}
s_nop 0
v_cvt_pk_bf16_f32 v{T+1}, v{r}, v{r+1}
v_lshlrev_b32 v{r}, 16, v{T+1}
v_and_b32 v{r+1}, 0xffff0000, v{T+1}""")
    a.vmem(f"buffer_store_dwordx4 {v4(AG)}, v{vGS}, {srd(SWS)}, s{sGB} offen sc1", "gst", certain=False)
    a("LA_ng:")
    WOF = 128
    for ts in range(2):
        for hd in range(2):
            r = WOF + (ts*2 + hd) * 4
            for hh in range(2):
                a.lds(f"ds_read_b64_tr_b16 {v2(r + 2*hh)}, v{vWo + 2*ts + hh} offset:{hd*3200 + (128 if ts else 0)}", "wof")
    k2_setup(160, bg)
    bg.flush()
    a.wait(vm=[("c", 3)], lg="all")
    run_ops(c_reads(3, vCR, 0))
    a.wait(lg="all")
    bg.add(dma_c(0, sCW, 0))
    bg.tick(E2("AF", 10))
    stamp(37)
    def gather(tracked):
        a(f"s_mov_b32 s{sT0}, s{sGA}")
        for n in range(16):
            t = f"buffer_load_dwordx4 {v4(32 + 4*n)}, v{vKP}, {srd(SWS)}, s{sT0} offen sc1"
            if tracked: a.vmem(t, ("kp", n))
            else: a(t)
            if n < 15: a(f"s_add_u32 s{sT0}, s{sT0}, 6400")
    gather(True)
    a.wait(vm=[("c", 4)])
    run_ops(c_reads(4, vCR, 10240))
    a.wait(lg="all")
    bg.add(dma_c(1, sCW, 10240))
    bg.tick(E2("AG", 6))
    a(f"""v_cmp_gt_u32 vcc, 200, v0
s_mov_b32 s{sSPIN}, 0
s_mov_b64 {sp(sMK)}, vcc
s_branch LA_gc
LA_gr:""")
    gather(False)
    a("s_waitcnt vmcnt(0)\nLA_gc:")
    a.wait(vm=[("kp", 0)])
    a(f"v_xor_b32 v32, v32, v{vTG}\nv_xor_b32 v34, v34, v{vTG}\nv_or_b32 v{T}, v32, v34")
    for n in range(1, 16):
        a.wait(vm=[("kp", n)])
        a(f"""v_xor_b32 v{32+4*n}, v{32+4*n}, v{vTG}
v_xor_b32 v{34+4*n}, v{34+4*n}, v{vTG}
v_pk_add_f32 v[32:33], v[32:33], {v2(32+4*n)}
v_or3_b32 v{T}, v{T}, v{32+4*n}, v{34+4*n}
v_pk_add_f32 v[34:35], v[34:35], {v2(34+4*n)}""")
    a(f"""v_and_b32 v{T}, 0xff, v{T}
v_cmp_ne_u32 vcc, 0, v{T}
s_add_u32 s{sSPIN}, s{sSPIN}, 1
s_and_b64 vcc, vcc, {sp(sMK)}
s_cmp_gt_u32 s{sSPIN}, 0x20000
s_cbranch_scc1 LA_gd
s_cbranch_vccnz LA_gr
LA_gd:
{'v_writelane_b32 v254, s96, 40' if STAMPS else ''}
v_cvt_pk_bf16_f32 v36, v32, v33
v_cvt_pk_bf16_f32 v37, v34, v35
s_mov_b64 exec, {sp(sMK)}""")
    a.lds(f"ds_write_b64 v{vKB}, v[36:37]", "kvb")
    a("s_mov_b64 exec, -1")
    bg.flush()
    a.wait(lg="all")
    a("s_barrier")
    stamp(3)
    KF = 40
    a.lds(f"ds_read_b128 {v4(KF)}, v{vOa0}", "kf")
    a.lds(f"ds_read_b128 {v4(KF+8)}, v{vOb0} offset:256", "kf")
    a.lds(f"ds_read_b128 {v4(KF+16)}, v{vOc0}", "kf")
    a.lds(f"ds_read_b128 {v4(KF+4)}, v{vOa1}", "kf")
    a.lds(f"ds_read_b128 {v4(KF+12)}, v{vOb1} offset:256", "kf")
    a.lds(f"ds_read_b128 {v4(KF+20)}, v{vOc1}", "kf")
    a.wait(lg="all")
    MD = 64
    for hd in range(2):
        for ts in range(2):
            for tl in range(3):
                d = MD + (ts*3 + tl) * 4
                mfma(v4(d), v4(KF + tl*8 + hd*4), v4(WOF + (ts*2+hd)*4), "0" if hd == 0 else v4(d))
    for ts in range(2):
        d = MD + ts*12; o = 88 + ts*8
        for q in range(6):
            a(f"v_cvt_pk_bf16_f32 v{o+q}, v{d+2*q}, v{d+2*q+1}")
        a.vmem(f"buffer_store_dwordx4 {v4(o)}, v{vMS}, {srd(SWS)}, s{sMa if ts == 0 else sMc} offen sc1", "mst")
        a.vmem(f"buffer_store_dwordx2 {v2(o+4)}, v{vMR}, {srd(SWS)}, s{sMb if ts == 0 else sMd} offen offset:2048 sc1", "mst")
    bg.add(dma_c(2, sXB, 0))
    bg.tick(E2("AD", 10))
    a.wait(vm=[("c", 1)])
    run_ops(c_reads(0, vCR, 0))
    run_ops(c_reads(1, vCR, 10240))
    a.wait(vm="mst", lg="all")
    a("s_barrier")
    set_flag(FM, "LA_nf2", 240, wave=3)
    stamp(4)
    bg.flush()
    skip_math(196, 120)
    if E2("APRE", 0): poll_issue(K_vFM, K_vTmp, "0xfffff", "p1")
    else: poll_issue(K_vFB, K_vTmp, "0xff", "p2")
    a.wait(vm=[("c", 2)], lg="all")
    run_ops(c_reads(2, vXR, 0))
    k2(True)

def type_B():
    a("LtypeB:")
    M0[0] = None
    a.vm = []; a.lg = []
    bg = BG()
    U = ACC; Q = ACC + 80
    RING = [152 + 4*i for i in range(6)]
    LAM = 176
    XR = 216
    COEF = 216
    L8, L128 = 250, 248
    T = 176
    sSa, sSb, sSc, sSd = 54, 55, 56, 57
    sSS, sKX, sKD, sC1, sC2, sT8 = 60, 61, 40, 41, 46, 47
    SXR = 36
    sVAL = 34
    a(f"""s_and_b32 s{sT2}, s{sWV}, 1
s_mul_i32 s{sT3}, s{sT2}, 40
s_mul_i32 s{sT4}, s{sJ}, 80
s_add_u32 s{sT3}, s{sT3}, s{sT4}
s_mul_i32 s{sT3}, s{sT3}, 1280
s_lshl_b32 s{sT4}, s{sT2}, 6
v_xor_b32 v64, s{sT4}, v45
v_xor_b32 v65, s{sT4}, v46
v_add_u32 v{vW}, s{sT3}, v64
v_add_u32 v65, s{sT3}, v65
v_add_u32 v{vW+1}, {10240-1024}, v65
v_add_u32 v{vW+2}, {2*(10240-1024)}, v{vW}
v_add_u32 v{vW+3}, {3*(10240-1024)}, v65
v_add_u32 v{vW+4}, {4*10240}, v{vW}
s_mul_i32 s{sT4}, s{sJ}, 160
v_min_u32 v66, 79, v0
v_lshl_add_u32 v66, v66, 1, s{sT4}
v_mov_b32 v{T}, 0
v_mov_b32 v{T+1}, 0
v_mov_b32 v{T+2}, 0
s_mul_i32 s{sKQ}, s{sKA}, 1920
s_mul_i32 s{sKQ+1}, s{sKA+1}, 1920
s_mul_i32 s{sT5}, s{sT2}, {32*3840}
s_add_u32 s{sT5}, s{sT5}, s{sT4}""")
    args_ready()
    a(f"""s_cmp_ge_u32 s{sWV}, 2
s_cselect_b32 s{SW}, s{pBIM}, s{pBRE}
s_cselect_b32 s{SW+1}, s{pBIM+1}, s{pBRE+1}
s_and_b32 s{SW+1}, s{SW+1}, 0xffff""")
    def stage_dma(s):
        if s < 10: return dma_x(s) + dma_w(s, vW, SW, sKA + s)
        if s < 15: return dma_w(s, vQ, SQ, sKQ + (s - 10))
        return None
    a.vmem(f"global_load_short_d16_hi v{T}, v66, {sp(pLRE)}", "par")
    a.vmem(f"global_load_short_d16_hi v{T+1}, v66, {sp(pLIM)}", "par")
    a.vmem(f"global_load_short_d16_hi v{T+2}, v66, {sp(pLDT)}", "par")
    run_ops(stage_dma(0))
    a(f"s_mov_b32 s{SQ}, s{pQKV}\ns_and_b32 s{SQ+1}, s{pQKV+1}, 0xffff")
    wq_pattern(vQ, sT5)
    late_setup()
    a(f"s_cmp_ge_u32 s{sWV}, 2")
    for q in range(5): a(f"s_cselect_b32 s{sKQ+q}, s{sKQ+2*q+1}, s{sKQ+2*q}")
    a(f"""v_add_u32 v{vWR}, {L_W}, v56
v_add_u32 v{vWR+1}, {L_W}, v57
v_add_u32 v{vWR+2}, {L_W+40960}, v56
v_add_u32 v{vWR+3}, {L_W+40960}, v57""")
    aTW, aTR0, aTR1, aST, aEA, aPT, aSA, aXA, aXW, aHR, aZR, aLT, aSX, aSD = range(240, 254)
    def params():
        a.wait(vm="par")
        stamp(34)
        bg.tick(2)
        P = T + 4
        t0, t1, t2, t3 = T+16, T+17, T+18, T+19
        C = P + 8
        a(f"""v_mul_f32 v{T+2}, {LOG2E}, v{T+2}
v_exp_f32 v{T+2}, v{T+2}
s_nop 0
v_cvt_pk_bf16_f32 v{T+2}, v{T+2}, v{T+2}
v_lshlrev_b32 v{T+2}, 16, v{T+2}
v_mul_f32 v{t0}, v{T+2}, v{T}
v_mul_f32 v{t1}, v{T+2}, v{T+1}
v_mul_f32 v{t0}, {LOG2E}, v{t0}
v_mul_f32 v{t1}, 0.15915494, v{t1}
v_exp_f32 v{t0}, v{t0}
v_fract_f32 v{t1}, v{t1}
v_cos_f32 v{t2}, v{t1}
v_sin_f32 v{t3}, v{t1}
s_nop 0
v_mul_f32 v{P}, v{t0}, v{t2}
v_mul_f32 v{t3}, v{t0}, v{t3}
v_sub_f32 v{P+1}, 0, v{t3}
v_add_f32 v{t0}, -1.0, v{P}
v_mul_f32 v{t1}, v{T}, v{T}
v_fma_f32 v{t1}, v{T+1}, v{T+1}, v{t1}
v_rcp_f32 v{t1}, v{t1}
v_mul_f32 v{C}, v{t0}, v{T}
v_fma_f32 v{C}, v{t3}, v{T+1}, v{C}
v_mul_f32 v{C+1}, v{t3}, v{T}
v_fma_f32 v{C+1}, -v{t0}, v{T+1}, v{C+1}
v_add_f32 v{t1}, v{t1}, v{t1}
v_mul_f32 v{C}, v{C}, v{t1}
v_mul_f32 v{C+1}, v{C+1}, v{t1}""")
        def cmul(d, l, p):
            a(f"""v_pk_mul_f32 {v2(d)}, {v2(p)}, {v2(l)} op_sel_hi:[1,0]
v_pk_fma_f32 {v2(d)}, {v2(p)}, {v2(l)}, {v2(d)} op_sel:[1,1,0] op_sel_hi:[0,1,1] neg_lo:[0,1,0]""")
        bg.tick(3)
        cmul(P+2, P, P); cmul(P+4, P+2, P); cmul(P+6, P+2, P+2); cmul(L8, P+6, P+6)
        bg.tick(2)
        a(f"""v_mul_u32_u24 v{t0}, 48, v0
v_add_u32 v{t0}, {L_PT}, v{t0}
v_lshlrev_b32 v{t1}, 3, v0
v_add_u32 v{t1}, {L_LT}, v{t1}
v_mov_b32 v{T+20}, 1.0
v_mov_b32 v{T+21}, 0
v_cmp_gt_u32 vcc, 80, v0
s_and_saveexec_b64 {sp(sT2)}, vcc
s_cbranch_execz LB_nopar""")
        a(f"""v_lshlrev_b32 v{t2}, 3, v0
v_mov_b32 v{T+26}, s{sT8}
v_mov_b32 v{T+27}, s{sT8}
s_mul_i32 s{sT4}, s{sR}, 1280
s_add_u32 s{sT4}, s{sT4}, s{sSS}""")
        a.vmem(f"buffer_store_dwordx2 {v2(T+26)}, v{t2}, {srd(SWS)}, s{sT4} offen offset:640 sc1", "dst", certain=False)
        for q in range(3): a.lds(f"ds_write_b128 v{t0}, {v4(P+4*q)} offset:{16*q}", "pt", certain=False)
        a.lds(f"ds_write_b64 v{t1}, {v2(T+20)}", "pt", certain=False)
        a.lds(f"ds_write_b64 v{t1}, {v2(L8)} offset:640", "pt", certain=False)
        prev = L8
        for s in range(2, 17):
            d = (T + 22 + 2*(s % 2)) if s < 16 else L128
            cmul(d, L8, prev)
            if s < 16: a.lds(f"ds_write_b64 v{t1}, {v2(d)} offset:{s*640}", "pt", certain=False)
            prev = d
        a(f"""LB_nopar:
s_mov_b64 exec, {sp(sT2)}""")
    def stash():
        t0, t1 = T+16, T+17
        a(f"""s_lshl_b32 s{sT2}, s{sJ}, 5
s_add_u32 s{sT3}, s{sT2}, 15
s_sub_u32 s{sT3}, s{sT3}, s{sR}
s_mul_i32 s{sSS}, s{sT3}, 640
s_add_u32 s{sSS}, s{sSS}, {WS_SP}
s_add_u32 s{sT3}, s{sSS}, 640
s_mul_i32 s{sT2}, s{sJ}, {16*640}
s_add_u32 s{sT2}, s{sT2}, {WS_ZP}
s_cmp_ge_u32 s{sWV}, 2
s_cselect_b32 s{sT2}, s{sT2}, s{sT3}
s_cselect_b32 s{SXR+2}, 0, {16*640}
s_add_u32 s{SXR}, s{pWS}, s{sT2}
s_addc_u32 s{SXR+1}, s{pWS+1}, 0
s_and_b32 s{SXR+1}, s{SXR+1}, 0xffff
s_mov_b32 s{SXR+3}, 0x20000
s_movk_i32 s{sC1}, 3840
s_movk_i32 s{sC2}, 7680
s_cmp_ge_u32 s{sWV}, 2
s_movk_i32 s{sT2}, 80
s_cmov_b32 s{sT2}, {128+40}
s_cselect_b32 s{sT3}, 128, 0
s_mov_b32 s{sT4}, {L_HB}
s_cmov_b32 s{sT4}, {L_ZB}
v_cmp_gt_u32 {sp(sVAL)}, s{sT2}, v0
v_subrev_u32 v{t0}, s{sT3}, v0
v_lshlrev_b32 v{t0}, 3, v{t0}
v_add_u32 v{t1}, s{sT4}, v{t0}
v_accvgpr_write_b32 a{aXW}, v{t1}
v_mov_b32 v{t1}, {OOB}
v_cndmask_b32 v{t0}, v{t1}, v{t0}, {sp(sVAL)}
v_accvgpr_write_b32 a{aXA}, v{t0}
v_min_u32 v{t0}, 79, v0
v_lshlrev_b32 v{t0}, 3, v{t0}
v_add_u32 v{t0}, {L_EB}, v{t0}
v_accvgpr_write_b32 a{aSA}, v{t0}""")
        c_, g_, u0, u1, u2, u3 = T+8, T+9, T+10, T+11, T+12, T+13
        a(f"""v_and_b32 v{c_}, 15, v{vLANE}
v_lshrrev_b32 v{g_}, 4, v{vLANE}
v_mul_u32_u24 v{u0}, 48, v{c_}
v_add_u32 v{u0}, {L_PT}, v{u0}
v_accvgpr_write_b32 a{aPT}, v{u0}
v_lshrrev_b32 v{u0}, 4, v0
v_mul_u32_u24 v{u0}, 640, v{u0}
v_lshl_add_u32 v{u0}, v{c_}, 3, v{u0}
v_add_u32 v{u0}, {L_LT}, v{u0}
v_accvgpr_write_b32 a{aLT}, v{u0}
v_mul_u32_u24 v{u0}, 640, v{g_}
v_lshl_add_u32 v{u0}, v{c_}, 3, v{u0}
v_add_u32 v{u0}, s{sXB}, v{u0}
v_accvgpr_write_b32 a{aEA}, v{u0}
v_lshlrev_b32 v{u0}, 3, v{c_}
v_add_u32 v{u0}, {L_HB}, v{u0}
v_accvgpr_write_b32 a{aHR}, v{u0}
v_mul_u32_u24 v{u0}, 80, v{g_}
v_add_u32 v{u0}, {L_ZB}, v{u0}
v_accvgpr_write_b32 a{aZR}, v{u0}
v_bfe_u32 v{u0}, v{c_}, 1, 2
v_xor_b32 v{u0}, v{u0}, v{g_}
v_lshlrev_b32 v{u0}, 4, v{u0}
v_lshl_add_u32 v{u0}, v{c_}, 6, v{u0}
s_add_u32 s{sT2}, s{sXB}, 10240
v_add_u32 v{u0}, s{sT2}, v{u0}
v_accvgpr_write_b32 a{aTW}, v{u0}
v_bfe_u32 v{u0}, v{vLANE}, 2, 2
v_lshrrev_b32 v{u1}, 1, v{g_}
v_lshl_add_u32 v{u2}, v{u1}, 3, v{u0}
v_lshlrev_b32 v{u2}, 6, v{u2}
v_and_b32 v{u3}, 1, v{g_}
v_lshl_add_u32 v{u2}, v{u3}, 3, v{u2}
v_add_u32 v{u2}, s{sT2}, v{u2}
v_lshrrev_b32 v{u0}, 1, v{u0}
v_and_b32 v{g_}, 3, v{vLANE}
v_xor_b32 v{u0}, v{u0}, v{g_}
v_lshl_add_u32 v{g_}, v{u0}, 4, v{u2}
v_accvgpr_write_b32 a{aTR0}, v{g_}
v_xor_b32 v{u0}, 2, v{u0}
v_lshl_add_u32 v{g_}, v{u0}, 4, v{u2}
v_add_u32 v{g_}, 256, v{g_}
v_accvgpr_write_b32 a{aTR1}, v{g_}
v_mul_u32_u24 v{u3}, {RT}, v{u3}
v_lshl_add_u32 v{u3}, v{u1}, 8, v{u3}
v_lshl_add_u32 v{u3}, v{c_}, 4, v{u3}
v_accvgpr_write_b32 a{aST}, v{u3}
s_lshl_b32 s{sT2}, s{sR}, 3
s_lshl_b32 s{sT3}, s{sWV}, 1
s_add_u32 s{sT2}, s{sT2}, s{sT3}
s_mul_i32 s{sT2}, s{sT2}, {RT}
s_mul_i32 s{sT3}, s{sJ}, 2560
s_add_u32 s{sSa}, s{sT2}, s{sT3}
s_add_u32 s{sSb}, s{sSa}, 20480
s_add_u32 s{sSc}, s{sSa}, 40960
s_add_u32 s{sSd}, s{sSc}, {RT}""")
    stash()
    skip_setup(T+8, sKX, sKD)
    a(f"v_accvgpr_write_b32 a{aSX}, v{T+8}")
    tag_ready()
    a(f"s_and_b32 s{sT8}, s{sTAG}, 0xff")
    bg.add(stage_dma(1))
    stamp(0)
    params()
    bg.flush()
    a.wait(lg="all")
    stamp(35)
    XA = lambda s, ks, m: s * 16 + ks * 8 + m * 4
    def x_reads(s):
        if s >= 10: return {}
        def mk(ks):
            return [(lambda m=m: a.lds(f"ds_read_b128 {a4(XA(s, ks, m))}, v{vXR+ks} offset:{(s%4)*4096 + m*2048}", ("x", s, ks))) for m in range(2)]
        return {0: mk(0), 10: mk(1)}
    def read_frag(s, i, reg):
        sl = s % 4
        if s < 10:
            ks, t = divmod(i, 10)
            c5, part = divmod(t, 2)
            return [lambda: a.lds(f"ds_read_b128 {v4(reg)}, v{vWR + (sl//2)*2 + ks} offset:{(sl%2)*20480 + part*10240 + c5*2048}", ("w", s, i))]
        else:
            k4, Tt = divmod(i, 5)
            return [(lambda hh=hh: a.lds(f"ds_read_b64_tr_b16 {v2(reg+2*hh)}, v{vT40 + (sl//2)*2 + hh} offset:{(sl%2)*20480 + k4*5120 + 8*Tt}", ("w", s, i))) for hh in range(2)]
    def mfmas(s, i, reg):
        out = []
        if s < 10:
            ks, t = divmod(i, 10)
            for m in range(2):
                d = U + t*8 + m*4
                c = "0" if (s == 0 and ks == 0) else v4(d)
                out.append(lambda d=d, m=m, c=c: mfma(v4(d), a4(XA(s, ks, m)), v4(reg), c))
        else:
            k4, Tt = divmod(i, 5)
            xs, ks = 2*(s-10) + k4//2, k4 % 2
            for m in range(2):
                d = Q + Tt*8 + m*4
                c = "0" if (s == 10 and k4 == 0) else v4(d)
                out.append(lambda d=d, m=m, c=c: mfma(v4(d), v4(reg), a4(XA(xs, ks, m)), c))
        return out
    def ur(c5, i): return U + (2*c5)*8 + 2*i
    def ui(c5, i): return U + (2*c5+1)*8 + 2*i
    LO = "op_sel_hi:[1,0,1]"
    HI = "op_sel:[0,1,0] op_sel_hi:[1,1,1]"
    NEG = "neg_lo:[0,1,0] neg_hi:[0,1,0]"
    vEA, vSA, vXA, vPT = vX, vX+1, vX+2, vX+3
    vTW, vTR0, vTR1, vST, vL16 = vW, vW+1, vW+2, vW+3, vW+4
    vXW, vHR, vZR, vLT = vWR, vWR+1, vWR+2, vWR+3
    def mk_ptread(c5):
        def f():
            if c5 == 0: a(f"v_accvgpr_read_b32 v{vPT}, a{aPT}")
            a.lds(f"ds_read_b128 {v4(LAM + c5*8)}, v{vPT} offset:{c5*768}", "ptr")
            a.lds(f"ds_read_b128 {v4(LAM + c5*8 + 4)}, v{vPT} offset:{c5*768 + 16}", "ptr")
            a.lds(f"ds_read_b64 {v2(COEF + c5*2)}, v{vPT} offset:{c5*768 + 32}", "ptr")
            if c5 == 4: a(f"v_accvgpr_read_b32 v{vEA}, a{aEA}\nv_accvgpr_read_b32 v{vSA}, a{aSA}\nv_accvgpr_read_b32 v{vXA}, a{aXA}")
        return f
    def scan1():
        stamp(1)
        tA, tB = 228, 230
        for c5 in range(5):
            c = COEF + c5*2
            for i in range(4):
                r_, i_ = ur(c5, i), ui(c5, i)
                a(f"""v_pk_mul_f32 {v2(tA)}, {v2(r_)}, {v2(c)} op_sel_hi:[1,0]
v_pk_mul_f32 {v2(tB)}, {v2(r_)}, {v2(c)} op_sel:[0,1] op_sel_hi:[1,1] neg_lo:[0,1] neg_hi:[0,1]
v_pk_fma_f32 {v2(r_)}, {v2(i_)}, {v2(c)}, {v2(tA)} {HI} {NEG}
v_pk_fma_f32 {v2(i_)}, {v2(i_)}, {v2(c)}, {v2(tB)} {LO} {NEG}""")
            l = LAM + c5*8
            for i in range(1, 4):
                a(f"""v_pk_fma_f32 {v2(ur(c5,i))}, {v2(ur(c5,i-1))}, {v2(l)}, {v2(ur(c5,i))} {LO}
v_pk_fma_f32 {v2(ui(c5,i))}, {v2(ui(c5,i-1))}, {v2(l)}, {v2(ui(c5,i))} {LO}
v_pk_fma_f32 {v2(ur(c5,i))}, {v2(ui(c5,i-1))}, {v2(l)}, {v2(ur(c5,i))} {HI} {NEG}
v_pk_fma_f32 {v2(ui(c5,i))}, {v2(ur(c5,i-1))}, {v2(l)}, {v2(ui(c5,i))} {HI}""")
            l4 = l + 6
            cmul_acc(c, c+1, l4, l4+1, ur(c5,3), ui(c5,3), ur(c5,3)+1, ui(c5,3)+1)
            a.lds(f"ds_write_b64 v{vEA}, {v2(c)} offset:{L_EB + c5*128}", "ew")
            bg.tick(2)
            if c5 == E2("WARMAT", 0): bg.flush(); warm_c(pCRE, vWR)()
        a.wait(lg="all")
        a("s_barrier")
        a(f"s_cmp_ge_u32 s{sWV}, 2\ns_cbranch_scc1 LB_nocarry1")
        E0 = XR
        tA, tB = 252, vPT
        for s in range(0, 16, 2):
            a(f"ds_read2_b64 {v4(E0 + 2*s)}, v{vSA} offset0:{(s%4)*80} offset1:{(s%4)*80+80}")
            if s % 4 == 2 and s < 14: a(f"v_add_u32 v{vSA}, 16384, v{vSA}")
        a(f"""v_mov_b32 v{tA}, 0
v_mov_b32 v{tA+1}, 0
v_mov_b32 v{tB}, s{sTAG}
s_movk_i32 s{sT3}, 0xff
v_subrev_u32 v{vSA}, {3*16384}, v{vSA}""")
        for s in range(1, 16):
            if s % 2 == 0 or s == 1: a(f"s_waitcnt lgkmcnt({7 - s//2})")
            pk_cmul_acc(E0+2*s, L8, E0+2*s-2, E0+2*s)
        a(f"""v_bfi_b32 v{E0+30}, s{sT3}, v{tB}, v{E0+30}
v_bfi_b32 v{E0+31}, s{sT3}, v{tB}, v{E0+31}""")
        a.vmem(f"buffer_store_dwordx2 {v2(E0+30)}, v{vXA}, {srd(SWS)}, s{sSS} offen sc1", "sst", certain=False)
        a(f"s_mov_b64 exec, {sp(sVAL)}\nds_write_b64 v{vSA}, {v2(tA)}")
        for s in range(15):
            a(f"ds_write_b64 v{vSA}, {v2(E0+2*s)} offset:{((s+1)//4)*16384 + ((s+1)%4)*640}")
        a("s_mov_b64 exec, -1\nLB_nocarry1:")
        stamp(2)
    def x_loads(tracked, cnt):
        ops = []
        for n in range(cnt - 1, -1, -1):
            def f(n=n):
                so = ["0", f"s{sC1}", f"s{sC2}"][n // 6]
                t = f"buffer_load_dwordx2 {v2(XR + 2*n)}, v{vXA}, {srd(SXR)}, {so} offen offset:{(n % 6)*640} sc1"
                if tracked: a.vmem(t, "xl")
                else: a(t)
            ops.append(("d", f))
        return ops
    def x_check(sfx, defer):
        cnt = 16 if defer else 15
        a(f"s_mov_b32 s{sSPIN}, 0\nLB_xt{sfx}:")
        for n in range(cnt - 1, -1, -1):
            r = XR + 2*n
            a(f"v_xor_b32 v{r}, s{sT8}, v{r}\nv_xor_b32 v{r+1}, s{sT8}, v{r+1}")
            if n == cnt - 1: a(f"v_or_b32 v250, v{r}, v{r+1}")
            else:
                a(f"v_or3_b32 v250, v250, v{r}, v{r+1}")
                if defer: a(f"v_pk_add_f32 {v2(r)}, {v2(r)}, {v2(r+2)}")
                else: pk_cmul_acc(r, L128, r+2, r)
        a(f"""v_and_b32 v250, 0xff, v250
v_cmp_ne_u32 vcc, 0, v250
s_add_u32 s{sSPIN}, s{sSPIN}, 1
s_and_b64 vcc, vcc, {sp(sVAL)}
s_cmp_gt_u32 s{sSPIN}, 0x20000
s_cbranch_scc1 LB_xok{sfx}
s_cbranch_vccz LB_xok{sfx}""")
        run_ops(x_loads(False, cnt))
        a(f"""s_waitcnt vmcnt(0)
s_branch LB_xt{sfx}
LB_xok{sfx}:
{'v_writelane_b32 v254, s96, 40' if STAMPS else ''}""")
        if defer:
            a(f"""v_cvt_pk_bf16_f32 v250, v{XR}, v{XR+1}
v_lshlrev_b32 v{XR}, 16, v250
v_and_b32 v{XR+1}, 0xffff0000, v250""")
        a(f"""s_mov_b64 exec, {sp(sVAL)}
ds_write_b64 v{vXW}, {v2(XR)}
s_mov_b64 exec, -1
LB_xe{sfx}:""")
    def start_x():
        bg.add(x_loads(True, 15)); bg.fast = True
    def c_start(slot):
        def f():
            a.wait(lg=[("cr", 0)])
            bg.add(dma_c(slot, sXB, 0)); bg.fast = True
        return f
    def c_read(slot):
        def f():
            bg.flush()
            a.wait(vm=[("c", slot)])
            bg.add(c_reads(slot, vXR, 0)); bg.fast = True
        return f
    hooks = {(10, 0): scan1, (12, E2('C0S', 14)): c_start(0), (13, 12): c_read(0), (14, 2): start_x, (13, 0): (lambda: bg.add([('s', lambda: a(f'v_accvgpr_read_b32 v252, a{aSX}'))] + skip_loads(252, sKX, sKD, sWB, 3*20480)))}
    for c5 in range(5): hooks[(9, 2*c5 + 1)] = mk_ptread(c5)
    gemm_loop(15, 20, read_frag, mfmas, x_reads, stage_dma, bg, RING, 6, hooks)
    bg.flush()
    stamp(3)
    run_ops(skip_reads(172, sWB, 3*20480, 0))
    bg.add(dma_c(1, sXB, 0)); bg.add(dma_c(3, sCW, 0)); bg.add(dma_c(4, sCW, 10240))
    bg.tick(E2("PT0", 4))
    for vr, ar in ((vTW, aTW), (vTR0, aTR0), (vTR1, aTR1), (vST, aST), (vXW, aXW), (vHR, aHR), (vZR, aZR), (vLT, aLT)):
        a(f"v_accvgpr_read_b32 v{vr}, a{ar}")
    a(f"v_lshlrev_b32 v{vL16}, 4, v{vLANE}")
    H = 152
    for c5 in range(5):
        a.lds(f"ds_read_b64 {v2(H+4*c5)}, v{vEA} offset:{L_EB + c5*128}", "pl")
        a.lds(f"ds_read_b64 {v2(H+4*c5+2)}, v{vLT} offset:{c5*128}", "pl")
    bg.tick(E2("PT1", 6))
    a(f"s_cmp_lg_u32 s{sWV}, 2\ns_cbranch_scc1 LB_nz\ns_movk_i32 s{SXR+2}, {16*640}")
    run_ops(x_loads(False, 16))
    a("LB_nz:")
    a(f"s_cmp_ge_u32 s{sWV}, 2\ns_cbranch_scc1 LB_xe1\ns_waitcnt vmcnt({a._cnt(a.vm, 'xl')[0]})")
    x_check("1", False)
    a.wait(lg="all")
    a("s_barrier")
    stamp(4)
    HR = vQ + 1
    HRS = [12, 14, 22, 24, 172]
    for c5 in range(5):
        a.lds(f"ds_read_b64 {v2(HRS[c5])}, v{vHR} offset:{c5*128}", ("hin", c5))
    def trd(c5, part):
        for hh in range(2):
            a.lds(f"ds_read_b64_tr_b16 {v2(U + (2*c5+part)*8 + 4 + 2*hh)}, v{vTR0+hh} offset:{((c5%3)*2+part)*1024}", ("tr", c5, part))
    def tst(c5, part):
        a.wait(lg=[("tr", c5, part)])
        a.vmem(f"buffer_store_dwordx4 {v4(U + (2*c5+part)*8 + 4)}, v{vST}, {srd(SWS)}, s{sSa if part == 0 else sSb} offen offset:{c5*512} sc1", "ast")
    for c5 in range(5):
        h = H + 4*c5; lam = LAM + c5*8
        a.wait(lg=[("hin", c5)])
        pk_cmul_acc(h, h+2, HRS[c5], h)
        a(f"v_mov_b32 v{h+2}, v{h+1}")
        cmul_acc(h+1, h+3, lam+6, lam+7, h, h+2, ur(c5,3), ui(c5,3))
        for part in range(2):
            for i in range(4):
                l = lam + 2*i
                if part == 0: a(f"v_pk_fma_f32 {v2(ur(c5,i))}, {v2(h)}, {v2(l)}, {v2(ur(c5,i))} {LO}")
                else: a(f"v_pk_fma_f32 {v2(ui(c5,i))}, {v2(h+2)}, {v2(l)}, {v2(ui(c5,i))} {LO}")
            k = 2*c5 + part
            if k >= 1: trd((k-1)//2, (k-1) % 2)
            for i in range(4):
                l = lam + 2*i
                if part == 0: a(f"v_pk_fma_f32 {v2(ur(c5,i))}, {v2(h+2)}, {v2(l)}, {v2(ur(c5,i))} {HI} {NEG}")
                else: a(f"v_pk_fma_f32 {v2(ui(c5,i))}, {v2(h)}, {v2(l)}, {v2(ui(c5,i))} {HI}")
            if k >= 2: tst((k-2)//2, (k-2) % 2)
            src = U + k*8
            for q in range(4): a(f"v_cvt_pk_bf16_f32 v{src+q}, v{src+2*q}, v{src+2*q+1}")
            a.lds(f"ds_write_b128 v{vTW}, {v4(src)} offset:{((c5%3)*2+part)*1024}", ("tw", c5))
    trd(4, 1)
    tst(4, 0)
    tst(4, 1)
    stamp(32)
    a.wait(vm=[("c", 1)])
    a(f"s_mov_b32 s{sT4}, {LOG2E}")
    cr1 = c_reads(1, vXR, 0)
    for n in range(10):
        if n == E2("PHF", 7):
            a.wait(vm="ast")
            a("s_barrier")
            set_flag(FB, "LB_nf", 152, wave=3)
            stamp(36)
        phi([Q + 4*n, Q + 4*n + 2], sT4, 172, NT=2)
        cr1[n][1]()
        if n >= E2("PHS", 0): bg.tick(E2("PHT", 1))
    a(f"s_cmp_lg_u32 s{sWV}, 2\ns_cbranch_scc1 LB_xe2")
    x_check("2", True)
    a.wait(lg="all")
    a("s_barrier")
    stamp(33)
    Z = 176
    for q in range(5): a.lds(f"ds_read_b128 {v4(Z+4*q)}, v{vZR} offset:{16*q}", ("zr", q))
    DN = 196
    for Tt in range(5):
        a.wait(lg=[("zr", Tt)])
        for q in range(2):
            for m in range(2):
                d = DN + 2*m
                r = Q + Tt*8 + m*4 + 2*q; z = Z + Tt*4 + 2*q
                if Tt == 0 and q == 0: a(f"v_pk_mul_f32 {v2(d)}, {v2(r)}, {v2(z)}")
                else: a(f"v_pk_fma_f32 {v2(d)}, {v2(r)}, {v2(z)}, {v2(d)}")
    a(f"""v_add_f32 v{DN}, v{DN}, v{DN+1}
v_add_f32 v{DN+2}, v{DN+2}, v{DN+3}
v_add_f32 v{DN}, 0x358637bd, v{DN}
v_add_f32 v{DN+2}, 0x358637bd, v{DN+2}
v_rcp_f32 v{DN}, v{DN}
v_rcp_f32 v{DN+2}, v{DN+2}""")
    WP = 200
    for m in range(2):
        d = DN + 2*m
        for hf in range(3):
            for Tt in ((0, 1), (2, 3), (4,))[hf]:
                for q in range(2):
                    r = Q + Tt*8 + m*4 + 2*q
                    a(f"v_pk_mul_f32 {v2(r)}, {v2(r)}, {v2(d)} op_sel_hi:[1,0]")
            for Tt in ((0, 1), (2, 3), (4,))[hf]:
                for q in range(2):
                    r = Q + Tt*8 + m*4 + 2*q
                    dst = (WP + m*8 + Tt*2 + q) if Tt < 4 else (216 + m*2 + q)
                    a(f"v_cvt_pk_bf16_f32 v{dst}, v{r}, v{r+1}")
            if hf < 2:
                a.vmem(f"buffer_store_dwordx4 {v4(WP + m*8 + hf*4)}, v{vL16}, {srd(SWS)}, s{sSc if m == 0 else sSd} offen offset:{hf*1024} sc1", "ast")
    a("v_permlane16_swap_b32 v216, v218\nv_permlane16_swap_b32 v217, v219")
    a.vmem(f"buffer_store_dwordx4 v[216:219], v{vST}, {srd(SWS)}, s{sSc} offen offset:2048 sc1", "ast")
    stamp(5)
    bg.add(dma_c(2, sXB, 0))
    bg.tick(E2("DT", 4))
    k2_setup(160, bg)
    bg.tick(E2("DT2", 1))
    a.wait(vm="ast")
    a("s_barrier")
    set_flag(FW, "LB_nf2", 240, wave=3)
    stamp(6)
    poll_issue(K_vFB, K_vTmp, "0xff", "p2")
    skip_math(196, 0, bg)
    bg.flush()
    a.wait(vm=[("c", 3)])
    run_ops(c_reads(3, vCR, 0))
    a.wait(vm=[("c", 4)], lg="all")
    run_ops(c_reads(4, vCR, 10240))
    a.wait(vm=[("c", 2)], lg="all")
    run_ops(c_reads(2, vXR, 0))
    k2(False)

K2STATE = []
def k2(isA):
    sf = "A" if isA else "B"
    AH, AB = K_AH, K_AB
    NS = 12
    STG = [196 + 4*i for i in range(NS)]
    vA, vM, vFB, vFM, vGA, vRW, vTmp, vG, sMT = K_vA, K_vM, K_vFB, K_vFM, K_vGA, K_vRW, K_vTmp, K_vG, K_sMT
    MH = [f"a[{120+4*n}:{123+4*n}]" for n in range(10)] + [f"a[{240+4*n}:{243+4*n}]" for n in range(4)] + [v4(152+4*n) for n in range(11)]
    extra = []
    def g_load(i):
        a(f"""s_lshl_b32 s{sT2}, s{sRB}, 2
s_add_u32 s{sT2}, s{sT2}, s{sMT+i}
s_lshl_b32 s{sT2}, s{sT2}, 6
s_add_u32 s{sT2}, s{sT2}, {WS_G}""")
        a.vmem(f"buffer_load_dword v{vG+2*i}, v{vGA}, {srd(SWS)}, s{sT2} offen sc1", "g")
    for i in range(5):
        for nt in range(5):
            extra.append(lambda i=i, nt=nt: a.vmem(f"buffer_load_dwordx4 {MH[i*5+nt]}, v{vM+nt}, {srd(SWS)}, s{sKQ+i} offen sc1", "M"))
    for i in range(4): extra.append(lambda i=i: g_load(i))
    def fl_issue(va, off, mask, tag):
        a(f"s_mov_b64 exec, {mask}")
        a.vmem(f"buffer_load_dword v{vTmp}, v{va}, {srd(SWS)}, {off} offen sc1", tag)
        a("s_mov_b64 exec, -1")
    def fl_check(va, off, mask, tag):
        a.wait(vm=tag)
        L = a.label("LK_fl"); C = a.label("LK_fc"); X = a.label("LK_fe")
        a(f"""s_mov_b64 exec, {mask}
s_mov_b32 s{sSPIN}, 0
s_branch {C}
{L}:
buffer_load_dword v{vTmp}, v{va}, {srd(SWS)}, {off} offen sc1
s_add_u32 s{sSPIN}, s{sSPIN}, 1
s_waitcnt vmcnt(0)
{C}:
v_cmp_ne_u32 vcc, s{sTAG}, v{vTmp}
s_cmp_gt_u32 s{sSPIN}, 0x20000
s_cbranch_scc1 {X}
s_cbranch_vccnz {L}
{X}:
s_mov_b64 exec, -1""")
    a.wait(lg="all")
    stamp(7)
    pre = isA and E2("APRE", 0)
    MS = E2("MSA", 0) if isA else E2("MSB", 6)
    if pre:
        if a._cnt(a.vm, "p1") is None: a.vm.insert(0, ("p1", False))
        poll_finish(vFM, vTmp, "0xfffff", "p1")
        stamp(13)
        poll_issue(vFB, vTmp, "0xff", "p2")
        for f in extra: f()
        extra = []
    else:
        stamp(13)
        if a._cnt(a.vm, "p2") is None: a.vm.insert(0, ("p2", False))
    poll_finish(vFB, vTmp, "0xff", "p2")
    stamp(8)
    a(f"v_subrev_u32 v{vFB}, {FB - FW}, v{vFB}")
    frags = [("h", i, ks, mt) for i in range(5) for ks in range(2) for mt in range(4)] + [("w", i, 0, mt) for mt in range(4) for i in range(5)]
    def issueA(n):
        kind, i, ks, mt = frags[n]
        r = STG[n % NS]
        if kind == "h": a.vmem(f"buffer_load_dwordx4 {v4(r)}, v{vA+mt}, {srd(SWS)}, s{sKA+i} offen offset:{ks*1024} sc1", ("A", n))
        else: a.vmem(f"buffer_load_dwordx4 {v4(r)}, v{vA+mt}, {srd(SWS)}, s{sKA+5+i} offen sc1", ("A", n))
    PI = min(NS, MS)
    for n in range(NS):
        if n == PI and not pre: fl_issue(vFM, 0, "0xfffff", "pfm")
        issueA(n)
    def g_prep():
        a.wait(vm="g")
        for i in range(4):
            g = vG + 2*i
            a(f"""v_sub_f32 v{g+1}, 1.0, v{g}
v_cvt_pk_bf16_f32 v{g+1}, v{g+1}, v{g+1}
v_lshlrev_b32 v{g+1}, 16, v{g+1}
s_mul_i32 s{sMT+i}, s{sMT+i}, {16*320}""")
    def scale_ops(mt, nt):
        g = vG + 2*mt; h = AH + (mt*5+nt)*4
        return [(lambda q=q: a(f"v_mul_f32 v{h+q}, v{g}, v{h+q}\nv_mul_f32 v{h+q+1}, v{g}, v{h+q+1}")) for q in (0, 2)]
    def fin_ops(mt, nt, pk=False):
        g = vG + 2*mt; h = AH + (mt*5+nt)*4; b = AB[mt % 2] + nt*4
        if pk: ops = [(lambda q=q: a(f"v_pk_fma_f32 {v2(h+q)}, {v2(b+q)}, {v2(g)}, {v2(h+q)} op_sel:[0,1,0] op_sel_hi:[1,1,1]")) for q in (0, 2)]
        else: ops = [(lambda q=q: a(f"v_fmac_f32 v{h+q}, v{g+1}, v{b+q}\nv_fmac_f32 v{h+q+1}, v{g+1}, v{b+q+1}")) for q in (0, 2)]
        def w():
            if nt == 0: a(f"v_add_u32 v{vTmp}, s{sMT+mt}, v{vRW}")
            a.lds(f"ds_write_b128 v{vTmp}, {v4(h)} offset:{nt*64}", "red")
        return ops + [w]
    for n in range(60):
        kind, i, ks, mt = frags[n]
        a.wait(vm=[("A", n)])
        if n == 0: stamp(14)
        if n == MS and not pre: fl_check(vFM, 0, "0xfffff", "pfm")
        if n == 40 - NS - 10: fl_issue(vFB, 0, "0xff", "pfw")
        if n == 40 - NS: fl_check(vFB, 0, "0xff", "pfw")
        if n == 40:
            if isA:
                a("s_branch LKW")
                K2STATE.append(list(a.vm))
                return
            tail = K2STATE[0]
            assert [t for t, _ in a.vm[-len(tail):]] == [t for t, _ in tail], (a.vm, tail)
            a("LKW:")
            stamp(15)
            assert not extra
            g_prep()
        fill = []
        if kind == "h" and extra and n >= MS:
            fill = [lambda: None, extra.pop(0)]
            if extra and len(extra) >= 27 - n: fill += [lambda: None, extra.pop(0)]
        if kind == "w":
            fill = scale_ops(mt, i) + (fin_ops(mt-1, i) if mt > 0 else [])
        for nt in range(5):
            if kind == "h":
                d = AH + (mt*5 + nt)*4
                first = (i == 0 and ks == 0 and mt != 0)
                fa = a4(CHOME[i] + (ks*5+nt)*4)
            else:
                d = AB[mt % 2] + nt*4
                first = (i == 0)
                fa = MH[i*5 + nt]
            mfma(v4(d), fa, v4(STG[n % NS]), "0" if first else v4(d))
            if fill: fill.pop(0)()
        if n + NS < 60: issueA(n + NS)
    stamp(9)
    for nt in range(5):
        for f in fin_ops(3, nt, True): f()
    a(f"""s_cmp_lg_u32 s{sRB}, 31
s_cbranch_scc1 LK_ne
s_or_b32 s{sT2}, s{sWV}, s{sCT}
s_cmp_lg_u32 s{sT2}, 0
s_cbranch_scc1 LK_ne
v_mov_b32 v196, {WS_EPOCH}
v_mov_b32 v197, s{sTAG}
s_mov_b64 exec, 1
buffer_store_dword v197, v196, {srd(SWS)}, 0 offen sc1
s_mov_b64 exec, -1
LK_ne:""")
    a.wait(lg="all")
    a("s_barrier")
    R = 32
    for n in range(5):
        for w in range(4):
            a.lds(f"ds_read_b128 {v4(R + (n*4+w)*4)}, v{K_FL} offset:{w*64*320 + n*64}", ("rr", n))
    for n in range(5):
        a.wait(lg=[("rr", n)])
        r = R + n*16
        a(f"""v_pk_add_f32 {v2(r)}, {v2(r)}, {v2(r+4)}
v_pk_add_f32 {v2(r+2)}, {v2(r+2)}, {v2(r+6)}
v_pk_add_f32 {v2(r+8)}, {v2(r+8)}, {v2(r+12)}
v_pk_add_f32 {v2(r+10)}, {v2(r+10)}, {v2(r+14)}
v_pk_add_f32 {v2(r)}, {v2(r)}, {v2(r+8)}
v_pk_add_f32 {v2(r+2)}, {v2(r+2)}, {v2(r+10)}""")
        a.vmem(f"buffer_store_dwordx4 {v4(r)}, v{K_FO}, {srd(SOUT)}, 0 offen offset:{n*64} {os.environ.get('OST', '').replace('_', ' ')}", "ost")
    stamp(10)
    stamp_flush()
    if E("PADUS"):
        a(f"""s_waitcnt vmcnt(0)
Lpad:
s_memrealtime s[96:97]
s_waitcnt lgkmcnt(0)
s_sub_u32 s96, s96, s{sST}
s_cmp_lt_u32 s96, {E("PADUS")*100}
s_cbranch_scc1 Lpad""")
    a("Lend:\ns_endpgm\nLcode_end:\n.fill 320, 4, 0xbf800000")

prologue()
type_A()
type_B()
body = a.text()
hdr = open("gated_mix__ssm_conv_s5__linear_attn_block__prompt.s.ref").read().split("; Override launch")[0]
src = hdr + f"; @launch grid=(256,1,1) block=(256,1,1) lds={LDS_BYTES}\n" + HEADER + kernel_begin(NAME) + body + kernel_desc(NAME, 512, 102, 256)
out = sys.argv[1] if len(sys.argv) > 1 else "k.s"
open(out, "w").write(src)
print("written", out, "nops inserted:", a.nnop, "lines", src.count("\n"))
```

```python
import sys, os
sys.path.insert(0, "work")
from asmlib import *

STAMPS = int(os.environ.get("STAMPS", "0"))
E = lambda k: int(os.environ.get(k, "0"))
E2 = lambda k, d: int(os.environ.get(k, str(d)))
STGST = int(os.environ.get("STGST", "0"))
NODMA = int(os.environ.get("NODMA", "0"))
NOMFMA = int(os.environ.get("NOMFMA", "0"))
NOREAD = int(os.environ.get("NOREAD", "0"))
LOOKA = int(os.environ.get("LOOK", "5"))

WS_A = 0
WS_M = 0x800000
WS_KVP = 0x900000
WS_ZP = 0xA00000
WS_SP = 0xA40000
WS_G = 0xA80000
WS_FL = 0xB00000
FS = E2("FS", 128)
FW, FM, FB = WS_FL, WS_FL + 0x100000, WS_FL + 0x200000
WS_EPOCH = 0xAC0000
WS_SIZE = 0xE00000
WS_STAMP = 0xC000000
OOB = 0x40000000
RT = 61440
L_W = 65536
L_SCR = 147456
L_PT = L_SCR
L_LT = L_SCR + 3840
L_ZB = L_LT + 10240
L_HB = L_ZB + 320
L_EB = 10240
L_GW = L_SCR
L_WO = L_SCR + 2048
L_KVB = L_WO + 7168
LDS_BYTES = 163840
sWV, sR, sJ, sTAG, sT0 = 3, 4, 5, 6, 7
SX, SW, SQ, SWS, SOUT = 8, 12, 16, 20, 24
sRB, sCT, sOFF, sT1 = 28, 29, 30, 31
pX, pLRE, pLIM, pBRE, pBIM, pCRE, pCIM, pLDT, pDSK, pBX, pQKV, pWO, pGW, pOUT, pDBG, pWS = range(32, 64, 2)
sKA = 64
sKQ = 74
sLC = 84
sXB, sWB, sCW = 89, 90, 91
sT2, sT3, sT4, sT5 = 92, 93, 94, 95
sSPIN = 96
sJL = 101
sST = 98
sM0, sM1 = 50, 51
vTID, vLANE = 0, 1
vX = 2
vW = 6
vQ = 11
vXR = 16
vWR = 18
vT40 = 22
vC = 26
vCR = 30
ACC = 32

def srd(n): return f"s[{n}:{n+3}]"
def sp(n): return f"s[{n}:{n+1}]"
def v4(n): return f"v[{n}:{n+3}]"
def v2(n): return f"v[{n}:{n+1}]"
def a4(n): return f"a[{n}:{n+3}]"

a = Asm()
nstamp = [0]
def stamp(idx, existing=False):
    if not STAMPS: return
    if not existing: a(f"s_memrealtime {sp(sST)}\ns_memtime s[96:97]")
    a(f"""s_waitcnt lgkmcnt(0)
v_writelane_b32 v254, s{sST}, {idx}
v_writelane_b32 v255, s96, {idx}""")
    a.lg = []

def stamp_flush():
    if not STAMPS: return
    a(f"""s_lshl_b32 s96, s2, 2
s_add_u32 s96, s96, s{sWV}
s_lshl_b32 s96, s96, 9
v_lshl_add_u32 v253, v{vLANE}, 3, s96
s_add_u32 s{sST}, s{pWS}, {WS_STAMP}
s_addc_u32 s{sST+1}, s{pWS+1}, 0
global_store_dwordx2 v253, v[254:255], {sp(sST)}""")

def mfma(d, A, B, C):
    a(f"v_mfma_f32_16x16x32_bf16 {d}, {A}, {B}, {C}")

def mk_srd(n, ptr, size):
    a(f"s_mov_b32 s{n}, s{ptr}\ns_and_b32 s{n+1}, s{ptr+1}, 0xffff\ns_mov_b32 s{n+2}, {size}\ns_mov_b32 s{n+3}, 0x20000")

POLLOP, POLLFL = ('buffer_load_dword', 'sc1') if E('LDPOLL') else ('buffer_atomic_add', 'sc0 sc1')
def poll_issue(vaddr, vtmp, execmask, tag):
    a(f"s_cmp_eq_u32 s{sWV}, 0\ns_cselect_b32 s{sT0}, 0, {OOB}\ns_mov_b64 exec, {execmask}\nv_mov_b32 v{vtmp}, 0")
    a.vmem(f"{POLLOP} v{vtmp}, v{vaddr}, {srd(SWS)}, s{sT0} offen {POLLFL}", tag)
    a("s_mov_b64 exec, -1")
def poll_finish(vaddr, vtmp, execmask, tag):
    L = a.label("Lpoll"); E_ = a.label("Lpolle"); C = a.label("Lpollc"); S = a.label("Lpolls")
    n = a._cnt(a.vm, tag)[0]
    a(f"""s_cmp_lg_u32 s{sWV}, 0
s_cbranch_scc1 {S}
s_mov_b64 exec, {execmask}
s_mov_b32 s{sSPIN}, 0
s_waitcnt vmcnt({min(n, 63)})
s_branch {C}
{L}:
v_mov_b32 v{vtmp}, 0
{'s_sleep %d' % E('SLP') if E('SLP') else ''}
{POLLOP} v{vtmp}, v{vaddr}, {srd(SWS)}, 0 offen {POLLFL}
s_add_u32 s{sSPIN}, s{sSPIN}, 1
s_waitcnt vmcnt(0)
{C}:
v_cmp_ne_u32 vcc, s{sTAG}, v{vtmp}
s_cmp_gt_u32 s{sSPIN}, 0x20000
s_cbranch_scc1 {E_}
s_cbranch_vccnz {L}
{E_}:
s_mov_b64 exec, -1
{S}:
s_barrier""")

def wq_pattern(dst, sadd):
    for i in range(5):
        a(f"""v_add_u32 v52, {64*i}, v{vLANE}
v_mul_u32_u24 v53, 6554, v52
v_lshrrev_b32 v53, 16, v53
v_mul_u32_u24 v54, 10, v53
v_sub_u32 v54, v52, v54
v_lshrrev_b32 v55, 1, v53
v_and_b32 v55, 4, v55
v_xor_b32 v53, v53, v55
v_mul_u32_u24 v53, 3840, v53
v_lshl_add_u32 v54, v54, 4, s{sadd}""")
        if i & 3: a(f"v_subrev_u32 v53, {(i&3)*1024}, v53")
        a(f"v_add_u32 v{dst+i}, v53, v54")

def prologue():
    if E2("ROT", 3) == 0:
        ROT = f"""s_lshr_b32 s{sT2}, s{sCT}, 2
s_add_u32 s{sT2}, s{sT2}, s{sCT}
s_mul_i32 s{sT3}, s{sJL}, 5
s_add_u32 s{sT3}, s{sT3}, 1
s_lshr_b32 s{sT3}, s{sT3}, 1
s_add_u32 s{sT2}, s{sT2}, s{sT3}
s_sub_u32 s{sT3}, s{sT2}, 10
s_cmp_ge_u32 s{sT2}, 10
s_cselect_b32 s{sT2}, s{sT3}, s{sT2}"""
    elif E2("ROT", 3) == 1:
        ROT = f"""s_add_u32 s{sT2}, s{sCT}, s{sJL}
s_and_b32 s{sT2}, s{sT2}, 3
s_mul_i32 s{sT2}, s{sT2}, 5
s_add_u32 s{sT2}, s{sT2}, 1
s_lshr_b32 s{sT2}, s{sT2}, 1"""
    else:
        ROT = f"""s_add_u32 s{sT2}, s{sCT}, s{sJL}
s_sub_u32 s{sT3}, s{sT2}, 10
s_cmp_ge_u32 s{sT2}, 10
s_cselect_b32 s{sT2}, s{sT3}, s{sT2}
s_sub_u32 s{sT3}, s{sT2}, 5
s_cmp_ge_u32 s{sT2}, 5
s_cselect_b32 s{sT2}, s{sT3}, s{sT2}
{'s_lshl_b32 s%d, s%d, 1' % (sT2, sT2) if E2("ROT", 3) == 2 else ''}"""
    WRAP = 640 if E2("ROT", 3) == 3 else 1280
    if E("PADUS"): a(f"s_memrealtime {sp(sST)}")
    if STAMPS: a(f"s_memrealtime {sp(sST)}\ns_memtime s[96:97]")
    a(f"""s_cmp_ge_u32 s2, 256
s_cbranch_scc1 Lend
s_load_dwordx16 s[32:47], s[0:1], 0
s_load_dwordx16 s[48:63], s[0:1], 64
v_and_b32 v{vLANE}, 63, v0
v_lshrrev_b32 v32, 6, v0
s_and_b32 s{sT0}, s2, 7
s_lshr_b32 s{sT1}, s2, 3
v_readfirstlane_b32 s{sWV}, v32""")
    a(f"""s_getpc_b64 s[92:93]
Lpc:
s_lshl_b32 s{sT4}, s{sWV}, 5
s_add_u32 s{sT4}, s{sT4}, s{sT1}
s_lshl_b32 s{sT4}, s{sT4}, 10
s_cmp_ge_u32 s{sT4}, Lcode_end-Lpc
s_cbranch_scc1 Lnopf
v_lshl_add_u32 v33, v{vLANE}, 4, s{sT4}""")
    a.vmem(f"global_load_dwordx4 v[36:39], v33, s[92:93]", "pf", certain=False)
    a("Lnopf:")
    a(f"""s_lshr_b32 s{sR}, s{sT0}, 2
s_lshl_b32 s{sR}, s{sR}, 3
s_and_b32 s{sCT}, s{sT1}, 7
s_add_u32 s{sR}, s{sR}, s{sCT}
s_lshr_b32 s{sJL}, s{sT1}, 3
s_and_b32 s{sJ}, s{sT0}, 3
s_lshl_b32 s{sJ}, s{sJ}, 1
s_and_b32 s{sT3}, s{sJL}, 1
s_add_u32 s{sJ}, s{sJ}, s{sT3}
s_lshl_b32 s{sRB}, s{sT0}, 2
s_and_b32 s{sT3}, s{sCT}, 1
s_lshl_b32 s{sT3}, s{sT3}, 1
s_xor_b32 s{sT3}, s{sT3}, s{sJL}
s_add_u32 s{sRB}, s{sRB}, s{sT3}
{ROT}
s_lshl_b32 s{sKA}, s{sT2}, 7
s_add_u32 s{sKA+1}, s{sKA}, 128
s_cmp_eq_u32 s{sKA+1}, {WRAP}
s_cselect_b32 s{sKA+1}, 0, s{sKA+1}
s_lshl_b32 s{sXB}, s{sWV}, 14
s_mul_i32 s{sWB}, s{sWV}, 5120
s_add_u32 s{sWB}, s{sWB}, {L_W}""")
    a(f"""v_lshrrev_b32 v40, 3, v{vLANE}
v_and_b32 v41, 7, v{vLANE}
v_lshrrev_b32 v43, 1, v40
v_xor_b32 v41, v41, v43
v_lshlrev_b32 v41, 4, v41
v_lshrrev_b32 v42, 2, v40
v_lshlrev_b32 v42, 3, v42
v_and_b32 v43, 1, v43
v_add_u32 v42, v42, v43
v_and_b32 v43, 1, v40
v_lshl_add_u32 v42, v43, 2, v42
s_lshl_b32 s{sT2}, s{sR}, 7
s_lshl_b32 s{sT3}, s{sWV}, 5
s_add_u32 s{sT2}, s{sT2}, s{sT3}
v_add_u32 v42, s{sT2}, v42
v_mul_u32_u24 v42, 1280, v42
v_add_u32 v{vX}, v42, v41
v_xor_b32 v44, 64, v41
v_add_u32 v{vX+1}, v42, v44
v_add_u32 v{vX+1}, {16*1280-1024}, v{vX+1}
v_add_u32 v{vX+2}, 512, v{vX}
v_add_u32 v{vX+3}, 512, v{vX+1}
v_mul_u32_u24 v43, 1280, v40
v_add_u32 v45, v43, v41
v_add_u32 v46, v43, v44
s_mov_b32 s{SX+2}, {2048*1280}
s_mov_b32 s{SX+3}, 0x20000
s_mov_b32 s{SW+2}, {640*1280}
s_mov_b32 s{SW+3}, 0x20000
s_mov_b32 s{SQ+2}, {640*3840}
s_mov_b32 s{SQ+3}, 0x20000
s_cmp_lt_u32 s{sJL}, 2
s_cbranch_scc1 LtypeB
s_mov_b32 s100, 0""")

def code_touch(vt):
    def f():
        L = a.label("Lct")
        a(f"""s_getpc_b64 {sp(sT2)}
{L}:
s_sub_u32 s{sT2}, s{sT2}, {L}-Lpc
s_subb_u32 s{sT3}, s{sT3}, 0
s_lshr_b32 s{sT0}, s2, 3
s_lshl_b32 s{sT0}, s{sT0}, 2
s_add_u32 s{sT0}, s{sT0}, s{sWV}
s_lshl_b32 s{sT0}, s{sT0}, 7
v_lshl_add_u32 v{vt}, v{vLANE}, 14, s{sT0}
v_min_u32 v{vt}, Lcode_end-Lpc, v{vt}
s_mov_b64 exec, 15""")
        a.vmem(f"global_load_dword v{vt}, v{vt}, {sp(sT2)}", "ct")
        a("s_mov_b64 exec, -1")
    return f

def args_ready():
    a("s_waitcnt lgkmcnt(0)")
    stamp(11, True)
    stamp(12)
    a(f"s_mov_b32 s{SX}, s{pX}\ns_and_b32 s{SX+1}, s{pX+1}, 0xffff")

def late_setup():
    if E("WSOFF"): a(f"s_add_u32 s{pWS}, s{pWS}, {E('WSOFF') << 20}\ns_addc_u32 s{pWS+1}, s{pWS+1}, 0")
    mk_srd(SWS, pWS, WS_SIZE)
    a(f"""s_add_u32 s{sT2}, s{pWS}, {WS_EPOCH}
s_addc_u32 s{sT3}, s{pWS+1}, 0
s_load_dword s{sTAG}, s[{sT2}:{sT3}], 0""")
    if E("TOUCH"):
        sh = E("TOUCH")
        L = a.label("Ltouch")
        mk_srd(SOUT, pOUT, 2048*2560)
        a(f"""s_cmp_lg_u32 s{sWV}, 3
s_cbranch_scc1 {L}
v_lshlrev_b32 v34, {sh}, v{vLANE}
v_mov_b32 v35, 0""")
        a.vmem(f"buffer_load_dword v36, v34, {srd(SWS)}, 0 offen", "touch", certain=False)
        a.vmem(f"buffer_load_dword v36, v34, {srd(SOUT)}, 0 offen", "touch", certain=False)
        a("s_mov_b64 exec, 1")
        for p in (pCRE, pCIM, pWO, pDSK, pQKV):
            a.vmem(f"global_load_dword v36, v35, {sp(p)}", "touch", certain=False)
        a(f"s_mov_b64 exec, -1\n{L}:")
    for s in range(2, 10):
        if E2("ROT", 3) == 3:
            if s < 5: a(f"s_add_u32 s{sKA+s}, s{sKA+s-1}, 128\ns_cmp_eq_u32 s{sKA+s}, 640\ns_cselect_b32 s{sKA+s}, 0, s{sKA+s}")
            else: a(f"s_add_u32 s{sKA+s}, s{sKA+s-5}, 640")
        else: a(f"s_add_u32 s{sKA+s}, s{sKA+s-1}, 128\ns_cmp_eq_u32 s{sKA+s}, 1280\ns_cselect_b32 s{sKA+s}, 0, s{sKA+s}")
    for s in range(2, 10):
        a(f"s_mul_i32 s{sKQ+s}, s{sKA+s}, 1920")
    a(f"""s_lshl_b32 s{sT2}, s{sJL}, 2
s_lshr_b32 s{sOFF}, 0x0410, s{sT2}
s_and_b32 s{sOFF}, s{sOFF}, 15
s_add_u32 s{sOFF}, s{sOFF}, s{sCT}
s_sub_u32 s{sT3}, s{sOFF}, 10
s_cmp_ge_u32 s{sOFF}, 10
s_cselect_b32 s{sOFF}, s{sT3}, s{sOFF}
s_sub_u32 s{sT3}, s{sOFF}, 5
s_cmp_ge_u32 s{sOFF}, 5
s_cselect_b32 s{sOFF}, s{sT3}, s{sOFF}
s_mul_i32 s{sT2}, s{sWV}, 5
s_add_u32 s{sT2}, s{sT2}, s{sOFF}""")
    for i in range(5):
        a(f"s_add_u32 s{sLC+i}, s{sT2}, {i}\ns_sub_u32 s{sT3}, s{sLC+i}, 20\ns_cmp_ge_u32 s{sLC+i}, 20\ns_cselect_b32 s{sLC+i}, s{sT3}, s{sLC+i}")
    a(f"""s_mul_i32 s{sCW}, s{sWV}, 10240
s_add_u32 s{sCW}, s{sCW}, {L_W}""")
    a(f"""v_and_b32 v52, 15, v{vLANE}
v_lshrrev_b32 v53, 4, v{vLANE}
v_lshrrev_b32 v54, 1, v52
v_xor_b32 v54, v54, v53
v_lshlrev_b32 v54, 4, v54
v_lshl_add_u32 v56, v52, 7, v54
v_xor_b32 v57, 64, v56
v_add_u32 v{vXR}, s{sXB}, v56
v_add_u32 v{vXR+1}, s{sXB}, v57
v_add_u32 v{vCR}, s{sCW}, v56
v_add_u32 v{vCR+1}, s{sCW}, v57""")
    a(f"""v_bfe_u32 v54, v{vLANE}, 2, 2
v_lshl_add_u32 v54, v53, 3, v54
v_and_b32 v55, 1, v53
v_lshlrev_b32 v55, 2, v55
v_add_u32 v58, v54, v55
v_xor_b32 v55, 4, v55
v_add_u32 v59, v54, v55
v_mul_u32_u24 v58, 160, v58
v_mul_u32_u24 v59, 160, v59
v_and_b32 v60, 3, v{vLANE}
v_mul_u32_u24 v61, 40, v60
v_add_u32 v62, v58, v61
v_add_u32 v63, v59, v61
v_add_u32 v{vT40}, {L_W}, v62
v_add_u32 v{vT40+1}, {L_W}, v63
v_add_u32 v{vT40+2}, {L_W+40960}, v62
v_add_u32 v{vT40+3}, {L_W+40960}, v63""")
    a(f"""s_mul_i32 s{sT2}, s{sCT}, {80*1280}
v_add_u32 v{vC}, s{sT2}, v45
v_add_u32 v{vC+1}, s{sT2}, v46
v_add_u32 v{vC+1}, {10240-1024}, v{vC+1}
v_add_u32 v{vC+2}, {2*(10240-1024)}, v{vC}
v_add_u32 v{vC+3}, {2*(10240-1024)}, v{vC+1}""")

def tag_ready():
    a(f"""s_waitcnt lgkmcnt(0)
s_add_u32 s{sTAG}, s{sTAG}, 0x9e3779b1""")
    a.lg = []

def set_flag(base, lab, vt, wave=0, atomic=True):
    a(f"""s_cmp_lg_u32 s{sWV}, {wave}
s_cbranch_scc1 {lab}
s_lshl_b32 s{sT0}, s{sJ}, 4
s_add_u32 s{sT0}, s{sT0}, s{sR}
s_mul_i32 s{sT0}, s{sT0}, {FS}
s_add_u32 s{sT0}, s{sT0}, {base}
v_lshl_add_u32 v{vt}, v{vLANE}, 2, s{sT0}
v_mov_b32 v{vt+1}, s{sTAG}
{'s_mov_b64 exec, 1' if atomic and not E('STFLAG') else 's_mov_b32 exec_hi, 0'}""")
    a.vmem(f"{'buffer_atomic_swap' if atomic and not E('STFLAG') else 'buffer_store_dword'} v{vt+1}, v{vt}, {srd(SWS)}, 0 offen sc1", "fl", certain=False)
    a(f"s_mov_b64 exec, -1\n{lab}:")

def pk_cmul_acc(d, l, p, acc):
    a(f"""v_pk_fma_f32 {v2(d)}, {v2(p)}, {v2(l)}, {v2(acc)} op_sel_hi:[1,0,1]
v_pk_fma_f32 {v2(d)}, {v2(p)}, {v2(l)}, {v2(d)} op_sel:[1,1,0] op_sel_hi:[0,1,1] neg_lo:[0,1,0]""")

M0 = [None]
def set_m0(sreg, imm):
    if M0[0] != (sreg, imm):
        a(f"s_add_u32 m0, s{sreg}, {imm}")
        M0[0] = (sreg, imm)
def dma_x(s):
    ops = [("s", lambda: set_m0(sXB, (s%4)*4096))]
    for i in range(4):
        def f(i=i):
            set_m0(sXB, (s%4)*4096)
            a.vmem(f"buffer_load_dwordx4 v{vX+i}, {srd(SX)}, s{sKA+s} offen offset:{i*1024} lds", ("st", s))
        ops.append(("d", f))
    return ops
def dma_w(s, vaddr, rsrc, soff):
    ops = [("s", lambda: set_m0(sWB, (s%4)*20480))]
    for i in range(4):
        def f(i=i):
            set_m0(sWB, (s%4)*20480)
            a.vmem(f"buffer_load_dwordx4 v{vaddr+i}, {srd(rsrc)}, s{soff} offen offset:{i*1024} lds", ("st", s))
        ops.append(("d", f))
    ops.append(("s", lambda: set_m0(sWB, (s%4)*20480+4096)))
    def g():
        set_m0(sWB, (s%4)*20480+4096)
        a.vmem(f"buffer_load_dwordx4 v{vaddr+4}, {srd(rsrc)}, s{soff} offen lds", ("st", s))
    ops.append(("d", g))
    return ops
def dma_c(slot, sbase, ldsoff):
    ops = []
    def setup():
        a(f"""s_cmp_ge_u32 s{sLC+slot}, 10
s_cselect_b32 s{SW}, s{pCIM}, s{pCRE}
s_cselect_b32 s{SW+1}, s{pCIM+1}, s{pCRE+1}
s_cselect_b32 s{sM1}, 1280, 0
s_and_b32 s{SW+1}, s{SW+1}, 0xffff
s_lshl_b32 s{sM0}, s{sLC+slot}, 7
s_sub_u32 s{sM0}, s{sM0}, s{sM1}""")
    ops.append(("s", setup))
    for g in range(3):
        def m0(g=g):
            set_m0(sbase, ldsoff + g*4096)
            if g: a(f"s_add_u32 s{sM0}, s{sM0}, 40960")
        ops.append(("s", m0))
        for i in range(4 if g < 2 else 2):
            def f(i=i, g=g):
                set_m0(sbase, ldsoff + g*4096)
                a.vmem(f"buffer_load_dwordx4 v{vC+i}, {srd(SW)}, s{sM0} offen offset:{i*1024} lds", ("c", slot))
            ops.append(("d", f))
    return ops
CHOME = [160, 200, 0, 40, 80]
def c_reads(slot, vbase, ldsoff):
    ops = []
    for ks in range(2):
        for nt in range(5):
            def f(ks=ks, nt=nt):
                a.lds(f"ds_read_b128 {a4(CHOME[slot] + (ks*5+nt)*4)}, v{vbase+ks} offset:{ldsoff + nt*2048}", ("cr", slot))
            ops.append(("r", f))
    return ops

class BG:
    def __init__(self): self.q = []; self.keys = {}; self.fast = False
    def add(self, ops, key=None):
        self.q.extend(ops)
        if key is not None: self.keys[key] = ops[-1]
    def require(self, key):
        last = self.keys.get(key)
        while last in self.q:
            print("note: forced flush for", key)
            self.q.pop(0)[1]()
    def tick(self, n=1):
        while n > 0 and self.q:
            k, f = self.q.pop(0)
            f()
            if k != "s": n -= 1
    def tick_s(self):
        while self.q and self.q[0][0] == "s":
            self.q.pop(0)[1]()
    def flush(self):
        while self.q: self.q.pop(0)[1]()

def run_ops(ops):
    for k, f in ops: f()

def gemm_loop(nstage, frags_per_stage, read_frag, mfmas, x_reads, stage_dma, bg, ring, LOOK, hooks, first_stage=0, pre_issued=2):
    F = frags_per_stage
    total = nstage * F
    NR = len(ring)
    def sid(f): return first_stage + f // F, f % F
    rq = []; last = []
    for f in range(total):
        s, i = sid(f)
        ops = []
        xr = x_reads(s)
        if i in xr: ops += xr[i]
        ops += read_frag(s, i, ring[f % NR])
        if i == 0:
            def first(s=s, e=ops[0]):
                bg.require(s)
                EA = E2("EARLY", 2)
                a.wait(vm=[("st", s)], lg=("all" if s == EA else None))
                a("s_barrier")
                if STGST: stamp(16 + s)
                d = stage_dma(s + 2)
                if d and s != EA + 1: bg.add(d, s + 2)
                if s == EA:
                    bg.add(stage_dma(s + 3), s + 3); bg.fast = True
                if s == EA + 1: bg.fast = False
                e()
            ops[0] = first
        rq += ops
        last.append(len(rq))
    issued = [0]
    def pop(n):
        for _ in range(n):
            rq[issued[0]](); issued[0] += 1
    pop(last[LOOK - 1])
    gap = 0
    for f in range(total):
        s, i = sid(f)
        if (s, i) in hooks: hooks[(s, i)]()
        a.wait(lg=[("w", s, i)])
        ms = mfmas(s, i, ring[f % NR])
        need = last[min(f + LOOK - 1, total - 1)]
        for half, m in enumerate(ms):
            m()
            maxi = last[min(f + LOOK, f + NR - 1 + (1 if half == len(ms) - 1 else 0), total - 1)]
            period = 2 if bg.fast else 4
            due = lambda g: bool(bg.q) and g % period == 1
            if due(gap):
                bg.tick(1)
                if half == len(ms) - 1 and need > issued[0]: pop(need - issued[0])
            else:
                usable = 1 + sum(1 for g in range(gap + 1, gap + len(ms) - half) if not due(g))
                n = max(1, -(-(need - issued[0]) // usable))
                if due(gap + 1) and half == len(ms) - 1: pass
                pop(max(0, min(n, maxi - issued[0])))
                if due(gap + 1): bg.tick_s()
            gap += 1

LOG2E = 0x3fb8aa3b
def phi(regs, sconst_log2e, tmp, NT=4):
    for n, r in enumerate(regs):
        t = tmp + (n % NT) * 2
        a(f"v_pk_mul_f32 {v2(t)}, {v2(r)}, {sp(sconst_log2e)} op_sel_hi:[1,0]")
        a(f"v_max_f32 v{r}, 0x358637bd, v{r}\nv_max_f32 v{r+1}, 0x358637bd, v{r+1}")
        a(f"v_exp_f32_e64 v{t}, v{t} clamp\nv_exp_f32_e64 v{t+1}, v{t+1} clamp")
        if n > 0:
            rp = regs[n-1]; tp = tmp + ((n-1) % NT) * 2
            a(f"v_pk_add_f32 {v2(rp)}, {v2(rp)}, {v2(tp)}")
    rp = regs[-1]; tp = tmp + ((len(regs)-1) % NT) * 2
    a(f"v_pk_add_f32 {v2(rp)}, {v2(rp)}, {v2(tp)}")

def cmul_acc(dr, di, lr, li, pr, pi, ar, ai):
    a(f"""v_fma_f32 v{dr}, v{lr}, v{pr}, v{ar}
v_fma_f32 v{di}, v{lr}, v{pi}, v{ai}
v_fma_f32 v{dr}, -v{li}, v{pi}, v{dr}
v_fma_f32 v{di}, v{li}, v{pr}, v{di}""")

AR1, AR2 = 40960, 0
K_AH = 32
K_AB = [112, 132]
K_vA, K_vM = 2, 6
K_vFB, K_vFM, K_vGA, K_vRW, K_vTmp = 11, 12, 13, 14, 15
K_vG = 18
K_FO, K_FL = 246, 247
K_sMT = sKQ + 5
def time_base(dst, srt, tmp):
    a(f"""s_lshr_b32 s{dst}, s{srt}, 1
s_lshl_b32 s{dst}, s{dst}, 5
s_and_b32 s{tmp}, s{srt}, 1
s_lshl_b32 s{tmp}, s{tmp}, 1
s_add_u32 s{dst}, s{dst}, s{tmp}""")
def skip_setup(t, sx, sd):
    mk_srd(SOUT, pDSK, 1280)
    a(f"""s_add_u32 s{sT0}, s{sWV}, s{sCT}
s_and_b32 s{sT0}, s{sT0}, 3
s_lshl_b32 s{sx}, s{sRB}, 2
s_add_u32 s{sT0}, s{sT0}, s{sx}""")
    time_base(sx, sT0, sd)
    a(f"""s_mul_i32 s{sx}, s{sx}, 1280
s_mul_i32 s{sd}, s{sCT}, 160
s_add_u32 s{sx}, s{sx}, s{sd}
v_bfe_u32 v{t}, v{vLANE}, 5, 1
v_bfe_u32 v{t+1}, v{vLANE}, 4, 1
v_lshl_add_u32 v{t}, v{t+1}, 2, v{t}
v_mul_u32_u24 v{t}, 1280, v{t}
v_lshrrev_b32 v{t+1}, 4, v{vLANE}
v_mul_u32_u24 v{t+1}, 17, v{t+1}
v_sub_u32 v{t+1}, v{vLANE}, v{t+1}
v_med3_i32 v{t+1}, v{t+1}, 0, 9
v_lshl_add_u32 v{t}, v{t+1}, 4, v{t}""")
def skip_loads(t, sx, sd, sbase, off):
    ops = [("s", lambda: set_m0(sbase, off))]
    for i in range(4):
        def f(i=i):
            set_m0(sbase, off)
            a.vmem(f"buffer_load_dwordx4 v{t}, {srd(SX)}, s{sx} offen offset:{i*1088} lds", "fx")
        ops.append(("d", f))
        if i < 3: ops.append(("s", lambda: a(f"s_add_u32 s{sx}, s{sx}, {10240-1088}")))
    ops.append(("s", lambda: set_m0(sbase, off + 4288)))
    def g():
        set_m0(sbase, off + 4288)
        a("s_mov_b64 exec, 0x3ff")
        a.vmem(f"buffer_load_dwordx4 v{t}, {srd(SOUT)}, s{sd} offen lds", "fx")
        a("s_mov_b64 exec, -1")
    ops.append(("d", g))
    return ops
def skip_reads(t, sbase, off, AB):
    def setup():
        a(f"""s_add_u32 s{sT0}, s{sbase}, {off}
v_lshrrev_b32 v{t}, 4, v{vLANE}
v_lshl_add_u32 v{t}, v{t}, 3, s{sT0}
v_and_b32 v{t+1}, 15, v{vLANE}
v_mul_u32_u24 v{t+1}, 272, v{t+1}
v_add_u32 v{t+1}, v{t+1}, v{t}""")
        a.wait(vm="fx")
    ops = [("s", setup)]
    for nt in range(5):
        ops.append(("r", lambda nt=nt: a.lds(f"ds_read_b64 a[{AB+2*nt}:{AB+1+2*nt}], v{t+1} offset:{nt*32}", "sk")))
        ops.append(("r", lambda nt=nt: a.lds(f"ds_read_b64 a[{AB+10+2*nt}:{AB+11+2*nt}], v{t} offset:{4288 + nt*32}", "sk")))
    return ops
def skip_math(t, AB, bg=None):
    for n in range(10):
        d = K_AH + 2*n
        a(f"""v_accvgpr_read_b32 v{t+1}, a{AB+n}
v_accvgpr_read_b32 v{t+3}, a{AB+10+n}
v_lshlrev_b32 v{t}, 16, v{t+1}
v_and_b32 v{t+1}, 0xffff0000, v{t+1}
v_lshlrev_b32 v{t+2}, 16, v{t+3}
v_and_b32 v{t+3}, 0xffff0000, v{t+3}
v_pk_mul_f32 {v2(t)}, {v2(t)}, {v2(t+2)}
v_cvt_pk_bf16_f32 v{t}, v{t}, v{t+1}
v_lshlrev_b32 v{d}, 16, v{t}
v_and_b32 v{d+1}, 0xffff0000, v{t}""")
        if bg: bg.tick(1)
def k2_setup(t, bg=None):
    tk = (lambda n: bg.tick(n)) if bg else (lambda n: None)
    vA, vM, sMT = K_vA, K_vM, K_sMT
    mk_srd(SOUT, pOUT, 2048*2560)
    a(f"s_add_u32 s{sT0}, s{sWV}, s{sCT}")
    a(f"v_lshlrev_b32 v{vM}, 4, v{vLANE}")
    for i in range(4):
        a(f"""s_add_u32 s{sMT+i}, s{sT0}, {i}
s_and_b32 s{sMT+i}, s{sMT+i}, 3
s_mul_i32 s{sT1}, s{sMT+i}, {RT}
v_add_u32 v{vA+i}, s{sT1}, v{vM}""")
    tk(2)
    for nt in range(1, 5): a(f"v_add_u32 v{vM+nt}, {nt*20480}, v{vM}")
    a(f"s_mul_i32 s{sT0}, s{sRB}, {4*RT}\ns_mul_i32 s{sT1}, s{sCT}, {5*20480}\ns_add_u32 s{sT1}, s{sT1}, {WS_M}\ns_add_u32 s{sT3}, s{sT0}, 40960")
    for i in range(5):
        a(f"""s_lshl_b32 s{sT2}, s{sLC+i}, 11
s_add_u32 s{sKA+i}, s{sT0}, s{sT2}
s_lshl_b32 s{sT2}, s{sLC+i}, 10
s_add_u32 s{sKA+5+i}, s{sT3}, s{sT2}
s_add_u32 s{sKQ+i}, s{sT1}, s{sT2}""")
    tk(2)
    a(f"s_lshl_b32 s{sT2}, s{sRB}, 2\ns_add_u32 s{sT2}, s{sT2}, s{sWV}")
    time_base(sT3, sT2, sT4)
    a(f"""s_mul_i32 s{sT4}, s{sCT}, 320
s_mul_i32 s{sT5}, s{sWV}, {16*320}
v_lshrrev_b32 v{t}, 4, v{vLANE}
v_lshlrev_b32 v{t}, 3, v{t}
v_bfe_u32 v{t+1}, v{vLANE}, 3, 1
v_add_u32 v{t}, v{t}, v{t+1}
v_bfe_u32 v{t+1}, v{vLANE}, 2, 1
v_lshl_add_u32 v{t}, v{t+1}, 2, v{t}
v_add_u32 v{t}, s{sT3}, v{t}
v_mul_u32_u24 v{t}, 2560, v{t}
v_and_b32 v{t+1}, 3, v{vLANE}
v_lshl_add_u32 v{t+2}, v{t+1}, 4, s{sT4}
v_add_u32 v{K_FO}, v{t}, v{t+2}
v_bfe_u32 v{t+2}, v{vLANE}, 3, 2
v_xor_b32 v{t+1}, v{t+1}, v{t+2}
v_lshrrev_b32 v{t}, 2, v{vLANE}
v_mul_u32_u24 v{t}, 320, v{t}
v_lshl_add_u32 v{t}, v{t+1}, 4, v{t}
v_add_u32 v{K_FL}, s{sT5}, v{t}""")
    tk(2)
    a(f"""s_lshr_b32 s{sT2}, s{sRB}, 1
v_lshl_add_u32 v{t}, v{vLANE}, 4, s{sT2}
v_mul_u32_u24 v{t}, {FS}, v{t}
v_add_u32 v{K_vFB}, {FB}, v{t}
s_and_b32 s{sT3}, s{sRB}, 1
s_mul_i32 s{sT3}, s{sT3}, {64*FS}
s_add_u32 s{sT3}, s{sT3}, {FM - 256*FS}
v_add_u32 v{t}, s{sT3}, v{t}
s_lshl_b32 s{sT2}, s{sCT}, 1
v_lshrrev_b32 v{K_vFM}, 1, v{vLANE}
v_lshl_add_u32 v{K_vFM}, v{K_vFM}, 4, s{sT2}
v_and_b32 v{t+1}, 1, v{vLANE}
v_add_u32 v{K_vFM}, v{K_vFM}, v{t+1}
v_mul_u32_u24 v{K_vFM}, {FS}, v{K_vFM}
v_add_u32 v{K_vFM}, {FM}, v{K_vFM}
v_cmp_gt_u32 vcc, 16, v{vLANE}
v_cndmask_b32 v{K_vFM}, v{t}, v{K_vFM}, vcc
v_subrev_u32 v{t}, {20*16*FS}, v{K_vFB}
v_cmp_gt_u32 vcc, 20, v{vLANE}
v_cndmask_b32 v{K_vFM}, v{t}, v{K_vFM}, vcc
v_subrev_u32 v{K_vFB}, {FB - FW}, v{K_vFB}
v_and_b32 v{t}, 15, v{vLANE}
v_lshlrev_b32 v{K_vGA}, 2, v{t}
v_lshrrev_b32 v{t+1}, 4, v{vLANE}
v_bfe_u32 v{t+2}, v{vLANE}, 1, 2
v_xor_b32 v{t+1}, v{t+1}, v{t+2}
v_mul_u32_u24 v{t}, 320, v{t}
v_lshl_add_u32 v{t}, v{t+1}, 4, v{t}
s_mul_i32 s{sT2}, s{sWV}, {64*320}
v_add_u32 v{K_vRW}, s{sT2}, v{t}""")

def warm_c(ptr, vt):
    def f():
        a(f"""s_mov_b32 s{SW}, s{ptr}
s_and_b32 s{SW+1}, s{ptr+1}, 0xffff
s_lshr_b32 s{sM0}, s2, 3
s_and_b32 s{sM0}, s{sM0}, 15
s_lshl_b32 s{sM0}, s{sM0}, 2
s_add_u32 s{sM0}, s{sM0}, s{sWV}
s_mul_i32 s{sM0}, s{sM0}, 12800
v_lshlrev_b32 v{vt}, 7, v{vLANE}""")
        a.vmem(f"buffer_load_dword v{vt+1}, v{vt}, {srd(SW)}, s{sM0} offen", "warm")
        a(f"s_add_u32 s{sM0}, s{sM0}, 8192\ns_mov_b32 exec_hi, 15")
        a.vmem(f"buffer_load_dword v{vt+1}, v{vt}, {srd(SW)}, s{sM0} offen", "warm")
        a("s_mov_b32 exec_hi, -1")
    return f

def type_A():
    bg = BG()
    AK, AG = ACC, ACC + 80
    RING = [128 + 4*i for i in range(8)]
    sZB, sKVB, sGA, sMa, sMb, sMc, sMd, sGB = 34, 35, 36, 37, 38, 39, 40, 41
    sMK = 60
    sGW = 46
    a(f"""s_lshr_b32 s{sT2}, s{sWV}, 1
s_add_u32 s{sT2}, s{sT2}, 1
s_mul_i32 s{sT2}, s{sT2}, 1280
s_mul_i32 s{sT3}, s{sJ}, 160
s_add_u32 s{sT2}, s{sT2}, s{sT3}
s_and_b32 s{sT3}, s{sWV}, 1
s_mul_i32 s{sT3}, s{sT3}, {32*3840}
s_add_u32 s{sT2}, s{sT2}, s{sT3}
s_mul_i32 s{sKQ}, s{sKA}, 1920
s_mul_i32 s{sKQ+1}, s{sKA+1}, 1920""")
    wq_pattern(vW, sT2)
    args_ready()
    a(f"s_mov_b32 s{SQ}, s{pQKV}\ns_and_b32 s{SQ+1}, s{pQKV+1}, 0xffff")
    def stage_dma(s):
        if s >= 10: return None
        return dma_x(s) + dma_w(s, vW, SQ, sKQ + s)
    run_ops(stage_dma(0))
    mk_srd(SW, pGW, 1280)
    a(f"""s_and_b32 s{sT2}, s{sWV}, 1
s_lshl_b32 s{sT2}, s{sT2}, 10
v_lshlrev_b32 v64, 4, v{vLANE}""")
    set_m0(sT2, L_GW)
    a.vmem(f"buffer_load_dwordx4 v64, {srd(SW)}, s{sT2} offen lds", ("st", 0))
    late_setup()
    a(f"""v_mov_b32 v68, 0
v_mov_b32 v69, 0
v_mov_b32 v70, 0
v_mov_b32 v71, 0
v_lshlrev_b32 v65, 4, v0
v_add_u32 v65, {L_KVB}, v65
v_cmp_gt_u32 vcc, 164, v0
s_and_saveexec_b64 {sp(sT2)}, vcc""")
    a.lds("ds_write_b128 v65, v[68:71]", "z0")
    a(f"s_mov_b64 exec, {sp(sT2)}")
    vXM = vQ + 1
    a(f"""v_lshlrev_b32 v61, 3, v60
v_add_u32 v62, v58, v61
v_add_u32 v63, v59, v61
v_add_u32 v{vWR}, {L_W}, v62
v_add_u32 v{vWR+1}, {L_W}, v63
v_add_u32 v{vWR+2}, {L_W+40960}, v62
v_add_u32 v{vWR+3}, {L_W+40960}, v63
v_lshrrev_b32 v{vQ}, 4, v{vLANE}
v_lshlrev_b32 v{vQ}, 4, v{vQ}
v_add_u32 v{vQ}, {L_GW}, v{vQ}
s_and_b32 s{sT2}, s{sJ}, 1
s_lshl_b32 s{sT2}, s{sT2}, 11
s_xor_b32 s{sT3}, s{sT2}, 2048
v_add_u32 v{vXM}, s{sT2}, v{vXR}
v_add_u32 v{vXM+1}, s{sT2}, v{vXR+1}
v_add_u32 v{vXM+2}, s{sT3}, v{vXR}
v_add_u32 v{vXM+3}, s{sT3}, v{vXR+1}""")
    mk_srd(SW, pWO, 640*1280)
    a(f"""s_and_b32 s{sT1}, s{sR}, 1
s_mul_i32 s{sT2}, s{sT1}, 40
s_mul_i32 s{sT3}, s{sJ}, 80
s_add_u32 s{sT2}, s{sT2}, s{sT3}
s_mul_i32 s{sT2}, s{sT2}, 1280
s_lshr_b32 s{sT3}, s{sR}, 1
s_mul_i32 s{sT3}, s{sT3}, 160
s_add_u32 s{sT2}, s{sT2}, s{sT3}
s_mov_b32 s{sM0}, s{sT2}
s_lshl_b32 s{sM1}, s{sWV}, 10
v_mov_b32 v211, {OOB}""")
    for n in range(2):
        a(f"""v_add_u32 v65, {256*n}, v0
v_mul_u32_u24 v66, 6554, v65
v_lshrrev_b32 v66, 16, v66
v_mul_u32_u24 v67, 10, v66
v_sub_u32 v67, v65, v67
v_mul_u32_u24 v66, 1280, v66
v_lshl_add_u32 v66, v67, 4, v66
v_cmp_gt_u32 vcc, 400, v65
v_cndmask_b32 v{72+n}, v211, v66, vcc""")
    def wo_dma():
        for n in range(2):
            set_m0(sM1, L_WO + 4096*n)
            if n == 1:
                a(f"s_cmp_eq_u32 s{sWV}, 3\ns_cbranch_scc1 LskipWo")
                a.vmem(f"buffer_load_dwordx4 v73, {srd(SW)}, s{sM0} offen lds", ("st", 1), certain=False)
                a("LskipWo:")
            else:
                a.vmem(f"buffer_load_dwordx4 v72, {srd(SW)}, s{sM0} offen lds", ("st", 1))
    vGS, vZ1, vZ2, vK1, vK2, vK3, vK4 = 212, 213, 214, 215, 216, 217, 218
    vXW, vR0, vR1, vKP, vKB = 219, 220, 221, 222, 223
    vOa0, vOa1, vOb0, vOb1, vOc0, vOc1 = 224, 225, 226, 227, 228, 229
    vWo = 230
    vMS, vMR, vONE, vTG = 234, 235, 236, 237
    ZR = L_KVB + 2560
    def precompute():
        a(f"""v_and_b32 v208, 15, v{vLANE}
v_lshrrev_b32 v209, 4, v{vLANE}
v_lshrrev_b32 v210, 2, v208
v_lshlrev_b32 v{vGS}, 4, v209
v_lshl_add_u32 v{vGS}, v208, 6, v{vGS}
v_cmp_gt_u32 vcc, 2, v208
v_cndmask_b32 v{vGS}, v211, v{vGS}, vcc
s_lshl_b32 s{sGB}, s{sR}, 3
s_add_u32 s{sGB}, s{sGB}, s{sJ}
s_lshl_b32 s{sGB}, s{sGB}, 7
s_add_u32 s{sGB}, s{sGB}, {WS_G}
v_cmp_eq_u32 {sp(sMK)}, s{sWV}, v210
v_cmp_eq_u32 {sp(sT4)}, s{sWV}, v209
s_add_u32 s{sT2}, s{sWV}, 1
s_and_b32 s{sT2}, s{sT2}, 3
v_cmp_eq_u32 vcc, s{sT2}, v209
v_lshlrev_b32 v{vZ1}, 2, v208
v_and_b32 v240, 3, v208
v_add_u32 v241, 16, v240
v_lshlrev_b32 v{vZ2}, 2, v241
v_cndmask_b32 v{vZ1}, v211, v{vZ1}, vcc
v_cndmask_b32 v{vZ2}, v211, v{vZ2}, vcc
v_cndmask_b32 v{vZ2}, v211, v{vZ2}, {sp(sMK)}
s_lshl_b32 s{sT2}, s{sJ}, 4
s_add_u32 s{sT2}, s{sT2}, s{sR}
s_mul_i32 s{sZB}, s{sT2}, 640
s_mul_i32 s{sT3}, s{sWV}, 80
s_add_u32 s{sZB}, s{sZB}, s{sT3}
s_add_u32 s{sZB}, s{sZB}, {WS_ZP}
v_mul_u32_u24 v242, 320, v209
v_lshl_add_u32 v{vK1}, v208, 4, v242
v_lshlrev_b32 v{vK2}, 4, v208
v_cndmask_b32 v{vK2}, v211, v{vK2}, {sp(sT4)}
v_lshl_add_u32 v{vK3}, v241, 4, v242
v_cndmask_b32 v{vK3}, v211, v{vK3}, {sp(sMK)}
v_lshlrev_b32 v{vK4}, 4, v241
v_cndmask_b32 v{vK4}, v211, v{vK4}, {sp(sMK)}
v_cndmask_b32 v{vK4}, v211, v{vK4}, {sp(sT4)}
s_mul_i32 s{sKVB}, s{sT2}, 6400
s_mul_i32 s{sT3}, s{sWV}, 1600
s_add_u32 s{sKVB}, s{sKVB}, s{sT3}
s_add_u32 s{sKVB}, s{sKVB}, {WS_KVP}
v_lshlrev_b32 v{vR0}, 4, v{vLANE}
v_add_u32 v{vXW}, s{sXB}, v{vR0}
s_lshl_b32 s{sT2}, s{sWV}, 10
v_add_u32 v{vR1}, s{sT2}, v{vR0}
v_lshlrev_b32 v{vKP}, 4, v0
v_cmp_gt_u32 vcc, 200, v0
v_cndmask_b32 v{vKP}, v211, v{vKP}, vcc
s_mul_i32 s{sGA}, s{sJ}, {16*6400}
s_and_b32 s{sT1}, s{sR}, 1
s_mul_i32 s{sT2}, s{sT1}, 3200
s_add_u32 s{sGA}, s{sGA}, s{sT2}
s_add_u32 s{sGA}, s{sGA}, {WS_KVP}""")
        a(f"""v_cmp_le_u32 vcc, 100, v0
v_subrev_u32 v242, 100, v0
v_cndmask_b32 v242, v0, v242, vcc
v_mov_b32 v243, {L_KVB}
v_mov_b32 v244, {L_KVB + 1280}
v_cndmask_b32 v243, v243, v244, vcc
v_mul_u32_u24 v244, 3277, v242
v_lshrrev_b32 v244, 16, v244
v_mul_u32_u24 v245, 20, v244
v_sub_u32 v245, v242, v245
v_lshl_add_u32 v243, v245, 6, v243
v_lshl_add_u32 v{vKB}, v244, 3, v243""")
        a(f"""v_lshrrev_b32 v242, 1, v210
v_lshl_add_u32 v242, v242, 3, v240
v_lshlrev_b32 v242, 6, v242
v_lshl_add_u32 v242, v209, 4, v242
v_add_u32 v242, {L_KVB}, v242
v_add_u32 v243, 1280, v242
v_mov_b32 v244, {ZR - 256}
v_and_b32 v245, 1, v210
v_cmp_eq_u32 vcc, 0, v245
v_cndmask_b32 v{vOb0}, v244, v242, vcc
v_cndmask_b32 v{vOb1}, v243, v244, vcc
v_mov_b32 v244, {ZR}
v_cndmask_b32 v{vOa0}, v244, v242, vcc
v_cndmask_b32 v{vOa1}, v243, v244, vcc
v_lshlrev_b32 v242, 6, v240
v_lshl_add_u32 v242, v209, 4, v242
v_add_u32 v242, {L_KVB + 16*64}, v242
v_add_u32 v243, 1280, v242
v_cmp_eq_u32 vcc, 0, v210
v_cndmask_b32 v{vOc0}, v244, v242, vcc
v_cmp_eq_u32 vcc, 1, v210
v_cndmask_b32 v{vOc1}, v244, v243, vcc""")
        a(f"""v_bfe_u32 v242, v{vLANE}, 2, 2
v_lshl_add_u32 v242, v209, 3, v242
v_add_u32 v243, 4, v242
v_min_u32 v242, 19, v242
v_min_u32 v243, 19, v243
v_mul_u32_u24 v242, 160, v242
v_mul_u32_u24 v243, 160, v243
v_lshl_add_u32 v242, v240, 3, v242
v_lshl_add_u32 v243, v240, 3, v243
v_add_u32 v{vWo+2}, {L_WO}, v242
v_add_u32 v{vWo+3}, {L_WO}, v243
s_lshl_b32 s{sT2}, s{sWV}, 5
v_add_u32 v{vWo}, s{sT2}, v{vWo+2}
v_add_u32 v{vWo+1}, s{sT2}, v{vWo+3}""")
        a(f"""v_and_b32 v242, 1, v209
v_lshrrev_b32 v243, 1, v209
v_lshl_add_u32 v242, v243, 2, v242
v_lshlrev_b32 v242, 8, v242
v_lshl_add_u32 v{vMS}, v208, 4, v242
v_mul_u32_u24 v243, {4*20480}, v209
v_lshl_add_u32 v243, v208, 4, v243
s_cmp_eq_u32 s{sWV}, 0
s_cselect_b32 s{sT0}, 2, 1
v_cmp_gt_u32 vcc, s{sT0}, v209
v_cndmask_b32 v{vMR}, v211, v243, vcc
s_lshr_b32 s{sT0}, s{sR}, 1
s_mul_i32 s{sT0}, s{sT0}, {5*20480}
s_mul_i32 s{sT2}, s{sJ}, 2560
s_add_u32 s{sT0}, s{sT0}, s{sT2}
s_add_u32 s{sT0}, s{sT0}, {WS_M}
s_lshl_b32 s{sT2}, s{sT1}, 9
s_add_u32 s{sT2}, s{sT2}, s{sT0}
s_lshl_b32 s{sT3}, s{sT1}, 8
s_add_u32 s{sT3}, s{sT3}, s{sT0}
s_mul_i32 s{sT0}, s{sWV}, 20480
s_add_u32 s{sMa}, s{sT2}, s{sT0}
s_add_u32 s{sMb}, s{sT3}, s{sT0}
s_add_u32 s{sT2}, s{sT2}, {4*20480}
s_add_u32 s{sT3}, s{sT3}, {4*20480}
s_cmp_eq_u32 s{sWV}, 0
s_cselect_b32 s{sMc}, s{sT2}, {OOB}
s_cselect_b32 s{sMd}, s{sT3}, {OOB}
v_mov_b32 v{vONE}, 0x3f803f80""")
    precompute()
    skip_setup(238, 56, 57)
    stamp(34)
    if E2("IW", 0):
        a(f"""Lladder:
s_mov_b64 exec, 0
s_mov_b32 s{sT0}, s{sWV}
Lwret:
s_mov_b32 s{sT1}, s{sT0}
s_add_u32 s{sT0}, s{sT0}, 4
;LADDER
s_mov_b64 exec, -1
s_cmp_eq_u32 s100, 1
s_cbranch_scc1 LB_cont
s_branch LA_cont
.p2align 12
LA_cont:""")
    run_ops(stage_dma(1))
    wo_dma()
    if E2("PTOUCH", 0):
        a(f"""v_lshlrev_b32 v122, 7, v{vLANE}
s_mov_b64 exec, 0x1fff""")
        a.vmem(f"buffer_load_dword v123, v122, {srd(SWS)}, s{sKVB} offen", "pt")
        a("s_mov_b64 exec, 1")
        a.vmem(f"buffer_load_dword v123, v122, {srd(SWS)}, s{sZB} offen", "pt")
        a("s_mov_b64 exec, -1")
    tag_ready()
    a(f"""s_and_b32 s{sT2}, s{sTAG}, 0xff
v_mov_b32 v{vTG}, s{sT2}
s_lshr_b32 s{sT2}, s{sJ}, 1
s_cmp_eq_u32 s{sT2}, s{sWV}
s_cselect_b64 {sp(sGW)}, -1, 0
s_mov_b64 vcc, {sp(sGW)}""")
    stamp(0)
    XA = lambda s, ks, m: (s % 2) * 16 + ks * 8 + m * 4 + 120
    def x_reads(s):
        def mk(ks):
            return [(lambda m=m: a.lds(f"ds_read_b128 {a4(XA(s, ks, m))}, v{vXM+2*m+ks} offset:{(s%4)*4096}", ("x", s, ks))) for m in range(2)]
        return {0: mk(0), 11: mk(1)}
    def read_frag(s, i, reg):
        ks, t = divmod(i, 11)
        sl = s % 4
        if t == 10:
            def g():
                if ks == 0: a(f"v_add_u32 v120, s{sKA+s}, v{vQ}")
                a.lds(f"ds_read_b128 {v4(reg)}, v120 offset:{ks*64}", ("w", s, i))
            return [g]
        seg, T = divmod(t, 5)
        off = (sl % 2) * 20480 + seg * 10240 + ks * 5120
        out = []
        for hh in range(2):
            if T < 4: va, o = vWR + (sl // 2) * 2 + hh, off + 40 * T
            else: va, o = vT40 + (sl // 2) * 2 + hh, off + 32
            out.append(lambda hh=hh, va=va, o=o: a.lds(f"ds_read_b64_tr_b16 {v2(reg + 2*hh)}, v{va} offset:{o}", ("w", s, i)))
        return out
    def mfmas(s, i, reg):
        ks, t = divmod(i, 11)
        first = (s == 0 and ks == 0)
        if t == 10:
            def g():
                L = a.label("Lng")
                a(f"s_cbranch_vccz {L}")
                mfma(v4(AG), a4(XA(s, ks, 0)), v4(reg), "0" if first else v4(AG))
                a(f"{L}:")
            return [g]
        out = []
        for m in range(2):
            d = ACC + t * 8 + m * 4
            c = "0" if first else v4(d)
            out.append(lambda d=d, m=m, c=c: mfma(v4(d), a4(XA(s, ks, m)), v4(reg), c))
        return out
    gemm_loop(10, 22, read_frag, mfmas, x_reads, stage_dma, bg, RING, 7, {(8, 0): (lambda: bg.add(skip_loads(238, 56, 57, sXB, 10240) + [('d', lambda: a.vmem(f'buffer_load_dword v123, v{vGS}, {srd(SWS)}, s{sGB} offen', 'pt'))] + ([('d', code_touch(122))] if E2('CT', 1) else []))), (8, 18): (lambda: (bg.add(dma_c(3, sCW, AR1)), setattr(bg, 'fast', E2('AFAST', 0))))})
    bg.flush()
    stamp(1)
    a(f"s_mov_b32 s{sT2}, {LOG2E}\ns_movk_i32 s{sT3}, 0xff")
    T = 160
    PKR = 168
    def pack(t):
        dst = PKR + 4*t
        for q in range(4):
            a(f"v_cvt_pk_bf16_f32 v{dst+q}, v{ACC + t*8 + 2*q}, v{ACC + t*8 + 2*q + 1}")
        a.lds(f"ds_write_b128 v{vXW}, {v4(dst)} offset:{t*1024}", "kvx")
    for t in range(5):
        phi([AK + 8*t + 2*n for n in range(2)], sT2, T)
        pack(5 + t)
        phi([AK + 8*t + 2*n for n in range(2, 4)], sT2, T)
        pack(t)
    a.wait(lg="all")
    a("s_barrier")
    F0 = 32
    bg.add(dma_c(4, sCW, AR2))
    for w in range(4):
        b = F0 + w * 16
        a.lds(f"ds_read_b128 {v4(b+12)}, v{vR0} offset:{w*16384 + 9216}", ("kr", w))
        a.lds(f"ds_read_b128 {v4(b)}, v{vR1} offset:{w*16384}", ("kr", w))
        a.lds(f"ds_read_b128 {v4(b+4)}, v{vR0} offset:{w*16384 + 4096}", ("kr", w))
        a.lds(f"ds_read_b128 {v4(b+8)}, v{vR1} offset:{w*16384 + 5120}", ("kr", w))
    P = 96
    bg.tick(E2("AE", 4))
    for w in range(4):
        b = F0 + w * 16
        if w and E2("AE", 4): bg.tick(1)
        a.wait(lg=[("kr", w)])
        for q in range(4): a(f"v_cndmask_b32 v{b+12+q}, v{vONE}, v{b+12+q}, {sp(sMK)}")
        c = lambda n: "0" if w == 0 else v4(P + 4*n)
        mfma(v4(P), v4(b+8), v4(b), c(0))
        mfma(v4(P+8), v4(b+8), v4(b+4), c(2))
        mfma(v4(P+4), v4(b+12), v4(b), c(1))
        mfma(v4(P+12), v4(b+12), v4(b+4), c(3))
    for n in (0, 2, 1, 3):
        for q in (0, 2):
            a(f"v_bfi_b32 v{P+4*n+q}, s{sT3}, v{vTG}, v{P+4*n+q}")
    a.vmem(f"buffer_store_dword v{P+4}, v{vZ1}, {srd(SWS)}, s{sZB} offen sc1", "zst")
    a.vmem(f"buffer_store_dword v{P+12}, v{vZ2}, {srd(SWS)}, s{sZB} offen sc1", "zst")
    a.vmem(f"buffer_store_dwordx4 {v4(P)}, v{vK1}, {srd(SWS)}, s{sKVB} offen sc1", "kvst")
    a.vmem(f"buffer_store_dwordx4 {v4(P+4)}, v{vK2}, {srd(SWS)}, s{sKVB} offen offset:1280 sc1", "kvst")
    a.vmem(f"buffer_store_dwordx4 {v4(P+8)}, v{vK3}, {srd(SWS)}, s{sKVB} offen sc1", "kvst")
    a.vmem(f"buffer_store_dwordx4 {v4(P+12)}, v{vK4}, {srd(SWS)}, s{sKVB} offen offset:1280 sc1", "kvst")
    stamp(2)
    bg.tick(3)
    a.wait(vm=[("c", 3)])
    run_ops(c_reads(3, vCR, AR1))
    run_ops(skip_reads(160, sXB, 10240, 120))
    a.wait(lg=[("cr", 3)])
    bg.add(dma_c(0, sCW, AR1))
    a("s_cbranch_vccz LA_ng")
    for q in range(2):
        r = AG + 2*q
        a(f"""v_cvt_pk_bf16_f32 v{T+1}, v{r}, v{r+1}
v_lshlrev_b32 v{r}, 16, v{T+1}
v_and_b32 v{r+1}, 0xffff0000, v{T+1}
v_mul_f32 v{r}, 0xbfb8aa3b, v{r}
v_mul_f32 v{r+1}, 0xbfb8aa3b, v{r+1}
v_exp_f32 v{r}, v{r}
v_exp_f32 v{r+1}, v{r+1}
s_nop 0
v_add_f32 v{r}, 1.0, v{r}
v_add_f32 v{r+1}, 1.0, v{r+1}
v_rcp_f32 v{r}, v{r}
v_rcp_f32 v{r+1}, v{r+1}
s_nop 0
v_cvt_pk_bf16_f32 v{T+1}, v{r}, v{r+1}
v_lshlrev_b32 v{r}, 16, v{T+1}
v_and_b32 v{r+1}, 0xffff0000, v{T+1}""")
    a.vmem(f"buffer_store_dwordx4 {v4(AG)}, v{vGS}, {srd(SWS)}, s{sGB} offen sc1", "gst", certain=False)
    a("LA_ng:")
    WOF = 128
    for ts in range(2):
        for hd in range(2):
            r = WOF + (ts*2 + hd) * 4
            for hh in range(2):
                a.lds(f"ds_read_b64_tr_b16 {v2(r + 2*hh)}, v{vWo + 2*ts + hh} offset:{hd*3200 + (128 if ts else 0)}", "wof")
    k2_setup(160, bg)
    bg.flush()
    stamp(37)
    def gather(tracked):
        a(f"s_mov_b32 s{sT0}, s{sGA}")
        for n in range(16):
            t = f"buffer_load_dwordx4 {v4(32 + 4*n)}, v{vKP}, {srd(SWS)}, s{sT0} offen sc1"
            if tracked: a.vmem(t, ("kp", n))
            else: a(t)
            if n < 15: a(f"s_add_u32 s{sT0}, s{sT0}, 6400")
    gather(True)
    a.wait(vm=[("c", 4)])
    run_ops(c_reads(4, vCR, AR2))
    a.wait(lg="all")
    bg.add(dma_c(1, sCW, AR2))
    bg.tick(E2("AG", 6))
    a(f"""v_cmp_gt_u32 vcc, 200, v0
s_mov_b32 s{sSPIN}, 0
s_mov_b64 {sp(sMK)}, vcc
s_branch LA_gc
LA_gr:""")
    gather(False)
    a("s_waitcnt vmcnt(0)\nLA_gc:")
    a.wait(vm=[("kp", 0)])
    a(f"v_xor_b32 v32, v32, v{vTG}\nv_xor_b32 v34, v34, v{vTG}\nv_or_b32 v{T}, v32, v34")
    for n in range(1, 16):
        a.wait(vm=[("kp", n)])
        a(f"""v_xor_b32 v{32+4*n}, v{32+4*n}, v{vTG}
v_xor_b32 v{34+4*n}, v{34+4*n}, v{vTG}
v_pk_add_f32 v[32:33], v[32:33], {v2(32+4*n)}
v_or3_b32 v{T}, v{T}, v{32+4*n}, v{34+4*n}
v_pk_add_f32 v[34:35], v[34:35], {v2(34+4*n)}""")
    a(f"""v_and_b32 v{T}, 0xff, v{T}
v_cmp_ne_u32 vcc, 0, v{T}
s_add_u32 s{sSPIN}, s{sSPIN}, 1
s_and_b64 vcc, vcc, {sp(sMK)}
s_cmp_gt_u32 s{sSPIN}, 0x20000
s_cbranch_scc1 LA_gd
s_cbranch_vccnz LA_gr
LA_gd:
{'v_writelane_b32 v254, s96, 40' if STAMPS else ''}
v_cvt_pk_bf16_f32 v36, v32, v33
v_cvt_pk_bf16_f32 v37, v34, v35
s_mov_b64 exec, {sp(sMK)}""")
    a.lds(f"ds_write_b64 v{vKB}, v[36:37]", "kvb")
    a("s_mov_b64 exec, -1")
    bg.flush()
    a.wait(lg="all")
    a("s_barrier")
    stamp(3)
    KF = 40
    a.lds(f"ds_read_b128 {v4(KF)}, v{vOa0}", "kf")
    a.lds(f"ds_read_b128 {v4(KF+8)}, v{vOb0} offset:256", "kf")
    a.lds(f"ds_read_b128 {v4(KF+16)}, v{vOc0}", "kf")
    a.lds(f"ds_read_b128 {v4(KF+4)}, v{vOa1}", "kf")
    a.lds(f"ds_read_b128 {v4(KF+12)}, v{vOb1} offset:256", "kf")
    a.lds(f"ds_read_b128 {v4(KF+20)}, v{vOc1}", "kf")
    a.wait(lg="all")
    MD = 64
    for hd in range(2):
        for ts in range(2):
            for tl in range(3):
                d = MD + (ts*3 + tl) * 4
                mfma(v4(d), v4(KF + tl*8 + hd*4), v4(WOF + (ts*2+hd)*4), "0" if hd == 0 else v4(d))
    for ts in range(2):
        d = MD + ts*12; o = 88 + ts*4
        for q in range(4):
            a(f"v_cvt_pk_bf16_f32 v{o+q}, v{d+2*q}, v{d+2*q+1}")
        for q in range(2):
            a(f"v_cvt_pk_bf16_f32 v{96+2*ts+q}, v{d+8+2*q}, v{d+9+2*q}")
        a.vmem(f"buffer_store_dwordx4 {v4(o)}, v{vMS}, {srd(SWS)}, s{sMa if ts == 0 else sMc} offen sc1", "mst")
    a("v_permlane16_swap_b32 v96, v98\nv_permlane16_swap_b32 v97, v99")
    a.vmem(f"buffer_store_dwordx4 v[96:99], v{vMR}, {srd(SWS)}, s{sMb} offen offset:2048 sc1", "mst")
    bg.add(dma_c(2, sXB, 0))
    bg.tick(E2("AD", 10))
    a.wait(vm=[("c", 1)])
    run_ops(c_reads(0, vCR, AR1))
    run_ops(c_reads(1, vCR, AR2))
    a.wait(vm="mst", lg="all")
    a("s_barrier")
    set_flag(FM, "LA_nf2", 240, wave=3, atomic=False)
    stamp(4)
    bg.flush()
    skip_math(196, 120)
    poll_issue(K_vFM, K_vTmp, "0xfffffff", "p2")
    a.wait(vm=[("c", 2)], lg="all")
    run_ops(c_reads(2, vXR, 0))
    a("s_branch LK2")

def type_B():
    a("LtypeB:\ns_mov_b32 s100, 1")
    M0[0] = None
    a.vm = []; a.lg = []
    bg = BG()
    U = ACC; Q = ACC + 80
    RING = [152 + 4*i for i in range(6)]
    LAM = 176
    XR = 216
    COEF = 216
    L8, L128 = 250, 248
    T = 176
    sSa, sSb, sSc, sSd = 54, 55, 56, 57
    sSS, sKX, sKD, sC1, sC2, sT8 = 60, 61, 40, 41, 46, 47
    SXR = 36
    sVAL = 34
    a(f"""s_and_b32 s{sT2}, s{sWV}, 1
s_mul_i32 s{sT3}, s{sT2}, 40
s_mul_i32 s{sT4}, s{sJ}, 80
s_add_u32 s{sT3}, s{sT3}, s{sT4}
s_mul_i32 s{sT3}, s{sT3}, 1280
s_lshl_b32 s{sT4}, s{sT2}, 6
v_xor_b32 v64, s{sT4}, v45
v_xor_b32 v65, s{sT4}, v46
v_add_u32 v{vW}, s{sT3}, v64
v_add_u32 v65, s{sT3}, v65
v_add_u32 v{vW+1}, {10240-1024}, v65
v_add_u32 v{vW+2}, {2*(10240-1024)}, v{vW}
v_add_u32 v{vW+3}, {3*(10240-1024)}, v65
v_add_u32 v{vW+4}, {4*10240}, v{vW}
s_mul_i32 s{sT4}, s{sJ}, 160
v_min_u32 v66, 79, v0
v_lshl_add_u32 v66, v66, 1, s{sT4}
v_mov_b32 v{T}, 0
v_mov_b32 v{T+1}, 0
v_mov_b32 v{T+2}, 0
s_mul_i32 s{sKQ}, s{sKA}, 1920
s_mul_i32 s{sKQ+1}, s{sKA+1}, 1920
s_mul_i32 s{sT5}, s{sT2}, {32*3840}
s_add_u32 s{sT5}, s{sT5}, s{sT4}""")
    args_ready()
    a(f"""s_cmp_ge_u32 s{sWV}, 2
s_cselect_b32 s{SW}, s{pBIM}, s{pBRE}
s_cselect_b32 s{SW+1}, s{pBIM+1}, s{pBRE+1}
s_and_b32 s{SW+1}, s{SW+1}, 0xffff""")
    def stage_dma(s):
        if s < 10: return dma_x(s) + dma_w(s, vW, SW, sKA + s)
        if s < 15: return dma_w(s, vQ, SQ, sKQ + (s - 10))
        return None
    a.vmem(f"global_load_short_d16_hi v{T}, v66, {sp(pLRE)}", "par")
    a.vmem(f"global_load_short_d16_hi v{T+1}, v66, {sp(pLIM)}", "par")
    a.vmem(f"global_load_short_d16_hi v{T+2}, v66, {sp(pLDT)}", "par")
    run_ops(stage_dma(0))
    a(f"s_mov_b32 s{SQ}, s{pQKV}\ns_and_b32 s{SQ+1}, s{pQKV+1}, 0xffff")
    wq_pattern(vQ, sT5)
    late_setup()
    a(f"s_cmp_ge_u32 s{sWV}, 2")
    for q in range(5): a(f"s_cselect_b32 s{sKQ+q}, s{sKQ+2*q+1}, s{sKQ+2*q}")
    a(f"""v_add_u32 v{vWR}, {L_W}, v56
v_add_u32 v{vWR+1}, {L_W}, v57
v_add_u32 v{vWR+2}, {L_W+40960}, v56
v_add_u32 v{vWR+3}, {L_W+40960}, v57""")
    aTW, aTR0, aTR1, aST, aEA, aPT, aSA, aXA, aXW, aHR, aZR, aLT, aSX, aSD = range(240, 254)
    def params():
        a.wait(vm="par")
        stamp(34)
        bg.tick(E2("PK0", 2))
        P = T + 4
        t0, t1, t2, t3 = T+16, T+17, T+18, T+19
        C = P + 8
        a(f"""v_mul_f32 v{T+2}, {LOG2E}, v{T+2}
v_exp_f32 v{T+2}, v{T+2}
s_nop 0
v_cvt_pk_bf16_f32 v{T+2}, v{T+2}, v{T+2}
v_lshlrev_b32 v{T+2}, 16, v{T+2}
v_mul_f32 v{t0}, v{T+2}, v{T}
v_mul_f32 v{t1}, v{T+2}, v{T+1}
v_mul_f32 v{t0}, {LOG2E}, v{t0}
v_mul_f32 v{t1}, 0.15915494, v{t1}
v_exp_f32 v{t0}, v{t0}
v_fract_f32 v{t1}, v{t1}
v_cos_f32 v{t2}, v{t1}
v_sin_f32 v{t3}, v{t1}
s_nop 0
v_mul_f32 v{P}, v{t0}, v{t2}
v_mul_f32 v{t3}, v{t0}, v{t3}
v_sub_f32 v{P+1}, 0, v{t3}
v_add_f32 v{t0}, -1.0, v{P}
v_mul_f32 v{t1}, v{T}, v{T}
v_fma_f32 v{t1}, v{T+1}, v{T+1}, v{t1}
v_rcp_f32 v{t1}, v{t1}
v_mul_f32 v{C}, v{t0}, v{T}
v_fma_f32 v{C}, v{t3}, v{T+1}, v{C}
v_mul_f32 v{C+1}, v{t3}, v{T}
v_fma_f32 v{C+1}, -v{t0}, v{T+1}, v{C+1}
v_add_f32 v{t1}, v{t1}, v{t1}
v_mul_f32 v{C}, v{C}, v{t1}
v_mul_f32 v{C+1}, v{C+1}, v{t1}""")
        def cmul(d, l, p):
            a(f"""v_pk_mul_f32 {v2(d)}, {v2(p)}, {v2(l)} op_sel_hi:[1,0]
v_pk_fma_f32 {v2(d)}, {v2(p)}, {v2(l)}, {v2(d)} op_sel:[1,1,0] op_sel_hi:[0,1,1] neg_lo:[0,1,0]""")
        bg.tick(E2("PK1", 0))
        cmul(P+2, P, P); cmul(P+4, P+2, P); cmul(P+6, P+2, P+2); cmul(L8, P+6, P+6)
        bg.tick(E2("PK2", 0))
        a(f"""v_mul_u32_u24 v{t0}, 48, v0
v_add_u32 v{t0}, {L_PT}, v{t0}
v_lshlrev_b32 v{t1}, 3, v0
v_add_u32 v{t1}, {L_LT}, v{t1}
v_mov_b32 v{T+20}, 1.0
v_mov_b32 v{T+21}, 0
v_cmp_gt_u32 vcc, 80, v0
s_and_saveexec_b64 {sp(sT2)}, vcc
s_cbranch_execz LB_nopar""")
        a(f"""v_lshlrev_b32 v{t2}, 3, v0
v_mov_b32 v{T+26}, s{sT8}
v_mov_b32 v{T+27}, s{sT8}
s_mul_i32 s{sT4}, s{sR}, 1280
s_add_u32 s{sT4}, s{sT4}, s{sSS}""")
        a.vmem(f"buffer_store_dwordx2 {v2(T+26)}, v{t2}, {srd(SWS)}, s{sT4} offen offset:640 sc1", "dst", certain=False)
        for q in range(3): a.lds(f"ds_write_b128 v{t0}, {v4(P+4*q)} offset:{16*q}", "pt", certain=False)
        a.lds(f"ds_write_b64 v{t1}, {v2(T+20)}", "pt", certain=False)
        a.lds(f"ds_write_b64 v{t1}, {v2(L8)} offset:640", "pt", certain=False)
        prev = L8
        for s in range(2, 17):
            d = (T + 22 + 2*(s % 2)) if s < 16 else L128
            cmul(d, L8, prev)
            if s < 16: a.lds(f"ds_write_b64 v{t1}, {v2(d)} offset:{s*640}", "pt", certain=False)
            prev = d
        a(f"""LB_nopar:
s_mov_b64 exec, {sp(sT2)}""")
    def stash():
        t0, t1 = T+16, T+17
        a(f"""s_lshl_b32 s{sT2}, s{sJ}, 5
s_add_u32 s{sT3}, s{sT2}, 15
s_sub_u32 s{sT3}, s{sT3}, s{sR}
s_mul_i32 s{sSS}, s{sT3}, 640
s_add_u32 s{sSS}, s{sSS}, {WS_SP}
s_add_u32 s{sT3}, s{sSS}, 640
s_mul_i32 s{sT2}, s{sJ}, {16*640}
s_add_u32 s{sT2}, s{sT2}, {WS_ZP}
s_cmp_ge_u32 s{sWV}, 2
s_cselect_b32 s{sT2}, s{sT2}, s{sT3}
s_cselect_b32 s{SXR+2}, 0, {16*640}
s_add_u32 s{SXR}, s{pWS}, s{sT2}
s_addc_u32 s{SXR+1}, s{pWS+1}, 0
s_and_b32 s{SXR+1}, s{SXR+1}, 0xffff
s_mov_b32 s{SXR+3}, 0x20000
s_movk_i32 s{sC1}, 3840
s_movk_i32 s{sC2}, 7680
s_cmp_ge_u32 s{sWV}, 2
s_movk_i32 s{sT2}, 80
s_cmov_b32 s{sT2}, {128+40}
s_cselect_b32 s{sT3}, 128, 0
s_mov_b32 s{sT4}, {L_HB}
s_cmov_b32 s{sT4}, {L_ZB}
v_cmp_gt_u32 {sp(sVAL)}, s{sT2}, v0
v_subrev_u32 v{t0}, s{sT3}, v0
v_lshlrev_b32 v{t0}, 3, v{t0}
v_add_u32 v{t1}, s{sT4}, v{t0}
v_accvgpr_write_b32 a{aXW}, v{t1}
v_mov_b32 v{t1}, {OOB}
v_cndmask_b32 v{t0}, v{t1}, v{t0}, {sp(sVAL)}
v_accvgpr_write_b32 a{aXA}, v{t0}
v_min_u32 v{t0}, 79, v0
v_lshlrev_b32 v{t0}, 3, v{t0}
v_add_u32 v{t0}, {L_EB}, v{t0}
v_accvgpr_write_b32 a{aSA}, v{t0}""")
        c_, g_, u0, u1, u2, u3 = T+8, T+9, T+10, T+11, T+12, T+13
        a(f"""v_and_b32 v{c_}, 15, v{vLANE}
v_lshrrev_b32 v{g_}, 4, v{vLANE}
v_mul_u32_u24 v{u0}, 48, v{c_}
v_add_u32 v{u0}, {L_PT}, v{u0}
v_accvgpr_write_b32 a{aPT}, v{u0}
v_lshrrev_b32 v{u0}, 4, v0
v_mul_u32_u24 v{u0}, 640, v{u0}
v_lshl_add_u32 v{u0}, v{c_}, 3, v{u0}
v_add_u32 v{u0}, {L_LT}, v{u0}
v_accvgpr_write_b32 a{aLT}, v{u0}
v_mul_u32_u24 v{u0}, 640, v{g_}
v_lshl_add_u32 v{u0}, v{c_}, 3, v{u0}
v_add_u32 v{u0}, s{sXB}, v{u0}
v_accvgpr_write_b32 a{aEA}, v{u0}
v_lshlrev_b32 v{u0}, 3, v{c_}
v_add_u32 v{u0}, {L_HB}, v{u0}
v_accvgpr_write_b32 a{aHR}, v{u0}
v_mul_u32_u24 v{u0}, 80, v{g_}
v_add_u32 v{u0}, {L_ZB}, v{u0}
v_accvgpr_write_b32 a{aZR}, v{u0}
v_bfe_u32 v{u0}, v{c_}, 1, 2
v_xor_b32 v{u0}, v{u0}, v{g_}
v_lshlrev_b32 v{u0}, 4, v{u0}
v_lshl_add_u32 v{u0}, v{c_}, 6, v{u0}
s_add_u32 s{sT2}, s{sXB}, 10240
v_add_u32 v{u0}, s{sT2}, v{u0}
v_accvgpr_write_b32 a{aTW}, v{u0}
v_bfe_u32 v{u0}, v{vLANE}, 2, 2
v_lshrrev_b32 v{u1}, 1, v{g_}
v_lshl_add_u32 v{u2}, v{u1}, 3, v{u0}
v_lshlrev_b32 v{u2}, 6, v{u2}
v_and_b32 v{u3}, 1, v{g_}
v_lshl_add_u32 v{u2}, v{u3}, 3, v{u2}
v_add_u32 v{u2}, s{sT2}, v{u2}
v_lshrrev_b32 v{u0}, 1, v{u0}
v_and_b32 v{g_}, 3, v{vLANE}
v_xor_b32 v{u0}, v{u0}, v{g_}
v_lshl_add_u32 v{g_}, v{u0}, 4, v{u2}
v_accvgpr_write_b32 a{aTR0}, v{g_}
v_xor_b32 v{u0}, 2, v{u0}
v_lshl_add_u32 v{g_}, v{u0}, 4, v{u2}
v_add_u32 v{g_}, 256, v{g_}
v_accvgpr_write_b32 a{aTR1}, v{g_}
v_mul_u32_u24 v{u3}, {RT}, v{u3}
v_lshl_add_u32 v{u3}, v{u1}, 8, v{u3}
v_lshl_add_u32 v{u3}, v{c_}, 4, v{u3}
v_accvgpr_write_b32 a{aST}, v{u3}
s_lshl_b32 s{sT2}, s{sR}, 3
s_lshl_b32 s{sT3}, s{sWV}, 1
s_add_u32 s{sT2}, s{sT2}, s{sT3}
s_mul_i32 s{sT2}, s{sT2}, {RT}
s_mul_i32 s{sT3}, s{sJ}, 2560
s_add_u32 s{sSa}, s{sT2}, s{sT3}
s_add_u32 s{sSb}, s{sSa}, 20480
s_add_u32 s{sSc}, s{sSa}, 40960
s_add_u32 s{sSd}, s{sSc}, {RT}""")
    stash()
    skip_setup(T+8, sKX, sKD)
    a(f"v_accvgpr_write_b32 a{aSX}, v{T+8}")
    tag_ready()
    a(f"s_and_b32 s{sT8}, s{sTAG}, 0xff")
    if E2("IW", 0): a("s_branch Lladder\nLB_cont:")
    bg.add(stage_dma(1), 1)
    stamp(0)
    params()
    bg.tick(E2("PK3", 2))
    bg.fast = True
    a.wait(lg="all")
    stamp(35)
    XA = lambda s, ks, m: s * 16 + ks * 8 + m * 4
    def x_reads(s):
        if s >= 10: return {}
        def mk(ks):
            return [(lambda m=m: a.lds(f"ds_read_b128 {a4(XA(s, ks, m))}, v{vXR+ks} offset:{(s%4)*4096 + m*2048}", ("x", s, ks))) for m in range(2)]
        return {0: mk(0), 10: mk(1)}
    def read_frag(s, i, reg):
        sl = s % 4
        if s < 10:
            ks, t = divmod(i, 10)
            c5, part = divmod(t, 2)
            return [lambda: a.lds(f"ds_read_b128 {v4(reg)}, v{vWR + (sl//2)*2 + ks} offset:{(sl%2)*20480 + part*10240 + c5*2048}", ("w", s, i))]
        else:
            k4, Tt = divmod(i, 5)
            return [(lambda hh=hh: a.lds(f"ds_read_b64_tr_b16 {v2(reg+2*hh)}, v{vT40 + (sl//2)*2 + hh} offset:{(sl%2)*20480 + k4*5120 + 8*Tt}", ("w", s, i))) for hh in range(2)]
    def mfmas(s, i, reg):
        out = []
        if s < 10:
            ks, t = divmod(i, 10)
            for m in range(2):
                d = U + t*8 + m*4
                c = "0" if (s == 0 and ks == 0) else v4(d)
                out.append(lambda d=d, m=m, c=c: mfma(v4(d), a4(XA(s, ks, m)), v4(reg), c))
        else:
            k4, Tt = divmod(i, 5)
            xs, ks = 2*(s-10) + k4//2, k4 % 2
            for m in range(2):
                d = Q + Tt*8 + m*4
                c = "0" if (s == 10 and k4 == 0) else v4(d)
                out.append(lambda d=d, m=m, c=c: mfma(v4(d), v4(reg), a4(XA(xs, ks, m)), c))
        return out
    def ur(c5, i): return U + (2*c5)*8 + 2*i
    def ui(c5, i): return U + (2*c5+1)*8 + 2*i
    LO = "op_sel_hi:[1,0,1]"
    HI = "op_sel:[0,1,0] op_sel_hi:[1,1,1]"
    NEG = "neg_lo:[0,1,0] neg_hi:[0,1,0]"
    vEA, vSA, vXA, vPT = vX, vX+1, vX+2, vX+3
    vTW, vTR0, vTR1, vST, vL16 = vW, vW+1, vW+2, vW+3, vW+4
    vXW, vHR, vZR, vLT = vWR, vWR+1, vWR+2, vWR+3
    def mk_ptread(c5):
        def f():
            if c5 == 0: a(f"v_accvgpr_read_b32 v{vPT}, a{aPT}")
            a.lds(f"ds_read_b128 {v4(LAM + c5*8)}, v{vPT} offset:{c5*768}", "ptr")
            a.lds(f"ds_read_b128 {v4(LAM + c5*8 + 4)}, v{vPT} offset:{c5*768 + 16}", "ptr")
            a.lds(f"ds_read_b64 {v2(COEF + c5*2)}, v{vPT} offset:{c5*768 + 32}", "ptr")
            if c5 == 4: a(f"v_accvgpr_read_b32 v{vEA}, a{aEA}\nv_accvgpr_read_b32 v{vSA}, a{aSA}\nv_accvgpr_read_b32 v{vXA}, a{aXA}")
        return f
    def scan1():
        stamp(1)
        bg.flush()
        if E2('CT', 1): code_touch(vWR)()
        bg.add(dma_c(0, sXB, 0))
        tA, tB = 228, 230
        for c5 in range(5):
            c = COEF + c5*2
            for i in range(4):
                r_, i_ = ur(c5, i), ui(c5, i)
                a(f"""v_pk_mul_f32 {v2(tA)}, {v2(r_)}, {v2(c)} op_sel_hi:[1,0]
v_pk_mul_f32 {v2(tB)}, {v2(r_)}, {v2(c)} op_sel:[0,1] op_sel_hi:[1,1] neg_lo:[0,1] neg_hi:[0,1]
v_pk_fma_f32 {v2(r_)}, {v2(i_)}, {v2(c)}, {v2(tA)} {HI} {NEG}
v_pk_fma_f32 {v2(i_)}, {v2(i_)}, {v2(c)}, {v2(tB)} {LO} {NEG}""")
            l = LAM + c5*8
            for i in range(1, 4):
                a(f"""v_pk_fma_f32 {v2(ur(c5,i))}, {v2(ur(c5,i-1))}, {v2(l)}, {v2(ur(c5,i))} {LO}
v_pk_fma_f32 {v2(ui(c5,i))}, {v2(ui(c5,i-1))}, {v2(l)}, {v2(ui(c5,i))} {LO}
v_pk_fma_f32 {v2(ur(c5,i))}, {v2(ui(c5,i-1))}, {v2(l)}, {v2(ur(c5,i))} {HI} {NEG}
v_pk_fma_f32 {v2(ui(c5,i))}, {v2(ur(c5,i-1))}, {v2(l)}, {v2(ui(c5,i))} {HI}""")
            l4 = l + 6
            cmul_acc(c, c+1, l4, l4+1, ur(c5,3), ui(c5,3), ur(c5,3)+1, ui(c5,3)+1)
            a.lds(f"ds_write_b64 v{vEA}, {v2(c)} offset:{L_EB + c5*128}", "ew")
            bg.tick(E2("S1T", 1))
        a.wait(lg="all")
        a("s_barrier")
        a(f"s_cmp_ge_u32 s{sWV}, 2\ns_cbranch_scc1 LB_nocarry1")
        E0 = XR
        tA, tB = 252, vPT
        for s in range(0, 16, 2):
            a(f"ds_read2_b64 {v4(E0 + 2*s)}, v{vSA} offset0:{(s%4)*80} offset1:{(s%4)*80+80}")
            if s % 4 == 2 and s < 14: a(f"v_add_u32 v{vSA}, 16384, v{vSA}")
        a(f"""v_mov_b32 v{tA}, 0
v_mov_b32 v{tA+1}, 0
v_mov_b32 v{tB}, s{sTAG}
s_movk_i32 s{sT3}, 0xff
v_subrev_u32 v{vSA}, {3*16384}, v{vSA}""")
        for s in range(1, 16):
            if s % 2 == 0 or s == 1: a(f"s_waitcnt lgkmcnt({7 - s//2})")
            pk_cmul_acc(E0+2*s, L8, E0+2*s-2, E0+2*s)
        a(f"""v_bfi_b32 v{E0+30}, s{sT3}, v{tB}, v{E0+30}
v_bfi_b32 v{E0+31}, s{sT3}, v{tB}, v{E0+31}""")
        a.vmem(f"buffer_store_dwordx2 {v2(E0+30)}, v{vXA}, {srd(SWS)}, s{sSS} offen sc1", "sst", certain=False)
        a(f"s_mov_b64 exec, {sp(sVAL)}\nds_write_b64 v{vSA}, {v2(tA)}")
        for s in range(15):
            a(f"ds_write_b64 v{vSA}, {v2(E0+2*s)} offset:{((s+1)//4)*16384 + ((s+1)%4)*640}")
        a("s_mov_b64 exec, -1\nLB_nocarry1:")
        stamp(2)
    def x_loads(tracked, cnt):
        ops = []
        for n in range(cnt - 1, -1, -1):
            def f(n=n):
                so = ["0", f"s{sC1}", f"s{sC2}"][n // 6]
                t = f"buffer_load_dwordx2 {v2(XR + 2*n)}, v{vXA}, {srd(SXR)}, {so} offen offset:{(n % 6)*640} sc1"
                if tracked: a.vmem(t, "xl")
                else: a(t)
            ops.append(("d", f))
        return ops
    def x_check(sfx, defer):
        cnt = 16 if defer else 15
        a(f"s_mov_b32 s{sSPIN}, 0\nLB_xt{sfx}:")
        for n in range(cnt - 1, -1, -1):
            r = XR + 2*n
            a(f"v_xor_b32 v{r}, s{sT8}, v{r}\nv_xor_b32 v{r+1}, s{sT8}, v{r+1}")
            if n == cnt - 1: a(f"v_or_b32 v250, v{r}, v{r+1}")
            else:
                a(f"v_or3_b32 v250, v250, v{r}, v{r+1}")
                if defer: a(f"v_pk_add_f32 {v2(r)}, {v2(r)}, {v2(r+2)}")
                else: pk_cmul_acc(r, L128, r+2, r)
        a(f"""v_and_b32 v250, 0xff, v250
v_cmp_ne_u32 vcc, 0, v250
s_add_u32 s{sSPIN}, s{sSPIN}, 1
s_and_b64 vcc, vcc, {sp(sVAL)}
s_cmp_gt_u32 s{sSPIN}, 0x20000
s_cbranch_scc1 LB_xok{sfx}
s_cbranch_vccz LB_xok{sfx}""")
        run_ops(x_loads(False, cnt))
        a(f"""s_waitcnt vmcnt(0)
s_branch LB_xt{sfx}
LB_xok{sfx}:
{'v_writelane_b32 v254, s96, 40' if STAMPS else ''}""")
        if defer:
            a(f"""v_cvt_pk_bf16_f32 v250, v{XR}, v{XR+1}
v_lshlrev_b32 v{XR}, 16, v250
v_and_b32 v{XR+1}, 0xffff0000, v250""")
        a(f"""s_mov_b64 exec, {sp(sVAL)}
ds_write_b64 v{vXW}, {v2(XR)}
s_mov_b64 exec, -1
LB_xe{sfx}:""")
    def start_x():
        bg.add(x_loads(True, 15)); bg.fast = True
    def c_start(slot):
        def f():
            bg.flush()
            a.wait(lg=[("cr", 0)])
            bg.add(dma_c(slot, sXB, 0)); bg.fast = True
        return f
    def c_read(slot):
        def f():
            if slot: bg.flush()
            a.wait(vm=[("c", slot)])
            bg.add(c_reads(slot, vXR, 0)); bg.fast = True
        return f
    hooks = {(0, E2('FEND', 14)): (lambda: setattr(bg, 'fast', False)), (10, 0): scan1, (12, E2('C0R', 0)): c_read(0), (12, E2('C0R', 0) + 12): c_start(1), (13, 12): c_read(1), (14, 2): start_x, (13, 0): (lambda: bg.add([('s', lambda: a(f'v_accvgpr_read_b32 v252, a{aSX}'))] + skip_loads(252, sKX, sKD, sWB, 3*20480)))}
    for c5 in range(5): hooks[(9, 2*c5 + 1)] = mk_ptread(c5)
    gemm_loop(15, 20, read_frag, mfmas, x_reads, stage_dma, bg, RING, 6, hooks)
    bg.flush()
    stamp(3)
    run_ops(skip_reads(172, sWB, 3*20480, 120))
    bg.add(dma_c(2, sXB, 0)); bg.add(dma_c(3, sCW, AR1)); bg.add(dma_c(4, sCW, AR2))
    bg.tick(E2("PT0", 4))
    for vr, ar in ((vTW, aTW), (vTR0, aTR0), (vTR1, aTR1), (vST, aST), (vXW, aXW), (vHR, aHR), (vZR, aZR), (vLT, aLT)):
        a(f"v_accvgpr_read_b32 v{vr}, a{ar}")
    a(f"v_lshlrev_b32 v{vL16}, 4, v{vLANE}")
    H = 152
    for c5 in range(5):
        a.lds(f"ds_read_b64 {v2(H+4*c5)}, v{vEA} offset:{L_EB + c5*128}", "pl")
        a.lds(f"ds_read_b64 {v2(H+4*c5+2)}, v{vLT} offset:{c5*128}", "pl")
    bg.tick(E2("PT1", 6))
    a(f"s_cmp_lg_u32 s{sWV}, 2\ns_cbranch_scc1 LB_nz\ns_movk_i32 s{SXR+2}, {16*640}")
    run_ops(x_loads(False, 16))
    a("LB_nz:")
    a(f"s_cmp_ge_u32 s{sWV}, 2\ns_cbranch_scc1 LB_xe1\ns_waitcnt vmcnt({a._cnt(a.vm, 'xl')[0]})")
    x_check("1", False)
    a.wait(lg="all")
    a("s_barrier")
    stamp(4)
    HR = vQ + 1
    HRS = [12, 14, 22, 24, 172]
    for c5 in range(5):
        a.lds(f"ds_read_b64 {v2(HRS[c5])}, v{vHR} offset:{c5*128}", ("hin", c5))
    def trd(c5, part):
        for hh in range(2):
            a.lds(f"ds_read_b64_tr_b16 {v2(U + (2*c5+part)*8 + 4 + 2*hh)}, v{vTR0+hh} offset:{((c5%3)*2+part)*1024}", ("tr", c5, part))
    def tst(c5, part):
        a.wait(lg=[("tr", c5, part)])
        a.vmem(f"buffer_store_dwordx4 {v4(U + (2*c5+part)*8 + 4)}, v{vST}, {srd(SWS)}, s{sSa if part == 0 else sSb} offen offset:{c5*512} sc1", "ast")
    for c5 in range(5):
        h = H + 4*c5; lam = LAM + c5*8
        a.wait(lg=[("hin", c5)])
        pk_cmul_acc(h, h+2, HRS[c5], h)
        a(f"v_mov_b32 v{h+2}, v{h+1}")
        cmul_acc(h+1, h+3, lam+6, lam+7, h, h+2, ur(c5,3), ui(c5,3))
        for part in range(2):
            for i in range(4):
                l = lam + 2*i
                if part == 0: a(f"v_pk_fma_f32 {v2(ur(c5,i))}, {v2(h)}, {v2(l)}, {v2(ur(c5,i))} {LO}")
                else: a(f"v_pk_fma_f32 {v2(ui(c5,i))}, {v2(h+2)}, {v2(l)}, {v2(ui(c5,i))} {LO}")
            k = 2*c5 + part
            if k >= 1: trd((k-1)//2, (k-1) % 2)
            for i in range(4):
                l = lam + 2*i
                if part == 0: a(f"v_pk_fma_f32 {v2(ur(c5,i))}, {v2(h+2)}, {v2(l)}, {v2(ur(c5,i))} {HI} {NEG}")
                else: a(f"v_pk_fma_f32 {v2(ui(c5,i))}, {v2(h)}, {v2(l)}, {v2(ui(c5,i))} {HI}")
            if k >= 2: tst((k-2)//2, (k-2) % 2)
            src = U + k*8
            for q in range(4): a(f"v_cvt_pk_bf16_f32 v{src+q}, v{src+2*q}, v{src+2*q+1}")
            a.lds(f"ds_write_b128 v{vTW}, {v4(src)} offset:{((c5%3)*2+part)*1024}", ("tw", c5))
    trd(4, 1)
    tst(4, 0)
    tst(4, 1)
    stamp(32)
    a.wait(vm=[("c", 2)])
    a(f"s_mov_b32 s{sT4}, {LOG2E}")
    cr1 = c_reads(2, vXR, 0)
    for n in range(10):
        if n == E2("PHF", 9):
            a.wait(vm="ast")
            a("s_barrier")
            set_flag(FB, "LB_nf", 152, wave=3)
            stamp(36)
        phi([Q + 4*n, Q + 4*n + 2], sT4, 172, NT=2)
        cr1[n][1]()
        if n >= E2("PHS", 0): bg.tick(E2("PHT", 2))
    a(f"s_cmp_lg_u32 s{sWV}, 2\ns_cbranch_scc1 LB_xe2")
    x_check("2", True)
    a.wait(lg="all")
    a("s_barrier")
    stamp(33)
    Z = 176
    for q in range(5): a.lds(f"ds_read_b128 {v4(Z+4*q)}, v{vZR} offset:{16*q}", ("zr", q))
    DN = 196
    for Tt in range(5):
        a.wait(lg=[("zr", Tt)])
        for q in range(2):
            for m in range(2):
                d = DN + 2*m
                r = Q + Tt*8 + m*4 + 2*q; z = Z + Tt*4 + 2*q
                if Tt == 0 and q == 0: a(f"v_pk_mul_f32 {v2(d)}, {v2(r)}, {v2(z)}")
                else: a(f"v_pk_fma_f32 {v2(d)}, {v2(r)}, {v2(z)}, {v2(d)}")
    a(f"""v_add_f32 v{DN}, v{DN}, v{DN+1}
v_add_f32 v{DN+2}, v{DN+2}, v{DN+3}
v_add_f32 v{DN}, 0x358637bd, v{DN}
v_add_f32 v{DN+2}, 0x358637bd, v{DN+2}
v_rcp_f32 v{DN}, v{DN}
v_rcp_f32 v{DN+2}, v{DN+2}""")
    WP = 200
    for m in range(2):
        d = DN + 2*m
        for hf in range(3):
            for Tt in ((0, 1), (2, 3), (4,))[hf]:
                for q in range(2):
                    r = Q + Tt*8 + m*4 + 2*q
                    a(f"v_pk_mul_f32 {v2(r)}, {v2(r)}, {v2(d)} op_sel_hi:[1,0]")
            for Tt in ((0, 1), (2, 3), (4,))[hf]:
                for q in range(2):
                    r = Q + Tt*8 + m*4 + 2*q
                    dst = (WP + m*8 + Tt*2 + q) if Tt < 4 else (216 + m*2 + q)
                    a(f"v_cvt_pk_bf16_f32 v{dst}, v{r}, v{r+1}")
            if hf < 2:
                a.vmem(f"buffer_store_dwordx4 {v4(WP + m*8 + hf*4)}, v{vL16}, {srd(SWS)}, s{sSc if m == 0 else sSd} offen offset:{hf*1024} sc1", "ast")
    a("v_permlane16_swap_b32 v216, v218\nv_permlane16_swap_b32 v217, v219")
    a.vmem(f"buffer_store_dwordx4 v[216:219], v{vST}, {srd(SWS)}, s{sSc} offen offset:2048 sc1", "ast")
    stamp(5)
    bg.flush()
    k2_setup(220)
    a.wait(vm=[("c", 3)])
    run_ops(c_reads(3, vCR, AR1))
    poll_issue(K_vFM, K_vTmp, "0xfffffff", "p2")
    a.wait(vm=[("c", 4)], lg="all")
    run_ops(c_reads(4, vCR, AR2))
    a.wait(vm="ast")
    a("s_barrier")
    set_flag(FW, "LB_nf2", 240, wave=3, atomic=False)
    stamp(6)
    skip_math(220, 120)
    k2()

def fl_issue(va, vt, mask, tag):
    a(f"s_mov_b64 exec, {mask}")
    a.vmem(f"buffer_load_dword v{vt}, v{va}, {srd(SWS)}, 0 offen sc1", tag)
    a("s_mov_b64 exec, -1")
def fl_check(va, vt, mask, tag):
    a.wait(vm=tag)
    L = a.label("LK_fl"); C = a.label("LK_fc"); X = a.label("LK_fe")
    a(f"""s_mov_b64 exec, {mask}
s_mov_b32 s{sSPIN}, 0
s_branch {C}
{L}:
buffer_load_dword v{vt}, v{va}, {srd(SWS)}, 0 offen sc1
s_add_u32 s{sSPIN}, s{sSPIN}, 1
s_waitcnt vmcnt(0)
{C}:
v_cmp_ne_u32 vcc, s{sTAG}, v{vt}
s_cmp_gt_u32 s{sSPIN}, 0x20000
s_cbranch_scc1 {X}
s_cbranch_vccnz {L}
{X}:
s_mov_b64 exec, -1""")
def k2():
    a("LK2:")
    a.vm = [("p2", True)]; a.lg = []
    AH, AB = K_AH, K_AB
    NS = 12
    STG = [196 + 4*i for i in range(NS)]
    vA, vM, vFB, vFM, vGA, vRW, vTmp, vG, sMT = K_vA, K_vM, K_vFB, K_vFM, K_vGA, K_vRW, K_vTmp, K_vG, K_sMT
    MH = [f"a[{120+4*n}:{123+4*n}]" for n in range(10)] + [f"a[{240+4*n}:{243+4*n}]" for n in range(4)] + [v4(152+4*n) for n in range(11)]
    sG = [sT2, sT3, sT4, sT5]
    for i in range(4):
        a(f"""s_lshl_b32 s{sG[i]}, s{sRB}, 2
s_add_u32 s{sG[i]}, s{sG[i]}, s{sMT+i}
s_lshl_b32 s{sG[i]}, s{sG[i]}, 7
s_add_u32 s{sG[i]}, s{sG[i]}, {WS_G}
s_mul_i32 s{sMT+i}, s{sMT+i}, {16*320}""")
    a.wait(lg="all")
    stamp(7)
    poll_finish(vFM, vTmp, "0xfffffff", "p2")
    stamp(8)
    frags = [("h", i, ks, mt) for i in range(5) for ks in range(2) for mt in range(4)] + [("w", i, 0, mt) for mt in range(4) for i in range(5)]
    def issueA(n):
        kind, i, ks, mt = frags[n]
        r = STG[n % NS]
        if kind == "h": a.vmem(f"buffer_load_dwordx4 {v4(r)}, v{vA+mt}, {srd(SWS)}, s{sKA+i} offen offset:{ks*1024} sc1", ("A", n))
        else: a.vmem(f"buffer_load_dwordx4 {v4(r)}, v{vA+mt}, {srd(SWS)}, s{sKA+5+i} offen sc1", ("A", n))
    extra = [(lambda i=i: a.vmem(f"buffer_load_dword v{vG+2*i}, v{vGA}, {srd(SWS)}, s{sG[i]} offen sc1", "g")) for i in range(4)]
    for i in range(5):
        for nt in range(5):
            extra.append(lambda i=i, nt=nt: a.vmem(f"buffer_load_dwordx4 {MH[i*5+nt]}, v{vM+nt}, {srd(SWS)}, s{sKQ+i} offen sc1", "M"))
    extra = extra[4:9] + extra[:4] + extra[9:]
    MS, D, X0, X1 = E2("MS", 4), E2("KD", 11), E2("X0", 3), E2("X1", 44)
    PW = E2("PW", 26)
    Q = []
    e = 0
    for n in range(60):
        if n == PW: Q.append(("pw", None))
        while e < 29 and n >= X0 and (e + 1) * (X1 - X0 + 1) <= (n - X0 + 1) * 29:
            Q.append(("x", extra[e])); e += 1
        Q.append(("A", n))
    assert e == 29
    pos = {v: k for k, (t, v) in enumerate(Q) if t == "A"}
    st = {"q": 0, "fm": True, "fw": False}
    def can(limitA):
        if st["q"] >= len(Q): return False
        t, v = Q[st["q"]]
        if t == "A": return v < limitA and (v < 40 or st["fw"])
        if t == "x": return st["fm"]
        return True
    def pop():
        t, v = Q[st["q"]]; st["q"] += 1
        if t == "A": issueA(v)
        elif t == "x": v()
        elif t == "pm": fl_issue(vFM, vTmp, "0xfffff", "pfm")
        else: fl_issue(vFB, vTmp, "0xff", "pfw")
    while st["q"] < E2("D0", 10) and can(NS): pop()
    def g_prep():
        a.wait(vm="g")
        for i in range(4):
            g = vG + 2*i
            a(f"""v_sub_f32 v{g+1}, 1.0, v{g}
v_cvt_pk_bf16_f32 v{g+1}, v{g+1}, v{g+1}
v_lshlrev_b32 v{g+1}, 16, v{g+1}""")
    def scale_ops(mt, nt):
        g = vG + 2*mt; h = AH + (mt*5+nt)*4
        return [(lambda q=q: a(f"v_mul_f32 v{h+q}, v{g}, v{h+q}\nv_mul_f32 v{h+q+1}, v{g}, v{h+q+1}")) for q in (0, 2)]
    def fin_ops(mt, nt, pk=False):
        g = vG + 2*mt; h = AH + (mt*5+nt)*4; b = AB[mt % 2] + nt*4
        if pk: ops = [(lambda q=q: a(f"v_pk_fma_f32 {v2(h+q)}, {v2(b+q)}, {v2(g)}, {v2(h+q)} op_sel:[0,1,0] op_sel_hi:[1,1,1]")) for q in (0, 2)]
        else: ops = [(lambda q=q: a(f"v_fmac_f32 v{h+q}, v{g+1}, v{b+q}\nv_fmac_f32 v{h+q+1}, v{g+1}, v{b+q+1}")) for q in (0, 2)]
        def w():
            if nt == 0: a(f"v_add_u32 v{vTmp}, s{sMT+mt}, v{vRW}")
            a.lds(f"ds_write_b128 v{vTmp}, {v4(h)} offset:{nt*64}", "red")
        return ops + [w]
    for n in range(60):
        kind, i, ks, mt = frags[n]
        assert st["q"] > pos[n], n
        a.wait(vm=[("A", n)])
        if n == 0: stamp(14)
        if E("K2ST") and n % 4 == 0: stamp(44 + n // 4)
        if n == PW: fl_check(vFB, vTmp, "0xff", "pfw"); st["fw"] = True
        if n == 40:
            stamp(15)
            g_prep()
        fill = []
        if kind == "w":
            fill = scale_ops(mt, i) + (fin_ops(mt-1, i) if mt > 0 else [])
        target = pos[min(n + 1, 59)] + D
        for nt in range(5):
            if kind == "h":
                d = AH + (mt*5 + nt)*4
                first = (i == 0 and ks == 0 and mt != 0)
                fa = a4(CHOME[i] + (ks*5+nt)*4)
            else:
                d = AB[mt % 2] + nt*4
                first = (i == 0)
                fa = MH[i*5 + nt]
            mfma(v4(d), fa, v4(STG[n % NS]), "0" if first else v4(d))
            if fill: fill.pop(0)()
            elif nt in (0, 2) and st["q"] < target and can(n + NS): pop()
        if st["q"] < target and can(n + NS + 1): pop()
    stamp(9)
    for nt in range(5):
        for f in fin_ops(3, nt, True): f()
    a(f"""s_cmp_lg_u32 s{sRB}, 31
s_cbranch_scc1 LK_ne
s_or_b32 s{sT2}, s{sWV}, s{sCT}
s_cmp_lg_u32 s{sT2}, 0
s_cbranch_scc1 LK_ne
v_mov_b32 v196, {WS_EPOCH}
v_mov_b32 v197, s{sTAG}
s_mov_b64 exec, 1
buffer_store_dword v197, v196, {srd(SWS)}, 0 offen sc1
s_mov_b64 exec, -1
LK_ne:""")
    a.wait(lg="all")
    a("s_barrier")
    R = 32
    for n in range(5):
        for w in range(4):
            a.lds(f"ds_read_b128 {v4(R + (n*4+w)*4)}, v{K_FL} offset:{w*64*320 + n*64}", ("rr", n))
    for n in range(5):
        a.wait(lg=[("rr", n)])
        r = R + n*16
        a(f"""v_pk_add_f32 {v2(r)}, {v2(r)}, {v2(r+4)}
v_pk_add_f32 {v2(r+2)}, {v2(r+2)}, {v2(r+6)}
v_pk_add_f32 {v2(r+8)}, {v2(r+8)}, {v2(r+12)}
v_pk_add_f32 {v2(r+10)}, {v2(r+10)}, {v2(r+14)}
v_pk_add_f32 {v2(r)}, {v2(r)}, {v2(r+8)}
v_pk_add_f32 {v2(r+2)}, {v2(r+2)}, {v2(r+10)}""")
        a.vmem(f"buffer_store_dwordx4 {v4(r)}, v{K_FO}, {srd(SOUT)}, 0 offen offset:{n*64} {os.environ.get('OST', '').replace('_', ' ')}", "ost")
    stamp(10)
    stamp_flush()
    if E("PADUS"):
        a(f"""s_waitcnt vmcnt(0)
Lpad:
s_memrealtime s[96:97]
s_waitcnt lgkmcnt(0)
s_sub_u32 s96, s96, s{sST}
s_cmp_lt_u32 s96, {E("PADUS")*100}
s_cbranch_scc1 Lpad""")
    a("Lend:\ns_endpgm\nLcode_end:\n.fill 320, 4, 0xbf800000")

prologue()
type_A()
type_B()
body = a.text()
hdr = open("gated_mix__ssm_conv_s5__linear_attn_block__prompt.s.ref").read().split("; Override launch")[0]
def wrap(b):
    return hdr + f"; @launch grid=(256,1,1) block=(256,1,1) lds={LDS_BYTES}\n" + HEADER + kernel_begin(NAME) + b + kernel_desc(NAME, 512, 102, 256)
out = sys.argv[1] if len(sys.argv) > 1 else "k.s"
if E2("IW", 0):
    import subprocess, re, tempfile
    tmp = tempfile.mkdtemp()
    open(tmp + "/p.s", "w").write(wrap(body))
    subprocess.run(["clang", "-x", "assembler", "-target", "amdgcn-amd-amdhsa", "-mcpu=gfx950", "-c", tmp + "/p.s", "-o", tmp + "/p.o"], check=True)
    dis = subprocess.run(["llvm-objdump", "-d", "--mcpu=gfx950", tmp + "/p.o"], capture_output=True, text=True).stdout
    seg = dis[dis.index("<LA_cont>:"):]
    sizes = [4 * len(m.group(1).split()) for m in re.finditer(r"// [0-9A-F]{12}: ([0-9A-F ]+?)(?: <.*)?$", seg, re.M)]
    lines = body.split("\n")
    i0 = lines.index("LA_cont:")
    outl = lines[:i0+1]
    off = 0; k = 0; nxt = 0; safe = True; sv = False; n = 0; done = False
    for l in lines[i0+1:]:
        t_ = l.strip()
        isins = t_ and not t_.endswith(":") and not t_.startswith((";", "."))
        if isins and not done:
            if off >= nxt and safe:
                outl.append(f"Lw_{k}:"); outl.append("    s_cbranch_execz Lwret")
                k += 1; off += 4; nxt += 4096
            off += sizes[n]; n += 1
            if t_.startswith("s_and_saveexec"): safe = False; sv = True
            elif t_.startswith("s_mov_b64 exec,"):
                x = t_.split(",")[1].strip()
                if x == "-1" or (sv and x == sp(sT2)): safe = True; sv = False
                else: safe = False
            elif t_.startswith("s_mov_b32 exec_hi,"): safe = t_.endswith("-1")
            if t_ == "s_endpgm": done = True
        outl.append(l)
    body = "\n".join(outl).replace(";LADDER", "\n".join(f"    s_cmp_eq_u32 s{sT1}, {q}\n    s_cbranch_scc1 Lw_{q}" for q in range(k)))
src = wrap(body)
open(out, "w").write(src)
print("written", out, "nops inserted:", a.nnop, "lines", src.count("\n"))
```

```python
import sys, os
sys.path.insert(0, "work")
from asmlib import *

STAMPS = int(os.environ.get("STAMPS", "0"))
E = lambda k: int(os.environ.get(k, "0"))
E2 = lambda k, d: int(os.environ.get(k, str(d)))
STGST = int(os.environ.get("STGST", "0"))
NODMA = int(os.environ.get("NODMA", "0"))
NOMFMA = int(os.environ.get("NOMFMA", "0"))
NOREAD = int(os.environ.get("NOREAD", "0"))
LOOKA = int(os.environ.get("LOOK", "5"))

WS_A = 0
WS_M = 0x800000
WS_KVP = 0x900000
WS_ZP = 0xA00000
WS_SP = 0xA40000
WS_G = 0xA80000
WS_FL = 0xB00000
FS = E2("FS", 128)
FW, FM, FB = WS_FL, WS_FL + 0x100000, WS_FL + 0x200000
WS_EPOCH = 0xAC0000
WS_SIZE = 0xE00000
WS_STAMP = 0xC000000
OOB = 0x40000000
RT = 61440
L_W = 65536
L_SCR = 147456
L_PT = L_SCR
L_LT = L_SCR + 3840
L_ZB = L_LT + 10240
L_HB = L_ZB + 320
L_EB = 10240
L_GW = L_SCR
L_WO = L_SCR + 2048
L_KVB = L_WO + 7168
LDS_BYTES = 163840
sWV, sR, sJ, sTAG, sT0 = 3, 4, 5, 6, 7
SX, SW, SQ, SWS, SOUT = 8, 12, 16, 20, 24
sRB, sCT, sOFF, sT1 = 28, 29, 30, 31
pX, pLRE, pLIM, pBRE, pBIM, pCRE, pCIM, pLDT, pDSK, pBX, pQKV, pWO, pGW, pOUT, pDBG, pWS = range(32, 64, 2)
sKA = 64
sKQ = 74
sLC = 84
sXB, sWB, sCW = 89, 90, 91
sT2, sT3, sT4, sT5 = 92, 93, 94, 95
sSPIN = 96
sJL = 101
sST = 98
sM0, sM1 = 50, 51
vTID, vLANE = 0, 1
vX = 2
vW = 6
vQ = 11
vXR = 16
vWR = 18
vT40 = 22
vC = 26
vCR = 30
ACC = 32

def srd(n): return f"s[{n}:{n+3}]"
def sp(n): return f"s[{n}:{n+1}]"
def v4(n): return f"v[{n}:{n+3}]"
def v2(n): return f"v[{n}:{n+1}]"
def a4(n): return f"a[{n}:{n+3}]"

a = Asm()
nstamp = [0]
def stamp(idx, existing=False):
    if not STAMPS: return
    if not existing: a(f"s_memrealtime {sp(sST)}\ns_memtime s[96:97]")
    a(f"""s_waitcnt lgkmcnt(0)
v_writelane_b32 v254, s{sST}, {idx}
v_writelane_b32 v255, s96, {idx}""")
    a.lg = []

def stamp_flush():
    if not STAMPS: return
    a(f"""s_lshl_b32 s96, s2, 2
s_add_u32 s96, s96, s{sWV}
s_lshl_b32 s96, s96, 9
v_lshl_add_u32 v253, v{vLANE}, 3, s96
s_add_u32 s{sST}, s{pWS}, {WS_STAMP}
s_addc_u32 s{sST+1}, s{pWS+1}, 0
global_store_dwordx2 v253, v[254:255], {sp(sST)}""")

def mfma(d, A, B, C):
    a(f"v_mfma_f32_16x16x32_bf16 {d}, {A}, {B}, {C}")

def mk_srd(n, ptr, size):
    a(f"s_mov_b32 s{n}, s{ptr}\ns_and_b32 s{n+1}, s{ptr+1}, 0xffff\ns_mov_b32 s{n+2}, {size}\ns_mov_b32 s{n+3}, 0x20000")

POLLOP, POLLFL = ('buffer_load_dword', 'sc1') if E('LDPOLL') else ('buffer_atomic_add', 'sc0 sc1')
def poll_issue(vaddr, vtmp, execmask, tag, load=False):
    POLLOP, POLLFL = ('buffer_load_dword', 'sc1') if load else (globals()['POLLOP'], globals()['POLLFL'])
    a(f"s_cmp_eq_u32 s{sWV}, 0\ns_cselect_b32 s{sT0}, 0, {OOB}\ns_mov_b64 exec, {execmask}\nv_mov_b32 v{vtmp}, 0")
    a.vmem(f"{POLLOP} v{vtmp}, v{vaddr}, {srd(SWS)}, s{sT0} offen {POLLFL}", tag)
    a("s_mov_b64 exec, -1")
def poll_finish(vaddr, vtmp, execmask, tag):
    L = a.label("Lpoll"); E_ = a.label("Lpolle"); C = a.label("Lpollc"); S = a.label("Lpolls")
    n = a._cnt(a.vm, tag)[0]
    a(f"""s_cmp_lg_u32 s{sWV}, 0
s_cbranch_scc1 {S}
s_mov_b64 exec, {execmask}
s_mov_b32 s{sSPIN}, 0
s_waitcnt vmcnt({min(n, 63)})
s_branch {C}
{L}:
{'s_mov_b64 exec, vcc' if E2('PX', 1) else ''}
v_mov_b32 v{vtmp}, 0
{'s_sleep %d' % E('SLP') if E('SLP') else ''}
{POLLOP} v{vtmp}, v{vaddr}, {srd(SWS)}, 0 offen {POLLFL}
s_add_u32 s{sSPIN}, s{sSPIN}, 1
s_waitcnt vmcnt(0)
{C}:
v_cmp_ne_u32 vcc, s{sTAG}, v{vtmp}
s_cmp_gt_u32 s{sSPIN}, 0x20000
s_cbranch_scc1 {E_}
s_cbranch_vccnz {L}
{E_}:
s_mov_b64 exec, -1
{S}:
s_barrier""")

def wq_pattern(dst, sadd):
    for i in range(5):
        a(f"""v_add_u32 v52, {64*i}, v{vLANE}
v_mul_u32_u24 v53, 6554, v52
v_lshrrev_b32 v53, 16, v53
v_mul_u32_u24 v54, 10, v53
v_sub_u32 v54, v52, v54
v_lshrrev_b32 v55, 1, v53
v_and_b32 v55, 4, v55
v_xor_b32 v53, v53, v55
v_mul_u32_u24 v53, 3840, v53
v_lshl_add_u32 v54, v54, 4, s{sadd}""")
        if i & 3: a(f"v_subrev_u32 v53, {(i&3)*1024}, v53")
        a(f"v_add_u32 v{dst+i}, v53, v54")

def prologue():
    if E2("ROT", 3) == 0:
        ROT = f"""s_lshr_b32 s{sT2}, s{sCT}, 2
s_add_u32 s{sT2}, s{sT2}, s{sCT}
s_mul_i32 s{sT3}, s{sJL}, 5
s_add_u32 s{sT3}, s{sT3}, 1
s_lshr_b32 s{sT3}, s{sT3}, 1
s_add_u32 s{sT2}, s{sT2}, s{sT3}
s_sub_u32 s{sT3}, s{sT2}, 10
s_cmp_ge_u32 s{sT2}, 10
s_cselect_b32 s{sT2}, s{sT3}, s{sT2}"""
    elif E2("ROT", 3) == 1:
        ROT = f"""s_add_u32 s{sT2}, s{sCT}, s{sJL}
s_and_b32 s{sT2}, s{sT2}, 3
s_mul_i32 s{sT2}, s{sT2}, 5
s_add_u32 s{sT2}, s{sT2}, 1
s_lshr_b32 s{sT2}, s{sT2}, 1"""
    else:
        ROT = f"""s_add_u32 s{sT2}, s{sCT}, s{sJL}
s_sub_u32 s{sT3}, s{sT2}, 10
s_cmp_ge_u32 s{sT2}, 10
s_cselect_b32 s{sT2}, s{sT3}, s{sT2}
s_sub_u32 s{sT3}, s{sT2}, 5
s_cmp_ge_u32 s{sT2}, 5
s_cselect_b32 s{sT2}, s{sT3}, s{sT2}
{'s_lshl_b32 s%d, s%d, 1' % (sT2, sT2) if E2("ROT", 3) == 2 else ''}"""
    WRAP = 640 if E2("ROT", 3) == 3 else 1280
    if E("PADUS"): a(f"s_memrealtime {sp(sST)}")
    if STAMPS: a(f"s_memrealtime {sp(sST)}\ns_memtime s[96:97]")
    a(f"""s_cmp_ge_u32 s2, 256
s_cbranch_scc1 Lend
s_load_dwordx16 s[32:47], s[0:1], 0
s_load_dwordx16 s[48:63], s[0:1], 64
v_and_b32 v{vLANE}, 63, v0
v_lshrrev_b32 v32, 6, v0
s_and_b32 s{sT0}, s2, 7
s_lshr_b32 s{sT1}, s2, 3
v_readfirstlane_b32 s{sWV}, v32""")
    a(f"""s_getpc_b64 s[92:93]
Lpc:
s_lshl_b32 s{sT4}, s{sWV}, 5
s_add_u32 s{sT4}, s{sT4}, s{sT1}
s_lshl_b32 s{sT4}, s{sT4}, 10
s_cmp_ge_u32 s{sT4}, Lcode_end-Lpc
s_cbranch_scc1 Lnopf
v_lshl_add_u32 v33, v{vLANE}, 4, s{sT4}""")
    a.vmem(f"global_load_dwordx4 v[36:39], v33, s[92:93]", "pf", certain=False)
    a("Lnopf:")
    a(f"""s_lshr_b32 s{sR}, s{sT0}, 2
s_lshl_b32 s{sR}, s{sR}, 3
s_and_b32 s{sCT}, s{sT1}, 7
s_add_u32 s{sR}, s{sR}, s{sCT}
s_lshr_b32 s{sJL}, s{sT1}, 3
s_and_b32 s{sJ}, s{sT0}, 3
s_lshl_b32 s{sJ}, s{sJ}, 1
s_and_b32 s{sT3}, s{sJL}, 1
s_add_u32 s{sJ}, s{sJ}, s{sT3}
s_lshl_b32 s{sRB}, s{sT0}, 2
s_and_b32 s{sT3}, s{sCT}, 1
s_lshl_b32 s{sT3}, s{sT3}, 1
s_xor_b32 s{sT3}, s{sT3}, s{sJL}
s_add_u32 s{sRB}, s{sRB}, s{sT3}
{ROT}
s_lshl_b32 s{sKA}, s{sT2}, 7
s_add_u32 s{sKA+1}, s{sKA}, 128
s_cmp_eq_u32 s{sKA+1}, {WRAP}
s_cselect_b32 s{sKA+1}, 0, s{sKA+1}
s_lshl_b32 s{sXB}, s{sWV}, 14
s_mul_i32 s{sWB}, s{sWV}, 5120
s_add_u32 s{sWB}, s{sWB}, {L_W}""")
    a(f"""v_lshrrev_b32 v40, 3, v{vLANE}
v_and_b32 v41, 7, v{vLANE}
v_lshrrev_b32 v43, 1, v40
v_xor_b32 v41, v41, v43
v_lshlrev_b32 v41, 4, v41
v_lshrrev_b32 v42, 2, v40
v_lshlrev_b32 v42, 3, v42
v_and_b32 v43, 1, v43
v_add_u32 v42, v42, v43
v_and_b32 v43, 1, v40
v_lshl_add_u32 v42, v43, 2, v42
s_lshl_b32 s{sT2}, s{sR}, 7
s_lshl_b32 s{sT3}, s{sWV}, 5
s_add_u32 s{sT2}, s{sT2}, s{sT3}
v_add_u32 v42, s{sT2}, v42
v_mul_u32_u24 v42, 1280, v42
v_add_u32 v{vX}, v42, v41
v_xor_b32 v44, 64, v41
v_add_u32 v{vX+1}, v42, v44
v_add_u32 v{vX+1}, {16*1280-1024}, v{vX+1}
v_add_u32 v{vX+2}, 512, v{vX}
v_add_u32 v{vX+3}, 512, v{vX+1}
v_mul_u32_u24 v43, 1280, v40
v_add_u32 v45, v43, v41
v_add_u32 v46, v43, v44
s_mov_b32 s{SX+2}, {2048*1280}
s_mov_b32 s{SX+3}, 0x20000
s_mov_b32 s{SW+2}, {640*1280}
s_mov_b32 s{SW+3}, 0x20000
s_mov_b32 s{SQ+2}, {640*3840}
s_mov_b32 s{SQ+3}, 0x20000
s_cmp_lt_u32 s{sJL}, 2
s_cbranch_scc1 LtypeB
s_mov_b32 s100, 0""")

def code_touch(vt):
    def f():
        L = a.label("Lct")
        a(f"""s_getpc_b64 {sp(sT2)}
{L}:
s_sub_u32 s{sT2}, s{sT2}, {L}-Lpc
s_subb_u32 s{sT3}, s{sT3}, 0
s_lshr_b32 s{sT0}, s2, 3
s_lshl_b32 s{sT0}, s{sT0}, 2
s_add_u32 s{sT0}, s{sT0}, s{sWV}
s_lshl_b32 s{sT0}, s{sT0}, 7
v_lshl_add_u32 v{vt}, v{vLANE}, 14, s{sT0}
v_min_u32 v{vt}, Lcode_end-Lpc, v{vt}
s_mov_b64 exec, 15""")
        a.vmem(f"global_load_dword v{vt}, v{vt}, {sp(sT2)}", "ct")
        a("s_mov_b64 exec, -1")
    return f

def mall_prefetch(vt):
    def f():
        a(f"""s_lshl_b32 s{sT0}, s2, 2
s_add_u32 s{sT0}, s{sT0}, s{sWV}
s_cmp_ge_u32 s{sT0}, 512
s_cselect_b64 {sp(sT2)}, {sp(pCIM)}, {sp(pCRE)}
s_and_b32 s{sT1}, s{sT0}, 511
s_mul_i32 s{sT1}, s{sT1}, 1600
v_lshl_add_u32 v{vt}, v{vLANE}, 7, s{sT1}
s_mul_i32 s{sT0}, s{sT0}, 25
s_lshr_b32 s{sT0}, s{sT0}, 2
v_add_u32 v{vt+1}, s{sT0}, v{vLANE}
v_mul_u32_u24 v{vt+2}, 6554, v{vt+1}
v_lshrrev_b32 v{vt+2}, 16, v{vt+2}
v_mul_u32_u24 v{vt+2}, 2560, v{vt+2}
v_lshl_add_u32 v{vt+1}, v{vt+1}, 7, v{vt+2}
s_mov_b64 exec, 0x1fff""")
        a.vmem(f"global_load_dword v{vt}, v{vt}, {sp(sT2)}", "mp")
        a("s_mov_b64 exec, 0x7f")
        a.vmem(f"buffer_load_dword v{vt+1}, v{vt+1}, {srd(SQ)}, 0 offen", "mp")
        a("s_mov_b64 exec, -1")
    return f

def args_ready():
    a("s_waitcnt lgkmcnt(0)")
    stamp(11, True)
    stamp(12)
    a(f"s_mov_b32 s{SX}, s{pX}\ns_and_b32 s{SX+1}, s{pX+1}, 0xffff")

def late_setup():
    if E("WSOFF"): a(f"s_add_u32 s{pWS}, s{pWS}, {E('WSOFF') << 20}\ns_addc_u32 s{pWS+1}, s{pWS+1}, 0")
    mk_srd(SWS, pWS, WS_SIZE)
    a(f"""s_add_u32 s{sT2}, s{pWS}, {WS_EPOCH}
s_addc_u32 s{sT3}, s{pWS+1}, 0
s_load_dword s{sTAG}, s[{sT2}:{sT3}], 0""")
    if E("TOUCH"):
        sh = E("TOUCH")
        L = a.label("Ltouch")
        mk_srd(SOUT, pOUT, 2048*2560)
        a(f"""s_cmp_lg_u32 s{sWV}, 3
s_cbranch_scc1 {L}
v_lshlrev_b32 v34, {sh}, v{vLANE}
v_mov_b32 v35, 0""")
        a.vmem(f"buffer_load_dword v36, v34, {srd(SWS)}, 0 offen", "touch", certain=False)
        a.vmem(f"buffer_load_dword v36, v34, {srd(SOUT)}, 0 offen", "touch", certain=False)
        a("s_mov_b64 exec, 1")
        for p in (pCRE, pCIM, pWO, pDSK, pQKV):
            a.vmem(f"global_load_dword v36, v35, {sp(p)}", "touch", certain=False)
        a(f"s_mov_b64 exec, -1\n{L}:")
    for s in range(2, 10):
        if E2("ROT", 3) == 3:
            if s < 5: a(f"s_add_u32 s{sKA+s}, s{sKA+s-1}, 128\ns_cmp_eq_u32 s{sKA+s}, 640\ns_cselect_b32 s{sKA+s}, 0, s{sKA+s}")
            else: a(f"s_add_u32 s{sKA+s}, s{sKA+s-5}, 640")
        else: a(f"s_add_u32 s{sKA+s}, s{sKA+s-1}, 128\ns_cmp_eq_u32 s{sKA+s}, 1280\ns_cselect_b32 s{sKA+s}, 0, s{sKA+s}")
    for s in range(2, 10):
        a(f"s_mul_i32 s{sKQ+s}, s{sKA+s}, 1920")
    a(f"""s_lshl_b32 s{sT2}, s{sJL}, 2
s_lshr_b32 s{sOFF}, 0x0410, s{sT2}
s_and_b32 s{sOFF}, s{sOFF}, 15
s_add_u32 s{sOFF}, s{sOFF}, s{sCT}
s_sub_u32 s{sT3}, s{sOFF}, 10
s_cmp_ge_u32 s{sOFF}, 10
s_cselect_b32 s{sOFF}, s{sT3}, s{sOFF}
s_sub_u32 s{sT3}, s{sOFF}, 5
s_cmp_ge_u32 s{sOFF}, 5
s_cselect_b32 s{sOFF}, s{sT3}, s{sOFF}
s_mul_i32 s{sT2}, s{sWV}, 5
s_add_u32 s{sT2}, s{sT2}, s{sOFF}""")
    for i in range(5):
        a(f"s_add_u32 s{sLC+i}, s{sT2}, {i}\ns_sub_u32 s{sT3}, s{sLC+i}, 20\ns_cmp_ge_u32 s{sLC+i}, 20\ns_cselect_b32 s{sLC+i}, s{sT3}, s{sLC+i}")
    a(f"""s_mul_i32 s{sCW}, s{sWV}, 10240
s_add_u32 s{sCW}, s{sCW}, {L_W}""")
    a(f"""v_and_b32 v52, 15, v{vLANE}
v_lshrrev_b32 v53, 4, v{vLANE}
v_lshrrev_b32 v54, 1, v52
v_xor_b32 v54, v54, v53
v_lshlrev_b32 v54, 4, v54
v_lshl_add_u32 v56, v52, 7, v54
v_xor_b32 v57, 64, v56
v_add_u32 v{vXR}, s{sXB}, v56
v_add_u32 v{vXR+1}, s{sXB}, v57
v_add_u32 v{vCR}, s{sCW}, v56
v_add_u32 v{vCR+1}, s{sCW}, v57""")
    a(f"""v_bfe_u32 v54, v{vLANE}, 2, 2
v_lshl_add_u32 v54, v53, 3, v54
v_and_b32 v55, 1, v53
v_lshlrev_b32 v55, 2, v55
v_add_u32 v58, v54, v55
v_xor_b32 v55, 4, v55
v_add_u32 v59, v54, v55
v_mul_u32_u24 v58, 160, v58
v_mul_u32_u24 v59, 160, v59
v_and_b32 v60, 3, v{vLANE}
v_mul_u32_u24 v61, 40, v60
v_add_u32 v62, v58, v61
v_add_u32 v63, v59, v61
v_add_u32 v{vT40}, {L_W}, v62
v_add_u32 v{vT40+1}, {L_W}, v63
v_add_u32 v{vT40+2}, {L_W+40960}, v62
v_add_u32 v{vT40+3}, {L_W+40960}, v63""")
    a(f"""s_mul_i32 s{sT2}, s{sCT}, {80*1280}
v_add_u32 v{vC}, s{sT2}, v45
v_add_u32 v{vC+1}, s{sT2}, v46
v_add_u32 v{vC+1}, {10240-1024}, v{vC+1}
v_add_u32 v{vC+2}, {2*(10240-1024)}, v{vC}
v_add_u32 v{vC+3}, {2*(10240-1024)}, v{vC+1}""")

def tag_ready():
    a(f"""s_waitcnt lgkmcnt(0)
s_add_u32 s{sTAG}, s{sTAG}, 0x9e3779b1""")
    a.lg = []

def set_flag(base, lab, vt, wave=0, atomic=True):
    a(f"""s_cmp_lg_u32 s{sWV}, {wave}
s_cbranch_scc1 {lab}
s_lshl_b32 s{sT0}, s{sJ}, 4
s_add_u32 s{sT0}, s{sT0}, s{sR}
s_mul_i32 s{sT0}, s{sT0}, {FS}
s_add_u32 s{sT0}, s{sT0}, {base}
v_lshl_add_u32 v{vt}, v{vLANE}, 2, s{sT0}
v_mov_b32 v{vt+1}, s{sTAG}
{'s_mov_b64 exec, 1' if atomic and not E('STFLAG') else 's_mov_b32 exec_hi, 0'}""")
    a.vmem(f"{'buffer_atomic_swap' if atomic and not E('STFLAG') else 'buffer_store_dword'} v{vt+1}, v{vt}, {srd(SWS)}, 0 offen sc1", "fl", certain=False)
    a(f"s_mov_b64 exec, -1\n{lab}:")

def pk_cmul_acc(d, l, p, acc):
    a(f"""v_pk_fma_f32 {v2(d)}, {v2(p)}, {v2(l)}, {v2(acc)} op_sel_hi:[1,0,1]
v_pk_fma_f32 {v2(d)}, {v2(p)}, {v2(l)}, {v2(d)} op_sel:[1,1,0] op_sel_hi:[0,1,1] neg_lo:[0,1,0]""")

M0 = [None]
def set_m0(sreg, imm):
    if M0[0] != (sreg, imm):
        a(f"s_add_u32 m0, s{sreg}, {imm}")
        M0[0] = (sreg, imm)
def dma_x(s):
    ops = [("s", lambda: set_m0(sXB, (s%4)*4096))]
    for i in range(4):
        def f(i=i):
            set_m0(sXB, (s%4)*4096)
            a.vmem(f"buffer_load_dwordx4 v{vX+i}, {srd(SX)}, s{sKA+s} offen offset:{i*1024} lds", ("st", s))
        ops.append(("d", f))
    return ops
def dma_w(s, vaddr, rsrc, soff):
    ops = [("s", lambda: set_m0(sWB, (s%4)*20480))]
    for i in range(4):
        def f(i=i):
            set_m0(sWB, (s%4)*20480)
            a.vmem(f"buffer_load_dwordx4 v{vaddr+i}, {srd(rsrc)}, s{soff} offen offset:{i*1024} lds", ("st", s))
        ops.append(("d", f))
    ops.append(("s", lambda: set_m0(sWB, (s%4)*20480+4096)))
    def g():
        set_m0(sWB, (s%4)*20480+4096)
        a.vmem(f"buffer_load_dwordx4 v{vaddr+4}, {srd(rsrc)}, s{soff} offen lds", ("st", s))
    ops.append(("d", g))
    return ops
def dma_c(slot, sbase, ldsoff):
    ops = []
    def setup():
        a(f"""s_cmp_ge_u32 s{sLC+slot}, 10
s_cselect_b32 s{SW}, s{pCIM}, s{pCRE}
s_cselect_b32 s{SW+1}, s{pCIM+1}, s{pCRE+1}
s_cselect_b32 s{sM1}, 1280, 0
s_and_b32 s{SW+1}, s{SW+1}, 0xffff
s_lshl_b32 s{sM0}, s{sLC+slot}, 7
s_sub_u32 s{sM0}, s{sM0}, s{sM1}""")
    ops.append(("s", setup))
    for g in range(3):
        def m0(g=g):
            set_m0(sbase, ldsoff + g*4096)
            if g: a(f"s_add_u32 s{sM0}, s{sM0}, 40960")
        ops.append(("s", m0))
        for i in range(4 if g < 2 else 2):
            def f(i=i, g=g):
                set_m0(sbase, ldsoff + g*4096)
                a.vmem(f"buffer_load_dwordx4 v{vC+i}, {srd(SW)}, s{sM0} offen offset:{i*1024} lds", ("c", slot))
            ops.append(("d", f))
    return ops
CHOME = [160, 200, 0, 40, 80]
def c_reads(slot, vbase, ldsoff):
    ops = []
    for ks in range(2):
        for nt in range(5):
            def f(ks=ks, nt=nt):
                a.lds(f"ds_read_b128 {a4(CHOME[slot] + (ks*5+nt)*4)}, v{vbase+ks} offset:{ldsoff + nt*2048}", ("cr", slot))
            ops.append(("r", f))
    return ops

class BG:
    def __init__(self): self.q = []; self.keys = {}; self.fast = False
    def add(self, ops, key=None):
        self.q.extend(ops)
        if key is not None: self.keys[key] = ops[-1]
    def require(self, key):
        last = self.keys.get(key)
        while last in self.q:
            print("note: forced flush for", key)
            self.q.pop(0)[1]()
    def tick(self, n=1):
        while n > 0 and self.q:
            k, f = self.q.pop(0)
            f()
            if k != "s": n -= 1
    def tick_s(self):
        while self.q and self.q[0][0] == "s":
            self.q.pop(0)[1]()
    def flush(self):
        while self.q: self.q.pop(0)[1]()

def run_ops(ops):
    for k, f in ops: f()

def gemm_loop(nstage, frags_per_stage, read_frag, mfmas, x_reads, stage_dma, bg, ring, LOOK, hooks, first_stage=0, pre_issued=2):
    F = frags_per_stage
    total = nstage * F
    NR = len(ring)
    def sid(f): return first_stage + f // F, f % F
    rq = []; last = []
    for f in range(total):
        s, i = sid(f)
        ops = []
        xr = x_reads(s)
        if i in xr: ops += xr[i]
        ops += read_frag(s, i, ring[f % NR])
        if i == 0:
            def first(s=s, e=ops[0]):
                bg.require(s)
                EA = E2("EARLY", 2)
                a.wait(vm=[("st", s)], lg=("all" if s in (EA, 14) else None))
                a("s_barrier")
                if STGST: stamp(16 + s)
                d = stage_dma(s + 2)
                if E2("MPF", 1) == 10 + s: bg.add([("d", mall_prefetch(124))])
                if d and s != EA + 1: bg.add(d, s + 2)
                if E2("MPF", 1) == 20 + s: bg.add([("d", mall_prefetch(124))])
                if s == EA:
                    if E2("MPF", 1) == 1: bg.add([("d", mall_prefetch(124))])
                    bg.add(stage_dma(s + 3), s + 3); bg.fast = True
                    if E2("MPF", 1) == 2: bg.add([("d", mall_prefetch(124))])
                if s == EA + 1: bg.fast = False
                e()
            ops[0] = first
        rq += ops
        last.append(len(rq))
    issued = [0]
    def pop(n):
        for _ in range(n):
            rq[issued[0]](); issued[0] += 1
    pop(last[LOOK - 1])
    gap = 0
    for f in range(total):
        s, i = sid(f)
        if (s, i) in hooks: hooks[(s, i)]()
        a.wait(lg=[("w", s, i)])
        ms = mfmas(s, i, ring[f % NR])
        need = last[min(f + LOOK - 1, total - 1)]
        for half, m in enumerate(ms):
            m()
            maxi = last[min(f + LOOK, f + NR - 1 + (1 if half == len(ms) - 1 else 0), total - 1)]
            period = 2 if bg.fast else 4
            due = lambda g: bool(bg.q) and g % period == 1
            if due(gap):
                bg.tick(1)
                if half == len(ms) - 1 and need > issued[0]: pop(need - issued[0])
            else:
                usable = 1 + sum(1 for g in range(gap + 1, gap + len(ms) - half) if not due(g))
                n = max(1, -(-(need - issued[0]) // usable))
                if due(gap + 1) and half == len(ms) - 1: pass
                pop(max(0, min(n, maxi - issued[0])))
                if due(gap + 1): bg.tick_s()
            gap += 1

LOG2E = 0x3fb8aa3b
def phi(regs, sconst_log2e, tmp, NT=4):
    for n, r in enumerate(regs):
        t = tmp + (n % NT) * 2
        a(f"v_pk_mul_f32 {v2(t)}, {v2(r)}, {sp(sconst_log2e)} op_sel_hi:[1,0]")
        a(f"v_max_f32 v{r}, 0x358637bd, v{r}\nv_max_f32 v{r+1}, 0x358637bd, v{r+1}")
        a(f"v_exp_f32_e64 v{t}, v{t} clamp\nv_exp_f32_e64 v{t+1}, v{t+1} clamp")
        if n > 0:
            rp = regs[n-1]; tp = tmp + ((n-1) % NT) * 2
            a(f"v_pk_add_f32 {v2(rp)}, {v2(rp)}, {v2(tp)}")
    rp = regs[-1]; tp = tmp + ((len(regs)-1) % NT) * 2
    a(f"v_pk_add_f32 {v2(rp)}, {v2(rp)}, {v2(tp)}")

def cmul_acc(dr, di, lr, li, pr, pi, ar, ai):
    a(f"""v_fma_f32 v{dr}, v{lr}, v{pr}, v{ar}
v_fma_f32 v{di}, v{lr}, v{pi}, v{ai}
v_fma_f32 v{dr}, -v{li}, v{pi}, v{dr}
v_fma_f32 v{di}, v{li}, v{pr}, v{di}""")

AR1, AR2 = 40960, 0
K_AH = 32
K_AB = [112, 132]
K_vA, K_vM = 2, 6
K_vFB, K_vFM, K_vGA, K_vRW, K_vTmp = 11, 12, 13, 14, 15
K_vG = 18
K_FO, K_FL = 246, 247
K_sMT = sKQ + 5
def time_base(dst, srt, tmp):
    a(f"""s_lshr_b32 s{dst}, s{srt}, 1
s_lshl_b32 s{dst}, s{dst}, 5
s_and_b32 s{tmp}, s{srt}, 1
s_lshl_b32 s{tmp}, s{tmp}, 1
s_add_u32 s{dst}, s{dst}, s{tmp}""")
def skip_setup(t, sx, sd):
    mk_srd(SOUT, pDSK, 1280)
    a(f"""s_add_u32 s{sT0}, s{sWV}, s{sCT}
s_and_b32 s{sT0}, s{sT0}, 3
s_lshl_b32 s{sx}, s{sRB}, 2
s_add_u32 s{sT0}, s{sT0}, s{sx}""")
    time_base(sx, sT0, sd)
    a(f"""s_mul_i32 s{sx}, s{sx}, 1280
s_mul_i32 s{sd}, s{sCT}, 160
s_add_u32 s{sx}, s{sx}, s{sd}
v_bfe_u32 v{t}, v{vLANE}, 5, 1
v_bfe_u32 v{t+1}, v{vLANE}, 4, 1
v_lshl_add_u32 v{t}, v{t+1}, 2, v{t}
v_mul_u32_u24 v{t}, 1280, v{t}
v_lshrrev_b32 v{t+1}, 4, v{vLANE}
v_mul_u32_u24 v{t+1}, 17, v{t+1}
v_sub_u32 v{t+1}, v{vLANE}, v{t+1}
v_med3_i32 v{t+1}, v{t+1}, 0, 9
v_lshl_add_u32 v{t}, v{t+1}, 4, v{t}""")
def skip_loads(t, sx, sd, sbase, off):
    ops = [("s", lambda: set_m0(sbase, off))]
    for i in range(4):
        def f(i=i):
            set_m0(sbase, off)
            a.vmem(f"buffer_load_dwordx4 v{t}, {srd(SX)}, s{sx} offen offset:{i*1088} lds", "fx")
        ops.append(("d", f))
        if i < 3: ops.append(("s", lambda: a(f"s_add_u32 s{sx}, s{sx}, {10240-1088}")))
    ops.append(("s", lambda: set_m0(sbase, off + 4288)))
    def g():
        set_m0(sbase, off + 4288)
        a("s_mov_b64 exec, 0x3ff")
        a.vmem(f"buffer_load_dwordx4 v{t}, {srd(SOUT)}, s{sd} offen lds", "fx")
        a("s_mov_b64 exec, -1")
    ops.append(("d", g))
    return ops
def skip_reads(t, sbase, off, AB):
    def setup():
        a(f"""s_add_u32 s{sT0}, s{sbase}, {off}
v_lshrrev_b32 v{t}, 4, v{vLANE}
v_lshl_add_u32 v{t}, v{t}, 3, s{sT0}
v_and_b32 v{t+1}, 15, v{vLANE}
v_mul_u32_u24 v{t+1}, 272, v{t+1}
v_add_u32 v{t+1}, v{t+1}, v{t}""")
        a.wait(vm="fx")
    ops = [("s", setup)]
    for nt in range(5):
        ops.append(("r", lambda nt=nt: a.lds(f"ds_read_b64 a[{AB+2*nt}:{AB+1+2*nt}], v{t+1} offset:{nt*32}", "sk")))
        ops.append(("r", lambda nt=nt: a.lds(f"ds_read_b64 a[{AB+10+2*nt}:{AB+11+2*nt}], v{t} offset:{4288 + nt*32}", "sk")))
    return ops
def skip_math(t, AB, bg=None):
    for n in range(10):
        d = K_AH + 2*n
        a(f"""v_accvgpr_read_b32 v{t+1}, a{AB+n}
v_accvgpr_read_b32 v{t+3}, a{AB+10+n}
v_lshlrev_b32 v{t}, 16, v{t+1}
v_and_b32 v{t+1}, 0xffff0000, v{t+1}
v_lshlrev_b32 v{t+2}, 16, v{t+3}
v_and_b32 v{t+3}, 0xffff0000, v{t+3}
v_pk_mul_f32 {v2(t)}, {v2(t)}, {v2(t+2)}
v_cvt_pk_bf16_f32 v{t}, v{t}, v{t+1}
v_lshlrev_b32 v{d}, 16, v{t}
v_and_b32 v{d+1}, 0xffff0000, v{t}""")
        if bg: bg.tick(1)
def k2_flags(t, vfb, vfm):
    a(f"""s_lshr_b32 s{sT2}, s{sRB}, 1
v_lshl_add_u32 v{t}, v{vLANE}, 4, s{sT2}
v_mul_u32_u24 v{t}, {FS}, v{t}
v_add_u32 v{vfb}, {FB}, v{t}
s_and_b32 s{sT3}, s{sRB}, 1
s_mul_i32 s{sT3}, s{sT3}, {64*FS}
s_add_u32 s{sT3}, s{sT3}, {FM - 256*FS}
v_add_u32 v{t}, s{sT3}, v{t}
s_lshl_b32 s{sT2}, s{sCT}, 1
v_lshrrev_b32 v{vfm}, 1, v{vLANE}
v_lshl_add_u32 v{vfm}, v{vfm}, 4, s{sT2}
v_and_b32 v{t+1}, 1, v{vLANE}
v_add_u32 v{vfm}, v{vfm}, v{t+1}
v_mul_u32_u24 v{vfm}, {FS}, v{vfm}
v_add_u32 v{vfm}, {FM}, v{vfm}
v_cmp_gt_u32 vcc, 16, v{vLANE}
v_cndmask_b32 v{vfm}, v{t}, v{vfm}, vcc
v_subrev_u32 v{t}, {20*16*FS}, v{vfb}
v_cmp_gt_u32 vcc, 20, v{vLANE}
v_cndmask_b32 v{vfm}, v{t}, v{vfm}, vcc
v_subrev_u32 v{vfb}, {FB - FW}, v{vfb}""")
def k2_mt():
    a(f"s_add_u32 s{sT0}, s{sWV}, s{sCT}")
    for i in range(4):
        a(f"s_add_u32 s{K_sMT+i}, s{sT0}, {i}\ns_and_b32 s{K_sMT+i}, s{K_sMT+i}, 3")
def k2_min(l16):
    for i in range(4):
        a(f"s_mul_i32 s{sT1}, s{K_sMT+i}, {RT}\nv_add_u32 v{K_vA+i}, s{sT1}, v{l16}")
    a(f"""s_mul_i32 s{sT0}, s{sRB}, {4*RT}
s_lshl_b32 s{sT2}, s{sLC}, 11
s_add_u32 s{sKA}, s{sT0}, s{sT2}""")
def k2_offs(slots):
    a(f"s_mul_i32 s{sT0}, s{sRB}, {4*RT}\ns_mul_i32 s{sT1}, s{sCT}, {5*20480}\ns_add_u32 s{sT1}, s{sT1}, {WS_M}\ns_add_u32 s{sT3}, s{sT0}, 40960")
    for i in slots:
        a(f"""s_lshl_b32 s{sT2}, s{sLC+i}, 11
s_add_u32 s{sKA+i}, s{sT0}, s{sT2}
s_lshl_b32 s{sT2}, s{sLC+i}, 10
s_add_u32 s{sKA+5+i}, s{sT3}, s{sT2}
s_add_u32 s{sKQ+i}, s{sT1}, s{sT2}""")
def k2_rest(t):
    k2_offs([0, 1, 2, 3, 4])
    a(f"v_lshlrev_b32 v{K_vM}, 4, v{vLANE}")
    for nt in range(1, 5): a(f"v_add_u32 v{K_vM+nt}, {nt*20480}, v{K_vM}")
def k2_fin(t):
    q2, q3, q4, q5 = 34, 35, 36, 37
    mk_srd(SOUT, pOUT, 2048*2560)
    a(f"s_lshl_b32 s{q2}, s{sRB}, 2\ns_add_u32 s{q2}, s{q2}, s{sWV}")
    time_base(q3, q2, q4)
    a(f"""s_mul_i32 s{q4}, s{sCT}, 320
s_mul_i32 s{q5}, s{sWV}, {16*320}
v_lshrrev_b32 v{t}, 4, v{vLANE}
v_lshlrev_b32 v{t}, 3, v{t}
v_bfe_u32 v{t+1}, v{vLANE}, 3, 1
v_add_u32 v{t}, v{t}, v{t+1}
v_bfe_u32 v{t+1}, v{vLANE}, 2, 1
v_lshl_add_u32 v{t}, v{t+1}, 2, v{t}
v_add_u32 v{t}, s{q3}, v{t}
v_mul_u32_u24 v{t}, 2560, v{t}
v_and_b32 v{t+1}, 3, v{vLANE}
v_lshl_add_u32 v{t+2}, v{t+1}, 4, s{q4}
v_add_u32 v{K_FO}, v{t}, v{t+2}
v_bfe_u32 v{t+2}, v{vLANE}, 3, 2
v_xor_b32 v{t+1}, v{t+1}, v{t+2}
v_lshrrev_b32 v{t}, 2, v{vLANE}
v_mul_u32_u24 v{t}, 320, v{t}
v_lshl_add_u32 v{t}, v{t+1}, 4, v{t}
v_add_u32 v{K_FL}, s{q5}, v{t}""")
    a(f"""v_and_b32 v{t}, 15, v{vLANE}
v_lshrrev_b32 v{t+1}, 4, v{vLANE}
v_bfe_u32 v{t+2}, v{vLANE}, 1, 2
v_xor_b32 v{t+1}, v{t+1}, v{t+2}
v_mul_u32_u24 v{t}, 320, v{t}
v_lshl_add_u32 v{t}, v{t+1}, 4, v{t}
s_mul_i32 s{q2}, s{sWV}, {64*320}
v_add_u32 v{K_vRW}, s{q2}, v{t}""")

def capture(fn):
    keep = a.items; a.items = []
    fn()
    got = a.items; a.items = keep
    return got

def warm_c(ptr, vt):
    def f():
        a(f"""s_mov_b32 s{SW}, s{ptr}
s_and_b32 s{SW+1}, s{ptr+1}, 0xffff
s_lshr_b32 s{sM0}, s2, 3
s_and_b32 s{sM0}, s{sM0}, 15
s_lshl_b32 s{sM0}, s{sM0}, 2
s_add_u32 s{sM0}, s{sM0}, s{sWV}
s_mul_i32 s{sM0}, s{sM0}, 12800
v_lshlrev_b32 v{vt}, 7, v{vLANE}""")
        a.vmem(f"buffer_load_dword v{vt+1}, v{vt}, {srd(SW)}, s{sM0} offen", "warm")
        a(f"s_add_u32 s{sM0}, s{sM0}, 8192\ns_mov_b32 exec_hi, 15")
        a.vmem(f"buffer_load_dword v{vt+1}, v{vt}, {srd(SW)}, s{sM0} offen", "warm")
        a("s_mov_b32 exec_hi, -1")
    return f

def c_touch(slot, vt):
    dma_c(slot, sXB, 0)[0][1]()
    a(f"""s_mul_i32 s{sM1}, s{sCT}, {80*1280}
s_add_u32 s{sM0}, s{sM0}, s{sM1}
v_mul_u32_u24 v{vt}, 1280, v{vLANE}""")
    a.vmem(f"buffer_load_dword v{vt+1}, v{vt}, {srd(SW)}, s{sM0} offen", "warm")
    a(f"s_add_u32 s{sM0}, s{sM0}, {64*1280}\ns_mov_b64 exec, 0xffff")
    a.vmem(f"buffer_load_dword v{vt+1}, v{vt}, {srd(SW)}, s{sM0} offen", "warm")
    a("s_mov_b64 exec, -1")

def flag_touch(base, vd):
    a(f"""s_lshl_b32 s{sT0}, s{sJ}, 4
s_add_u32 s{sT0}, s{sT0}, s{sR}
s_mul_i32 s{sT0}, s{sT0}, {FS}
s_add_u32 s{sT0}, s{sT0}, {base}
s_mov_b64 exec, 1""")
    a.vmem(f"buffer_load_dword v{vd}, v{vLANE}, {srd(SWS)}, s{sT0} offen", "pt")
    a("s_mov_b64 exec, -1")

def type_A():
    bg = BG()
    AK, AG = ACC, ACC + 80
    RING = [128 + 4*i for i in range(8)]
    sZB, sKVB, sGA, sMa, sMb, sMc, sMd, sGB = 34, 35, 36, 37, 38, 39, 40, 41
    sMK = 60
    sGW = 46
    a(f"""s_lshr_b32 s{sT2}, s{sWV}, 1
s_add_u32 s{sT2}, s{sT2}, 1
s_mul_i32 s{sT2}, s{sT2}, 1280
s_mul_i32 s{sT3}, s{sJ}, 160
s_add_u32 s{sT2}, s{sT2}, s{sT3}
s_and_b32 s{sT3}, s{sWV}, 1
s_mul_i32 s{sT3}, s{sT3}, {32*3840}
s_add_u32 s{sT2}, s{sT2}, s{sT3}
s_mul_i32 s{sKQ}, s{sKA}, 1920
s_mul_i32 s{sKQ+1}, s{sKA+1}, 1920""")
    wq_pattern(vW, sT2)
    args_ready()
    a(f"s_mov_b32 s{SQ}, s{pQKV}\ns_and_b32 s{SQ+1}, s{pQKV+1}, 0xffff")
    def stage_dma(s):
        if s >= 10: return None
        return dma_x(s) + dma_w(s, vW, SQ, sKQ + s)
    run_ops(stage_dma(0))
    mk_srd(SW, pGW, 1280)
    a(f"""s_and_b32 s{sT2}, s{sWV}, 1
s_lshl_b32 s{sT2}, s{sT2}, 10
v_lshlrev_b32 v64, 4, v{vLANE}""")
    set_m0(sT2, L_GW)
    a.vmem(f"buffer_load_dwordx4 v64, {srd(SW)}, s{sT2} offen lds", ("st", 0))
    late_setup()
    a(f"""v_mov_b32 v68, 0
v_mov_b32 v69, 0
v_mov_b32 v70, 0
v_mov_b32 v71, 0
v_lshlrev_b32 v65, 4, v0
v_add_u32 v65, {L_KVB}, v65
v_cmp_gt_u32 vcc, 164, v0
s_and_saveexec_b64 {sp(sT2)}, vcc""")
    a.lds("ds_write_b128 v65, v[68:71]", "z0")
    a(f"s_mov_b64 exec, {sp(sT2)}")
    vXM = vQ + 1
    a(f"""v_lshlrev_b32 v61, 3, v60
v_add_u32 v62, v58, v61
v_add_u32 v63, v59, v61
v_add_u32 v{vWR}, {L_W}, v62
v_add_u32 v{vWR+1}, {L_W}, v63
v_add_u32 v{vWR+2}, {L_W+40960}, v62
v_add_u32 v{vWR+3}, {L_W+40960}, v63
v_lshrrev_b32 v{vQ}, 4, v{vLANE}
v_lshlrev_b32 v{vQ}, 4, v{vQ}
v_add_u32 v{vQ}, {L_GW}, v{vQ}
s_and_b32 s{sT2}, s{sJ}, 1
s_lshl_b32 s{sT2}, s{sT2}, 11
s_xor_b32 s{sT3}, s{sT2}, 2048
v_add_u32 v{vXM}, s{sT2}, v{vXR}
v_add_u32 v{vXM+1}, s{sT2}, v{vXR+1}
v_add_u32 v{vXM+2}, s{sT3}, v{vXR}
v_add_u32 v{vXM+3}, s{sT3}, v{vXR+1}""")
    mk_srd(SW, pWO, 640*1280)
    a(f"""s_and_b32 s{sT1}, s{sR}, 1
s_mul_i32 s{sT2}, s{sT1}, 40
s_mul_i32 s{sT3}, s{sJ}, 80
s_add_u32 s{sT2}, s{sT2}, s{sT3}
s_mul_i32 s{sT2}, s{sT2}, 1280
s_lshr_b32 s{sT3}, s{sR}, 1
s_mul_i32 s{sT3}, s{sT3}, 160
s_add_u32 s{sT2}, s{sT2}, s{sT3}
s_mov_b32 s{sM0}, s{sT2}
s_lshl_b32 s{sM1}, s{sWV}, 10
v_mov_b32 v211, {OOB}""")
    for n in range(2):
        a(f"""v_add_u32 v65, {256*n}, v0
v_mul_u32_u24 v66, 6554, v65
v_lshrrev_b32 v66, 16, v66
v_mul_u32_u24 v67, 10, v66
v_sub_u32 v67, v65, v67
v_mul_u32_u24 v66, 1280, v66
v_lshl_add_u32 v66, v67, 4, v66
v_cmp_gt_u32 vcc, 400, v65
v_cndmask_b32 v{72+n}, v211, v66, vcc""")
    def wo_dma():
        for n in range(2):
            set_m0(sM1, L_WO + 4096*n)
            if n == 1:
                a(f"s_cmp_eq_u32 s{sWV}, 3\ns_cbranch_scc1 LskipWo")
                a.vmem(f"buffer_load_dwordx4 v73, {srd(SW)}, s{sM0} offen lds", ("st", 1), certain=False)
                a("LskipWo:")
            else:
                a.vmem(f"buffer_load_dwordx4 v72, {srd(SW)}, s{sM0} offen lds", ("st", 1))
    vGS, vZ1, vZ2, vK1, vK2, vK3, vK4 = 212, 213, 214, 215, 216, 217, 218
    vXW, vR0, vR1, vKP, vKB = 219, 220, 221, 222, 223
    vOa0, vOa1, vOb0, vOb1, vOc0, vOc1 = 224, 225, 226, 227, 228, 229
    vWo = 230
    vMS, vMR, vONE, vTG = 234, 235, 236, 237
    ZR = L_KVB + 2560
    def precompute():
        a(f"""v_and_b32 v208, 15, v{vLANE}
v_lshrrev_b32 v209, 4, v{vLANE}
v_lshrrev_b32 v210, 2, v208
v_lshlrev_b32 v{vGS}, 4, v209
v_lshl_add_u32 v{vGS}, v208, 6, v{vGS}
v_cmp_gt_u32 vcc, 2, v208
v_cndmask_b32 v{vGS}, v211, v{vGS}, vcc
s_lshl_b32 s{sGB}, s{sR}, 3
s_add_u32 s{sGB}, s{sGB}, s{sJ}
s_lshl_b32 s{sGB}, s{sGB}, 7
s_add_u32 s{sGB}, s{sGB}, {WS_G}
v_cmp_eq_u32 {sp(sMK)}, s{sWV}, v210
v_cmp_eq_u32 {sp(sT4)}, s{sWV}, v209
s_add_u32 s{sT2}, s{sWV}, 1
s_and_b32 s{sT2}, s{sT2}, 3
v_cmp_eq_u32 vcc, s{sT2}, v209
v_lshlrev_b32 v{vZ1}, 2, v208
v_and_b32 v240, 3, v208
v_add_u32 v241, 16, v240
v_lshlrev_b32 v{vZ2}, 2, v241
v_cndmask_b32 v{vZ1}, v211, v{vZ1}, vcc
v_cndmask_b32 v{vZ2}, v211, v{vZ2}, vcc
v_cndmask_b32 v{vZ2}, v211, v{vZ2}, {sp(sMK)}
s_lshl_b32 s{sT2}, s{sJ}, 4
s_add_u32 s{sT2}, s{sT2}, s{sR}
s_mul_i32 s{sZB}, s{sT2}, 640
s_mul_i32 s{sT3}, s{sWV}, 80
s_add_u32 s{sZB}, s{sZB}, s{sT3}
s_add_u32 s{sZB}, s{sZB}, {WS_ZP}
v_mul_u32_u24 v242, 320, v209
v_lshl_add_u32 v{vK1}, v208, 4, v242
v_lshlrev_b32 v{vK2}, 4, v208
v_cndmask_b32 v{vK2}, v211, v{vK2}, {sp(sT4)}
v_lshl_add_u32 v{vK3}, v241, 4, v242
v_cndmask_b32 v{vK3}, v211, v{vK3}, {sp(sMK)}
v_lshlrev_b32 v{vK4}, 4, v241
v_cndmask_b32 v{vK4}, v211, v{vK4}, {sp(sMK)}
v_cndmask_b32 v{vK4}, v211, v{vK4}, {sp(sT4)}
s_mul_i32 s{sKVB}, s{sT2}, 6400
s_mul_i32 s{sT3}, s{sWV}, 1600
s_add_u32 s{sKVB}, s{sKVB}, s{sT3}
s_add_u32 s{sKVB}, s{sKVB}, {WS_KVP}
v_lshlrev_b32 v{vR0}, 4, v{vLANE}
v_add_u32 v{vXW}, s{sXB}, v{vR0}
s_lshl_b32 s{sT2}, s{sWV}, 10
v_add_u32 v{vR1}, s{sT2}, v{vR0}
v_lshlrev_b32 v{vKP}, 4, v0
v_cmp_gt_u32 vcc, 200, v0
v_cndmask_b32 v{vKP}, v211, v{vKP}, vcc
s_mul_i32 s{sGA}, s{sJ}, {16*6400}
s_and_b32 s{sT1}, s{sR}, 1
s_mul_i32 s{sT2}, s{sT1}, 3200
s_add_u32 s{sGA}, s{sGA}, s{sT2}
s_add_u32 s{sGA}, s{sGA}, {WS_KVP}""")
        a(f"""v_cmp_le_u32 vcc, 100, v0
v_subrev_u32 v242, 100, v0
v_cndmask_b32 v242, v0, v242, vcc
v_mov_b32 v243, {L_KVB}
v_mov_b32 v244, {L_KVB + 1280}
v_cndmask_b32 v243, v243, v244, vcc
v_mul_u32_u24 v244, 3277, v242
v_lshrrev_b32 v244, 16, v244
v_mul_u32_u24 v245, 20, v244
v_sub_u32 v245, v242, v245
v_lshl_add_u32 v243, v245, 6, v243
v_lshl_add_u32 v{vKB}, v244, 3, v243""")
        a(f"""v_lshrrev_b32 v242, 1, v210
v_lshl_add_u32 v242, v242, 3, v240
v_lshlrev_b32 v242, 6, v242
v_lshl_add_u32 v242, v209, 4, v242
v_add_u32 v242, {L_KVB}, v242
v_add_u32 v243, 1280, v242
v_mov_b32 v244, {ZR - 256}
v_and_b32 v245, 1, v210
v_cmp_eq_u32 vcc, 0, v245
v_cndmask_b32 v{vOb0}, v244, v242, vcc
v_cndmask_b32 v{vOb1}, v243, v244, vcc
v_mov_b32 v244, {ZR}
v_cndmask_b32 v{vOa0}, v244, v242, vcc
v_cndmask_b32 v{vOa1}, v243, v244, vcc
v_lshlrev_b32 v242, 6, v240
v_lshl_add_u32 v242, v209, 4, v242
v_add_u32 v242, {L_KVB + 16*64}, v242
v_add_u32 v243, 1280, v242
v_cmp_eq_u32 vcc, 0, v210
v_cndmask_b32 v{vOc0}, v244, v242, vcc
v_cmp_eq_u32 vcc, 1, v210
v_cndmask_b32 v{vOc1}, v244, v243, vcc""")
        a(f"""v_bfe_u32 v242, v{vLANE}, 2, 2
v_lshl_add_u32 v242, v209, 3, v242
v_add_u32 v243, 4, v242
v_min_u32 v242, 19, v242
v_min_u32 v243, 19, v243
v_mul_u32_u24 v242, 160, v242
v_mul_u32_u24 v243, 160, v243
v_lshl_add_u32 v242, v240, 3, v242
v_lshl_add_u32 v243, v240, 3, v243
v_add_u32 v{vWo+2}, {L_WO}, v242
v_add_u32 v{vWo+3}, {L_WO}, v243
s_lshl_b32 s{sT2}, s{sWV}, 5
v_add_u32 v{vWo}, s{sT2}, v{vWo+2}
v_add_u32 v{vWo+1}, s{sT2}, v{vWo+3}""")
        a(f"""v_and_b32 v242, 1, v209
v_lshrrev_b32 v243, 1, v209
v_lshl_add_u32 v242, v243, 2, v242
v_lshlrev_b32 v242, 8, v242
v_lshl_add_u32 v{vMS}, v208, 4, v242
v_mul_u32_u24 v243, {4*20480}, v209
v_lshl_add_u32 v243, v208, 4, v243
s_cmp_eq_u32 s{sWV}, 0
s_cselect_b32 s{sT0}, 2, 1
v_cmp_gt_u32 vcc, s{sT0}, v209
v_cndmask_b32 v{vMR}, v211, v243, vcc
s_lshr_b32 s{sT0}, s{sR}, 1
s_mul_i32 s{sT0}, s{sT0}, {5*20480}
s_mul_i32 s{sT2}, s{sJ}, 2560
s_add_u32 s{sT0}, s{sT0}, s{sT2}
s_add_u32 s{sT0}, s{sT0}, {WS_M}
s_lshl_b32 s{sT2}, s{sT1}, 9
s_add_u32 s{sT2}, s{sT2}, s{sT0}
s_lshl_b32 s{sT3}, s{sT1}, 8
s_add_u32 s{sT3}, s{sT3}, s{sT0}
s_mul_i32 s{sT0}, s{sWV}, 20480
s_add_u32 s{sMa}, s{sT2}, s{sT0}
s_add_u32 s{sMb}, s{sT3}, s{sT0}
s_add_u32 s{sT2}, s{sT2}, {4*20480}
s_add_u32 s{sT3}, s{sT3}, {4*20480}
s_cmp_eq_u32 s{sWV}, 0
s_cselect_b32 s{sMc}, s{sT2}, {OOB}
s_cselect_b32 s{sMd}, s{sT3}, {OOB}
v_mov_b32 v{vONE}, 0x3f803f80""")
    precompute()
    skip_setup(238, 56, 57)
    stamp(34)
    if E2("IW", 0):
        a(f"""Lladder:
s_mov_b64 exec, 0
s_mov_b32 s{sT0}, s{sWV}
Lwret:
s_mov_b32 s{sT1}, s{sT0}
s_add_u32 s{sT0}, s{sT0}, 4
;LADDER
s_mov_b64 exec, -1
s_cmp_eq_u32 s100, 1
s_cbranch_scc1 LB_cont
s_branch LA_cont
.p2align 12
LA_cont:""")
    run_ops(stage_dma(1))
    wo_dma()
    def ptouch():
        a(f"""v_lshlrev_b32 v124, 7, v{vLANE}
s_mov_b64 exec, 0x3fff""")
        a.vmem(f"buffer_load_dword v123, v124, {srd(SWS)}, s{sKVB} offen", "pt")
        a("s_mov_b64 exec, 3")
        a.vmem(f"buffer_load_dword v123, v124, {srd(SWS)}, s{sZB} offen", "pt")
        if E2("PTF", 1): flag_touch(FM, 123)
        else: a("s_mov_b64 exec, -1")
    tag_ready()
    a(f"""s_and_b32 s{sT2}, s{sTAG}, 0xff
v_mov_b32 v{vTG}, s{sT2}
s_lshr_b32 s{sT2}, s{sJ}, 1
s_cmp_eq_u32 s{sT2}, s{sWV}
s_cselect_b64 {sp(sGW)}, -1, 0
s_mov_b64 vcc, {sp(sGW)}""")
    stamp(0)
    XA = lambda s, ks, m: (s % 2) * 16 + ks * 8 + m * 4 + 120
    def x_reads(s):
        def mk(ks):
            return [(lambda m=m: a.lds(f"ds_read_b128 {a4(XA(s, ks, m))}, v{vXM+2*m+ks} offset:{(s%4)*4096}", ("x", s, ks))) for m in range(2)]
        return {0: mk(0), 11: mk(1)}
    def read_frag(s, i, reg):
        ks, t = divmod(i, 11)
        sl = s % 4
        if t == 10:
            def g():
                if ks == 0: a(f"v_add_u32 v120, s{sKA+s}, v{vQ}")
                a.lds(f"ds_read_b128 {v4(reg)}, v120 offset:{ks*64}", ("w", s, i))
            return [g]
        seg, T = divmod(t, 5)
        off = (sl % 2) * 20480 + seg * 10240 + ks * 5120
        out = []
        for hh in range(2):
            if T < 4: va, o = vWR + (sl // 2) * 2 + hh, off + 40 * T
            else: va, o = vT40 + (sl // 2) * 2 + hh, off + 32
            out.append(lambda hh=hh, va=va, o=o: a.lds(f"ds_read_b64_tr_b16 {v2(reg + 2*hh)}, v{va} offset:{o}", ("w", s, i)))
        return out
    def mfmas(s, i, reg):
        ks, t = divmod(i, 11)
        first = (s == 0 and ks == 0)
        if t == 10:
            def g():
                L = a.label("Lng")
                a(f"s_cbranch_vccz {L}")
                mfma(v4(AG), a4(XA(s, ks, 0)), v4(reg), "0" if first else v4(AG))
                a(f"{L}:")
            return [g]
        out = []
        for m in range(2):
            d = ACC + t * 8 + m * 4
            c = "0" if first else v4(d)
            out.append(lambda d=d, m=m, c=c: mfma(v4(d), a4(XA(s, ks, m)), v4(reg), c))
        return out
    gemm_loop(10, 22, read_frag, mfmas, x_reads, stage_dma, bg, RING, 7, {(8, 0): (lambda: bg.add(skip_loads(238, 56, 57, sXB, 10240) + [('d', lambda: a.vmem(f'buffer_load_dword v123, v{vGS}, {srd(SWS)}, s{sGB} offen', 'pt'))] + ([('d', code_touch(122))] if E2('CT', 1) else []) + ([('d', ptouch)] if E2('PTOUCH', 0) else []) + ([('d', lambda: c_touch(3, 124))] if E2('ATCH', 0) else []))), ((9, E2('AC3', 6)) if E2('ATCH', 0) else (8, 18)): (lambda: (bg.add(dma_c(3, sCW, AR1)), setattr(bg, 'fast', E2('AFAST', 0))))})
    bg.flush()
    stamp(1)
    a(f"s_mov_b32 s{sT2}, {LOG2E}\ns_movk_i32 s{sT3}, 0xff")
    T = 160
    PKR = 168
    def pack(t):
        dst = PKR + 4*t
        for q in range(4):
            a(f"v_cvt_pk_bf16_f32 v{dst+q}, v{ACC + t*8 + 2*q}, v{ACC + t*8 + 2*q + 1}")
        a.lds(f"ds_write_b128 v{vXW}, {v4(dst)} offset:{t*1024}", "kvx")
    for t in range(5):
        phi([AK + 8*t + 2*n for n in range(2)], sT2, T)
        pack(5 + t)
        phi([AK + 8*t + 2*n for n in range(2, 4)], sT2, T)
        pack(t)
    stamp(38)
    a.wait(lg="all")
    a("s_barrier")
    stamp(39)
    F0 = 32
    bg.add(dma_c(4, sCW, AR2))
    for w in range(4):
        b = F0 + w * 16
        a.lds(f"ds_read_b128 {v4(b+12)}, v{vR0} offset:{w*16384 + 9216}", ("kr", w))
        a.lds(f"ds_read_b128 {v4(b)}, v{vR1} offset:{w*16384}", ("kr", w))
        a.lds(f"ds_read_b128 {v4(b+4)}, v{vR0} offset:{w*16384 + 4096}", ("kr", w))
        a.lds(f"ds_read_b128 {v4(b+8)}, v{vR1} offset:{w*16384 + 5120}", ("kr", w))
    P = 96
    bg.tick(E2("AE", 4))
    for w in range(4):
        b = F0 + w * 16
        if w and E2("AE", 4): bg.tick(1)
        a.wait(lg=[("kr", w)])
        for q in range(4): a(f"v_cndmask_b32 v{b+12+q}, v{vONE}, v{b+12+q}, {sp(sMK)}")
        c = lambda n: "0" if w == 0 else v4(P + 4*n)
        mfma(v4(P), v4(b+8), v4(b), c(0))
        mfma(v4(P+8), v4(b+8), v4(b+4), c(2))
        mfma(v4(P+4), v4(b+12), v4(b), c(1))
        mfma(v4(P+12), v4(b+12), v4(b+4), c(3))
    for n in (0, 2, 1, 3):
        for q in (0, 2):
            a(f"v_bfi_b32 v{P+4*n+q}, s{sT3}, v{vTG}, v{P+4*n+q}")
    a.vmem(f"buffer_store_dword v{P+4}, v{vZ1}, {srd(SWS)}, s{sZB} offen sc1", "zst")
    a.vmem(f"buffer_store_dword v{P+12}, v{vZ2}, {srd(SWS)}, s{sZB} offen sc1", "zst")
    a.vmem(f"buffer_store_dwordx4 {v4(P)}, v{vK1}, {srd(SWS)}, s{sKVB} offen sc1", "kvst")
    a.vmem(f"buffer_store_dwordx4 {v4(P+4)}, v{vK2}, {srd(SWS)}, s{sKVB} offen offset:1280 sc1", "kvst")
    a.vmem(f"buffer_store_dwordx4 {v4(P+8)}, v{vK3}, {srd(SWS)}, s{sKVB} offen sc1", "kvst")
    a.vmem(f"buffer_store_dwordx4 {v4(P+12)}, v{vK4}, {srd(SWS)}, s{sKVB} offen offset:1280 sc1", "kvst")
    stamp(2)
    bg.tick(3)
    a.wait(vm=[("c", 3)])
    run_ops(c_reads(3, vCR, AR1))
    run_ops(skip_reads(160, sXB, 10240, 140))
    a.wait(lg=[("cr", 3)])
    bg.add(dma_c(0, sCW, AR1))
    a("s_cbranch_vccz LA_ng")
    for q in range(2):
        r = AG + 2*q
        a(f"""v_cvt_pk_bf16_f32 v{T+1}, v{r}, v{r+1}
v_lshlrev_b32 v{r}, 16, v{T+1}
v_and_b32 v{r+1}, 0xffff0000, v{T+1}
v_mul_f32 v{r}, 0xbfb8aa3b, v{r}
v_mul_f32 v{r+1}, 0xbfb8aa3b, v{r+1}
v_exp_f32 v{r}, v{r}
v_exp_f32 v{r+1}, v{r+1}
s_nop 0
v_add_f32 v{r}, 1.0, v{r}
v_add_f32 v{r+1}, 1.0, v{r+1}
v_rcp_f32 v{r}, v{r}
v_rcp_f32 v{r+1}, v{r+1}
s_nop 0
v_cvt_pk_bf16_f32 v{T+1}, v{r}, v{r+1}
v_lshlrev_b32 v{r}, 16, v{T+1}
v_and_b32 v{r+1}, 0xffff0000, v{T+1}""")
    a.vmem(f"buffer_store_dwordx4 {v4(AG)}, v{vGS}, {srd(SWS)}, s{sGB} offen sc1", "gst", certain=False)
    a("LA_ng:")
    WOF = 128
    for ts in range(2):
        for hd in range(2):
            r = WOF + (ts*2 + hd) * 4
            for hh in range(2):
                a.lds(f"ds_read_b64_tr_b16 {v2(r + 2*hh)}, v{vWo + 2*ts + hh} offset:{hd*3200 + (128 if ts else 0)}", "wof")
    bg.tick(3)
    k2_flags(160, K_vFB, K_vFM)
    k2_mt()
    k2_min(vR0)
    bg.flush()
    stamp(37)
    def gather(tracked):
        a(f"s_mov_b32 s{sT0}, s{sGA}")
        for n in range(16):
            t = f"buffer_load_dwordx4 {v4(32 + 4*n)}, v{vKP}, {srd(SWS)}, s{sT0} offen sc1"
            if tracked: a.vmem(t, ("kp", n))
            else: a(t)
            if n < 15: a(f"s_add_u32 s{sT0}, s{sT0}, 6400")
    gather(True)
    a.wait(vm=[("c", 4)])
    run_ops(c_reads(4, vCR, AR2))
    a.wait(lg="all")
    bg.add(dma_c(1, sCW, AR2))
    bg.tick(E2("AG", 6))
    stamp(41)
    a(f"""v_cmp_gt_u32 vcc, 200, v0
s_mov_b32 s{sSPIN}, 0
s_mov_b64 {sp(sMK)}, vcc
s_branch LA_gc
LA_gr:""")
    gather(False)
    a("s_waitcnt vmcnt(0)\nLA_gc:")
    a.wait(vm=[("kp", 0)])
    a(f"v_xor_b32 v32, v32, v{vTG}\nv_xor_b32 v34, v34, v{vTG}\nv_or_b32 v{T}, v32, v34")
    for n in range(1, 16):
        a.wait(vm=[("kp", n)])
        a(f"""v_xor_b32 v{32+4*n}, v{32+4*n}, v{vTG}
v_xor_b32 v{34+4*n}, v{34+4*n}, v{vTG}
v_pk_add_f32 v[32:33], v[32:33], {v2(32+4*n)}
v_or3_b32 v{T}, v{T}, v{32+4*n}, v{34+4*n}
v_pk_add_f32 v[34:35], v[34:35], {v2(34+4*n)}""")
    a(f"""v_and_b32 v{T}, 0xff, v{T}
v_cmp_ne_u32 vcc, 0, v{T}
s_add_u32 s{sSPIN}, s{sSPIN}, 1
s_and_b64 vcc, vcc, {sp(sMK)}
s_cmp_gt_u32 s{sSPIN}, 0x20000
s_cbranch_scc1 LA_gd
s_cbranch_vccnz LA_gr
LA_gd:
{'v_writelane_b32 v254, s96, 40' if STAMPS else ''}
v_cvt_pk_bf16_f32 v36, v32, v33
v_cvt_pk_bf16_f32 v37, v34, v35
s_mov_b64 exec, {sp(sMK)}""")
    a.lds(f"ds_write_b64 v{vKB}, v[36:37]", "kvb")
    a("s_mov_b64 exec, -1")
    bg.flush()
    a.wait(lg="all")
    a("s_barrier")
    stamp(3)
    KF = 40
    a.lds(f"ds_read_b128 {v4(KF)}, v{vOa0}", "kf")
    a.lds(f"ds_read_b128 {v4(KF+8)}, v{vOb0} offset:256", "kf")
    a.lds(f"ds_read_b128 {v4(KF+16)}, v{vOc0}", "kf")
    a.lds(f"ds_read_b128 {v4(KF+4)}, v{vOa1}", "kf")
    a.lds(f"ds_read_b128 {v4(KF+12)}, v{vOb1} offset:256", "kf")
    a.lds(f"ds_read_b128 {v4(KF+20)}, v{vOc1}", "kf")
    a.wait(lg="all")
    MD = 64
    for hd in range(2):
        for ts in range(2):
            for tl in range(3):
                d = MD + (ts*3 + tl) * 4
                mfma(v4(d), v4(KF + tl*8 + hd*4), v4(WOF + (ts*2+hd)*4), "0" if hd == 0 else v4(d))
    for ts in range(2):
        d = MD + ts*12; o = 88 + ts*4
        for q in range(4):
            a(f"v_cvt_pk_bf16_f32 v{o+q}, v{d+2*q}, v{d+2*q+1}")
        for q in range(2):
            a(f"v_cvt_pk_bf16_f32 v{96+2*ts+q}, v{d+8+2*q}, v{d+9+2*q}")
        a.vmem(f"buffer_store_dwordx4 {v4(o)}, v{vMS}, {srd(SWS)}, s{sMa if ts == 0 else sMc} offen sc1", "mst")
    a("v_permlane16_swap_b32 v96, v98\nv_permlane16_swap_b32 v97, v99")
    a.vmem(f"buffer_store_dwordx4 v[96:99], v{vMR}, {srd(SWS)}, s{sMb} offen offset:2048 sc1", "mst")
    stamp(42)
    bg.add(dma_c(2, sXB, 0))
    bg.tick(E2("AD", 10))
    a.wait(vm=[("c", 1)])
    run_ops(c_reads(0, vCR, AR1))
    run_ops(c_reads(1, vCR, AR2))
    a.wait(vm="mst", lg="all")
    a("s_barrier")
    set_flag(FM, "LA_nf2", 240, wave=3, atomic=False)
    stamp(4)
    bg.flush()
    poll_issue(K_vFM, K_vTmp, "0xff00000", "p2")
    a.wait(vm="p2")
    a("s_branch LK2")

OUTLINE = []
def type_B():
    if E2("PADB", 10) >= 0: a(f".p2align 12\n.fill {E2('PADB', 10)*64}, 4, 0xbf800000")
    a("LtypeB:\ns_mov_b32 s100, 1")
    M0[0] = None
    a.vm = []; a.lg = []
    bg = BG()
    U = ACC; Q = ACC + 80
    RING = [152 + 4*i for i in range(6)]
    LAM = 176
    XR = 216
    COEF = 216
    L8, L128 = 250, 248
    T = 176
    sSa, sSb, sSc, sSd = 54, 55, 56, 57
    sSS, sKX, sKD, sC1, sC2, sT8 = 60, 61, 40, 41, 46, 47
    SXR = 36
    sVAL = 34
    a(f"""s_and_b32 s{sT2}, s{sWV}, 1
s_mul_i32 s{sT3}, s{sT2}, 40
s_mul_i32 s{sT4}, s{sJ}, 80
s_add_u32 s{sT3}, s{sT3}, s{sT4}
s_mul_i32 s{sT3}, s{sT3}, 1280
s_lshl_b32 s{sT4}, s{sT2}, 6
v_xor_b32 v64, s{sT4}, v45
v_xor_b32 v65, s{sT4}, v46
v_add_u32 v{vW}, s{sT3}, v64
v_add_u32 v65, s{sT3}, v65
v_add_u32 v{vW+1}, {10240-1024}, v65
v_add_u32 v{vW+2}, {2*(10240-1024)}, v{vW}
v_add_u32 v{vW+3}, {3*(10240-1024)}, v65
v_add_u32 v{vW+4}, {4*10240}, v{vW}
s_mul_i32 s{sT4}, s{sJ}, 160
v_min_u32 v66, 79, v0
v_lshl_add_u32 v66, v66, 1, s{sT4}
v_mov_b32 v{T}, 0
v_mov_b32 v{T+1}, 0
v_mov_b32 v{T+2}, 0
s_mul_i32 s{sKQ}, s{sKA}, 1920
s_mul_i32 s{sKQ+1}, s{sKA+1}, 1920
s_mul_i32 s{sT5}, s{sT2}, {32*3840}
s_add_u32 s{sT5}, s{sT5}, s{sT4}""")
    args_ready()
    a(f"""s_cmp_ge_u32 s{sWV}, 2
s_cselect_b32 s{SW}, s{pBIM}, s{pBRE}
s_cselect_b32 s{SW+1}, s{pBIM+1}, s{pBRE+1}
s_and_b32 s{SW+1}, s{SW+1}, 0xffff""")
    def stage_dma(s):
        if s < 10: return dma_x(s) + dma_w(s, vW, SW, sKA + s)
        if s < 15: return dma_w(s, vQ, SQ, sKQ + (s - 10))
        return None
    a.vmem(f"global_load_short_d16_hi v{T}, v66, {sp(pLRE)}", "par")
    a.vmem(f"global_load_short_d16_hi v{T+1}, v66, {sp(pLIM)}", "par")
    a.vmem(f"global_load_short_d16_hi v{T+2}, v66, {sp(pLDT)}", "par")
    run_ops(stage_dma(0))
    a(f"s_mov_b32 s{SQ}, s{pQKV}\ns_and_b32 s{SQ+1}, s{pQKV+1}, 0xffff")
    wq_pattern(vQ, sT5)
    late_setup()
    a(f"s_cmp_ge_u32 s{sWV}, 2")
    for q in range(5): a(f"s_cselect_b32 s{sKQ+q}, s{sKQ+2*q+1}, s{sKQ+2*q}")
    a(f"""v_add_u32 v{vWR}, {L_W}, v56
v_add_u32 v{vWR+1}, {L_W}, v57
v_add_u32 v{vWR+2}, {L_W+40960}, v56
v_add_u32 v{vWR+3}, {L_W+40960}, v57""")
    aTW, aTR0, aTR1, aST, aEA, aPT, aSA, aXA, aXW, aHR, aZR, aLT, aSX, aFB, aFM = range(240, 255)
    def params():
        a.wait(vm="par")
        stamp(34)
        bg.tick(E2("PK0", 2))
        P = T + 4
        t0, t1, t2, t3 = T+16, T+17, T+18, T+19
        C = P + 8
        a(f"""v_mul_f32 v{T+2}, {LOG2E}, v{T+2}
v_exp_f32 v{T+2}, v{T+2}
s_nop 0
v_cvt_pk_bf16_f32 v{T+2}, v{T+2}, v{T+2}
v_lshlrev_b32 v{T+2}, 16, v{T+2}
v_mul_f32 v{t0}, v{T+2}, v{T}
v_mul_f32 v{t1}, v{T+2}, v{T+1}
v_mul_f32 v{t0}, {LOG2E}, v{t0}
v_mul_f32 v{t1}, 0.15915494, v{t1}
v_exp_f32 v{t0}, v{t0}
v_fract_f32 v{t1}, v{t1}
v_cos_f32 v{t2}, v{t1}
v_sin_f32 v{t3}, v{t1}
s_nop 0
v_mul_f32 v{P}, v{t0}, v{t2}
v_mul_f32 v{t3}, v{t0}, v{t3}
v_sub_f32 v{P+1}, 0, v{t3}
v_add_f32 v{t0}, -1.0, v{P}
v_mul_f32 v{t1}, v{T}, v{T}
v_fma_f32 v{t1}, v{T+1}, v{T+1}, v{t1}
v_rcp_f32 v{t1}, v{t1}
v_mul_f32 v{C}, v{t0}, v{T}
v_fma_f32 v{C}, v{t3}, v{T+1}, v{C}
v_mul_f32 v{C+1}, v{t3}, v{T}
v_fma_f32 v{C+1}, -v{t0}, v{T+1}, v{C+1}
v_add_f32 v{t1}, v{t1}, v{t1}
v_mul_f32 v{C}, v{C}, v{t1}
v_mul_f32 v{C+1}, v{C+1}, v{t1}""")
        def cmul(d, l, p):
            a(f"""v_pk_mul_f32 {v2(d)}, {v2(p)}, {v2(l)} op_sel_hi:[1,0]
v_pk_fma_f32 {v2(d)}, {v2(p)}, {v2(l)}, {v2(d)} op_sel:[1,1,0] op_sel_hi:[0,1,1] neg_lo:[0,1,0]""")
        bg.tick(E2("PK1", 0))
        cmul(P+2, P, P); cmul(P+4, P+2, P); cmul(P+6, P+2, P+2); cmul(L8, P+6, P+6)
        bg.tick(E2("PK2", 0))
        a(f"""v_mul_u32_u24 v{t0}, 48, v0
v_add_u32 v{t0}, {L_PT}, v{t0}
v_lshlrev_b32 v{t1}, 3, v0
v_add_u32 v{t1}, {L_LT}, v{t1}
v_mov_b32 v{T+20}, 1.0
v_mov_b32 v{T+21}, 0
v_cmp_gt_u32 vcc, 80, v0
s_and_saveexec_b64 {sp(sT2)}, vcc
s_cbranch_execz LB_nopar""")
        a(f"""v_lshlrev_b32 v{t2}, 3, v0
v_mov_b32 v{T+26}, s{sT8}
v_mov_b32 v{T+27}, s{sT8}
s_mul_i32 s{sT4}, s{sR}, 1280
s_add_u32 s{sT4}, s{sT4}, s{sSS}""")
        a.vmem(f"buffer_store_dwordx2 {v2(T+26)}, v{t2}, {srd(SWS)}, s{sT4} offen offset:640 sc1", "dst", certain=False)
        for q in range(3): a.lds(f"ds_write_b128 v{t0}, {v4(P+4*q)} offset:{16*q}", "pt", certain=False)
        a.lds(f"ds_write_b64 v{t1}, {v2(T+20)}", "pt", certain=False)
        a.lds(f"ds_write_b64 v{t1}, {v2(L8)} offset:640", "pt", certain=False)
        prev = L8
        for s in range(2, 17):
            d = (T + 22 + 2*(s % 2)) if s < 16 else L128
            cmul(d, L8, prev)
            if s < 16: a.lds(f"ds_write_b64 v{t1}, {v2(d)} offset:{s*640}", "pt", certain=False)
            prev = d
        a(f"""LB_nopar:
s_mov_b64 exec, {sp(sT2)}""")
    def stash():
        t0, t1 = T+16, T+17
        a(f"""s_lshl_b32 s{sT2}, s{sJ}, 5
s_add_u32 s{sT3}, s{sT2}, 15
s_sub_u32 s{sT3}, s{sT3}, s{sR}
s_mul_i32 s{sSS}, s{sT3}, 640
s_add_u32 s{sSS}, s{sSS}, {WS_SP}
s_add_u32 s{sT3}, s{sSS}, 640
s_mul_i32 s{sT2}, s{sJ}, {16*640}
s_add_u32 s{sT2}, s{sT2}, {WS_ZP}
s_cmp_ge_u32 s{sWV}, 2
s_cselect_b32 s{sT2}, s{sT2}, s{sT3}
s_cselect_b32 s{SXR+2}, 0, {16*640}
s_add_u32 s{SXR}, s{pWS}, s{sT2}
s_addc_u32 s{SXR+1}, s{pWS+1}, 0
s_and_b32 s{SXR+1}, s{SXR+1}, 0xffff
s_mov_b32 s{SXR+3}, 0x20000
s_movk_i32 s{sC1}, 3840
s_movk_i32 s{sC2}, 7680
s_cmp_ge_u32 s{sWV}, 2
s_movk_i32 s{sT2}, 80
s_cmov_b32 s{sT2}, {128+40}
s_cselect_b32 s{sT3}, 128, 0
s_mov_b32 s{sT4}, {L_HB}
s_cmov_b32 s{sT4}, {L_ZB}
v_cmp_gt_u32 {sp(sVAL)}, s{sT2}, v0
v_subrev_u32 v{t0}, s{sT3}, v0
v_lshlrev_b32 v{t0}, 3, v{t0}
v_add_u32 v{t1}, s{sT4}, v{t0}
v_accvgpr_write_b32 a{aXW}, v{t1}
v_mov_b32 v{t1}, {OOB}
v_cndmask_b32 v{t0}, v{t1}, v{t0}, {sp(sVAL)}
v_accvgpr_write_b32 a{aXA}, v{t0}
v_min_u32 v{t0}, 79, v0
v_lshlrev_b32 v{t0}, 3, v{t0}
v_add_u32 v{t0}, {L_EB}, v{t0}
v_accvgpr_write_b32 a{aSA}, v{t0}""")
        c_, g_, u0, u1, u2, u3 = T+8, T+9, T+10, T+11, T+12, T+13
        a(f"""v_and_b32 v{c_}, 15, v{vLANE}
v_lshrrev_b32 v{g_}, 4, v{vLANE}
v_mul_u32_u24 v{u0}, 48, v{c_}
v_add_u32 v{u0}, {L_PT}, v{u0}
v_accvgpr_write_b32 a{aPT}, v{u0}
v_lshrrev_b32 v{u0}, 4, v0
v_mul_u32_u24 v{u0}, 640, v{u0}
v_lshl_add_u32 v{u0}, v{c_}, 3, v{u0}
v_add_u32 v{u0}, {L_LT}, v{u0}
v_accvgpr_write_b32 a{aLT}, v{u0}
v_mul_u32_u24 v{u0}, 640, v{g_}
v_lshl_add_u32 v{u0}, v{c_}, 3, v{u0}
v_add_u32 v{u0}, s{sXB}, v{u0}
v_accvgpr_write_b32 a{aEA}, v{u0}
v_lshlrev_b32 v{u0}, 3, v{c_}
v_add_u32 v{u0}, {L_HB}, v{u0}
v_accvgpr_write_b32 a{aHR}, v{u0}
v_mul_u32_u24 v{u0}, 80, v{g_}
v_add_u32 v{u0}, {L_ZB}, v{u0}
v_accvgpr_write_b32 a{aZR}, v{u0}
v_bfe_u32 v{u0}, v{c_}, 1, 2
v_xor_b32 v{u0}, v{u0}, v{g_}
v_lshlrev_b32 v{u0}, 4, v{u0}
v_lshl_add_u32 v{u0}, v{c_}, 6, v{u0}
s_add_u32 s{sT2}, s{sXB}, 10240
v_add_u32 v{u0}, s{sT2}, v{u0}
v_accvgpr_write_b32 a{aTW}, v{u0}
v_bfe_u32 v{u0}, v{vLANE}, 2, 2
v_lshrrev_b32 v{u1}, 1, v{g_}
v_lshl_add_u32 v{u2}, v{u1}, 3, v{u0}
v_lshlrev_b32 v{u2}, 6, v{u2}
v_and_b32 v{u3}, 1, v{g_}
v_lshl_add_u32 v{u2}, v{u3}, 3, v{u2}
v_add_u32 v{u2}, s{sT2}, v{u2}
v_lshrrev_b32 v{u0}, 1, v{u0}
v_and_b32 v{g_}, 3, v{vLANE}
v_xor_b32 v{u0}, v{u0}, v{g_}
v_lshl_add_u32 v{g_}, v{u0}, 4, v{u2}
v_accvgpr_write_b32 a{aTR0}, v{g_}
v_xor_b32 v{u0}, 2, v{u0}
v_lshl_add_u32 v{g_}, v{u0}, 4, v{u2}
v_add_u32 v{g_}, 256, v{g_}
v_accvgpr_write_b32 a{aTR1}, v{g_}
v_mul_u32_u24 v{u3}, {RT}, v{u3}
v_lshl_add_u32 v{u3}, v{u1}, 8, v{u3}
v_lshl_add_u32 v{u3}, v{c_}, 4, v{u3}
v_accvgpr_write_b32 a{aST}, v{u3}
s_lshl_b32 s{sT2}, s{sR}, 3
s_lshl_b32 s{sT3}, s{sWV}, 1
s_add_u32 s{sT2}, s{sT2}, s{sT3}
s_mul_i32 s{sT2}, s{sT2}, {RT}
s_mul_i32 s{sT3}, s{sJ}, 2560
s_add_u32 s{sSa}, s{sT2}, s{sT3}
s_add_u32 s{sSb}, s{sSa}, 20480
s_add_u32 s{sSc}, s{sSa}, 40960
s_add_u32 s{sSd}, s{sSc}, {RT}""")
    stash()
    skip_setup(T+8, sKX, sKD)
    a(f"v_accvgpr_write_b32 a{aSX}, v{T+8}")
    k2_flags(T+8, T+10, T+11)
    a(f"v_accvgpr_write_b32 a{aFB}, v{T+10}\nv_accvgpr_write_b32 a{aFM}, v{T+11}")
    k2_mt()
    tag_ready()
    a(f"s_and_b32 s{sT8}, s{sTAG}, 0xff")
    if E2("IW", 0): a("s_branch Lladder\nLB_cont:")
    bg.add(stage_dma(1), 1)
    stamp(0)
    params()
    bg.tick(E2("PK3", 2))
    bg.fast = True
    a.wait(lg="all")
    stamp(35)
    XA = lambda s, ks, m: s * 16 + ks * 8 + m * 4
    def x_reads(s):
        if s >= 10: return {}
        def mk(ks):
            return [(lambda m=m: a.lds(f"ds_read_b128 {a4(XA(s, ks, m))}, v{vXR+ks} offset:{(s%4)*4096 + m*2048}", ("x", s, ks))) for m in range(2)]
        return {0: mk(0), 10: mk(1)}
    def read_frag(s, i, reg):
        sl = s % 4
        if s < 10:
            ks, t = divmod(i, 10)
            c5, part = divmod(t, 2)
            return [lambda: a.lds(f"ds_read_b128 {v4(reg)}, v{vWR + (sl//2)*2 + ks} offset:{(sl%2)*20480 + part*10240 + c5*2048}", ("w", s, i))]
        else:
            k4, Tt = divmod(i, 5)
            return [(lambda hh=hh: a.lds(f"ds_read_b64_tr_b16 {v2(reg+2*hh)}, v{vT40 + (sl//2)*2 + hh} offset:{(sl%2)*20480 + k4*5120 + 8*Tt}", ("w", s, i))) for hh in range(2)]
    def mfmas(s, i, reg):
        out = []
        if s < 10:
            ks, t = divmod(i, 10)
            for m in range(2):
                d = U + t*8 + m*4
                c = "0" if (s == 0 and ks == 0) else v4(d)
                out.append(lambda d=d, m=m, c=c: mfma(v4(d), a4(XA(s, ks, m)), v4(reg), c))
        else:
            k4, Tt = divmod(i, 5)
            xs, ks = 2*(s-10) + k4//2, k4 % 2
            for m in range(2):
                d = Q + Tt*8 + m*4
                c = "0" if (s == 10 and k4 == 0) else v4(d)
                out.append(lambda d=d, m=m, c=c: mfma(v4(d), v4(reg), a4(XA(xs, ks, m)), c))
        return out
    def ur(c5, i): return U + (2*c5)*8 + 2*i
    def ui(c5, i): return U + (2*c5+1)*8 + 2*i
    LO = "op_sel_hi:[1,0,1]"
    HI = "op_sel:[0,1,0] op_sel_hi:[1,1,1]"
    NEG = "neg_lo:[0,1,0] neg_hi:[0,1,0]"
    vEA, vSA, vXA, vPT = vX, vX+1, vX+2, vX+3
    vTW, vTR0, vTR1, vST, vL16 = vW, vW+1, vW+2, vW+3, vW+4
    vXW, vHR, vZR, vLT = vWR, vWR+1, vWR+2, vWR+3
    def mk_ptread(c5):
        def f():
            if c5 == 0: a(f"v_accvgpr_read_b32 v{vPT}, a{aPT}")
            a.lds(f"ds_read_b128 {v4(LAM + c5*8)}, v{vPT} offset:{c5*768}", "ptr")
            a.lds(f"ds_read_b128 {v4(LAM + c5*8 + 4)}, v{vPT} offset:{c5*768 + 16}", "ptr")
            a.lds(f"ds_read_b64 {v2(COEF + c5*2)}, v{vPT} offset:{c5*768 + 32}", "ptr")
            if c5 == 4: a(f"v_accvgpr_read_b32 v{vEA}, a{aEA}\nv_accvgpr_read_b32 v{vSA}, a{aSA}\nv_accvgpr_read_b32 v{vXA}, a{aXA}")
        return f
    def scan1():
        stamp(1)
        bg.fast = False
        bg.add(dma_c(0, sXB, 0))
        tA, tB = 228, 230
        for c5 in range(5):
            c = COEF + c5*2
            for i in range(4):
                r_, i_ = ur(c5, i), ui(c5, i)
                a(f"""v_pk_mul_f32 {v2(tA)}, {v2(r_)}, {v2(c)} op_sel_hi:[1,0]
v_pk_mul_f32 {v2(tB)}, {v2(r_)}, {v2(c)} op_sel:[0,1] op_sel_hi:[1,1] neg_lo:[0,1] neg_hi:[0,1]
v_pk_fma_f32 {v2(r_)}, {v2(i_)}, {v2(c)}, {v2(tA)} {HI} {NEG}
v_pk_fma_f32 {v2(i_)}, {v2(i_)}, {v2(c)}, {v2(tB)} {LO} {NEG}""")
            l = LAM + c5*8
            for i in range(1, 4):
                a(f"""v_pk_fma_f32 {v2(ur(c5,i))}, {v2(ur(c5,i-1))}, {v2(l)}, {v2(ur(c5,i))} {LO}
v_pk_fma_f32 {v2(ui(c5,i))}, {v2(ui(c5,i-1))}, {v2(l)}, {v2(ui(c5,i))} {LO}
v_pk_fma_f32 {v2(ur(c5,i))}, {v2(ui(c5,i-1))}, {v2(l)}, {v2(ur(c5,i))} {HI} {NEG}
v_pk_fma_f32 {v2(ui(c5,i))}, {v2(ur(c5,i-1))}, {v2(l)}, {v2(ui(c5,i))} {HI}""")
            l4 = l + 6
            cmul_acc(c, c+1, l4, l4+1, ur(c5,3), ui(c5,3), ur(c5,3)+1, ui(c5,3)+1)
            a.lds(f"ds_write_b64 v{vEA}, {v2(c)} offset:{L_EB + c5*128}", "ew")
            bg.tick(E2("S1T", 1))
        stamp(38)
        a.wait(lg="all")
        a("s_barrier")
        stamp(39)
        a(f"s_cmp_ge_u32 s{sWV}, 2\ns_cbranch_scc1 LB_nocarry1")
        E0 = XR
        tA, tB = 252, vPT
        for s in range(0, 16, 2):
            a(f"ds_read2_b64 {v4(E0 + 2*s)}, v{vSA} offset0:{(s%4)*80} offset1:{(s%4)*80+80}")
            if s % 4 == 2 and s < 14: a(f"v_add_u32 v{vSA}, 16384, v{vSA}")
        a(f"""v_mov_b32 v{tA}, 0
v_mov_b32 v{tA+1}, 0
v_mov_b32 v{tB}, s{sTAG}
s_movk_i32 s{sT3}, 0xff""")
        for s in range(1, 16):
            if s % 2 == 0 or s == 1: a(f"s_waitcnt lgkmcnt({7 - s//2})")
            pk_cmul_acc(E0+2*s, L8, E0+2*s-2, E0+2*s)
        a(f"""v_bfi_b32 v{E0+30}, s{sT3}, v{tB}, v{E0+30}
v_bfi_b32 v{E0+31}, s{sT3}, v{tB}, v{E0+31}""")
        a.vmem(f"buffer_store_dwordx2 {v2(E0+30)}, v{vXA}, {srd(SWS)}, s{sSS} offen sc1", "sst", certain=False)
        a(f"s_mov_b64 exec, {sp(sVAL)}")
        for q in range(14, -1, -2):
            lo = v2(tA) if q == 0 else v2(E0+2*q-2)
            a(f"ds_write2_b64 v{vSA}, {lo}, {v2(E0+2*q)} offset0:{(q%4)*80} offset1:{(q%4)*80+80}")
            if q % 4 == 0 and q: a(f"v_subrev_u32 v{vSA}, 16384, v{vSA}")
        a("s_mov_b64 exec, -1\nLB_nocarry1:")
        stamp(2)
    def x_loads(tracked, cnt):
        ops = []
        for n in range(cnt - 1, -1, -1):
            def f(n=n):
                so = ["0", f"s{sC1}", f"s{sC2}"][n // 6]
                t = f"buffer_load_dwordx2 {v2(XR + 2*n)}, v{vXA}, {srd(SXR)}, {so} offen offset:{(n % 6)*640} sc1"
                if tracked: a.vmem(t, "xl")
                else: a(t)
            ops.append(("d", f))
        return ops
    def x_body(z, ticks):
        cnt = 16 if z else 15
        for n in range(cnt - 1, -1, -1):
            r = XR + 2*n
            a(f"v_xor_b32 v{r}, s{sT8}, v{r}\nv_xor_b32 v{r+1}, s{sT8}, v{r+1}")
            if n == cnt - 1: a(f"v_or_b32 v250, v{r}, v{r+1}")
            else:
                a(f"v_or3_b32 v250, v250, v{r}, v{r+1}")
                if z: a(f"v_pk_add_f32 {v2(r)}, {v2(r)}, {v2(r+2)}")
                else: pk_cmul_acc(r, L128, r+2, r)
            if ticks and n % 2 == 0: bg.tick(1)
        a(f"""v_and_b32 v250, 0xff, v250
v_cmp_ne_u32 vcc, 0, v250
s_add_u32 s{sSPIN}, s{sSPIN}, 1
s_and_b64 vcc, vcc, {sp(sVAL)}""")
    def x_write(z):
        if STAMPS: a("v_writelane_b32 v254, s96, 40")
        if z:
            a(f"""v_cvt_pk_bf16_f32 v250, v{XR}, v{XR+1}
v_lshlrev_b32 v{XR}, 16, v250
v_and_b32 v{XR+1}, 0xffff0000, v250""")
        a(f"s_mov_b64 exec, {sp(sVAL)}\nds_write_b64 v{vXW}, {v2(XR)}\ns_mov_b64 exec, -1")
    def x_retry(z, lab, back):
        a(f"{lab}:")
        run_ops(x_loads(False, 16 if z else 15))
        a(f"s_waitcnt vmcnt(0)\n{lab}c:")
        x_body(z, False)
        a(f"s_cmp_gt_u32 s{sSPIN}, 0x20000\ns_cbranch_scc1 {back}\ns_cbranch_vccnz {lab}\ns_branch {back}")
    OUTLINE.append(lambda: (x_retry(False, "LB_rs", "LB_sok"), x_retry(True, "LB_rz", "LB_zok")))
    def start_x():
        bg.add(x_loads(True, 15)); bg.fast = True
    def c_start(slot):
        def f():
            bg.flush()
            a.wait(lg=[("cr", 0)])
            bg.add(dma_c(slot, sXB, 0)); bg.fast = True
        return f
    def c_read(slot):
        def f():
            bg.flush()
            a.wait(vm=[("c", slot)])
            bg.add(c_reads(slot, vXR, 0)); bg.fast = True
        return f
    hooks = {(0, E2('FEND', 14)): (lambda: setattr(bg, 'fast', False)), (10, 0): scan1, (12, E2('C0R', 0)): c_read(0), (13, E2('XST', 4)): start_x, (14, 0): (lambda: (bg.add(dma_c(1, sXB, 0)), bg.add(dma_c(4, sCW, AR2)))), (13, 0): (lambda: bg.add([('s', lambda: a(f'v_accvgpr_read_b32 v252, a{aSX}'))] + skip_loads(252, sKX, sKD, sWB, 3*20480)))}
    for c5 in range(5): hooks[(9, 2*c5 + 1)] = mk_ptread(c5)
    def touches():
        bg.add([("d", code_touch(vW)), ("d", lambda: flag_touch(FB, vW+1)), ("d", lambda: flag_touch(FW, vW+1))])
    hooks[(9, 6)] = touches
    hooks[(9, 12)] = lambda: setattr(bg, 'fast', True)
    hooks[(14, 1)] = lambda: setattr(bg, 'fast', E2('QF', 0))
    gemm_loop(15, 20, read_frag, mfmas, x_reads, stage_dma, bg, RING, 6, hooks)
    stamp(3)
    a(f"s_mov_b32 s{sSPIN}, 0")
    for vr, ar in ((vLT, aLT), (vXW, aXW), (vTW, aTW), (vTR0, aTR0), (vTR1, aTR1), (vST, aST), (vHR, aHR), (vZR, aZR)):
        a(f"v_accvgpr_read_b32 v{vr}, a{ar}")
    a(f"v_lshlrev_b32 v{vL16}, 4, v{vLANE}")
    H = 152
    for c5 in range(5):
        a.lds(f"ds_read_b64 {v2(H+4*c5)}, v{vEA} offset:{L_EB + c5*128}", "pl")
        a.lds(f"ds_read_b64 {v2(H+4*c5+2)}, v{vLT} offset:{c5*128}", "pl")
    a(f"s_cmp_ge_u32 s{sWV}, 2\ns_cbranch_scc1 LB_x23")
    snap = (list(bg.q), list(a.vm), list(a.lg), M0[0])
    a.wait(vm="xl")
    run_ops(skip_reads(172, sWB, 3*20480, 140))
    x_body(False, True)
    bg.flush()
    a("s_cbranch_vccnz LB_rs\nLB_sok:")
    x_write(False)
    a("s_branch LB_xe1\nLB_x23:")
    bg.q, a.vm, a.lg, M0[0] = snap
    bg.flush()
    full = list(a.vm)
    run_ops(skip_reads(172, sWB, 3*20480, 140))
    a.vm = full
    a(f"s_cmp_lg_u32 s{sWV}, 2\ns_cbranch_scc1 LB_xe1\ns_movk_i32 s{SXR+2}, {16*640}")
    run_ops(x_loads(False, 16))
    a("LB_xe1:")
    M0[0] = None
    a.wait(lg="all")
    a("s_barrier")
    stamp(4)
    HR = vQ + 1
    HRS = [12, 14, 22, 24, 172]
    for c5 in range(5):
        a.lds(f"ds_read_b64 {v2(HRS[c5])}, v{vHR} offset:{c5*128}", ("hin", c5))
    def trd(c5, part):
        for hh in range(2):
            a.lds(f"ds_read_b64_tr_b16 {v2(U + (2*c5+part)*8 + 4 + 2*hh)}, v{vTR0+hh} offset:{((c5%3)*2+part)*1024}", ("tr", c5, part))
    def tst(c5, part):
        a.wait(lg=[("tr", c5, part)])
        a.vmem(f"buffer_store_dwordx4 {v4(U + (2*c5+part)*8 + 4)}, v{vST}, {srd(SWS)}, s{sSa if part == 0 else sSb} offen offset:{c5*512} sc1", "ast")
    for c5 in range(5):
        h = H + 4*c5; lam = LAM + c5*8
        a.wait(lg=[("hin", c5)])
        pk_cmul_acc(h, h+2, HRS[c5], h)
        a(f"v_mov_b32 v{h+2}, v{h+1}")
        cmul_acc(h+1, h+3, lam+6, lam+7, h, h+2, ur(c5,3), ui(c5,3))
        for part in range(2):
            for i in range(4):
                l = lam + 2*i
                if part == 0: a(f"v_pk_fma_f32 {v2(ur(c5,i))}, {v2(h)}, {v2(l)}, {v2(ur(c5,i))} {LO}")
                else: a(f"v_pk_fma_f32 {v2(ui(c5,i))}, {v2(h+2)}, {v2(l)}, {v2(ui(c5,i))} {LO}")
            k = 2*c5 + part
            if k >= 1: trd((k-1)//2, (k-1) % 2)
            for i in range(4):
                l = lam + 2*i
                if part == 0: a(f"v_pk_fma_f32 {v2(ur(c5,i))}, {v2(h+2)}, {v2(l)}, {v2(ur(c5,i))} {HI} {NEG}")
                else: a(f"v_pk_fma_f32 {v2(ui(c5,i))}, {v2(h)}, {v2(l)}, {v2(ui(c5,i))} {HI}")
            if k >= 2: tst((k-2)//2, (k-2) % 2)
            src = U + k*8
            for q in range(4): a(f"v_cvt_pk_bf16_f32 v{src+q}, v{src+2*q}, v{src+2*q+1}")
            a.lds(f"ds_write_b128 v{vTW}, {v4(src)} offset:{((c5%3)*2+part)*1024}", ("tw", c5))
    trd(4, 1)
    tst(4, 0)
    tst(4, 1)
    stamp(32)
    a.wait(vm=[("c", 4)])
    a(f"s_mov_b32 s{sT4}, {LOG2E}")
    cr1 = c_reads(1, vXR, 0) + c_reads(4, vCR, AR2)
    bg.add(dma_c(3, sCW, AR1))
    bg.add([("s", lambda: a.wait(lg=[("cr", 1)]))] + dma_c(2, sXB, 0))
    for n in range(10):
        if n == E2("PHF", 7):
            a.wait(vm="ast")
            a("s_barrier")
            set_flag(FB, "LB_nf", 152, wave=3)
            stamp(36)
        phi([Q + 4*n], sT4, 172, NT=2)
        cr1[2*n][1]()
        phi([Q + 4*n + 2], sT4, 172, NT=2)
        cr1[2*n+1][1]()
        bg.tick(E2("PHT", 2))
    a(f"s_cmp_lg_u32 s{sWV}, 2\ns_cbranch_scc1 LB_xe2")
    x_body(True, False)
    a("s_cbranch_vccnz LB_rz\nLB_zok:")
    x_write(True)
    a("s_waitcnt lgkmcnt(0)\nLB_xe2:")
    bg.flush()
    a(f"v_accvgpr_read_b32 v{K_vFB}, a{aFB}\nv_accvgpr_read_b32 v{K_vFM}, a{aFM}\ns_barrier")
    if E2("EP", 1): poll_issue(K_vFM, K_vTmp, "0xff00000", "p2")
    stamp(33)
    Z = 176
    for q in range(5): a.lds(f"ds_read_b128 {v4(Z+4*q)}, v{vZR} offset:{16*q}", ("zr", q))
    DN = 196
    for Tt in range(5):
        a.wait(lg=[("zr", Tt)])
        for q in range(2):
            for m in range(2):
                d = DN + 2*m
                r = Q + Tt*8 + m*4 + 2*q; z = Z + Tt*4 + 2*q
                if Tt == 0 and q == 0: a(f"v_pk_mul_f32 {v2(d)}, {v2(r)}, {v2(z)}")
                else: a(f"v_pk_fma_f32 {v2(d)}, {v2(r)}, {v2(z)}, {v2(d)}")
    a(f"""v_add_f32 v{DN}, v{DN}, v{DN+1}
v_add_f32 v{DN+2}, v{DN+2}, v{DN+3}
v_add_f32 v{DN}, 0x358637bd, v{DN}
v_add_f32 v{DN+2}, 0x358637bd, v{DN+2}
v_rcp_f32 v{DN}, v{DN}
v_rcp_f32 v{DN+2}, v{DN+2}""")
    WP = 200
    for m in range(2):
        d = DN + 2*m
        for hf in range(3):
            for Tt in ((0, 1), (2, 3), (4,))[hf]:
                for q in range(2):
                    r = Q + Tt*8 + m*4 + 2*q
                    a(f"v_pk_mul_f32 {v2(r)}, {v2(r)}, {v2(d)} op_sel_hi:[1,0]")
            for Tt in ((0, 1), (2, 3), (4,))[hf]:
                for q in range(2):
                    r = Q + Tt*8 + m*4 + 2*q
                    dst = (WP + m*8 + Tt*2 + q) if Tt < 4 else (216 + m*2 + q)
                    a(f"v_cvt_pk_bf16_f32 v{dst}, v{r}, v{r+1}")
            if hf < 2:
                a.vmem(f"buffer_store_dwordx4 {v4(WP + m*8 + hf*4)}, v{vL16}, {srd(SWS)}, s{sSc if m == 0 else sSd} offen offset:{hf*1024} sc1", "ast")
    a("v_permlane16_swap_b32 v216, v218\nv_permlane16_swap_b32 v217, v219")
    a.vmem(f"buffer_store_dwordx4 v[216:219], v{vST}, {srd(SWS)}, s{sSc} offen offset:2048 sc1", "ast")
    stamp(5)
    if not E2("EP", 1): poll_issue(K_vFM, K_vTmp, "0xff00000", "p2")
    k2_min(vL16)
    stamp(6)
    a.wait(vm="p2")
    k2()

def fl_issue(va, vt, mask, tag):
    a(f"s_mov_b64 exec, {mask}")
    a.vmem(f"buffer_load_dword v{vt}, v{va}, {srd(SWS)}, 0 offen sc1", tag)
    a("s_mov_b64 exec, -1")
def fl_check(va, vt, mask, tag):
    a.wait(vm=tag)
    L = a.label("LK_fl"); C = a.label("LK_fc"); X = a.label("LK_fe")
    a(f"""s_mov_b64 exec, {mask}
s_mov_b32 s{sSPIN}, 0
s_branch {C}
{L}:
buffer_load_dword v{vt}, v{va}, {srd(SWS)}, 0 offen sc1
s_add_u32 s{sSPIN}, s{sSPIN}, 1
s_waitcnt vmcnt(0)
{C}:
v_cmp_ne_u32 vcc, s{sTAG}, v{vt}
s_cmp_gt_u32 s{sSPIN}, 0x20000
s_cbranch_scc1 {X}
s_cbranch_vccnz {L}
{X}:
s_mov_b64 exec, -1""")
def k2():
    a("LK2:")
    a.vm = [("p2", True)] + [("old", True)]*5; a.lg = []
    AH, AB = K_AH, K_AB
    NS = 12
    STG = [196 + 4*i for i in range(NS)]
    vA, vM, vFB, vFM, vGA, vRW, vTmp, vG, sMT = K_vA, K_vM, K_vFB, K_vFM, K_vGA, K_vRW, K_vTmp, K_vG, K_sMT
    MH = [f"a[{120+4*n}:{123+4*n}]" for n in range(10)] + [f"a[{240+4*n}:{243+4*n}]" for n in range(4)] + [v4(152+4*n) for n in range(11)]
    sG = [sT2, sT3, sT4, sT5]
    stamp(7)
    poll_finish(vFM, vTmp, "0xff00000", "p2")
    stamp(8)
    frags = [("h", i, ks, mt) for i in range(5) for ks in range(2) for mt in range(4)] + [("w", i, 0, mt) for mt in range(4) for i in range(5)]
    def issueA(n):
        kind, i, ks, mt = frags[n]
        r = STG[n % NS]
        if kind == "h": a.vmem(f"buffer_load_dwordx4 {v4(r)}, v{vA+mt}, {srd(SWS)}, s{sKA+i} offen offset:{ks*1024} sc1", ("A", n))
        else: a.vmem(f"buffer_load_dwordx4 {v4(r)}, v{vA+mt}, {srd(SWS)}, s{sKA+5+i} offen sc1", ("A", n))
    def gl(i):
        assert st["sp"] >= NG
        a.vmem(f"buffer_load_dword v{vG+2*i}, v{vGA}, {srd(SWS)}, s{sG[i]} offen sc1", "g")
    extra = [(lambda i=i: gl(i)) for i in range(4)]
    for i in range(5):
        for nt in range(5):
            extra.append(lambda i=i, nt=nt: a.vmem(f"buffer_load_dwordx4 {MH[i*5+nt]}, v{vM+nt}, {srd(SWS)}, s{sKQ+i} offen sc1", "M"))
    extra = extra[4:9] + extra[:4] + extra[9:]
    MS, D, X0, X1 = E2("MS", 4), E2("KD", 11), E2("X0", 11), E2("X1", 44)
    PW = E2("PW", 26)
    Q = []
    e = 0
    for n in range(60):
        if n == PW: Q.append(("pw", None))
        while e < 29 and n >= X0 and (e + 1) * (X1 - X0 + 1) <= (n - X0 + 1) * 29:
            Q.append(("x", extra[e])); e += 1
        Q.append(("A", n))
    assert e == 29
    pos = {v: k for k, (t, v) in enumerate(Q) if t == "A"}
    st = {"q": 0, "fm": False, "fw": False}
    def can(limitA):
        if st["q"] >= len(Q): return False
        t, v = Q[st["q"]]
        if t == "A": return v < limitA and (v < 40 or st["fw"])
        if t == "x": return st["fm"]
        return True
    def pop():
        t, v = Q[st["q"]]; st["q"] += 1
        if t == "A": issueA(v)
        elif t == "x": v()
        elif t == "pm": fl_issue(vFM, vTmp, "0xfffff", "pfm")
        else: fl_issue(vFB, vTmp, "0xff", "pfw")
    while st["q"] < E2("P3AT", 4): pop()
    poll_issue(vFM, vTmp, "0xfffff", "p3", load=E2("P3LD", 1))
    while st["q"] < E2("D0", 8) and can(8): pop()
    k2_rest(248)
    a("s_cmp_eq_u32 s100, 0\ns_cbranch_scc1 LK_c3")
    run_ops(c_reads(3, vCR, AR1))
    a("LK_c3:")
    run_ops(c_reads(2, vXR, 0))
    skip_math(248, 140)
    while st["q"] < E2("D1", 8) and can(NS): pop()
    a.wait(vm="old", lg="all")
    poll_finish(vFM, vTmp, "0xfffff", "p3")
    st["fm"] = True
    a("s_cmp_eq_u32 s100, 0\ns_cbranch_scc1 LB_nf2")
    set_flag(FW, "LB_nf2", 244, wave=3, atomic=False)
    def goffs():
        a(f"v_and_b32 v{vGA}, 15, v{vLANE}\nv_lshlrev_b32 v{vGA}, 2, v{vGA}")
        for i in range(4):
            a(f"""s_lshl_b32 s{sG[i]}, s{sRB}, 2
s_add_u32 s{sG[i]}, s{sG[i]}, s{sMT+i}
s_lshl_b32 s{sG[i]}, s{sG[i]}, 7
s_add_u32 s{sG[i]}, s{sG[i]}, {WS_G}
s_mul_i32 s{sMT+i}, s{sMT+i}, {16*320}""")
    spare = capture(goffs)
    NG = len(spare)
    spare += capture(lambda: k2_fin(248))
    st["sp"] = 0
    def g_prep():
        a.wait(vm="g")
        for i in range(4):
            g = vG + 2*i
            a(f"""v_sub_f32 v{g+1}, 1.0, v{g}
v_cvt_pk_bf16_f32 v{g+1}, v{g+1}, v{g+1}
v_lshlrev_b32 v{g+1}, 16, v{g+1}""")
    def scale_ops(mt, nt):
        g = vG + 2*mt; h = AH + (mt*5+nt)*4
        return [(lambda q=q: a(f"v_mul_f32 v{h+q}, v{g}, v{h+q}\nv_mul_f32 v{h+q+1}, v{g}, v{h+q+1}")) for q in (0, 2)]
    def fin_ops(mt, nt, pk=False):
        g = vG + 2*mt; h = AH + (mt*5+nt)*4; b = AB[mt % 2] + nt*4
        if pk: ops = [(lambda q=q: a(f"v_pk_fma_f32 {v2(h+q)}, {v2(b+q)}, {v2(g)}, {v2(h+q)} op_sel:[0,1,0] op_sel_hi:[1,1,1]")) for q in (0, 2)]
        else: ops = [(lambda q=q: a(f"v_fmac_f32 v{h+q}, v{g+1}, v{b+q}\nv_fmac_f32 v{h+q+1}, v{g+1}, v{b+q+1}")) for q in (0, 2)]
        def w():
            if nt == 0: a(f"v_add_u32 v{vTmp}, s{sMT+mt}, v{vRW}")
            a.lds(f"ds_write_b128 v{vTmp}, {v4(h)} offset:{nt*64}", "red")
        return ops + [w]
    for n in range(60):
        kind, i, ks, mt = frags[n]
        assert st["q"] > pos[n], n
        a.wait(vm=[("A", n)])
        if n == 0: stamp(14)
        if E("K2ST") and n % 4 == 0: stamp(44 + n // 4)
        if n == PW: fl_check(vFB, vTmp, "0xff", "pfw"); st["fw"] = True
        if n == 40:
            stamp(15)
            assert st["sp"] == len(spare)
            g_prep()
        fill = []
        if kind == "w":
            fill = scale_ops(mt, i) + (fin_ops(mt-1, i) if mt > 0 else [])
        target = pos[min(n + 1, 59)] + D
        for nt in range(5):
            if kind == "h":
                d = AH + (mt*5 + nt)*4
                first = (i == 0 and ks == 0 and mt != 0)
                fa = a4(CHOME[i] + (ks*5+nt)*4)
            else:
                d = AB[mt % 2] + nt*4
                first = (i == 0)
                fa = MH[i*5 + nt]
            mfma(v4(d), fa, v4(STG[n % NS]), "0" if first else v4(d))
            if fill: fill.pop(0)()
            elif nt in (0, 2) and st["q"] < target and can(n + NS): pop()
            elif nt < 4:
                for _ in range(2):
                    if st["sp"] < len(spare): a(spare[st["sp"]]); st["sp"] += 1
        if st["q"] < target and can(n + NS + 1): pop()
    stamp(9)
    for nt in range(5):
        for f in fin_ops(3, nt, True): f()
    a(f"""s_cmp_lg_u32 s{sRB}, 31
s_cbranch_scc1 LK_ne
s_or_b32 s{sT2}, s{sWV}, s{sCT}
s_cmp_lg_u32 s{sT2}, 0
s_cbranch_scc1 LK_ne
v_mov_b32 v196, {WS_EPOCH}
v_mov_b32 v197, s{sTAG}
s_mov_b64 exec, 1
buffer_store_dword v197, v196, {srd(SWS)}, 0 offen sc1
s_mov_b64 exec, -1
LK_ne:""")
    a.wait(lg="all")
    a("s_barrier")
    R = 32
    for n in range(5):
        for w in range(4):
            a.lds(f"ds_read_b128 {v4(R + (n*4+w)*4)}, v{K_FL} offset:{w*64*320 + n*64}", ("rr", n))
    for n in range(5):
        a.wait(lg=[("rr", n)])
        r = R + n*16
        a(f"""v_pk_add_f32 {v2(r)}, {v2(r)}, {v2(r+4)}
v_pk_add_f32 {v2(r+2)}, {v2(r+2)}, {v2(r+6)}
v_pk_add_f32 {v2(r+8)}, {v2(r+8)}, {v2(r+12)}
v_pk_add_f32 {v2(r+10)}, {v2(r+10)}, {v2(r+14)}
v_pk_add_f32 {v2(r)}, {v2(r)}, {v2(r+8)}
v_pk_add_f32 {v2(r+2)}, {v2(r+2)}, {v2(r+10)}""")
        a.vmem(f"buffer_store_dwordx4 {v4(r)}, v{K_FO}, {srd(SOUT)}, 0 offen offset:{n*64} {os.environ.get('OST', '').replace('_', ' ')}", "ost")
    stamp(10)
    stamp_flush()
    if E("PADUS"):
        a(f"""s_waitcnt vmcnt(0)
Lpad:
s_memrealtime s[96:97]
s_waitcnt lgkmcnt(0)
s_sub_u32 s96, s96, s{sST}
s_cmp_lt_u32 s96, {E("PADUS")*100}
s_cbranch_scc1 Lpad""")
    a("Lend:\ns_endpgm")
    for f in OUTLINE: f()
    a("Lcode_end:\n.fill 320, 4, 0xbf800000")

prologue()
type_A()
type_B()
body = a.text()
hdr = open("gated_mix__ssm_conv_s5__linear_attn_block__prompt.s.ref").read().split("; Override launch")[0]
def wrap(b):
    return hdr + f"; @launch grid=(256,1,1) block=(256,1,1) lds={LDS_BYTES}\n" + HEADER + kernel_begin(NAME) + b + kernel_desc(NAME, 512, 102, 256)
out = sys.argv[1] if len(sys.argv) > 1 else "k.s"
if E2("IW", 0):
    import subprocess, re, tempfile
    tmp = tempfile.mkdtemp()
    open(tmp + "/p.s", "w").write(wrap(body))
    subprocess.run(["clang", "-x", "assembler", "-target", "amdgcn-amd-amdhsa", "-mcpu=gfx950", "-c", tmp + "/p.s", "-o", tmp + "/p.o"], check=True)
    dis = subprocess.run(["llvm-objdump", "-d", "--mcpu=gfx950", tmp + "/p.o"], capture_output=True, text=True).stdout
    seg = dis[dis.index("<LA_cont>:"):]
    sizes = [4 * len(m.group(1).split()) for m in re.finditer(r"// [0-9A-F]{12}: ([0-9A-F ]+?)(?: <.*)?$", seg, re.M)]
    lines = body.split("\n")
    i0 = lines.index("LA_cont:")
    outl = lines[:i0+1]
    off = 0; k = 0; nxt = 0; safe = True; sv = False; n = 0; done = False
    for l in lines[i0+1:]:
        t_ = l.strip()
        isins = t_ and not t_.endswith(":") and not t_.startswith((";", "."))
        if isins and not done:
            if off >= nxt and safe:
                outl.append(f"Lw_{k}:"); outl.append("    s_cbranch_execz Lwret")
                k += 1; off += 4; nxt += 4096
            off += sizes[n]; n += 1
            if t_.startswith("s_and_saveexec"): safe = False; sv = True
            elif t_.startswith("s_mov_b64 exec,"):
                x = t_.split(",")[1].strip()
                if x == "-1" or (sv and x == sp(sT2)): safe = True; sv = False
                else: safe = False
            elif t_.startswith("s_mov_b32 exec_hi,"): safe = t_.endswith("-1")
            if t_ == "s_endpgm": done = True
        outl.append(l)
    body = "\n".join(outl).replace(";LADDER", "\n".join(f"    s_cmp_eq_u32 s{sT1}, {q}\n    s_cbranch_scc1 Lw_{q}" for q in range(k)))
src = wrap(body)
open(out, "w").write(src)
print("written", out, "nops inserted:", a.nnop, "lines", src.count("\n"))
```

```python
import sys, os
sys.path.insert(0, "work")
from asmlib import *

STAMPS = int(os.environ.get("STAMPS", "0"))
E = lambda k: int(os.environ.get(k, "0"))
E2 = lambda k, d: int(os.environ.get(k, str(d)))
STGST = int(os.environ.get("STGST", "0"))
NODMA = int(os.environ.get("NODMA", "0"))
NOMFMA = int(os.environ.get("NOMFMA", "0"))
NOREAD = int(os.environ.get("NOREAD", "0"))
LOOKA = int(os.environ.get("LOOK", "5"))

WS_A = 0
WS_M = 0x800000
WS_KVP = 0x900000
WS_ZP = 0xA00000
WS_SP = 0xA40000
WS_G = 0xA80000
WS_FL = 0xB00000
FS = E2("FS", 128)
FW, FM, FB = WS_FL, WS_FL + 0x100000, WS_FL + 0x200000
WS_EPOCH = 0xAC0000
WS_SIZE = 0xE00000
WS_STAMP = 0xC000000
OOB = 0x40000000
RT = 61440
L_W = 65536
L_SCR = 147456
L_PT = L_SCR
L_LT = L_SCR + 3840
L_ZB = L_LT + 10240
L_HB = L_ZB + 320
L_EB = 10240
L_GW = L_SCR
L_WO = L_SCR + 2048
L_KVB = L_WO + 7168
LDS_BYTES = 163840
sWV, sR, sJ, sTAG, sT0 = 3, 4, 5, 6, 7
SX, SW, SQ, SWS, SOUT = 8, 12, 16, 20, 24
sRB, sCT, sOFF, sT1 = 28, 29, 30, 31
pX, pLRE, pLIM, pBRE, pBIM, pCRE, pCIM, pLDT, pDSK, pBX, pQKV, pWO, pGW, pOUT, pDBG, pWS = range(32, 64, 2)
sKA = 64
sKQ = 74
sLC = 84
sXB, sWB, sCW = 89, 90, 91
sT2, sT3, sT4, sT5 = 92, 93, 94, 95
sSPIN = 96
sJL = 101
sST = 98
sM0, sM1 = 50, 51
vTID, vLANE = 0, 1
vX = 2
vW = 6
vQ = 11
vXR = 16
vWR = 18
vT40 = 22
vC = 26
vCR = 30
ACC = 32

def srd(n): return f"s[{n}:{n+3}]"
def sp(n): return f"s[{n}:{n+1}]"
def v4(n): return f"v[{n}:{n+3}]"
def v2(n): return f"v[{n}:{n+1}]"
def a4(n): return f"a[{n}:{n+3}]"

a = Asm()
nstamp = [0]
CUR = ['A']
def stamp(idx, existing=False):
    pr = os.environ.get("PROBE")
    if pr:
        if idx == 11: a("s_mov_b32 s99, 0")
        if pr == f"{CUR[0]}{idx}":
            a("s_memrealtime s[96:97]\ns_waitcnt lgkmcnt(0)\ns_sub_u32 s99, s96, s98"); a.lg = []
        return
    if not STAMPS: return
    if not existing: a(f"s_memrealtime {sp(sST)}\ns_memtime s[96:97]")
    a(f"""s_waitcnt lgkmcnt(0)
v_writelane_b32 v254, s{sST}, {idx}
v_writelane_b32 v255, s96, {idx}""")
    a.lg = []

def stamp_flush():
    if not STAMPS: return
    a(f"""s_lshl_b32 s96, s2, 2
s_add_u32 s96, s96, s{sWV}
s_lshl_b32 s96, s96, 9
v_lshl_add_u32 v253, v{vLANE}, 3, s96
s_add_u32 s{sST}, s{pWS}, {WS_STAMP}
s_addc_u32 s{sST+1}, s{pWS+1}, 0
global_store_dwordx2 v253, v[254:255], {sp(sST)}""")

def mfma(d, A, B, C):
    a(f"v_mfma_f32_16x16x32_bf16 {d}, {A}, {B}, {C}")

def mk_srd(n, ptr, size):
    a(f"s_mov_b32 s{n}, s{ptr}\ns_and_b32 s{n+1}, s{ptr+1}, 0xffff\ns_mov_b32 s{n+2}, {size}\ns_mov_b32 s{n+3}, 0x20000")

POLLOP, POLLFL = ('buffer_load_dword', 'sc1') if E('LDPOLL') else ('buffer_atomic_add', 'sc0 sc1')
def poll_issue(vaddr, vtmp, execmask, tag, load=False):
    POLLOP, POLLFL = ('buffer_load_dword', 'sc1') if load else (globals()['POLLOP'], globals()['POLLFL'])
    a(f"s_cmp_eq_u32 s{sWV}, 0\ns_cselect_b32 s{sT0}, 0, {OOB}\ns_mov_b64 exec, {execmask}\nv_mov_b32 v{vtmp}, 0")
    a.vmem(f"{POLLOP} v{vtmp}, v{vaddr}, {srd(SWS)}, s{sT0} offen {POLLFL}", tag)
    a("s_mov_b64 exec, -1")
def poll_finish(vaddr, vtmp, execmask, tag):
    L = a.label("Lpoll"); E_ = a.label("Lpolle"); C = a.label("Lpollc"); S = a.label("Lpolls")
    n = a._cnt(a.vm, tag)[0]
    a(f"""s_cmp_lg_u32 s{sWV}, 0
s_cbranch_scc1 {S}
s_mov_b64 exec, {execmask}
s_mov_b32 s{sSPIN}, 0
s_waitcnt vmcnt({min(n, 63)})
s_branch {C}
{L}:
{'s_mov_b64 exec, vcc' if E2('PX', 1) else ''}
v_mov_b32 v{vtmp}, 0
{'s_sleep %d' % E('SLP') if E('SLP') else ''}
{POLLOP} v{vtmp}, v{vaddr}, {srd(SWS)}, 0 offen {POLLFL}
s_add_u32 s{sSPIN}, s{sSPIN}, 1
s_waitcnt vmcnt(0)
{C}:
v_cmp_ne_u32 vcc, s{sTAG}, v{vtmp}
s_cmp_gt_u32 s{sSPIN}, 0x20000
s_cbranch_scc1 {E_}
s_cbranch_vccnz {L}
{E_}:
s_mov_b64 exec, -1
{S}:
s_barrier""")

def wq_pattern(dst, sadd):
    for i in range(5):
        a(f"""v_add_u32 v52, {64*i}, v{vLANE}
v_mul_u32_u24 v53, 6554, v52
v_lshrrev_b32 v53, 16, v53
v_mul_u32_u24 v54, 10, v53
v_sub_u32 v54, v52, v54
v_lshrrev_b32 v55, 1, v53
v_and_b32 v55, 4, v55
v_xor_b32 v53, v53, v55
v_mul_u32_u24 v53, 3840, v53
v_lshl_add_u32 v54, v54, 4, s{sadd}""")
        if i & 3: a(f"v_subrev_u32 v53, {(i&3)*1024}, v53")
        a(f"v_add_u32 v{dst+i}, v53, v54")

def prologue():
    if E2("ROT", 3) == 0:
        ROT = f"""s_lshr_b32 s{sT2}, s{sCT}, 2
s_add_u32 s{sT2}, s{sT2}, s{sCT}
s_mul_i32 s{sT3}, s{sJL}, 5
s_add_u32 s{sT3}, s{sT3}, 1
s_lshr_b32 s{sT3}, s{sT3}, 1
s_add_u32 s{sT2}, s{sT2}, s{sT3}
s_sub_u32 s{sT3}, s{sT2}, 10
s_cmp_ge_u32 s{sT2}, 10
s_cselect_b32 s{sT2}, s{sT3}, s{sT2}"""
    elif E2("ROT", 3) == 1:
        ROT = f"""s_add_u32 s{sT2}, s{sCT}, s{sJL}
s_and_b32 s{sT2}, s{sT2}, 3
s_mul_i32 s{sT2}, s{sT2}, 5
s_add_u32 s{sT2}, s{sT2}, 1
s_lshr_b32 s{sT2}, s{sT2}, 1"""
    else:
        ROT = f"""s_add_u32 s{sT2}, s{sCT}, s{sJL}
s_sub_u32 s{sT3}, s{sT2}, 10
s_cmp_ge_u32 s{sT2}, 10
s_cselect_b32 s{sT2}, s{sT3}, s{sT2}
s_sub_u32 s{sT3}, s{sT2}, 5
s_cmp_ge_u32 s{sT2}, 5
s_cselect_b32 s{sT2}, s{sT3}, s{sT2}
{'s_lshl_b32 s%d, s%d, 1' % (sT2, sT2) if E2("ROT", 3) == 2 else ''}"""
    WRAP = 640 if E2("ROT", 3) == 3 else 1280
    if E("PADUS"): a(f"s_memrealtime {sp(sST)}")
    if STAMPS: a(f"s_memrealtime {sp(sST)}\ns_memtime s[96:97]")
    a(f"""s_cmp_ge_u32 s2, 256
s_cbranch_scc1 Lend
s_load_dwordx16 s[32:47], s[0:1], 0
s_load_dwordx16 s[48:63], s[0:1], 64
v_and_b32 v{vLANE}, 63, v0
v_lshrrev_b32 v32, 6, v0
s_and_b32 s{sT0}, s2, 7
s_lshr_b32 s{sT1}, s2, 3
v_readfirstlane_b32 s{sWV}, v32""")
    a(f"""s_getpc_b64 s[92:93]
Lpc:
s_lshl_b32 s{sT4}, s{sWV}, 5
s_add_u32 s{sT4}, s{sT4}, s{sT1}
s_lshl_b32 s{sT4}, s{sT4}, 10
s_cmp_ge_u32 s{sT4}, Lcode_end-Lpc
s_cbranch_scc1 Lnopf
v_lshl_add_u32 v33, v{vLANE}, 4, s{sT4}""")
    a.vmem(f"global_load_dwordx4 v[36:39], v33, s[92:93]", "pf", certain=False)
    a("Lnopf:")
    a(f"""s_lshr_b32 s{sR}, s{sT0}, 2
s_lshl_b32 s{sR}, s{sR}, 3
s_and_b32 s{sCT}, s{sT1}, 7
s_add_u32 s{sR}, s{sR}, s{sCT}
s_lshr_b32 s{sJL}, s{sT1}, 3
s_and_b32 s{sJ}, s{sT0}, 3
s_lshl_b32 s{sJ}, s{sJ}, 1
s_and_b32 s{sT3}, s{sJL}, 1
s_add_u32 s{sJ}, s{sJ}, s{sT3}
s_lshl_b32 s{sRB}, s{sT0}, 2
s_and_b32 s{sT3}, s{sCT}, 1
s_lshl_b32 s{sT3}, s{sT3}, 1
s_xor_b32 s{sT3}, s{sT3}, s{sJL}
s_add_u32 s{sRB}, s{sRB}, s{sT3}
{ROT}
s_lshl_b32 s{sKA}, s{sT2}, 7
s_add_u32 s{sKA+1}, s{sKA}, 128
s_cmp_eq_u32 s{sKA+1}, {WRAP}
s_cselect_b32 s{sKA+1}, 0, s{sKA+1}
s_lshl_b32 s{sXB}, s{sWV}, 14
s_mul_i32 s{sWB}, s{sWV}, 5120
s_add_u32 s{sWB}, s{sWB}, {L_W}""")
    a(f"""v_lshrrev_b32 v40, 3, v{vLANE}
v_and_b32 v41, 7, v{vLANE}
v_lshrrev_b32 v43, 1, v40
v_xor_b32 v41, v41, v43
v_lshlrev_b32 v41, 4, v41
v_lshrrev_b32 v42, 2, v40
v_lshlrev_b32 v42, 3, v42
v_and_b32 v43, 1, v43
v_add_u32 v42, v42, v43
v_and_b32 v43, 1, v40
v_lshl_add_u32 v42, v43, 2, v42
s_lshl_b32 s{sT2}, s{sR}, 7
s_lshl_b32 s{sT3}, s{sWV}, 5
s_add_u32 s{sT2}, s{sT2}, s{sT3}
v_add_u32 v42, s{sT2}, v42
v_mul_u32_u24 v42, 1280, v42
v_add_u32 v{vX}, v42, v41
v_xor_b32 v44, 64, v41
v_add_u32 v{vX+1}, v42, v44
v_add_u32 v{vX+1}, {16*1280-1024}, v{vX+1}
v_add_u32 v{vX+2}, 512, v{vX}
v_add_u32 v{vX+3}, 512, v{vX+1}
v_mul_u32_u24 v43, 1280, v40
v_add_u32 v45, v43, v41
v_add_u32 v46, v43, v44
s_mov_b32 s{SX+2}, {2048*1280}
s_mov_b32 s{SX+3}, 0x20000
s_mov_b32 s{SW+2}, {640*1280}
s_mov_b32 s{SW+3}, 0x20000
s_mov_b32 s{SQ+2}, {640*3840}
s_mov_b32 s{SQ+3}, 0x20000
s_cmp_lt_u32 s{sJL}, 2
s_cbranch_scc1 LtypeB
s_mov_b32 s100, 0""")

def code_touch(vt):
    def f():
        L = a.label("Lct")
        a(f"""s_getpc_b64 {sp(sT2)}
{L}:
s_sub_u32 s{sT2}, s{sT2}, {L}-Lpc
s_subb_u32 s{sT3}, s{sT3}, 0
s_lshr_b32 s{sT0}, s2, 3
s_lshl_b32 s{sT0}, s{sT0}, 2
s_add_u32 s{sT0}, s{sT0}, s{sWV}
s_lshl_b32 s{sT0}, s{sT0}, 7
v_lshl_add_u32 v{vt}, v{vLANE}, 14, s{sT0}
v_min_u32 v{vt}, Lcode_end-Lpc, v{vt}
s_mov_b64 exec, 15""")
        a.vmem(f"global_load_dword v{vt}, v{vt}, {sp(sT2)}", "ct")
        a("s_mov_b64 exec, -1")
    return f

def mall_prefetch(vt):
    def f():
        a(f"""s_lshl_b32 s{sT0}, s2, 2
s_add_u32 s{sT0}, s{sT0}, s{sWV}
s_cmp_ge_u32 s{sT0}, 512
s_cselect_b64 {sp(sT2)}, {sp(pCIM)}, {sp(pCRE)}
s_and_b32 s{sT1}, s{sT0}, 511
s_mul_i32 s{sT1}, s{sT1}, 1600
v_lshl_add_u32 v{vt}, v{vLANE}, 7, s{sT1}
s_mul_i32 s{sT0}, s{sT0}, 25
s_lshr_b32 s{sT0}, s{sT0}, 2
v_add_u32 v{vt+1}, s{sT0}, v{vLANE}
v_mul_u32_u24 v{vt+2}, 6554, v{vt+1}
v_lshrrev_b32 v{vt+2}, 16, v{vt+2}
v_mul_u32_u24 v{vt+2}, 2560, v{vt+2}
v_lshl_add_u32 v{vt+1}, v{vt+1}, 7, v{vt+2}
s_mov_b64 exec, 0x1fff""")
        a.vmem(f"global_load_dword v{vt}, v{vt}, {sp(sT2)}", "mp")
        a("s_mov_b64 exec, 0x7f")
        a.vmem(f"buffer_load_dword v{vt+1}, v{vt+1}, {srd(SQ)}, 0 offen", "mp")
        a("s_mov_b64 exec, -1")
    return f

def args_ready():
    a("s_waitcnt lgkmcnt(0)")
    stamp(11, True)
    stamp(12)
    a(f"s_mov_b32 s{SX}, s{pX}\ns_and_b32 s{SX+1}, s{pX+1}, 0xffff")

def late_setup():
    if E("WSOFF"): a(f"s_add_u32 s{pWS}, s{pWS}, {E('WSOFF') << 20}\ns_addc_u32 s{pWS+1}, s{pWS+1}, 0")
    mk_srd(SWS, pWS, WS_SIZE)
    a(f"""s_add_u32 s{sT2}, s{pWS}, {WS_EPOCH}
s_addc_u32 s{sT3}, s{pWS+1}, 0
s_load_dword s{sTAG}, s[{sT2}:{sT3}], 0""")
    if E("TOUCH"):
        sh = E("TOUCH")
        L = a.label("Ltouch")
        mk_srd(SOUT, pOUT, 2048*2560)
        a(f"""s_cmp_lg_u32 s{sWV}, 3
s_cbranch_scc1 {L}
v_lshlrev_b32 v34, {sh}, v{vLANE}
v_mov_b32 v35, 0""")
        a.vmem(f"buffer_load_dword v36, v34, {srd(SWS)}, 0 offen", "touch", certain=False)
        a.vmem(f"buffer_load_dword v36, v34, {srd(SOUT)}, 0 offen", "touch", certain=False)
        a("s_mov_b64 exec, 1")
        for p in (pCRE, pCIM, pWO, pDSK, pQKV):
            a.vmem(f"global_load_dword v36, v35, {sp(p)}", "touch", certain=False)
        a(f"s_mov_b64 exec, -1\n{L}:")
    for s in range(2, 10):
        if E2("ROT", 3) == 3:
            if s < 5: a(f"s_add_u32 s{sKA+s}, s{sKA+s-1}, 128\ns_cmp_eq_u32 s{sKA+s}, 640\ns_cselect_b32 s{sKA+s}, 0, s{sKA+s}")
            else: a(f"s_add_u32 s{sKA+s}, s{sKA+s-5}, 640")
        else: a(f"s_add_u32 s{sKA+s}, s{sKA+s-1}, 128\ns_cmp_eq_u32 s{sKA+s}, 1280\ns_cselect_b32 s{sKA+s}, 0, s{sKA+s}")
    for s in range(2, 10):
        a(f"s_mul_i32 s{sKQ+s}, s{sKA+s}, 1920")
    a(f"""s_lshl_b32 s{sT2}, s{sJL}, 2
s_lshr_b32 s{sOFF}, 0x0410, s{sT2}
s_and_b32 s{sOFF}, s{sOFF}, 15
s_add_u32 s{sOFF}, s{sOFF}, s{sCT}
s_sub_u32 s{sT3}, s{sOFF}, 10
s_cmp_ge_u32 s{sOFF}, 10
s_cselect_b32 s{sOFF}, s{sT3}, s{sOFF}
s_sub_u32 s{sT3}, s{sOFF}, 5
s_cmp_ge_u32 s{sOFF}, 5
s_cselect_b32 s{sOFF}, s{sT3}, s{sOFF}
s_mul_i32 s{sT2}, s{sWV}, 5
s_add_u32 s{sT2}, s{sT2}, s{sOFF}""")
    for i in range(5):
        a(f"s_add_u32 s{sLC+i}, s{sT2}, {i}\ns_sub_u32 s{sT3}, s{sLC+i}, 20\ns_cmp_ge_u32 s{sLC+i}, 20\ns_cselect_b32 s{sLC+i}, s{sT3}, s{sLC+i}")
    a(f"""s_mul_i32 s{sCW}, s{sWV}, 10240
s_add_u32 s{sCW}, s{sCW}, {L_W}""")
    a(f"""v_and_b32 v52, 15, v{vLANE}
v_lshrrev_b32 v53, 4, v{vLANE}
v_lshrrev_b32 v54, 1, v52
v_xor_b32 v54, v54, v53
v_lshlrev_b32 v54, 4, v54
v_lshl_add_u32 v56, v52, 7, v54
v_xor_b32 v57, 64, v56
v_add_u32 v{vXR}, s{sXB}, v56
v_add_u32 v{vXR+1}, s{sXB}, v57
v_add_u32 v{vCR}, s{sCW}, v56
v_add_u32 v{vCR+1}, s{sCW}, v57""")
    a(f"""v_bfe_u32 v54, v{vLANE}, 2, 2
v_lshl_add_u32 v54, v53, 3, v54
v_and_b32 v55, 1, v53
v_lshlrev_b32 v55, 2, v55
v_add_u32 v58, v54, v55
v_xor_b32 v55, 4, v55
v_add_u32 v59, v54, v55
v_mul_u32_u24 v58, 160, v58
v_mul_u32_u24 v59, 160, v59
v_and_b32 v60, 3, v{vLANE}
v_mul_u32_u24 v61, 40, v60
v_add_u32 v62, v58, v61
v_add_u32 v63, v59, v61
v_add_u32 v{vT40}, {L_W}, v62
v_add_u32 v{vT40+1}, {L_W}, v63
v_add_u32 v{vT40+2}, {L_W+40960}, v62
v_add_u32 v{vT40+3}, {L_W+40960}, v63""")
    a(f"""s_mul_i32 s{sT2}, s{sCT}, {80*1280}
v_add_u32 v{vC}, s{sT2}, v45
v_add_u32 v{vC+1}, s{sT2}, v46
v_add_u32 v{vC+1}, {10240-1024}, v{vC+1}
v_add_u32 v{vC+2}, {2*(10240-1024)}, v{vC}
v_add_u32 v{vC+3}, {2*(10240-1024)}, v{vC+1}""")

def tag_ready():
    a(f"""s_waitcnt lgkmcnt(0)
s_add_u32 s{sTAG}, s{sTAG}, 0x9e3779b1""")
    a.lg = []

def set_flag(base, lab, vt, wave=0, atomic=True):
    a(f"""s_cmp_lg_u32 s{sWV}, {wave}
s_cbranch_scc1 {lab}
s_lshl_b32 s{sT0}, s{sJ}, 4
s_add_u32 s{sT0}, s{sT0}, s{sR}
s_mul_i32 s{sT0}, s{sT0}, {FS}
s_add_u32 s{sT0}, s{sT0}, {base}
v_lshl_add_u32 v{vt}, v{vLANE}, 2, s{sT0}
v_mov_b32 v{vt+1}, s{sTAG}
{'s_mov_b64 exec, 1' if atomic and not E('STFLAG') else 's_mov_b32 exec_hi, 0'}""")
    a.vmem(f"{'buffer_atomic_swap' if atomic and not E('STFLAG') else 'buffer_store_dword'} v{vt+1}, v{vt}, {srd(SWS)}, 0 offen sc1", "fl", certain=False)
    a(f"s_mov_b64 exec, -1\n{lab}:")

def pk_cmul_acc(d, l, p, acc):
    a(f"""v_pk_fma_f32 {v2(d)}, {v2(p)}, {v2(l)}, {v2(acc)} op_sel_hi:[1,0,1]
v_pk_fma_f32 {v2(d)}, {v2(p)}, {v2(l)}, {v2(d)} op_sel:[1,1,0] op_sel_hi:[0,1,1] neg_lo:[0,1,0]""")

M0 = [None]
def set_m0(sreg, imm):
    if M0[0] != (sreg, imm):
        a(f"s_add_u32 m0, s{sreg}, {imm}")
        M0[0] = (sreg, imm)
def dma_x(s):
    ops = [("s", lambda: set_m0(sXB, (s%4)*4096))]
    for i in range(4):
        def f(i=i):
            set_m0(sXB, (s%4)*4096)
            a.vmem(f"buffer_load_dwordx4 v{vX+i}, {srd(SX)}, s{sKA+s} offen offset:{i*1024} lds", ("st", s))
        ops.append(("d", f))
    return ops
def dma_w(s, vaddr, rsrc, soff):
    ops = [("s", lambda: set_m0(sWB, (s%4)*20480))]
    for i in range(4):
        def f(i=i):
            set_m0(sWB, (s%4)*20480)
            a.vmem(f"buffer_load_dwordx4 v{vaddr+i}, {srd(rsrc)}, s{soff} offen offset:{i*1024} lds", ("st", s))
        ops.append(("d", f))
    ops.append(("s", lambda: set_m0(sWB, (s%4)*20480+4096)))
    def g():
        set_m0(sWB, (s%4)*20480+4096)
        a.vmem(f"buffer_load_dwordx4 v{vaddr+4}, {srd(rsrc)}, s{soff} offen lds", ("st", s))
    ops.append(("d", g))
    return ops
def dma_c(slot, sbase, ldsoff):
    ops = []
    def setup():
        a(f"""s_cmp_ge_u32 s{sLC+slot}, 10
s_cselect_b32 s{SW}, s{pCIM}, s{pCRE}
s_cselect_b32 s{SW+1}, s{pCIM+1}, s{pCRE+1}
s_cselect_b32 s{sM1}, 1280, 0
s_and_b32 s{SW+1}, s{SW+1}, 0xffff
s_lshl_b32 s{sM0}, s{sLC+slot}, 7
s_sub_u32 s{sM0}, s{sM0}, s{sM1}""")
    ops.append(("s", setup))
    for g in range(3):
        def m0(g=g):
            set_m0(sbase, ldsoff + g*4096)
            if g: a(f"s_add_u32 s{sM0}, s{sM0}, 40960")
        ops.append(("s", m0))
        for i in range(4 if g < 2 else 2):
            def f(i=i, g=g):
                set_m0(sbase, ldsoff + g*4096)
                a.vmem(f"buffer_load_dwordx4 v{vC+i}, {srd(SW)}, s{sM0} offen offset:{i*1024} lds", ("c", slot))
            ops.append(("d", f))
    return ops
CHOME = [160, 200, 0, 40, 80]
def c_reads(slot, vbase, ldsoff):
    ops = []
    for ks in range(2):
        for nt in range(5):
            def f(ks=ks, nt=nt):
                a.lds(f"ds_read_b128 {a4(CHOME[slot] + (ks*5+nt)*4)}, v{vbase+ks} offset:{ldsoff + nt*2048}", ("cr", slot))
            ops.append(("r", f))
    return ops

class BG:
    def __init__(self): self.q = []; self.keys = {}; self.fast = False
    def add(self, ops, key=None):
        self.q.extend(ops)
        if key is not None: self.keys[key] = ops[-1]
    def require(self, key):
        last = self.keys.get(key)
        while last in self.q:
            print("note: forced flush for", key)
            self.q.pop(0)[1]()
    def tick(self, n=1):
        while n > 0 and self.q:
            k, f = self.q.pop(0)
            f()
            if k != "s": n -= 1
    def tick_s(self):
        while self.q and self.q[0][0] == "s":
            self.q.pop(0)[1]()
    def flush(self):
        while self.q: self.q.pop(0)[1]()

def run_ops(ops):
    for k, f in ops: f()

def gemm_loop(nstage, frags_per_stage, read_frag, mfmas, x_reads, stage_dma, bg, ring, LOOK, hooks, first_stage=0, pre_issued=2):
    F = frags_per_stage
    total = nstage * F
    NR = len(ring)
    def sid(f): return first_stage + f // F, f % F
    rq = []; last = []
    for f in range(total):
        s, i = sid(f)
        ops = []
        xr = x_reads(s)
        if i in xr: ops += xr[i]
        ops += read_frag(s, i, ring[f % NR])
        if i == 0:
            def first(s=s, e=ops[0]):
                bg.require(s)
                EA = E2("EARLY", 2)
                a.wait(vm=[("st", s)], lg=("all" if s in (EA, 14) else None))
                a("s_barrier")
                if STGST or os.environ.get('PROBE'): stamp(16 + s)
                d = stage_dma(s + 2)
                if E2("MPF", 1) == 10 + s: bg.add([("d", mall_prefetch(124))])
                if d and s != EA + 1: bg.add(d, s + 2)
                if E2("MPF", 1) == 20 + s: bg.add([("d", mall_prefetch(124))])
                if s == EA:
                    if E2("MPF", 1) == 1: bg.add([("d", mall_prefetch(124))])
                    bg.add(stage_dma(s + 3), s + 3); bg.fast = True
                    if E2("MPF", 1) == 2: bg.add([("d", mall_prefetch(124))])
                if s == EA + 1: bg.fast = False
                e()
            ops[0] = first
        rq += ops
        last.append(len(rq))
    issued = [0]
    def pop(n):
        for _ in range(n):
            rq[issued[0]](); issued[0] += 1
    pop(last[LOOK - 1])
    gap = 0
    for f in range(total):
        s, i = sid(f)
        if (s, i) in hooks: hooks[(s, i)]()
        a.wait(lg=[("w", s, i)])
        ms = mfmas(s, i, ring[f % NR])
        need = last[min(f + LOOK - 1, total - 1)]
        for half, m in enumerate(ms):
            m()
            maxi = last[min(f + LOOK, f + NR - 1 + (1 if half == len(ms) - 1 else 0), total - 1)]
            period = 2 if bg.fast else 4
            due = lambda g: bool(bg.q) and g % period == 1
            if due(gap):
                bg.tick(1)
                if half == len(ms) - 1 and need > issued[0]: pop(need - issued[0])
            else:
                usable = 1 + sum(1 for g in range(gap + 1, gap + len(ms) - half) if not due(g))
                n = max(1, -(-(need - issued[0]) // usable))
                if due(gap + 1) and half == len(ms) - 1: pass
                pop(max(0, min(n, maxi - issued[0])))
                if due(gap + 1): bg.tick_s()
            gap += 1

LOG2E = 0x3fb8aa3b
def phi(regs, sconst_log2e, tmp, NT=4):
    for n, r in enumerate(regs):
        t = tmp + (n % NT) * 2
        a(f"v_pk_mul_f32 {v2(t)}, {v2(r)}, {sp(sconst_log2e)} op_sel_hi:[1,0]")
        a(f"v_max_f32 v{r}, 0x358637bd, v{r}\nv_max_f32 v{r+1}, 0x358637bd, v{r+1}")
        a(f"v_exp_f32_e64 v{t}, v{t} clamp\nv_exp_f32_e64 v{t+1}, v{t+1} clamp")
        if n > 0:
            rp = regs[n-1]; tp = tmp + ((n-1) % NT) * 2
            a(f"v_pk_add_f32 {v2(rp)}, {v2(rp)}, {v2(tp)}")
    rp = regs[-1]; tp = tmp + ((len(regs)-1) % NT) * 2
    a(f"v_pk_add_f32 {v2(rp)}, {v2(rp)}, {v2(tp)}")

def cmul_acc(dr, di, lr, li, pr, pi, ar, ai):
    a(f"""v_fma_f32 v{dr}, v{lr}, v{pr}, v{ar}
v_fma_f32 v{di}, v{lr}, v{pi}, v{ai}
v_fma_f32 v{dr}, -v{li}, v{pi}, v{dr}
v_fma_f32 v{di}, v{li}, v{pr}, v{di}""")

AR1, AR2 = 40960, 0
K_AH = 32
K_AB = [112, 132]
K_vA, K_vM = 2, 6
K_vFB, K_vFM, K_vGA, K_vRW, K_vTmp = 11, 12, 13, 14, 15
K_vG = 18
K_FO, K_FL = 246, 247
K_sMT = sKQ + 5
def time_base(dst, srt, tmp):
    a(f"""s_lshr_b32 s{dst}, s{srt}, 1
s_lshl_b32 s{dst}, s{dst}, 5
s_and_b32 s{tmp}, s{srt}, 1
s_lshl_b32 s{tmp}, s{tmp}, 1
s_add_u32 s{dst}, s{dst}, s{tmp}""")
def skip_setup(t, sx, sd):
    mk_srd(SOUT, pDSK, 1280)
    a(f"""s_add_u32 s{sT0}, s{sWV}, s{sCT}
s_and_b32 s{sT0}, s{sT0}, 3
s_lshl_b32 s{sx}, s{sRB}, 2
s_add_u32 s{sT0}, s{sT0}, s{sx}""")
    time_base(sx, sT0, sd)
    a(f"""s_mul_i32 s{sx}, s{sx}, 1280
s_mul_i32 s{sd}, s{sCT}, 160
s_add_u32 s{sx}, s{sx}, s{sd}
v_bfe_u32 v{t}, v{vLANE}, 5, 1
v_bfe_u32 v{t+1}, v{vLANE}, 4, 1
v_lshl_add_u32 v{t}, v{t+1}, 2, v{t}
v_mul_u32_u24 v{t}, 1280, v{t}
v_lshrrev_b32 v{t+1}, 4, v{vLANE}
v_mul_u32_u24 v{t+1}, 17, v{t+1}
v_sub_u32 v{t+1}, v{vLANE}, v{t+1}
v_med3_i32 v{t+1}, v{t+1}, 0, 9
v_lshl_add_u32 v{t}, v{t+1}, 4, v{t}""")
def skip_loads(t, sx, sd, sbase, off):
    ops = [("s", lambda: set_m0(sbase, off))]
    for i in range(4):
        def f(i=i):
            set_m0(sbase, off)
            a.vmem(f"buffer_load_dwordx4 v{t}, {srd(SX)}, s{sx} offen offset:{i*1088} lds", "fx")
        ops.append(("d", f))
        if i < 3: ops.append(("s", lambda: a(f"s_add_u32 s{sx}, s{sx}, {10240-1088}")))
    ops.append(("s", lambda: set_m0(sbase, off + 4288)))
    def g():
        set_m0(sbase, off + 4288)
        a("s_mov_b64 exec, 0x3ff")
        a.vmem(f"buffer_load_dwordx4 v{t}, {srd(SOUT)}, s{sd} offen lds", "fx")
        a("s_mov_b64 exec, -1")
    ops.append(("d", g))
    return ops
def skip_reads(t, sbase, off, AB):
    def setup():
        a(f"""s_add_u32 s{sT0}, s{sbase}, {off}
v_lshrrev_b32 v{t}, 4, v{vLANE}
v_lshl_add_u32 v{t}, v{t}, 3, s{sT0}
v_and_b32 v{t+1}, 15, v{vLANE}
v_mul_u32_u24 v{t+1}, 272, v{t+1}
v_add_u32 v{t+1}, v{t+1}, v{t}""")
        a.wait(vm="fx")
    ops = [("s", setup)]
    for nt in range(5):
        ops.append(("r", lambda nt=nt: a.lds(f"ds_read_b64 a[{AB+2*nt}:{AB+1+2*nt}], v{t+1} offset:{nt*32}", "sk")))
        ops.append(("r", lambda nt=nt: a.lds(f"ds_read_b64 a[{AB+10+2*nt}:{AB+11+2*nt}], v{t} offset:{4288 + nt*32}", "sk")))
    return ops
def skip_math(t, AB, bg=None):
    for n in range(10):
        d = K_AH + 2*n
        a(f"""v_accvgpr_read_b32 v{t+1}, a{AB+n}
v_accvgpr_read_b32 v{t+3}, a{AB+10+n}
v_lshlrev_b32 v{t}, 16, v{t+1}
v_and_b32 v{t+1}, 0xffff0000, v{t+1}
v_lshlrev_b32 v{t+2}, 16, v{t+3}
v_and_b32 v{t+3}, 0xffff0000, v{t+3}
v_pk_mul_f32 {v2(t)}, {v2(t)}, {v2(t+2)}
v_cvt_pk_bf16_f32 v{t}, v{t}, v{t+1}
v_lshlrev_b32 v{d}, 16, v{t}
v_and_b32 v{d+1}, 0xffff0000, v{t}""")
        if bg: bg.tick(1)
def k2_flags(t, vfb, vfm):
    a(f"""s_lshr_b32 s{sT2}, s{sRB}, 1
v_lshl_add_u32 v{t}, v{vLANE}, 4, s{sT2}
v_mul_u32_u24 v{t}, {FS}, v{t}
v_add_u32 v{vfb}, {FB}, v{t}
s_and_b32 s{sT3}, s{sRB}, 1
s_mul_i32 s{sT3}, s{sT3}, {64*FS}
s_add_u32 s{sT3}, s{sT3}, {FM - 256*FS}
v_add_u32 v{t}, s{sT3}, v{t}
s_lshl_b32 s{sT2}, s{sCT}, 1
v_lshrrev_b32 v{vfm}, 1, v{vLANE}
v_lshl_add_u32 v{vfm}, v{vfm}, 4, s{sT2}
v_and_b32 v{t+1}, 1, v{vLANE}
v_add_u32 v{vfm}, v{vfm}, v{t+1}
v_mul_u32_u24 v{vfm}, {FS}, v{vfm}
v_add_u32 v{vfm}, {FM}, v{vfm}
v_cmp_gt_u32 vcc, 16, v{vLANE}
v_cndmask_b32 v{vfm}, v{t}, v{vfm}, vcc
v_subrev_u32 v{t}, {20*16*FS}, v{vfb}
v_cmp_gt_u32 vcc, 20, v{vLANE}
v_cndmask_b32 v{vfm}, v{t}, v{vfm}, vcc
v_subrev_u32 v{vfb}, {FB - FW}, v{vfb}""")
def k2_mt():
    a(f"s_add_u32 s{sT0}, s{sWV}, s{sCT}")
    for i in range(4):
        a(f"s_add_u32 s{K_sMT+i}, s{sT0}, {i}\ns_and_b32 s{K_sMT+i}, s{K_sMT+i}, 3")
def k2_min(l16):
    for i in range(4):
        a(f"s_mul_i32 s{sT1}, s{K_sMT+i}, {RT}\nv_add_u32 v{K_vA+i}, s{sT1}, v{l16}")
    a(f"""s_mul_i32 s{sT0}, s{sRB}, {4*RT}
s_lshl_b32 s{sT2}, s{sLC}, 11
s_add_u32 s{sKA}, s{sT0}, s{sT2}""")
def k2_offs(slots):
    a(f"s_mul_i32 s{sT0}, s{sRB}, {4*RT}\ns_mul_i32 s{sT1}, s{sCT}, {5*20480}\ns_add_u32 s{sT1}, s{sT1}, {WS_M}\ns_add_u32 s{sT3}, s{sT0}, 40960")
    for i in slots:
        a(f"""s_lshl_b32 s{sT2}, s{sLC+i}, 11
s_add_u32 s{sKA+i}, s{sT0}, s{sT2}
s_lshl_b32 s{sT2}, s{sLC+i}, 10
s_add_u32 s{sKA+5+i}, s{sT3}, s{sT2}
s_add_u32 s{sKQ+i}, s{sT1}, s{sT2}""")
def k2_rest(t):
    k2_offs([0, 1, 2, 3, 4])
    a(f"v_lshlrev_b32 v{K_vM}, 4, v{vLANE}")
    for nt in range(1, 5): a(f"v_add_u32 v{K_vM+nt}, {nt*20480}, v{K_vM}")
def k2_fin(t):
    q2, q3, q4, q5 = 34, 35, 36, 37
    mk_srd(SOUT, pOUT, 2048*2560)
    a(f"s_lshl_b32 s{q2}, s{sRB}, 2\ns_add_u32 s{q2}, s{q2}, s{sWV}")
    time_base(q3, q2, q4)
    a(f"""s_mul_i32 s{q4}, s{sCT}, 320
s_mul_i32 s{q5}, s{sWV}, {16*320}
v_lshrrev_b32 v{t}, 4, v{vLANE}
v_lshlrev_b32 v{t}, 3, v{t}
v_bfe_u32 v{t+1}, v{vLANE}, 3, 1
v_add_u32 v{t}, v{t}, v{t+1}
v_bfe_u32 v{t+1}, v{vLANE}, 2, 1
v_lshl_add_u32 v{t}, v{t+1}, 2, v{t}
v_add_u32 v{t}, s{q3}, v{t}
v_mul_u32_u24 v{t}, 2560, v{t}
v_and_b32 v{t+1}, 3, v{vLANE}
v_lshl_add_u32 v{t+2}, v{t+1}, 4, s{q4}
v_add_u32 v{K_FO}, v{t}, v{t+2}
v_bfe_u32 v{t+2}, v{vLANE}, 3, 2
v_xor_b32 v{t+1}, v{t+1}, v{t+2}
v_lshrrev_b32 v{t}, 2, v{vLANE}
v_mul_u32_u24 v{t}, 320, v{t}
v_lshl_add_u32 v{t}, v{t+1}, 4, v{t}
v_add_u32 v{K_FL}, s{q5}, v{t}""")
    a(f"""v_and_b32 v{t}, 15, v{vLANE}
v_lshrrev_b32 v{t+1}, 4, v{vLANE}
v_bfe_u32 v{t+2}, v{vLANE}, 1, 2
v_xor_b32 v{t+1}, v{t+1}, v{t+2}
v_mul_u32_u24 v{t}, 320, v{t}
v_lshl_add_u32 v{t}, v{t+1}, 4, v{t}
s_mul_i32 s{q2}, s{sWV}, {64*320}
v_add_u32 v{K_vRW}, s{q2}, v{t}""")

def capture(fn):
    keep = a.items; a.items = []
    fn()
    got = a.items; a.items = keep
    return got

def warm_c(ptr, vt):
    def f():
        a(f"""s_mov_b32 s{SW}, s{ptr}
s_and_b32 s{SW+1}, s{ptr+1}, 0xffff
s_lshr_b32 s{sM0}, s2, 3
s_and_b32 s{sM0}, s{sM0}, 15
s_lshl_b32 s{sM0}, s{sM0}, 2
s_add_u32 s{sM0}, s{sM0}, s{sWV}
s_mul_i32 s{sM0}, s{sM0}, 12800
v_lshlrev_b32 v{vt}, 7, v{vLANE}""")
        a.vmem(f"buffer_load_dword v{vt+1}, v{vt}, {srd(SW)}, s{sM0} offen", "warm")
        a(f"s_add_u32 s{sM0}, s{sM0}, 8192\ns_mov_b32 exec_hi, 15")
        a.vmem(f"buffer_load_dword v{vt+1}, v{vt}, {srd(SW)}, s{sM0} offen", "warm")
        a("s_mov_b32 exec_hi, -1")
    return f

def c_touch(slot, vt):
    dma_c(slot, sXB, 0)[0][1]()
    a(f"""s_mul_i32 s{sM1}, s{sCT}, {80*1280}
s_add_u32 s{sM0}, s{sM0}, s{sM1}
v_mul_u32_u24 v{vt}, 1280, v{vLANE}""")
    a.vmem(f"buffer_load_dword v{vt+1}, v{vt}, {srd(SW)}, s{sM0} offen", "warm")
    a(f"s_add_u32 s{sM0}, s{sM0}, {64*1280}\ns_mov_b64 exec, 0xffff")
    a.vmem(f"buffer_load_dword v{vt+1}, v{vt}, {srd(SW)}, s{sM0} offen", "warm")
    a("s_mov_b64 exec, -1")

def flag_touch(base, vd):
    a(f"""s_lshl_b32 s{sT0}, s{sJ}, 4
s_add_u32 s{sT0}, s{sT0}, s{sR}
s_mul_i32 s{sT0}, s{sT0}, {FS}
s_add_u32 s{sT0}, s{sT0}, {base}
s_mov_b64 exec, 1""")
    a.vmem(f"buffer_load_dword v{vd}, v{vLANE}, {srd(SWS)}, s{sT0} offen", "pt")
    a("s_mov_b64 exec, -1")

def type_A():
    bg = BG()
    AK, AG = ACC, ACC + 80
    RING = [128 + 4*i for i in range(8)]
    sZB, sKVB, sGA, sMa, sMb, sMc, sMd, sGB = 34, 35, 36, 37, 38, 39, 40, 41
    sMK = 60
    sGW = 46
    a(f"""s_lshr_b32 s{sT2}, s{sWV}, 1
s_add_u32 s{sT2}, s{sT2}, 1
s_mul_i32 s{sT2}, s{sT2}, 1280
s_mul_i32 s{sT3}, s{sJ}, 160
s_add_u32 s{sT2}, s{sT2}, s{sT3}
s_and_b32 s{sT3}, s{sWV}, 1
s_mul_i32 s{sT3}, s{sT3}, {32*3840}
s_add_u32 s{sT2}, s{sT2}, s{sT3}
s_mul_i32 s{sKQ}, s{sKA}, 1920
s_mul_i32 s{sKQ+1}, s{sKA+1}, 1920""")
    wq_pattern(vW, sT2)
    args_ready()
    a(f"s_mov_b32 s{SQ}, s{pQKV}\ns_and_b32 s{SQ+1}, s{pQKV+1}, 0xffff")
    def stage_dma(s):
        if s >= 10: return None
        return dma_x(s) + dma_w(s, vW, SQ, sKQ + s)
    run_ops(stage_dma(0))
    mk_srd(SW, pGW, 1280)
    a(f"""s_and_b32 s{sT2}, s{sWV}, 1
s_lshl_b32 s{sT2}, s{sT2}, 10
v_lshlrev_b32 v64, 4, v{vLANE}""")
    set_m0(sT2, L_GW)
    a.vmem(f"buffer_load_dwordx4 v64, {srd(SW)}, s{sT2} offen lds", ("st", 0))
    late_setup()
    a(f"""v_mov_b32 v68, 0
v_mov_b32 v69, 0
v_mov_b32 v70, 0
v_mov_b32 v71, 0
v_lshlrev_b32 v65, 4, v0
v_add_u32 v65, {L_KVB}, v65
v_cmp_gt_u32 vcc, 164, v0
s_and_saveexec_b64 {sp(sT2)}, vcc""")
    a.lds("ds_write_b128 v65, v[68:71]", "z0")
    a(f"s_mov_b64 exec, {sp(sT2)}")
    vXM = vQ + 1
    a(f"""v_lshlrev_b32 v61, 3, v60
v_add_u32 v62, v58, v61
v_add_u32 v63, v59, v61
v_add_u32 v{vWR}, {L_W}, v62
v_add_u32 v{vWR+1}, {L_W}, v63
v_add_u32 v{vWR+2}, {L_W+40960}, v62
v_add_u32 v{vWR+3}, {L_W+40960}, v63
v_lshrrev_b32 v{vQ}, 4, v{vLANE}
v_lshlrev_b32 v{vQ}, 4, v{vQ}
v_add_u32 v{vQ}, {L_GW}, v{vQ}
s_and_b32 s{sT2}, s{sJ}, 1
s_lshl_b32 s{sT2}, s{sT2}, 11
s_xor_b32 s{sT3}, s{sT2}, 2048
v_add_u32 v{vXM}, s{sT2}, v{vXR}
v_add_u32 v{vXM+1}, s{sT2}, v{vXR+1}
v_add_u32 v{vXM+2}, s{sT3}, v{vXR}
v_add_u32 v{vXM+3}, s{sT3}, v{vXR+1}""")
    mk_srd(SW, pWO, 640*1280)
    a(f"""s_and_b32 s{sT1}, s{sR}, 1
s_mul_i32 s{sT2}, s{sT1}, 40
s_mul_i32 s{sT3}, s{sJ}, 80
s_add_u32 s{sT2}, s{sT2}, s{sT3}
s_mul_i32 s{sT2}, s{sT2}, 1280
s_lshr_b32 s{sT3}, s{sR}, 1
s_mul_i32 s{sT3}, s{sT3}, 160
s_add_u32 s{sT2}, s{sT2}, s{sT3}
s_mov_b32 s{sM0}, s{sT2}
s_lshl_b32 s{sM1}, s{sWV}, 10
v_mov_b32 v211, {OOB}""")
    for n in range(2):
        a(f"""v_add_u32 v65, {256*n}, v0
v_mul_u32_u24 v66, 6554, v65
v_lshrrev_b32 v66, 16, v66
v_mul_u32_u24 v67, 10, v66
v_sub_u32 v67, v65, v67
v_mul_u32_u24 v66, 1280, v66
v_lshl_add_u32 v66, v67, 4, v66
v_cmp_gt_u32 vcc, 400, v65
v_cndmask_b32 v{72+n}, v211, v66, vcc""")
    def wo_dma():
        for n in range(2):
            set_m0(sM1, L_WO + 4096*n)
            if n == 1:
                a(f"s_cmp_eq_u32 s{sWV}, 3\ns_cbranch_scc1 LskipWo")
                a.vmem(f"buffer_load_dwordx4 v73, {srd(SW)}, s{sM0} offen lds", ("st", 1), certain=False)
                a("LskipWo:")
            else:
                a.vmem(f"buffer_load_dwordx4 v72, {srd(SW)}, s{sM0} offen lds", ("st", 1))
    vGS, vZ1, vZ2, vK1, vK2, vK3, vK4 = 212, 213, 214, 215, 216, 217, 218
    vXW, vR0, vR1, vKP, vKB = 219, 220, 221, 222, 223
    vOa0, vOa1, vOb0, vOb1, vOc0, vOc1 = 224, 225, 226, 227, 228, 229
    vWo = 230
    vMS, vMR, vONE, vTG = 234, 235, 236, 237
    ZR = L_KVB + 2560
    def precompute():
        a(f"""v_and_b32 v208, 15, v{vLANE}
v_lshrrev_b32 v209, 4, v{vLANE}
v_lshrrev_b32 v210, 2, v208
v_lshlrev_b32 v{vGS}, 4, v209
v_lshl_add_u32 v{vGS}, v208, 6, v{vGS}
v_cmp_gt_u32 vcc, 2, v208
v_cndmask_b32 v{vGS}, v211, v{vGS}, vcc
s_lshl_b32 s{sGB}, s{sR}, 3
s_add_u32 s{sGB}, s{sGB}, s{sJ}
s_lshl_b32 s{sGB}, s{sGB}, 7
s_add_u32 s{sGB}, s{sGB}, {WS_G}
v_cmp_eq_u32 {sp(sMK)}, s{sWV}, v210
v_cmp_eq_u32 {sp(sT4)}, s{sWV}, v209
s_add_u32 s{sT2}, s{sWV}, 1
s_and_b32 s{sT2}, s{sT2}, 3
v_cmp_eq_u32 vcc, s{sT2}, v209
v_lshlrev_b32 v{vZ1}, 2, v208
v_and_b32 v240, 3, v208
v_add_u32 v241, 16, v240
v_lshlrev_b32 v{vZ2}, 2, v241
v_cndmask_b32 v{vZ1}, v211, v{vZ1}, vcc
v_cndmask_b32 v{vZ2}, v211, v{vZ2}, vcc
v_cndmask_b32 v{vZ2}, v211, v{vZ2}, {sp(sMK)}
s_lshl_b32 s{sT2}, s{sJ}, 4
s_add_u32 s{sT2}, s{sT2}, s{sR}
s_mul_i32 s{sZB}, s{sT2}, 640
s_mul_i32 s{sT3}, s{sWV}, 80
s_add_u32 s{sZB}, s{sZB}, s{sT3}
s_add_u32 s{sZB}, s{sZB}, {WS_ZP}
v_mul_u32_u24 v242, 320, v209
v_lshl_add_u32 v{vK1}, v208, 4, v242
v_lshlrev_b32 v{vK2}, 4, v208
v_cndmask_b32 v{vK2}, v211, v{vK2}, {sp(sT4)}
v_lshl_add_u32 v{vK3}, v241, 4, v242
v_cndmask_b32 v{vK3}, v211, v{vK3}, {sp(sMK)}
v_lshlrev_b32 v{vK4}, 4, v241
v_cndmask_b32 v{vK4}, v211, v{vK4}, {sp(sMK)}
v_cndmask_b32 v{vK4}, v211, v{vK4}, {sp(sT4)}
s_mul_i32 s{sKVB}, s{sT2}, 6400
s_mul_i32 s{sT3}, s{sWV}, 1600
s_add_u32 s{sKVB}, s{sKVB}, s{sT3}
s_add_u32 s{sKVB}, s{sKVB}, {WS_KVP}
v_lshlrev_b32 v{vR0}, 4, v{vLANE}
v_add_u32 v{vXW}, s{sXB}, v{vR0}
s_lshl_b32 s{sT2}, s{sWV}, 10
v_add_u32 v{vR1}, s{sT2}, v{vR0}
v_lshlrev_b32 v{vKP}, 4, v0
v_cmp_gt_u32 vcc, 200, v0
v_cndmask_b32 v{vKP}, v211, v{vKP}, vcc
s_mul_i32 s{sGA}, s{sJ}, {16*6400}
s_and_b32 s{sT1}, s{sR}, 1
s_mul_i32 s{sT2}, s{sT1}, 3200
s_add_u32 s{sGA}, s{sGA}, s{sT2}
s_add_u32 s{sGA}, s{sGA}, {WS_KVP}""")
        a(f"""v_cmp_le_u32 vcc, 100, v0
v_subrev_u32 v242, 100, v0
v_cndmask_b32 v242, v0, v242, vcc
v_mov_b32 v243, {L_KVB}
v_mov_b32 v244, {L_KVB + 1280}
v_cndmask_b32 v243, v243, v244, vcc
v_mul_u32_u24 v244, 3277, v242
v_lshrrev_b32 v244, 16, v244
v_mul_u32_u24 v245, 20, v244
v_sub_u32 v245, v242, v245
v_lshl_add_u32 v243, v245, 6, v243
v_lshl_add_u32 v{vKB}, v244, 3, v243""")
        a(f"""v_lshrrev_b32 v242, 1, v210
v_lshl_add_u32 v242, v242, 3, v240
v_lshlrev_b32 v242, 6, v242
v_lshl_add_u32 v242, v209, 4, v242
v_add_u32 v242, {L_KVB}, v242
v_add_u32 v243, 1280, v242
v_mov_b32 v244, {ZR - 256}
v_and_b32 v245, 1, v210
v_cmp_eq_u32 vcc, 0, v245
v_cndmask_b32 v{vOb0}, v244, v242, vcc
v_cndmask_b32 v{vOb1}, v243, v244, vcc
v_mov_b32 v244, {ZR}
v_cndmask_b32 v{vOa0}, v244, v242, vcc
v_cndmask_b32 v{vOa1}, v243, v244, vcc
v_lshlrev_b32 v242, 6, v240
v_lshl_add_u32 v242, v209, 4, v242
v_add_u32 v242, {L_KVB + 16*64}, v242
v_add_u32 v243, 1280, v242
v_cmp_eq_u32 vcc, 0, v210
v_cndmask_b32 v{vOc0}, v244, v242, vcc
v_cmp_eq_u32 vcc, 1, v210
v_cndmask_b32 v{vOc1}, v244, v243, vcc""")
        a(f"""v_bfe_u32 v242, v{vLANE}, 2, 2
v_lshl_add_u32 v242, v209, 3, v242
v_add_u32 v243, 4, v242
v_min_u32 v242, 19, v242
v_min_u32 v243, 19, v243
v_mul_u32_u24 v242, 160, v242
v_mul_u32_u24 v243, 160, v243
v_lshl_add_u32 v242, v240, 3, v242
v_lshl_add_u32 v243, v240, 3, v243
v_add_u32 v{vWo+2}, {L_WO}, v242
v_add_u32 v{vWo+3}, {L_WO}, v243
s_lshl_b32 s{sT2}, s{sWV}, 5
v_add_u32 v{vWo}, s{sT2}, v{vWo+2}
v_add_u32 v{vWo+1}, s{sT2}, v{vWo+3}""")
        a(f"""v_and_b32 v242, 1, v209
v_lshrrev_b32 v243, 1, v209
v_lshl_add_u32 v242, v243, 2, v242
v_lshlrev_b32 v242, 8, v242
v_lshl_add_u32 v{vMS}, v208, 4, v242
v_mul_u32_u24 v243, {4*20480}, v209
v_lshl_add_u32 v243, v208, 4, v243
s_cmp_eq_u32 s{sWV}, 0
s_cselect_b32 s{sT0}, 2, 1
v_cmp_gt_u32 vcc, s{sT0}, v209
v_cndmask_b32 v{vMR}, v211, v243, vcc
s_lshr_b32 s{sT0}, s{sR}, 1
s_mul_i32 s{sT0}, s{sT0}, {5*20480}
s_mul_i32 s{sT2}, s{sJ}, 2560
s_add_u32 s{sT0}, s{sT0}, s{sT2}
s_add_u32 s{sT0}, s{sT0}, {WS_M}
s_lshl_b32 s{sT2}, s{sT1}, 9
s_add_u32 s{sT2}, s{sT2}, s{sT0}
s_lshl_b32 s{sT3}, s{sT1}, 8
s_add_u32 s{sT3}, s{sT3}, s{sT0}
s_mul_i32 s{sT0}, s{sWV}, 20480
s_add_u32 s{sMa}, s{sT2}, s{sT0}
s_add_u32 s{sMb}, s{sT3}, s{sT0}
s_add_u32 s{sT2}, s{sT2}, {4*20480}
s_add_u32 s{sT3}, s{sT3}, {4*20480}
s_cmp_eq_u32 s{sWV}, 0
s_cselect_b32 s{sMc}, s{sT2}, {OOB}
s_cselect_b32 s{sMd}, s{sT3}, {OOB}
v_mov_b32 v{vONE}, 0x3f803f80""")
    precompute()
    skip_setup(238, 56, 57)
    stamp(34)
    if E2("IW", 0):
        a(f"""Lladder:
s_mov_b64 exec, 0
s_mov_b32 s{sT0}, s{sWV}
Lwret:
s_mov_b32 s{sT1}, s{sT0}
s_add_u32 s{sT0}, s{sT0}, 4
;LADDER
s_mov_b64 exec, -1
s_cmp_eq_u32 s100, 1
s_cbranch_scc1 LB_cont
s_branch LA_cont
.p2align 12
LA_cont:""")
    run_ops(stage_dma(1))
    wo_dma()
    def ptouch():
        a(f"""v_lshlrev_b32 v124, 7, v{vLANE}
s_mov_b64 exec, 0x3fff""")
        a.vmem(f"buffer_load_dword v123, v124, {srd(SWS)}, s{sKVB} offen", "pt")
        a("s_mov_b64 exec, 3")
        a.vmem(f"buffer_load_dword v123, v124, {srd(SWS)}, s{sZB} offen", "pt")
        if E2("PTF", 1): flag_touch(FM, 123)
        else: a("s_mov_b64 exec, -1")
    tag_ready()
    a(f"""s_and_b32 s{sT2}, s{sTAG}, 0xff
v_mov_b32 v{vTG}, s{sT2}
s_lshr_b32 s{sT2}, s{sJ}, 1
s_cmp_eq_u32 s{sT2}, s{sWV}
s_cselect_b64 {sp(sGW)}, -1, 0
s_mov_b64 vcc, {sp(sGW)}""")
    stamp(0)
    XA = lambda s, ks, m: (s % 2) * 16 + ks * 8 + m * 4 + 120
    def x_reads(s):
        def mk(ks):
            return [(lambda m=m: a.lds(f"ds_read_b128 {a4(XA(s, ks, m))}, v{vXM+2*m+ks} offset:{(s%4)*4096}", ("x", s, ks))) for m in range(2)]
        return {0: mk(0), 11: mk(1)}
    def read_frag(s, i, reg):
        ks, t = divmod(i, 11)
        sl = s % 4
        if t == 10:
            def g():
                if ks == 0: a(f"v_add_u32 v120, s{sKA+s}, v{vQ}")
                a.lds(f"ds_read_b128 {v4(reg)}, v120 offset:{ks*64}", ("w", s, i))
            return [g]
        seg, T = divmod(t, 5)
        off = (sl % 2) * 20480 + seg * 10240 + ks * 5120
        out = []
        for hh in range(2):
            if T < 4: va, o = vWR + (sl // 2) * 2 + hh, off + 40 * T
            else: va, o = vT40 + (sl // 2) * 2 + hh, off + 32
            out.append(lambda hh=hh, va=va, o=o: a.lds(f"ds_read_b64_tr_b16 {v2(reg + 2*hh)}, v{va} offset:{o}", ("w", s, i)))
        return out
    def mfmas(s, i, reg):
        ks, t = divmod(i, 11)
        first = (s == 0 and ks == 0)
        if t == 10:
            def g():
                L = a.label("Lng")
                a(f"s_cbranch_vccz {L}")
                mfma(v4(AG), a4(XA(s, ks, 0)), v4(reg), "0" if first else v4(AG))
                a(f"{L}:")
            return [g]
        out = []
        for m in range(2):
            d = ACC + t * 8 + m * 4
            c = "0" if first else v4(d)
            out.append(lambda d=d, m=m, c=c: mfma(v4(d), a4(XA(s, ks, m)), v4(reg), c))
        return out
    gemm_loop(10, 22, read_frag, mfmas, x_reads, stage_dma, bg, RING, 7, {(8, 0): (lambda: bg.add(skip_loads(238, 56, 57, sXB, 10240) + [('d', lambda: a.vmem(f'buffer_load_dword v123, v{vGS}, {srd(SWS)}, s{sGB} offen', 'pt'))] + ([('d', code_touch(122))] if E2('CT', 1) else []) + ([('d', ptouch)] if E2('PTOUCH', 0) else []) + ([('d', lambda: c_touch(3, 124))] if E2('ATCH', 0) else []))), ((9, E2('AC3', 6)) if E2('ATCH', 0) else (8, 18)): (lambda: (bg.add(dma_c(3, sCW, AR1)), setattr(bg, 'fast', E2('AFAST', 0))))})
    bg.flush()
    stamp(1)
    a(f"s_mov_b32 s{sT2}, {LOG2E}\ns_movk_i32 s{sT3}, 0xff")
    T = 160
    PKR = 168
    def pack(t):
        dst = PKR + 4*t
        for q in range(4):
            a(f"v_cvt_pk_bf16_f32 v{dst+q}, v{ACC + t*8 + 2*q}, v{ACC + t*8 + 2*q + 1}")
        a.lds(f"ds_write_b128 v{vXW}, {v4(dst)} offset:{t*1024}", "kvx")
    for t in range(5):
        phi([AK + 8*t + 2*n for n in range(2)], sT2, T)
        pack(5 + t)
        phi([AK + 8*t + 2*n for n in range(2, 4)], sT2, T)
        pack(t)
    stamp(38)
    a.wait(lg="all")
    a("s_barrier")
    stamp(39)
    F0 = 32
    bg.add(dma_c(4, sCW, AR2))
    for w in range(4):
        b = F0 + w * 16
        a.lds(f"ds_read_b128 {v4(b+12)}, v{vR0} offset:{w*16384 + 9216}", ("kr", w))
        a.lds(f"ds_read_b128 {v4(b)}, v{vR1} offset:{w*16384}", ("kr", w))
        a.lds(f"ds_read_b128 {v4(b+4)}, v{vR0} offset:{w*16384 + 4096}", ("kr", w))
        a.lds(f"ds_read_b128 {v4(b+8)}, v{vR1} offset:{w*16384 + 5120}", ("kr", w))
    P = 96
    bg.tick(E2("AE", 4))
    for w in range(4):
        b = F0 + w * 16
        if w and E2("AE", 4): bg.tick(1)
        a.wait(lg=[("kr", w)])
        for q in range(4): a(f"v_cndmask_b32 v{b+12+q}, v{vONE}, v{b+12+q}, {sp(sMK)}")
        c = lambda n: "0" if w == 0 else v4(P + 4*n)
        mfma(v4(P), v4(b+8), v4(b), c(0))
        mfma(v4(P+8), v4(b+8), v4(b+4), c(2))
        mfma(v4(P+4), v4(b+12), v4(b), c(1))
        mfma(v4(P+12), v4(b+12), v4(b+4), c(3))
    for n in (0, 2, 1, 3):
        for q in (0, 2):
            a(f"v_bfi_b32 v{P+4*n+q}, s{sT3}, v{vTG}, v{P+4*n+q}")
    a.vmem(f"buffer_store_dword v{P+4}, v{vZ1}, {srd(SWS)}, s{sZB} offen sc1", "zst")
    a.vmem(f"buffer_store_dword v{P+12}, v{vZ2}, {srd(SWS)}, s{sZB} offen sc1", "zst")
    a.vmem(f"buffer_store_dwordx4 {v4(P)}, v{vK1}, {srd(SWS)}, s{sKVB} offen sc1", "kvst")
    a.vmem(f"buffer_store_dwordx4 {v4(P+4)}, v{vK2}, {srd(SWS)}, s{sKVB} offen offset:1280 sc1", "kvst")
    a.vmem(f"buffer_store_dwordx4 {v4(P+8)}, v{vK3}, {srd(SWS)}, s{sKVB} offen sc1", "kvst")
    a.vmem(f"buffer_store_dwordx4 {v4(P+12)}, v{vK4}, {srd(SWS)}, s{sKVB} offen offset:1280 sc1", "kvst")
    stamp(2)
    bg.tick(3)
    a.wait(vm=[("c", 3)])
    run_ops(c_reads(3, vCR, AR1))
    run_ops(skip_reads(160, sXB, 10240, 140))
    a.wait(lg=[("cr", 3)])
    bg.add(dma_c(0, sCW, AR1))
    a("s_cbranch_vccz LA_ng")
    for q in range(2):
        r = AG + 2*q
        a(f"""v_cvt_pk_bf16_f32 v{T+1}, v{r}, v{r+1}
v_lshlrev_b32 v{r}, 16, v{T+1}
v_and_b32 v{r+1}, 0xffff0000, v{T+1}
v_mul_f32 v{r}, 0xbfb8aa3b, v{r}
v_mul_f32 v{r+1}, 0xbfb8aa3b, v{r+1}
v_exp_f32 v{r}, v{r}
v_exp_f32 v{r+1}, v{r+1}
s_nop 0
v_add_f32 v{r}, 1.0, v{r}
v_add_f32 v{r+1}, 1.0, v{r+1}
v_rcp_f32 v{r}, v{r}
v_rcp_f32 v{r+1}, v{r+1}
s_nop 0
v_cvt_pk_bf16_f32 v{T+1}, v{r}, v{r+1}
v_lshlrev_b32 v{r}, 16, v{T+1}
v_and_b32 v{r+1}, 0xffff0000, v{T+1}""")
    a.vmem(f"buffer_store_dwordx4 {v4(AG)}, v{vGS}, {srd(SWS)}, s{sGB} offen sc1", "gst", certain=False)
    a("LA_ng:")
    WOF = 128
    for ts in range(2):
        for hd in range(2):
            r = WOF + (ts*2 + hd) * 4
            for hh in range(2):
                a.lds(f"ds_read_b64_tr_b16 {v2(r + 2*hh)}, v{vWo + 2*ts + hh} offset:{hd*3200 + (128 if ts else 0)}", "wof")
    bg.tick(3)
    k2_flags(160, K_vFB, K_vFM)
    k2_mt()
    k2_min(vR0)
    bg.flush()
    stamp(37)
    def gather(tracked):
        a(f"s_mov_b32 s{sT0}, s{sGA}")
        for n in range(16):
            t = f"buffer_load_dwordx4 {v4(32 + 4*n)}, v{vKP}, {srd(SWS)}, s{sT0} offen sc1"
            if tracked: a.vmem(t, ("kp", n))
            else: a(t)
            if n < 15: a(f"s_add_u32 s{sT0}, s{sT0}, 6400")
    gather(True)
    a.wait(vm=[("c", 4)])
    run_ops(c_reads(4, vCR, AR2))
    a.wait(lg="all")
    bg.add(dma_c(1, sCW, AR2))
    bg.tick(E2("AG", 6))
    stamp(41)
    a(f"""v_cmp_gt_u32 vcc, 200, v0
s_mov_b32 s{sSPIN}, 0
s_mov_b64 {sp(sMK)}, vcc
s_branch LA_gc
LA_gr:""")
    gather(False)
    a("s_waitcnt vmcnt(0)\nLA_gc:")
    a.wait(vm=[("kp", 0)])
    a(f"v_xor_b32 v32, v32, v{vTG}\nv_xor_b32 v34, v34, v{vTG}\nv_or_b32 v{T}, v32, v34")
    for n in range(1, 16):
        a.wait(vm=[("kp", n)])
        a(f"""v_xor_b32 v{32+4*n}, v{32+4*n}, v{vTG}
v_xor_b32 v{34+4*n}, v{34+4*n}, v{vTG}
v_pk_add_f32 v[32:33], v[32:33], {v2(32+4*n)}
v_or3_b32 v{T}, v{T}, v{32+4*n}, v{34+4*n}
v_pk_add_f32 v[34:35], v[34:35], {v2(34+4*n)}""")
    a(f"""v_and_b32 v{T}, 0xff, v{T}
v_cmp_ne_u32 vcc, 0, v{T}
s_add_u32 s{sSPIN}, s{sSPIN}, 1
s_and_b64 vcc, vcc, {sp(sMK)}
s_cmp_gt_u32 s{sSPIN}, 0x20000
s_cbranch_scc1 LA_gd
s_cbranch_vccnz LA_gr
LA_gd:
{'v_writelane_b32 v254, s96, 40' if STAMPS else ''}
v_cvt_pk_bf16_f32 v36, v32, v33
v_cvt_pk_bf16_f32 v37, v34, v35
s_mov_b64 exec, {sp(sMK)}""")
    a.lds(f"ds_write_b64 v{vKB}, v[36:37]", "kvb")
    a("s_mov_b64 exec, -1")
    bg.flush()
    a.wait(lg="all")
    a("s_barrier")
    stamp(3)
    KF = 40
    a.lds(f"ds_read_b128 {v4(KF)}, v{vOa0}", "kf")
    a.lds(f"ds_read_b128 {v4(KF+8)}, v{vOb0} offset:256", "kf")
    a.lds(f"ds_read_b128 {v4(KF+16)}, v{vOc0}", "kf")
    a.lds(f"ds_read_b128 {v4(KF+4)}, v{vOa1}", "kf")
    a.lds(f"ds_read_b128 {v4(KF+12)}, v{vOb1} offset:256", "kf")
    a.lds(f"ds_read_b128 {v4(KF+20)}, v{vOc1}", "kf")
    a.wait(lg="all")
    MD = 64
    for hd in range(2):
        for ts in range(2):
            for tl in range(3):
                d = MD + (ts*3 + tl) * 4
                mfma(v4(d), v4(KF + tl*8 + hd*4), v4(WOF + (ts*2+hd)*4), "0" if hd == 0 else v4(d))
    for ts in range(2):
        d = MD + ts*12; o = 88 + ts*4
        for q in range(4):
            a(f"v_cvt_pk_bf16_f32 v{o+q}, v{d+2*q}, v{d+2*q+1}")
        for q in range(2):
            a(f"v_cvt_pk_bf16_f32 v{96+2*ts+q}, v{d+8+2*q}, v{d+9+2*q}")
        a.vmem(f"buffer_store_dwordx4 {v4(o)}, v{vMS}, {srd(SWS)}, s{sMa if ts == 0 else sMc} offen sc1", "mst")
    a("v_permlane16_swap_b32 v96, v98\nv_permlane16_swap_b32 v97, v99")
    a.vmem(f"buffer_store_dwordx4 v[96:99], v{vMR}, {srd(SWS)}, s{sMb} offen offset:2048 sc1", "mst")
    stamp(42)
    bg.add(dma_c(2, sXB, 0))
    bg.tick(E2("AD", 10))
    a.wait(vm=[("c", 1)])
    run_ops(c_reads(0, vCR, AR1))
    run_ops(c_reads(1, vCR, AR2))
    a.wait(vm="mst", lg="all")
    a("s_barrier")
    set_flag(FM, "LA_nf2", 240, wave=3, atomic=False)
    stamp(4)
    bg.flush()
    poll_issue(K_vFM, K_vTmp, "0xff00000", "p2")
    a.wait(vm="p2")
    a("s_branch LK2")

OUTLINE = []
def type_B():
    if E2("PADB", 10) >= 0: a(f".p2align 12\n.fill {E2('PADB', 10)*64}, 4, 0xbf800000")
    CUR[0] = 'B'
    a("LtypeB:\ns_mov_b32 s100, 1")
    M0[0] = None
    a.vm = []; a.lg = []
    bg = BG()
    U = ACC; Q = ACC + 80
    RING = [152 + 4*i for i in range(6)]
    LAM = 176
    XR = 216
    COEF = 216
    L8, L128 = 250, 248
    T = 176
    sSa, sSb, sSc, sSd = 54, 55, 56, 57
    sSS, sKX, sKD, sC1, sC2, sT8 = 60, 61, 40, 41, 46, 47
    SXR = 36
    sVAL = 34
    a(f"""s_and_b32 s{sT2}, s{sWV}, 1
s_mul_i32 s{sT3}, s{sT2}, 40
s_mul_i32 s{sT4}, s{sJ}, 80
s_add_u32 s{sT3}, s{sT3}, s{sT4}
s_mul_i32 s{sT3}, s{sT3}, 1280
s_lshl_b32 s{sT4}, s{sT2}, 6
v_xor_b32 v64, s{sT4}, v45
v_xor_b32 v65, s{sT4}, v46
v_add_u32 v{vW}, s{sT3}, v64
v_add_u32 v65, s{sT3}, v65
v_add_u32 v{vW+1}, {10240-1024}, v65
v_add_u32 v{vW+2}, {2*(10240-1024)}, v{vW}
v_add_u32 v{vW+3}, {3*(10240-1024)}, v65
v_add_u32 v{vW+4}, {4*10240}, v{vW}
s_mul_i32 s{sT4}, s{sJ}, 160
v_min_u32 v66, 79, v0
v_lshl_add_u32 v66, v66, 1, s{sT4}
v_mov_b32 v{T}, 0
v_mov_b32 v{T+1}, 0
v_mov_b32 v{T+2}, 0
s_mul_i32 s{sKQ}, s{sKA}, 1920
s_mul_i32 s{sKQ+1}, s{sKA+1}, 1920
s_mul_i32 s{sT5}, s{sT2}, {32*3840}
s_add_u32 s{sT5}, s{sT5}, s{sT4}""")
    args_ready()
    a(f"""s_cmp_ge_u32 s{sWV}, 2
s_cselect_b32 s{SW}, s{pBIM}, s{pBRE}
s_cselect_b32 s{SW+1}, s{pBIM+1}, s{pBRE+1}
s_and_b32 s{SW+1}, s{SW+1}, 0xffff""")
    def stage_dma(s):
        if s < 10: return dma_x(s) + dma_w(s, vW, SW, sKA + s)
        if s < 15: return dma_w(s, vQ, SQ, sKQ + (s - 10))
        return None
    a.vmem(f"global_load_short_d16_hi v{T}, v66, {sp(pLRE)}", "par")
    a.vmem(f"global_load_short_d16_hi v{T+1}, v66, {sp(pLIM)}", "par")
    a.vmem(f"global_load_short_d16_hi v{T+2}, v66, {sp(pLDT)}", "par")
    run_ops(stage_dma(0))
    a(f"s_mov_b32 s{SQ}, s{pQKV}\ns_and_b32 s{SQ+1}, s{pQKV+1}, 0xffff")
    wq_pattern(vQ, sT5)
    late_setup()
    a(f"s_cmp_ge_u32 s{sWV}, 2")
    for q in range(5): a(f"s_cselect_b32 s{sKQ+q}, s{sKQ+2*q+1}, s{sKQ+2*q}")
    a(f"""v_add_u32 v{vWR}, {L_W}, v56
v_add_u32 v{vWR+1}, {L_W}, v57
v_add_u32 v{vWR+2}, {L_W+40960}, v56
v_add_u32 v{vWR+3}, {L_W+40960}, v57""")
    aTW, aTR0, aTR1, aST, aEA, aPT, aSA, aXA, aXW, aHR, aZR, aLT, aSX, aFB, aFM = range(240, 255)
    def params():
        a.wait(vm="par")
        stamp(34)
        bg.tick(E2("PK0", 2))
        P = T + 4
        t0, t1, t2, t3 = T+16, T+17, T+18, T+19
        C = P + 8
        a(f"""v_mul_f32 v{T+2}, {LOG2E}, v{T+2}
v_exp_f32 v{T+2}, v{T+2}
s_nop 0
v_cvt_pk_bf16_f32 v{T+2}, v{T+2}, v{T+2}
v_lshlrev_b32 v{T+2}, 16, v{T+2}
v_mul_f32 v{t0}, v{T+2}, v{T}
v_mul_f32 v{t1}, v{T+2}, v{T+1}
v_mul_f32 v{t0}, {LOG2E}, v{t0}
v_mul_f32 v{t1}, 0.15915494, v{t1}
v_exp_f32 v{t0}, v{t0}
v_fract_f32 v{t1}, v{t1}
v_cos_f32 v{t2}, v{t1}
v_sin_f32 v{t3}, v{t1}
s_nop 0
v_mul_f32 v{P}, v{t0}, v{t2}
v_mul_f32 v{t3}, v{t0}, v{t3}
v_sub_f32 v{P+1}, 0, v{t3}
v_add_f32 v{t0}, -1.0, v{P}
v_mul_f32 v{t1}, v{T}, v{T}
v_fma_f32 v{t1}, v{T+1}, v{T+1}, v{t1}
v_rcp_f32 v{t1}, v{t1}
v_mul_f32 v{C}, v{t0}, v{T}
v_fma_f32 v{C}, v{t3}, v{T+1}, v{C}
v_mul_f32 v{C+1}, v{t3}, v{T}
v_fma_f32 v{C+1}, -v{t0}, v{T+1}, v{C+1}
v_add_f32 v{t1}, v{t1}, v{t1}
v_mul_f32 v{C}, v{C}, v{t1}
v_mul_f32 v{C+1}, v{C+1}, v{t1}""")
        def cmul(d, l, p):
            a(f"""v_pk_mul_f32 {v2(d)}, {v2(p)}, {v2(l)} op_sel_hi:[1,0]
v_pk_fma_f32 {v2(d)}, {v2(p)}, {v2(l)}, {v2(d)} op_sel:[1,1,0] op_sel_hi:[0,1,1] neg_lo:[0,1,0]""")
        bg.tick(E2("PK1", 0))
        cmul(P+2, P, P); cmul(P+4, P+2, P); cmul(P+6, P+2, P+2); cmul(L8, P+6, P+6)
        bg.tick(E2("PK2", 0))
        a(f"""v_mul_u32_u24 v{t0}, 48, v0
v_add_u32 v{t0}, {L_PT}, v{t0}
v_lshlrev_b32 v{t1}, 3, v0
v_add_u32 v{t1}, {L_LT}, v{t1}
v_mov_b32 v{T+20}, 1.0
v_mov_b32 v{T+21}, 0
v_cmp_gt_u32 vcc, 80, v0
s_and_saveexec_b64 {sp(sT2)}, vcc
s_cbranch_execz LB_nopar""")
        a(f"""v_lshlrev_b32 v{t2}, 3, v0
v_mov_b32 v{T+26}, s{sT8}
v_mov_b32 v{T+27}, s{sT8}
s_mul_i32 s{sT4}, s{sR}, 1280
s_add_u32 s{sT4}, s{sT4}, s{sSS}""")
        a.vmem(f"buffer_store_dwordx2 {v2(T+26)}, v{t2}, {srd(SWS)}, s{sT4} offen offset:640 sc1", "dst", certain=False)
        for q in range(3): a.lds(f"ds_write_b128 v{t0}, {v4(P+4*q)} offset:{16*q}", "pt", certain=False)
        a.lds(f"ds_write_b64 v{t1}, {v2(T+20)}", "pt", certain=False)
        a.lds(f"ds_write_b64 v{t1}, {v2(L8)} offset:640", "pt", certain=False)
        prev = L8
        for s in range(2, 17):
            d = (T + 22 + 2*(s % 2)) if s < 16 else L128
            cmul(d, L8, prev)
            if s < 16: a.lds(f"ds_write_b64 v{t1}, {v2(d)} offset:{s*640}", "pt", certain=False)
            prev = d
        a(f"""LB_nopar:
s_mov_b64 exec, {sp(sT2)}""")
    def stash():
        t0, t1 = T+16, T+17
        a(f"""s_lshl_b32 s{sT2}, s{sJ}, 5
s_add_u32 s{sT3}, s{sT2}, 15
s_sub_u32 s{sT3}, s{sT3}, s{sR}
s_mul_i32 s{sSS}, s{sT3}, 640
s_add_u32 s{sSS}, s{sSS}, {WS_SP}
s_add_u32 s{sT3}, s{sSS}, 640
s_mul_i32 s{sT2}, s{sJ}, {16*640}
s_add_u32 s{sT2}, s{sT2}, {WS_ZP}
s_cmp_ge_u32 s{sWV}, 2
s_cselect_b32 s{sT2}, s{sT2}, s{sT3}
s_cselect_b32 s{SXR+2}, 0, {16*640}
s_add_u32 s{SXR}, s{pWS}, s{sT2}
s_addc_u32 s{SXR+1}, s{pWS+1}, 0
s_and_b32 s{SXR+1}, s{SXR+1}, 0xffff
s_mov_b32 s{SXR+3}, 0x20000
s_movk_i32 s{sC1}, 3840
s_movk_i32 s{sC2}, 7680
s_cmp_ge_u32 s{sWV}, 2
s_movk_i32 s{sT2}, 80
s_cmov_b32 s{sT2}, {128+40}
s_cselect_b32 s{sT3}, 128, 0
s_mov_b32 s{sT4}, {L_HB}
s_cmov_b32 s{sT4}, {L_ZB}
v_cmp_gt_u32 {sp(sVAL)}, s{sT2}, v0
v_subrev_u32 v{t0}, s{sT3}, v0
v_lshlrev_b32 v{t0}, 3, v{t0}
v_add_u32 v{t1}, s{sT4}, v{t0}
v_accvgpr_write_b32 a{aXW}, v{t1}
v_mov_b32 v{t1}, {OOB}
v_cndmask_b32 v{t0}, v{t1}, v{t0}, {sp(sVAL)}
v_accvgpr_write_b32 a{aXA}, v{t0}
v_min_u32 v{t0}, 79, v0
v_lshlrev_b32 v{t0}, 3, v{t0}
v_add_u32 v{t0}, {L_EB}, v{t0}
v_accvgpr_write_b32 a{aSA}, v{t0}""")
        c_, g_, u0, u1, u2, u3 = T+8, T+9, T+10, T+11, T+12, T+13
        a(f"""v_and_b32 v{c_}, 15, v{vLANE}
v_lshrrev_b32 v{g_}, 4, v{vLANE}
v_mul_u32_u24 v{u0}, 48, v{c_}
v_add_u32 v{u0}, {L_PT}, v{u0}
v_accvgpr_write_b32 a{aPT}, v{u0}
v_lshrrev_b32 v{u0}, 4, v0
v_mul_u32_u24 v{u0}, 640, v{u0}
v_lshl_add_u32 v{u0}, v{c_}, 3, v{u0}
v_add_u32 v{u0}, {L_LT}, v{u0}
v_accvgpr_write_b32 a{aLT}, v{u0}
v_mul_u32_u24 v{u0}, 640, v{g_}
v_lshl_add_u32 v{u0}, v{c_}, 3, v{u0}
v_add_u32 v{u0}, s{sXB}, v{u0}
v_accvgpr_write_b32 a{aEA}, v{u0}
v_lshlrev_b32 v{u0}, 3, v{c_}
v_add_u32 v{u0}, {L_HB}, v{u0}
v_accvgpr_write_b32 a{aHR}, v{u0}
v_mul_u32_u24 v{u0}, 80, v{g_}
v_add_u32 v{u0}, {L_ZB}, v{u0}
v_accvgpr_write_b32 a{aZR}, v{u0}
v_bfe_u32 v{u0}, v{c_}, 1, 2
v_xor_b32 v{u0}, v{u0}, v{g_}
v_lshlrev_b32 v{u0}, 4, v{u0}
v_lshl_add_u32 v{u0}, v{c_}, 6, v{u0}
s_add_u32 s{sT2}, s{sXB}, 10240
v_add_u32 v{u0}, s{sT2}, v{u0}
v_accvgpr_write_b32 a{aTW}, v{u0}
v_bfe_u32 v{u0}, v{vLANE}, 2, 2
v_lshrrev_b32 v{u1}, 1, v{g_}
v_lshl_add_u32 v{u2}, v{u1}, 3, v{u0}
v_lshlrev_b32 v{u2}, 6, v{u2}
v_and_b32 v{u3}, 1, v{g_}
v_lshl_add_u32 v{u2}, v{u3}, 3, v{u2}
v_add_u32 v{u2}, s{sT2}, v{u2}
v_lshrrev_b32 v{u0}, 1, v{u0}
v_and_b32 v{g_}, 3, v{vLANE}
v_xor_b32 v{u0}, v{u0}, v{g_}
v_lshl_add_u32 v{g_}, v{u0}, 4, v{u2}
v_accvgpr_write_b32 a{aTR0}, v{g_}
v_xor_b32 v{u0}, 2, v{u0}
v_lshl_add_u32 v{g_}, v{u0}, 4, v{u2}
v_add_u32 v{g_}, 256, v{g_}
v_accvgpr_write_b32 a{aTR1}, v{g_}
v_mul_u32_u24 v{u3}, {RT}, v{u3}
v_lshl_add_u32 v{u3}, v{u1}, 8, v{u3}
v_lshl_add_u32 v{u3}, v{c_}, 4, v{u3}
v_accvgpr_write_b32 a{aST}, v{u3}
s_lshl_b32 s{sT2}, s{sR}, 3
s_lshl_b32 s{sT3}, s{sWV}, 1
s_add_u32 s{sT2}, s{sT2}, s{sT3}
s_mul_i32 s{sT2}, s{sT2}, {RT}
s_mul_i32 s{sT3}, s{sJ}, 2560
s_add_u32 s{sSa}, s{sT2}, s{sT3}
s_add_u32 s{sSb}, s{sSa}, 20480
s_add_u32 s{sSc}, s{sSa}, 40960
s_add_u32 s{sSd}, s{sSc}, {RT}""")
    stash()
    skip_setup(T+8, sKX, sKD)
    a(f"v_accvgpr_write_b32 a{aSX}, v{T+8}")
    k2_flags(T+8, T+10, T+11)
    a(f"v_accvgpr_write_b32 a{aFB}, v{T+10}\nv_accvgpr_write_b32 a{aFM}, v{T+11}")
    k2_mt()
    tag_ready()
    a(f"s_and_b32 s{sT8}, s{sTAG}, 0xff")
    if E2("IW", 0): a("s_branch Lladder\nLB_cont:")
    bg.add(stage_dma(1), 1)
    stamp(0)
    params()
    bg.tick(E2("PK3", 2))
    bg.fast = True
    a.wait(lg="all")
    stamp(35)
    XA = lambda s, ks, m: s * 16 + ks * 8 + m * 4
    def x_reads(s):
        if s >= 10: return {}
        def mk(ks):
            return [(lambda m=m: a.lds(f"ds_read_b128 {a4(XA(s, ks, m))}, v{vXR+ks} offset:{(s%4)*4096 + m*2048}", ("x", s, ks))) for m in range(2)]
        return {0: mk(0), 10: mk(1)}
    def read_frag(s, i, reg):
        sl = s % 4
        if s < 10:
            ks, t = divmod(i, 10)
            c5, part = divmod(t, 2)
            return [lambda: a.lds(f"ds_read_b128 {v4(reg)}, v{vWR + (sl//2)*2 + ks} offset:{(sl%2)*20480 + part*10240 + c5*2048}", ("w", s, i))]
        else:
            k4, Tt = divmod(i, 5)
            return [(lambda hh=hh: a.lds(f"ds_read_b64_tr_b16 {v2(reg+2*hh)}, v{vT40 + (sl//2)*2 + hh} offset:{(sl%2)*20480 + k4*5120 + 8*Tt}", ("w", s, i))) for hh in range(2)]
    def mfmas(s, i, reg):
        out = []
        if s < 10:
            ks, t = divmod(i, 10)
            for m in range(2):
                d = U + t*8 + m*4
                c = "0" if (s == 0 and ks == 0) else v4(d)
                out.append(lambda d=d, m=m, c=c: mfma(v4(d), a4(XA(s, ks, m)), v4(reg), c))
        else:
            k4, Tt = divmod(i, 5)
            xs, ks = 2*(s-10) + k4//2, k4 % 2
            for m in range(2):
                d = Q + Tt*8 + m*4
                c = "0" if (s == 10 and k4 == 0) else v4(d)
                out.append(lambda d=d, m=m, c=c: mfma(v4(d), v4(reg), a4(XA(xs, ks, m)), c))
        return out
    def ur(c5, i): return U + (2*c5)*8 + 2*i
    def ui(c5, i): return U + (2*c5+1)*8 + 2*i
    LO = "op_sel_hi:[1,0,1]"
    HI = "op_sel:[0,1,0] op_sel_hi:[1,1,1]"
    NEG = "neg_lo:[0,1,0] neg_hi:[0,1,0]"
    vEA, vSA, vXA, vPT = vX, vX+1, vX+2, vX+3
    vTW, vTR0, vTR1, vST, vL16 = vW, vW+1, vW+2, vW+3, vW+4
    vXW, vHR, vZR, vLT = vWR, vWR+1, vWR+2, vWR+3
    def mk_ptread(c5):
        def f():
            if c5 == 0: a(f"v_accvgpr_read_b32 v{vPT}, a{aPT}")
            a.lds(f"ds_read_b128 {v4(LAM + c5*8)}, v{vPT} offset:{c5*768}", "ptr")
            a.lds(f"ds_read_b128 {v4(LAM + c5*8 + 4)}, v{vPT} offset:{c5*768 + 16}", "ptr")
            a.lds(f"ds_read_b64 {v2(COEF + c5*2)}, v{vPT} offset:{c5*768 + 32}", "ptr")
            if c5 == 4: a(f"v_accvgpr_read_b32 v{vEA}, a{aEA}\nv_accvgpr_read_b32 v{vSA}, a{aSA}\nv_accvgpr_read_b32 v{vXA}, a{aXA}")
        return f
    def scan1():
        stamp(1)
        bg.fast = False
        bg.add(dma_c(0, sXB, 0))
        tA, tB = 228, 230
        for c5 in range(5):
            c = COEF + c5*2
            for i in range(4):
                r_, i_ = ur(c5, i), ui(c5, i)
                a(f"""v_pk_mul_f32 {v2(tA)}, {v2(r_)}, {v2(c)} op_sel_hi:[1,0]
v_pk_mul_f32 {v2(tB)}, {v2(r_)}, {v2(c)} op_sel:[0,1] op_sel_hi:[1,1] neg_lo:[0,1] neg_hi:[0,1]
v_pk_fma_f32 {v2(r_)}, {v2(i_)}, {v2(c)}, {v2(tA)} {HI} {NEG}
v_pk_fma_f32 {v2(i_)}, {v2(i_)}, {v2(c)}, {v2(tB)} {LO} {NEG}""")
            l = LAM + c5*8
            for i in range(1, 4):
                a(f"""v_pk_fma_f32 {v2(ur(c5,i))}, {v2(ur(c5,i-1))}, {v2(l)}, {v2(ur(c5,i))} {LO}
v_pk_fma_f32 {v2(ui(c5,i))}, {v2(ui(c5,i-1))}, {v2(l)}, {v2(ui(c5,i))} {LO}
v_pk_fma_f32 {v2(ur(c5,i))}, {v2(ui(c5,i-1))}, {v2(l)}, {v2(ur(c5,i))} {HI} {NEG}
v_pk_fma_f32 {v2(ui(c5,i))}, {v2(ur(c5,i-1))}, {v2(l)}, {v2(ui(c5,i))} {HI}""")
            l4 = l + 6
            cmul_acc(c, c+1, l4, l4+1, ur(c5,3), ui(c5,3), ur(c5,3)+1, ui(c5,3)+1)
            a.lds(f"ds_write_b64 v{vEA}, {v2(c)} offset:{L_EB + c5*128}", "ew")
            bg.tick(E2("S1T", 1))
        stamp(38)
        a.wait(lg="all")
        a("s_barrier")
        stamp(39)
        a(f"s_cmp_ge_u32 s{sWV}, 2\ns_cbranch_scc1 LB_nocarry1")
        E0 = XR
        tA, tB = 252, vPT
        for s in range(0, 16, 2):
            a(f"ds_read2_b64 {v4(E0 + 2*s)}, v{vSA} offset0:{(s%4)*80} offset1:{(s%4)*80+80}")
            if s % 4 == 2 and s < 14: a(f"v_add_u32 v{vSA}, 16384, v{vSA}")
        a(f"""v_mov_b32 v{tA}, 0
v_mov_b32 v{tA+1}, 0
v_mov_b32 v{tB}, s{sTAG}
s_movk_i32 s{sT3}, 0xff""")
        for s in range(1, 16):
            if s % 2 == 0 or s == 1: a(f"s_waitcnt lgkmcnt({7 - s//2})")
            pk_cmul_acc(E0+2*s, L8, E0+2*s-2, E0+2*s)
        a(f"""v_bfi_b32 v{E0+30}, s{sT3}, v{tB}, v{E0+30}
v_bfi_b32 v{E0+31}, s{sT3}, v{tB}, v{E0+31}""")
        a.vmem(f"buffer_store_dwordx2 {v2(E0+30)}, v{vXA}, {srd(SWS)}, s{sSS} offen sc1", "sst", certain=False)
        a(f"s_mov_b64 exec, {sp(sVAL)}")
        for q in range(14, -1, -2):
            lo = v2(tA) if q == 0 else v2(E0+2*q-2)
            a(f"ds_write2_b64 v{vSA}, {lo}, {v2(E0+2*q)} offset0:{(q%4)*80} offset1:{(q%4)*80+80}")
            if q % 4 == 0 and q: a(f"v_subrev_u32 v{vSA}, 16384, v{vSA}")
        a("s_mov_b64 exec, -1\nLB_nocarry1:")
        stamp(2)
    def x_loads(tracked, cnt):
        ops = []
        for n in range(cnt - 1, -1, -1):
            def f(n=n):
                so = ["0", f"s{sC1}", f"s{sC2}"][n // 6]
                t = f"buffer_load_dwordx2 {v2(XR + 2*n)}, v{vXA}, {srd(SXR)}, {so} offen offset:{(n % 6)*640} sc1"
                if tracked: a.vmem(t, "xl")
                else: a(t)
            ops.append(("d", f))
        return ops
    def x_body(z, ticks):
        cnt = 16 if z else 15
        for n in range(cnt - 1, -1, -1):
            r = XR + 2*n
            a(f"v_xor_b32 v{r}, s{sT8}, v{r}\nv_xor_b32 v{r+1}, s{sT8}, v{r+1}")
            if n == cnt - 1: a(f"v_or_b32 v250, v{r}, v{r+1}")
            else:
                a(f"v_or3_b32 v250, v250, v{r}, v{r+1}")
                if z: a(f"v_pk_add_f32 {v2(r)}, {v2(r)}, {v2(r+2)}")
                else: pk_cmul_acc(r, L128, r+2, r)
            if ticks and n % 2 == 0: bg.tick(1)
        a(f"""v_and_b32 v250, 0xff, v250
v_cmp_ne_u32 vcc, 0, v250
s_add_u32 s{sSPIN}, s{sSPIN}, 1
s_and_b64 vcc, vcc, {sp(sVAL)}""")
    def x_write(z):
        if STAMPS: a("v_writelane_b32 v254, s96, 40")
        if z:
            a(f"""v_cvt_pk_bf16_f32 v250, v{XR}, v{XR+1}
v_lshlrev_b32 v{XR}, 16, v250
v_and_b32 v{XR+1}, 0xffff0000, v250""")
        a(f"s_mov_b64 exec, {sp(sVAL)}\nds_write_b64 v{vXW}, {v2(XR)}\ns_mov_b64 exec, -1")
    def x_retry(z, lab, back):
        a(f"{lab}:")
        run_ops(x_loads(False, 16 if z else 15))
        a(f"s_waitcnt vmcnt(0)\n{lab}c:")
        x_body(z, False)
        a(f"s_cmp_gt_u32 s{sSPIN}, 0x20000\ns_cbranch_scc1 {back}\ns_cbranch_vccnz {lab}\ns_branch {back}")
    OUTLINE.append(lambda: (x_retry(False, "LB_rs", "LB_sok"), x_retry(True, "LB_rz", "LB_zok")))
    def start_x():
        bg.add(x_loads(True, 15)); bg.fast = True
    def c_start(slot):
        def f():
            bg.flush()
            a.wait(lg=[("cr", 0)])
            bg.add(dma_c(slot, sXB, 0)); bg.fast = True
        return f
    def c_read(slot):
        def f():
            bg.flush()
            a.wait(vm=[("c", slot)])
            bg.add(c_reads(slot, vXR, 0)); bg.fast = True
        return f
    hooks = {(0, E2('FEND', 14)): (lambda: setattr(bg, 'fast', False)), (10, 0): scan1, (12, E2('C0R', 0)): c_read(0), (13, E2('XST', 4)): start_x, (14, 0): (lambda: (bg.add(dma_c(1, sXB, 0)), bg.add(dma_c(4, sCW, AR2)))), (13, 0): (lambda: bg.add([('s', lambda: a(f'v_accvgpr_read_b32 v252, a{aSX}'))] + skip_loads(252, sKX, sKD, sWB, 3*20480)))}
    for c5 in range(5): hooks[(9, 2*c5 + 1)] = mk_ptread(c5)
    def touches():
        bg.add([("d", code_touch(vW)), ("d", lambda: flag_touch(FB, vW+1)), ("d", lambda: flag_touch(FW, vW+1))])
    hooks[(9, 6)] = touches
    hooks[(9, 12)] = lambda: setattr(bg, 'fast', True)
    hooks[(14, 1)] = lambda: setattr(bg, 'fast', E2('QF', 0))
    gemm_loop(15, 20, read_frag, mfmas, x_reads, stage_dma, bg, RING, 6, hooks)
    stamp(3)
    a(f"s_mov_b32 s{sSPIN}, 0")
    for vr, ar in ((vLT, aLT), (vXW, aXW), (vTW, aTW), (vTR0, aTR0), (vTR1, aTR1), (vST, aST), (vHR, aHR), (vZR, aZR)):
        a(f"v_accvgpr_read_b32 v{vr}, a{ar}")
    a(f"v_lshlrev_b32 v{vL16}, 4, v{vLANE}")
    H = 152
    for c5 in range(5):
        a.lds(f"ds_read_b64 {v2(H+4*c5)}, v{vEA} offset:{L_EB + c5*128}", "pl")
        a.lds(f"ds_read_b64 {v2(H+4*c5+2)}, v{vLT} offset:{c5*128}", "pl")
    a(f"s_cmp_ge_u32 s{sWV}, 2\ns_cbranch_scc1 LB_x23")
    snap = (list(bg.q), list(a.vm), list(a.lg), M0[0])
    a.wait(vm="xl")
    run_ops(skip_reads(172, sWB, 3*20480, 140))
    x_body(False, True)
    bg.flush()
    a("s_cbranch_vccnz LB_rs\nLB_sok:")
    x_write(False)
    a("s_branch LB_xe1\nLB_x23:")
    bg.q, a.vm, a.lg, M0[0] = snap
    bg.flush()
    full = list(a.vm)
    run_ops(skip_reads(172, sWB, 3*20480, 140))
    a.vm = full
    a(f"s_cmp_lg_u32 s{sWV}, 2\ns_cbranch_scc1 LB_xe1\ns_movk_i32 s{SXR+2}, {16*640}")
    run_ops(x_loads(False, 16))
    a("LB_xe1:")
    M0[0] = None
    a.wait(lg="all")
    a("s_barrier")
    stamp(4)
    HR = vQ + 1
    HRS = [12, 14, 22, 24, 172]
    for c5 in range(5):
        a.lds(f"ds_read_b64 {v2(HRS[c5])}, v{vHR} offset:{c5*128}", ("hin", c5))
    def trd(c5, part):
        for hh in range(2):
            a.lds(f"ds_read_b64_tr_b16 {v2(U + (2*c5+part)*8 + 4 + 2*hh)}, v{vTR0+hh} offset:{((c5%3)*2+part)*1024}", ("tr", c5, part))
    def tst(c5, part):
        a.wait(lg=[("tr", c5, part)])
        a.vmem(f"buffer_store_dwordx4 {v4(U + (2*c5+part)*8 + 4)}, v{vST}, {srd(SWS)}, s{sSa if part == 0 else sSb} offen offset:{c5*512} sc1", "ast")
    for c5 in range(5):
        h = H + 4*c5; lam = LAM + c5*8
        a.wait(lg=[("hin", c5)])
        pk_cmul_acc(h, h+2, HRS[c5], h)
        a(f"v_mov_b32 v{h+2}, v{h+1}")
        cmul_acc(h+1, h+3, lam+6, lam+7, h, h+2, ur(c5,3), ui(c5,3))
        for part in range(2):
            for i in range(4):
                l = lam + 2*i
                if part == 0: a(f"v_pk_fma_f32 {v2(ur(c5,i))}, {v2(h)}, {v2(l)}, {v2(ur(c5,i))} {LO}")
                else: a(f"v_pk_fma_f32 {v2(ui(c5,i))}, {v2(h+2)}, {v2(l)}, {v2(ui(c5,i))} {LO}")
            k = 2*c5 + part
            if k >= 1: trd((k-1)//2, (k-1) % 2)
            for i in range(4):
                l = lam + 2*i
                if part == 0: a(f"v_pk_fma_f32 {v2(ur(c5,i))}, {v2(h+2)}, {v2(l)}, {v2(ur(c5,i))} {HI} {NEG}")
                else: a(f"v_pk_fma_f32 {v2(ui(c5,i))}, {v2(h)}, {v2(l)}, {v2(ui(c5,i))} {HI}")
            if k >= 2: tst((k-2)//2, (k-2) % 2)
            src = U + k*8
            for q in range(4): a(f"v_cvt_pk_bf16_f32 v{src+q}, v{src+2*q}, v{src+2*q+1}")
            a.lds(f"ds_write_b128 v{vTW}, {v4(src)} offset:{((c5%3)*2+part)*1024}", ("tw", c5))
    trd(4, 1)
    tst(4, 0)
    tst(4, 1)
    stamp(32)
    a.wait(vm=[("c", 4)])
    a(f"s_mov_b32 s{sT4}, {LOG2E}")
    cr1 = c_reads(1, vXR, 0) + c_reads(4, vCR, AR2)
    bg.add(dma_c(3, sCW, AR1))
    bg.add([("s", lambda: a.wait(lg=[("cr", 1)]))] + dma_c(2, sXB, 0))
    for n in range(10):
        if n == E2("PHF", 7):
            a.wait(vm="ast")
            a("s_barrier")
            set_flag(FB, "LB_nf", 152, wave=3)
            stamp(36)
        phi([Q + 4*n], sT4, 172, NT=2)
        cr1[2*n][1]()
        phi([Q + 4*n + 2], sT4, 172, NT=2)
        cr1[2*n+1][1]()
        bg.tick(E2("PHT", 2))
    a(f"s_cmp_lg_u32 s{sWV}, 2\ns_cbranch_scc1 LB_xe2")
    x_body(True, False)
    a("s_cbranch_vccnz LB_rz\nLB_zok:")
    x_write(True)
    a("s_waitcnt lgkmcnt(0)\nLB_xe2:")
    bg.flush()
    a(f"v_accvgpr_read_b32 v{K_vFB}, a{aFB}\nv_accvgpr_read_b32 v{K_vFM}, a{aFM}\ns_barrier")
    if E2("EP", 1): poll_issue(K_vFM, K_vTmp, "0xff00000", "p2")
    stamp(33)
    Z = 176
    for q in range(5): a.lds(f"ds_read_b128 {v4(Z+4*q)}, v{vZR} offset:{16*q}", ("zr", q))
    DN = 196
    for Tt in range(5):
        a.wait(lg=[("zr", Tt)])
        for q in range(2):
            for m in range(2):
                d = DN + 2*m
                r = Q + Tt*8 + m*4 + 2*q; z = Z + Tt*4 + 2*q
                if Tt == 0 and q == 0: a(f"v_pk_mul_f32 {v2(d)}, {v2(r)}, {v2(z)}")
                else: a(f"v_pk_fma_f32 {v2(d)}, {v2(r)}, {v2(z)}, {v2(d)}")
    a(f"""v_add_f32 v{DN}, v{DN}, v{DN+1}
v_add_f32 v{DN+2}, v{DN+2}, v{DN+3}
v_add_f32 v{DN}, 0x358637bd, v{DN}
v_add_f32 v{DN+2}, 0x358637bd, v{DN+2}
v_rcp_f32 v{DN}, v{DN}
v_rcp_f32 v{DN+2}, v{DN+2}""")
    WP = 200
    for m in range(2):
        d = DN + 2*m
        for hf in range(3):
            for Tt in ((0, 1), (2, 3), (4,))[hf]:
                for q in range(2):
                    r = Q + Tt*8 + m*4 + 2*q
                    a(f"v_pk_mul_f32 {v2(r)}, {v2(r)}, {v2(d)} op_sel_hi:[1,0]")
            for Tt in ((0, 1), (2, 3), (4,))[hf]:
                for q in range(2):
                    r = Q + Tt*8 + m*4 + 2*q
                    dst = (WP + m*8 + Tt*2 + q) if Tt < 4 else (216 + m*2 + q)
                    a(f"v_cvt_pk_bf16_f32 v{dst}, v{r}, v{r+1}")
            if hf < 2:
                a.vmem(f"buffer_store_dwordx4 {v4(WP + m*8 + hf*4)}, v{vL16}, {srd(SWS)}, s{sSc if m == 0 else sSd} offen offset:{hf*1024} sc1", "ast")
    a("v_permlane16_swap_b32 v216, v218\nv_permlane16_swap_b32 v217, v219")
    a.vmem(f"buffer_store_dwordx4 v[216:219], v{vST}, {srd(SWS)}, s{sSc} offen offset:2048 sc1", "ast")
    stamp(5)
    if not E2("EP", 1): poll_issue(K_vFM, K_vTmp, "0xff00000", "p2")
    k2_min(vL16)
    stamp(6)
    a.wait(vm="p2")
    k2()

def fl_issue(va, vt, mask, tag):
    a(f"s_mov_b64 exec, {mask}")
    a.vmem(f"buffer_load_dword v{vt}, v{va}, {srd(SWS)}, 0 offen sc1", tag)
    a("s_mov_b64 exec, -1")
def fl_check(va, vt, mask, tag):
    a.wait(vm=tag)
    L = a.label("LK_fl"); C = a.label("LK_fc"); X = a.label("LK_fe")
    a(f"""s_mov_b64 exec, {mask}
s_mov_b32 s{sSPIN}, 0
s_branch {C}
{L}:
buffer_load_dword v{vt}, v{va}, {srd(SWS)}, 0 offen sc1
s_add_u32 s{sSPIN}, s{sSPIN}, 1
s_waitcnt vmcnt(0)
{C}:
v_cmp_ne_u32 vcc, s{sTAG}, v{vt}
s_cmp_gt_u32 s{sSPIN}, 0x20000
s_cbranch_scc1 {X}
s_cbranch_vccnz {L}
{X}:
s_mov_b64 exec, -1""")
def k2():
    CUR[0] = 'K'
    a("LK2:")
    a.vm = [("p2", True)] + [("old", True)]*5; a.lg = []
    AH, AB = K_AH, K_AB
    NS = 12
    STG = [196 + 4*i for i in range(NS)]
    vA, vM, vFB, vFM, vGA, vRW, vTmp, vG, sMT = K_vA, K_vM, K_vFB, K_vFM, K_vGA, K_vRW, K_vTmp, K_vG, K_sMT
    MH = [f"a[{120+4*n}:{123+4*n}]" for n in range(10)] + [f"a[{240+4*n}:{243+4*n}]" for n in range(4)] + [v4(152+4*n) for n in range(11)]
    sG = [sT2, sT3, sT4, sT5]
    stamp(7)
    poll_finish(vFM, vTmp, "0xff00000", "p2")
    stamp(8)
    frags = [("h", i, ks, mt) for i in range(5) for ks in range(2) for mt in range(4)] + [("w", i, 0, mt) for mt in range(4) for i in range(5)]
    def issueA(n):
        kind, i, ks, mt = frags[n]
        r = STG[n % NS]
        if kind == "h": a.vmem(f"buffer_load_dwordx4 {v4(r)}, v{vA+mt}, {srd(SWS)}, s{sKA+i} offen offset:{ks*1024} sc1", ("A", n))
        else: a.vmem(f"buffer_load_dwordx4 {v4(r)}, v{vA+mt}, {srd(SWS)}, s{sKA+5+i} offen sc1", ("A", n))
    def gl(i):
        assert st["sp"] >= NG
        a.vmem(f"buffer_load_dword v{vG+2*i}, v{vGA}, {srd(SWS)}, s{sG[i]} offen sc1", "g")
    extra = [(lambda i=i: gl(i)) for i in range(4)]
    for i in range(5):
        for nt in range(5):
            extra.append(lambda i=i, nt=nt: a.vmem(f"buffer_load_dwordx4 {MH[i*5+nt]}, v{vM+nt}, {srd(SWS)}, s{sKQ+i} offen sc1", "M"))
    extra = extra[4:9] + extra[:4] + extra[9:]
    MS, D, X0, X1 = E2("MS", 4), E2("KD", 11), E2("X0", 11), E2("X1", 44)
    PW = E2("PW", 26)
    Q = []
    e = 0
    for n in range(60):
        if n == PW: Q.append(("pw", None))
        while e < 29 and n >= X0 and (e + 1) * (X1 - X0 + 1) <= (n - X0 + 1) * 29:
            Q.append(("x", extra[e])); e += 1
        Q.append(("A", n))
    assert e == 29
    pos = {v: k for k, (t, v) in enumerate(Q) if t == "A"}
    st = {"q": 0, "fm": False, "fw": False}
    def can(limitA):
        if st["q"] >= len(Q): return False
        t, v = Q[st["q"]]
        if t == "A": return v < limitA and (v < 40 or st["fw"])
        if t == "x": return st["fm"]
        return True
    def pop():
        t, v = Q[st["q"]]; st["q"] += 1
        if t == "A": issueA(v)
        elif t == "x": v()
        elif t == "pm": fl_issue(vFM, vTmp, "0xfffff", "pfm")
        else: fl_issue(vFB, vTmp, "0xff", "pfw")
    while st["q"] < E2("P3AT", 4): pop()
    poll_issue(vFM, vTmp, "0xfffff", "p3", load=E2("P3LD", 1))
    while st["q"] < E2("D0", 8) and can(8): pop()
    k2_rest(248)
    a("s_cmp_eq_u32 s100, 0\ns_cbranch_scc1 LK_c3")
    run_ops(c_reads(3, vCR, AR1))
    a("LK_c3:")
    run_ops(c_reads(2, vXR, 0))
    skip_math(248, 140)
    while st["q"] < E2("D1", 8) and can(NS): pop()
    a.wait(vm="old", lg="all")
    poll_finish(vFM, vTmp, "0xfffff", "p3")
    st["fm"] = True
    a("s_cmp_eq_u32 s100, 0\ns_cbranch_scc1 LB_nf2")
    set_flag(FW, "LB_nf2", 244, wave=3, atomic=False)
    def goffs():
        a(f"v_and_b32 v{vGA}, 15, v{vLANE}\nv_lshlrev_b32 v{vGA}, 2, v{vGA}")
        for i in range(4):
            a(f"""s_lshl_b32 s{sG[i]}, s{sRB}, 2
s_add_u32 s{sG[i]}, s{sG[i]}, s{sMT+i}
s_lshl_b32 s{sG[i]}, s{sG[i]}, 7
s_add_u32 s{sG[i]}, s{sG[i]}, {WS_G}
s_mul_i32 s{sMT+i}, s{sMT+i}, {16*320}""")
    spare = capture(goffs)
    NG = len(spare)
    spare += capture(lambda: k2_fin(248))
    st["sp"] = 0
    def g_prep():
        a.wait(vm="g")
        for i in range(4):
            g = vG + 2*i
            a(f"""v_sub_f32 v{g+1}, 1.0, v{g}
v_cvt_pk_bf16_f32 v{g+1}, v{g+1}, v{g+1}
v_lshlrev_b32 v{g+1}, 16, v{g+1}""")
    def scale_ops(mt, nt):
        g = vG + 2*mt; h = AH + (mt*5+nt)*4
        return [(lambda q=q: a(f"v_mul_f32 v{h+q}, v{g}, v{h+q}\nv_mul_f32 v{h+q+1}, v{g}, v{h+q+1}")) for q in (0, 2)]
    def fin_ops(mt, nt, pk=False):
        g = vG + 2*mt; h = AH + (mt*5+nt)*4; b = AB[mt % 2] + nt*4
        if pk: ops = [(lambda q=q: a(f"v_pk_fma_f32 {v2(h+q)}, {v2(b+q)}, {v2(g)}, {v2(h+q)} op_sel:[0,1,0] op_sel_hi:[1,1,1]")) for q in (0, 2)]
        else: ops = [(lambda q=q: a(f"v_fmac_f32 v{h+q}, v{g+1}, v{b+q}\nv_fmac_f32 v{h+q+1}, v{g+1}, v{b+q+1}")) for q in (0, 2)]
        def w():
            if nt == 0: a(f"v_add_u32 v{vTmp}, s{sMT+mt}, v{vRW}")
            a.lds(f"ds_write_b128 v{vTmp}, {v4(h)} offset:{nt*64}", "red")
        return ops + [w]
    for n in range(60):
        kind, i, ks, mt = frags[n]
        assert st["q"] > pos[n], n
        a.wait(vm=[("A", n)])
        if n == 0: stamp(14)
        if E("K2ST") and n % 4 == 0: stamp(44 + n // 4)
        if n == PW: fl_check(vFB, vTmp, "0xff", "pfw"); st["fw"] = True
        if n == 40:
            stamp(15)
            assert st["sp"] == len(spare)
            g_prep()
        fill = []
        if kind == "w":
            fill = scale_ops(mt, i) + (fin_ops(mt-1, i) if mt > 0 else [])
        target = pos[min(n + 1, 59)] + D
        for nt in range(5):
            if kind == "h":
                d = AH + (mt*5 + nt)*4
                first = (i == 0 and ks == 0 and mt != 0)
                fa = a4(CHOME[i] + (ks*5+nt)*4)
            else:
                d = AB[mt % 2] + nt*4
                first = (i == 0)
                fa = MH[i*5 + nt]
            mfma(v4(d), fa, v4(STG[n % NS]), "0" if first else v4(d))
            if fill: fill.pop(0)()
            elif nt in (0, 2) and st["q"] < target and can(n + NS): pop()
            elif nt < 4:
                for _ in range(2):
                    if st["sp"] < len(spare): a(spare[st["sp"]]); st["sp"] += 1
        if st["q"] < target and can(n + NS + 1): pop()
    stamp(9)
    for nt in range(5):
        for f in fin_ops(3, nt, True): f()
    a(f"""s_cmp_lg_u32 s{sRB}, 31
s_cbranch_scc1 LK_ne
s_or_b32 s{sT2}, s{sWV}, s{sCT}
s_cmp_lg_u32 s{sT2}, 0
s_cbranch_scc1 LK_ne
v_mov_b32 v196, {WS_EPOCH}
v_mov_b32 v197, s{sTAG}
s_mov_b64 exec, 1
buffer_store_dword v197, v196, {srd(SWS)}, 0 offen sc1
s_mov_b64 exec, -1
LK_ne:""")
    a.wait(lg="all")
    a("s_barrier")
    R = 32
    for n in range(5):
        for w in range(4):
            a.lds(f"ds_read_b128 {v4(R + (n*4+w)*4)}, v{K_FL} offset:{w*64*320 + n*64}", ("rr", n))
    for n in range(5):
        a.wait(lg=[("rr", n)])
        r = R + n*16
        a(f"""v_pk_add_f32 {v2(r)}, {v2(r)}, {v2(r+4)}
v_pk_add_f32 {v2(r+2)}, {v2(r+2)}, {v2(r+6)}
v_pk_add_f32 {v2(r+8)}, {v2(r+8)}, {v2(r+12)}
v_pk_add_f32 {v2(r+10)}, {v2(r+10)}, {v2(r+14)}
v_pk_add_f32 {v2(r)}, {v2(r)}, {v2(r+8)}
v_pk_add_f32 {v2(r+2)}, {v2(r+2)}, {v2(r+10)}""")
        a.vmem(f"buffer_store_dwordx4 {v4(r)}, v{K_FO}, {srd(SOUT)}, 0 offen offset:{n*64} {os.environ.get('OST', '').replace('_', ' ')}", "ost")
    stamp(10)
    stamp_flush()
    if E("PADUS"):
        a(f"""s_waitcnt vmcnt(0)
Lpad:
s_memrealtime s[96:97]
s_waitcnt lgkmcnt(0)
s_sub_u32 s96, s96, s{sST}
{'s_sub_u32 s96, s96, s99' if os.environ.get('PROBE') else ''}
s_cmp_lt_u32 s96, {E("PADUS")*100}
s_cbranch_scc1 Lpad""")
    a("Lend:\ns_endpgm")
    for f in OUTLINE: f()
    a("Lcode_end:\n.fill 320, 4, 0xbf800000")

prologue()
type_A()
type_B()
body = a.text()
hdr = open("gated_mix__ssm_conv_s5__linear_attn_block__prompt.s.ref").read().split("; Override launch")[0]
def wrap(b):
    return hdr + f"; @launch grid=(256,1,1) block=(256,1,1) lds={LDS_BYTES}\n" + HEADER + kernel_begin(NAME) + b + kernel_desc(NAME, 512, 102, 256)
out = sys.argv[1] if len(sys.argv) > 1 else "k.s"
if E2("IW", 0):
    import subprocess, re, tempfile
    tmp = tempfile.mkdtemp()
    open(tmp + "/p.s", "w").write(wrap(body))
    subprocess.run(["clang", "-x", "assembler", "-target", "amdgcn-amd-amdhsa", "-mcpu=gfx950", "-c", tmp + "/p.s", "-o", tmp + "/p.o"], check=True)
    dis = subprocess.run(["llvm-objdump", "-d", "--mcpu=gfx950", tmp + "/p.o"], capture_output=True, text=True).stdout
    seg = dis[dis.index("<LA_cont>:"):]
    sizes = [4 * len(m.group(1).split()) for m in re.finditer(r"// [0-9A-F]{12}: ([0-9A-F ]+?)(?: <.*)?$", seg, re.M)]
    lines = body.split("\n")
    i0 = lines.index("LA_cont:")
    outl = lines[:i0+1]
    off = 0; k = 0; nxt = 0; safe = True; sv = False; n = 0; done = False
    for l in lines[i0+1:]:
        t_ = l.strip()
        isins = t_ and not t_.endswith(":") and not t_.startswith((";", "."))
        if isins and not done:
            if off >= nxt and safe:
                outl.append(f"Lw_{k}:"); outl.append("    s_cbranch_execz Lwret")
                k += 1; off += 4; nxt += 4096
            off += sizes[n]; n += 1
            if t_.startswith("s_and_saveexec"): safe = False; sv = True
            elif t_.startswith("s_mov_b64 exec,"):
                x = t_.split(",")[1].strip()
                if x == "-1" or (sv and x == sp(sT2)): safe = True; sv = False
                else: safe = False
            elif t_.startswith("s_mov_b32 exec_hi,"): safe = t_.endswith("-1")
            if t_ == "s_endpgm": done = True
        outl.append(l)
    body = "\n".join(outl).replace(";LADDER", "\n".join(f"    s_cmp_eq_u32 s{sT1}, {q}\n    s_cbranch_scc1 Lw_{q}" for q in range(k)))
src = wrap(body)
open(out, "w").write(src)
print("written", out, "nops inserted:", a.nnop, "lines", src.count("\n"))
```

```python
import sys, os
sys.path.insert(0, "work")
from asmlib import *

STAMPS = int(os.environ.get("STAMPS", "0"))
E = lambda k: int(os.environ.get(k, "0"))
E2 = lambda k, d: int(os.environ.get(k, str(d)))
STGST = int(os.environ.get("STGST", "0"))
NODMA = int(os.environ.get("NODMA", "0"))
NOMFMA = int(os.environ.get("NOMFMA", "0"))
NOREAD = int(os.environ.get("NOREAD", "0"))
LOOKA = int(os.environ.get("LOOK", "5"))

WS_A = 0
WS_M = 0x800000
WS_KVP = 0x900000
WS_KVR = 0xA00000
WS_SP = 0xA40000
WS_G = 0xA80000
WS_FL = 0xB00000
FS = E2("FS", 128)
FW, FM, FB = WS_FL, WS_FL + 0x100000, WS_FL + 0x200000
WS_EPOCH = 0xAC0000
WS_SIZE = 0xE00000
WS_STAMP = 0xC000000
OOB = 0x40000000
RT = 61440
L_W = 65536
L_SCR = 147456
L_PT = L_SCR
L_KT = L_PT
L_ZERO = L_PT + 4096
L_LT = L_PT + 5120
L_HB = L_LT + 10240
L_EB = 10240
L_GW = L_SCR
L_WO = L_SCR + 2048
L_KVB = L_WO + 7168
LDS_BYTES = 163840
sWV, sR, sJ, sTAG, sT0 = 3, 4, 5, 6, 7
SX, SW, SQ, SWS, SOUT = 8, 12, 16, 20, 24
sRB, sCT, sOFF, sT1 = 28, 29, 30, 31
pX, pLRE, pLIM, pBRE, pBIM, pCRE, pCIM, pLDT, pDSK, pBX, pQKV, pWO, pGW, pOUT, pDBG, pWS = range(32, 64, 2)
sKA = 64
sKQ = 74
sLC = 84
sXB, sWB, sCW = 89, 90, 91
sT2, sT3, sT4, sT5 = 92, 93, 94, 95
sSPIN = 96
sJL = 101
sST = 98
sM0, sM1 = 50, 51
vTID, vLANE = 0, 1
vX = 2
vW = 6
vQ = 11
vXR = 16
vWR = 18
vT40 = 22
vC = 26
vCR = 30
ACC = 32

def srd(n): return f"s[{n}:{n+3}]"
def sp(n): return f"s[{n}:{n+1}]"
def v4(n): return f"v[{n}:{n+3}]"
def v2(n): return f"v[{n}:{n+1}]"
def a4(n): return f"a[{n}:{n+3}]"

a = Asm()
nstamp = [0]
CUR = ['A']
def stamp(idx, existing=False):
    pr = os.environ.get("PROBE")
    if pr:
        if idx == 11: a("s_mov_b32 s99, 0")
        if pr == f"{CUR[0]}{idx}":
            a("s_memrealtime s[96:97]\ns_waitcnt lgkmcnt(0)\ns_sub_u32 s99, s96, s98"); a.lg = []
        return
    if not STAMPS: return
    if not existing: a(f"s_memrealtime {sp(sST)}\ns_memtime s[96:97]")
    a(f"""s_waitcnt lgkmcnt(0)
v_writelane_b32 v254, s{sST}, {idx}
v_writelane_b32 v255, s96, {idx}""")
    a.lg = []

def stamp_flush():
    if not STAMPS: return
    a(f"""s_lshl_b32 s96, s2, 2
s_add_u32 s96, s96, s{sWV}
s_lshl_b32 s96, s96, 9
v_lshl_add_u32 v253, v{vLANE}, 3, s96
s_add_u32 s{sST}, s{pWS}, {WS_STAMP}
s_addc_u32 s{sST+1}, s{pWS+1}, 0
global_store_dwordx2 v253, v[254:255], {sp(sST)}""")

def mfma(d, A, B, C):
    a(f"v_mfma_f32_16x16x32_bf16 {d}, {A}, {B}, {C}")

def mk_srd(n, ptr, size):
    a(f"s_mov_b32 s{n}, s{ptr}\ns_and_b32 s{n+1}, s{ptr+1}, 0xffff\ns_mov_b32 s{n+2}, {size}\ns_mov_b32 s{n+3}, 0x20000")

POLLOP, POLLFL = ('buffer_load_dword', 'sc1') if E('LDPOLL') else ('buffer_atomic_add', 'sc0 sc1')
def poll_issue(vaddr, vtmp, execmask, tag, load=False):
    POLLOP, POLLFL = ('buffer_load_dword', 'sc1') if load else (globals()['POLLOP'], globals()['POLLFL'])
    a(f"s_cmp_eq_u32 s{sWV}, 0\ns_cselect_b32 s{sT0}, 0, {OOB}\ns_mov_b64 exec, {execmask}\nv_mov_b32 v{vtmp}, 0")
    a.vmem(f"{POLLOP} v{vtmp}, v{vaddr}, {srd(SWS)}, s{sT0} offen {POLLFL}", tag)
    a("s_mov_b64 exec, -1")
def poll_finish(vaddr, vtmp, execmask, tag):
    L = a.label("Lpoll"); E_ = a.label("Lpolle"); C = a.label("Lpollc"); S = a.label("Lpolls")
    n = a._cnt(a.vm, tag)[0]
    a(f"""s_cmp_lg_u32 s{sWV}, 0
s_cbranch_scc1 {S}
s_mov_b64 exec, {execmask}
s_mov_b32 s{sSPIN}, 0
s_waitcnt vmcnt({min(n, 63)})
s_branch {C}
{L}:
{'s_mov_b64 exec, vcc' if E2('PX', 1) else ''}
v_mov_b32 v{vtmp}, 0
{'s_sleep %d' % E('SLP') if E('SLP') else ''}
{POLLOP} v{vtmp}, v{vaddr}, {srd(SWS)}, 0 offen {POLLFL}
s_add_u32 s{sSPIN}, s{sSPIN}, 1
s_waitcnt vmcnt(0)
{C}:
v_cmp_ne_u32 vcc, s{sTAG}, v{vtmp}
s_cmp_gt_u32 s{sSPIN}, 0x20000
s_cbranch_scc1 {E_}
s_cbranch_vccnz {L}
{E_}:
s_mov_b64 exec, -1
{S}:
s_barrier""")

def wq_pattern(dst, sadd, tb=52):
    for i in range(5):
        a(f"""v_add_u32 v{tb+0}, {64*i}, v{vLANE}
v_mul_u32_u24 v{tb+1}, 6554, v{tb+0}
v_lshrrev_b32 v{tb+1}, 16, v{tb+1}
v_mul_u32_u24 v{tb+2}, 10, v{tb+1}
v_sub_u32 v{tb+2}, v{tb+0}, v{tb+2}
v_lshrrev_b32 v{tb+3}, 1, v{tb+1}
v_and_b32 v{tb+3}, 4, v{tb+3}
v_xor_b32 v{tb+1}, v{tb+1}, v{tb+3}
v_mul_u32_u24 v{tb+1}, 3840, v{tb+1}
v_lshl_add_u32 v{tb+2}, v{tb+2}, 4, s{sadd}""")
        if i & 3: a(f"v_subrev_u32 v{tb+1}, {(i&3)*1024}, v{tb+1}")
        a(f"v_add_u32 v{dst+i}, v{tb+1}, v{tb+2}")

def prologue():
    if E2("ROT", 3) == 0:
        ROT = f"""s_lshr_b32 s{sT2}, s{sCT}, 2
s_add_u32 s{sT2}, s{sT2}, s{sCT}
s_mul_i32 s{sT3}, s{sJL}, 5
s_add_u32 s{sT3}, s{sT3}, 1
s_lshr_b32 s{sT3}, s{sT3}, 1
s_add_u32 s{sT2}, s{sT2}, s{sT3}
s_sub_u32 s{sT3}, s{sT2}, 10
s_cmp_ge_u32 s{sT2}, 10
s_cselect_b32 s{sT2}, s{sT3}, s{sT2}"""
    elif E2("ROT", 3) == 1:
        ROT = f"""s_add_u32 s{sT2}, s{sCT}, s{sJL}
s_and_b32 s{sT2}, s{sT2}, 3
s_mul_i32 s{sT2}, s{sT2}, 5
s_add_u32 s{sT2}, s{sT2}, 1
s_lshr_b32 s{sT2}, s{sT2}, 1"""
    else:
        ROT = f"""s_add_u32 s{sT2}, s{sCT}, s{sJL}
s_sub_u32 s{sT3}, s{sT2}, 10
s_cmp_ge_u32 s{sT2}, 10
s_cselect_b32 s{sT2}, s{sT3}, s{sT2}
s_sub_u32 s{sT3}, s{sT2}, 5
s_cmp_ge_u32 s{sT2}, 5
s_cselect_b32 s{sT2}, s{sT3}, s{sT2}
{'s_lshl_b32 s%d, s%d, 1' % (sT2, sT2) if E2("ROT", 3) == 2 else ''}"""
    WRAP = 640 if E2("ROT", 3) == 3 else 1280
    if E("PADUS"): a(f"s_memrealtime {sp(sST)}")
    if STAMPS: a(f"s_memrealtime {sp(sST)}\ns_memtime s[96:97]")
    a(f"""s_cmp_ge_u32 s2, 256
s_cbranch_scc1 Lend
s_load_dwordx16 s[32:47], s[0:1], 0
s_load_dwordx16 s[48:63], s[0:1], 64
v_and_b32 v{vLANE}, 63, v0
v_lshrrev_b32 v32, 6, v0
s_and_b32 s{sT0}, s2, 7
s_lshr_b32 s{sT1}, s2, 3
v_readfirstlane_b32 s{sWV}, v32""")
    a(f"""s_getpc_b64 s[92:93]
Lpc:
s_lshl_b32 s{sT4}, s{sWV}, 5
s_add_u32 s{sT4}, s{sT4}, s{sT1}
s_lshl_b32 s{sT4}, s{sT4}, 10
s_cmp_ge_u32 s{sT4}, Lcode_end-Lpc
s_cbranch_scc1 Lnopf
v_lshl_add_u32 v33, v{vLANE}, 4, s{sT4}""")
    a.vmem(f"global_load_dwordx4 v[36:39], v33, s[92:93]", "pf", certain=False)
    a("Lnopf:")
    a(f"""s_lshr_b32 s{sR}, s{sT0}, 2
s_lshl_b32 s{sR}, s{sR}, 3
s_and_b32 s{sCT}, s{sT1}, 7
s_add_u32 s{sR}, s{sR}, s{sCT}
s_lshr_b32 s{sJL}, s{sT1}, 3
s_and_b32 s{sJ}, s{sT0}, 3
s_lshl_b32 s{sJ}, s{sJ}, 1
s_and_b32 s{sT3}, s{sJL}, 1
s_add_u32 s{sJ}, s{sJ}, s{sT3}
s_lshl_b32 s{sRB}, s{sT0}, 2
s_and_b32 s{sT3}, s{sCT}, 1
s_lshl_b32 s{sT3}, s{sT3}, 1
s_xor_b32 s{sT3}, s{sT3}, s{sJL}
s_add_u32 s{sRB}, s{sRB}, s{sT3}
{ROT}
s_lshl_b32 s{sKA}, s{sT2}, 7
s_add_u32 s{sKA+1}, s{sKA}, 128
s_cmp_eq_u32 s{sKA+1}, {WRAP}
s_cselect_b32 s{sKA+1}, 0, s{sKA+1}
s_lshl_b32 s{sXB}, s{sWV}, 14
s_mul_i32 s{sWB}, s{sWV}, 5120
s_add_u32 s{sWB}, s{sWB}, {L_W}""")
    a(f"""v_lshrrev_b32 v40, 3, v{vLANE}
v_and_b32 v41, 7, v{vLANE}
v_lshrrev_b32 v43, 1, v40
v_xor_b32 v41, v41, v43
v_lshlrev_b32 v41, 4, v41
v_lshrrev_b32 v42, 2, v40
v_lshlrev_b32 v42, 3, v42
v_and_b32 v43, 1, v43
v_add_u32 v42, v42, v43
v_and_b32 v43, 1, v40
v_lshl_add_u32 v42, v43, 2, v42
s_lshl_b32 s{sT2}, s{sR}, 7
s_lshl_b32 s{sT3}, s{sWV}, 5
s_add_u32 s{sT2}, s{sT2}, s{sT3}
v_add_u32 v42, s{sT2}, v42
v_mul_u32_u24 v42, 1280, v42
v_add_u32 v{vX}, v42, v41
v_xor_b32 v44, 64, v41
v_add_u32 v{vX+1}, v42, v44
v_add_u32 v{vX+1}, {16*1280-1024}, v{vX+1}
v_add_u32 v{vX+2}, 512, v{vX}
v_add_u32 v{vX+3}, 512, v{vX+1}
v_mul_u32_u24 v43, 1280, v40
v_add_u32 v45, v43, v41
v_add_u32 v46, v43, v44
s_mov_b32 s{SX+2}, {2048*1280}
s_mov_b32 s{SX+3}, 0x20000
s_mov_b32 s{SW+2}, {640*1280}
s_mov_b32 s{SW+3}, 0x20000
s_mov_b32 s{SQ+2}, {640*3840}
s_mov_b32 s{SQ+3}, 0x20000
s_cmp_lt_u32 s{sJL}, 2
s_cbranch_scc1 LtypeB
s_mov_b32 s100, 0""")

def code_touch(vt):
    def f():
        L = a.label("Lct")
        a(f"""s_getpc_b64 {sp(sT2)}
{L}:
s_sub_u32 s{sT2}, s{sT2}, {L}-Lpc
s_subb_u32 s{sT3}, s{sT3}, 0
s_lshr_b32 s{sT0}, s2, 3
s_lshl_b32 s{sT0}, s{sT0}, 2
s_add_u32 s{sT0}, s{sT0}, s{sWV}
s_lshl_b32 s{sT0}, s{sT0}, 7
v_lshl_add_u32 v{vt}, v{vLANE}, 14, s{sT0}
v_min_u32 v{vt}, Lcode_end-Lpc, v{vt}
s_mov_b64 exec, 15""")
        a.vmem(f"global_load_dword v{vt}, v{vt}, {sp(sT2)}", "ct")
        a("s_mov_b64 exec, -1")
    return f

def mall_prefetch(vt):
    def f():
        a(f"""s_lshl_b32 s{sT0}, s2, 2
s_add_u32 s{sT0}, s{sT0}, s{sWV}
s_cmp_ge_u32 s{sT0}, 512
s_cselect_b64 {sp(sT2)}, {sp(pCIM)}, {sp(pCRE)}
s_and_b32 s{sT1}, s{sT0}, 511
s_mul_i32 s{sT1}, s{sT1}, 1600
v_lshl_add_u32 v{vt}, v{vLANE}, 7, s{sT1}
s_mul_i32 s{sT0}, s{sT0}, 25
s_lshr_b32 s{sT0}, s{sT0}, 2
v_add_u32 v{vt+1}, s{sT0}, v{vLANE}
v_mul_u32_u24 v{vt+2}, 6554, v{vt+1}
v_lshrrev_b32 v{vt+2}, 16, v{vt+2}
v_mul_u32_u24 v{vt+2}, 2560, v{vt+2}
v_lshl_add_u32 v{vt+1}, v{vt+1}, 7, v{vt+2}
s_mov_b64 exec, 0x1fff""")
        a.vmem(f"global_load_dword v{vt}, v{vt}, {sp(sT2)}", "mp")
        a("s_mov_b64 exec, 0x7f")
        a.vmem(f"buffer_load_dword v{vt+1}, v{vt+1}, {srd(SQ)}, 0 offen", "mp")
        a("s_mov_b64 exec, -1")
    return f

def args_ready():
    a("s_waitcnt lgkmcnt(0)")
    stamp(11, True)
    stamp(12)
    a(f"s_mov_b32 s{SX}, s{pX}\ns_and_b32 s{SX+1}, s{pX+1}, 0xffff")

def late_setup():
    if E("WSOFF"): a(f"s_add_u32 s{pWS}, s{pWS}, {E('WSOFF') << 20}\ns_addc_u32 s{pWS+1}, s{pWS+1}, 0")
    mk_srd(SWS, pWS, WS_SIZE)
    a(f"""s_add_u32 s{sT2}, s{pWS}, {WS_EPOCH}
s_addc_u32 s{sT3}, s{pWS+1}, 0
s_load_dword s{sTAG}, s[{sT2}:{sT3}], 0""")
    if E("TOUCH"):
        sh = E("TOUCH")
        L = a.label("Ltouch")
        mk_srd(SOUT, pOUT, 2048*2560)
        a(f"""s_cmp_lg_u32 s{sWV}, 3
s_cbranch_scc1 {L}
v_lshlrev_b32 v34, {sh}, v{vLANE}
v_mov_b32 v35, 0""")
        a.vmem(f"buffer_load_dword v36, v34, {srd(SWS)}, 0 offen", "touch", certain=False)
        a.vmem(f"buffer_load_dword v36, v34, {srd(SOUT)}, 0 offen", "touch", certain=False)
        a("s_mov_b64 exec, 1")
        for p in (pCRE, pCIM, pWO, pDSK, pQKV):
            a.vmem(f"global_load_dword v36, v35, {sp(p)}", "touch", certain=False)
        a(f"s_mov_b64 exec, -1\n{L}:")
    for s in range(2, 10):
        if E2("ROT", 3) == 3:
            if s < 5: a(f"s_add_u32 s{sKA+s}, s{sKA+s-1}, 128\ns_cmp_eq_u32 s{sKA+s}, 640\ns_cselect_b32 s{sKA+s}, 0, s{sKA+s}")
            else: a(f"s_add_u32 s{sKA+s}, s{sKA+s-5}, 640")
        else: a(f"s_add_u32 s{sKA+s}, s{sKA+s-1}, 128\ns_cmp_eq_u32 s{sKA+s}, 1280\ns_cselect_b32 s{sKA+s}, 0, s{sKA+s}")
    a(f"""s_mul_i32 s{sCW}, s{sWV}, 10240
s_add_u32 s{sCW}, s{sCW}, {L_W}""")
    a(f"""v_and_b32 v52, 15, v{vLANE}
v_lshrrev_b32 v53, 4, v{vLANE}
v_lshrrev_b32 v54, 1, v52
v_xor_b32 v54, v54, v53
v_lshlrev_b32 v54, 4, v54
v_lshl_add_u32 v56, v52, 7, v54
v_xor_b32 v57, 64, v56
v_add_u32 v{vXR}, s{sXB}, v56
v_add_u32 v{vXR+1}, s{sXB}, v57
v_add_u32 v{vCR}, s{sCW}, v56
v_add_u32 v{vCR+1}, s{sCW}, v57""")
    a(f"""v_bfe_u32 v54, v{vLANE}, 2, 2
v_lshl_add_u32 v54, v53, 3, v54
v_and_b32 v55, 1, v53
v_lshlrev_b32 v55, 2, v55
v_add_u32 v58, v54, v55
v_xor_b32 v55, 4, v55
v_add_u32 v59, v54, v55
v_mul_u32_u24 v58, 160, v58
v_mul_u32_u24 v59, 160, v59
v_and_b32 v60, 3, v{vLANE}
v_mul_u32_u24 v61, 40, v60
v_add_u32 v62, v58, v61
v_add_u32 v63, v59, v61
v_add_u32 v{vT40}, {L_W}, v62
v_add_u32 v{vT40+1}, {L_W}, v63
v_add_u32 v{vT40+2}, {L_W+40960}, v62
v_add_u32 v{vT40+3}, {L_W+40960}, v63""")
    a(f"""s_mul_i32 s{sT2}, s{sCT}, {80*1280}
v_add_u32 v{vC}, s{sT2}, v45
v_add_u32 v{vC+1}, s{sT2}, v46
v_add_u32 v{vC+1}, {10240-1024}, v{vC+1}
v_add_u32 v{vC+2}, {2*(10240-1024)}, v{vC}
v_add_u32 v{vC+3}, {2*(10240-1024)}, v{vC+1}""")

def kq_tables():
    for s in range(2, 10):
        a(f"s_mul_i32 s{sKQ+s}, s{sKA+s}, 1920")
def lc_tables():
    a(f"""s_lshl_b32 s{sT2}, s{sJL}, 2
s_lshr_b32 s{sOFF}, 0x0410, s{sT2}
s_and_b32 s{sOFF}, s{sOFF}, 15
s_add_u32 s{sOFF}, s{sOFF}, s{sCT}
s_sub_u32 s{sT3}, s{sOFF}, 10
s_cmp_ge_u32 s{sOFF}, 10
s_cselect_b32 s{sOFF}, s{sT3}, s{sOFF}
s_sub_u32 s{sT3}, s{sOFF}, 5
s_cmp_ge_u32 s{sOFF}, 5
s_cselect_b32 s{sOFF}, s{sT3}, s{sOFF}
s_mul_i32 s{sT2}, s{sWV}, 5
s_add_u32 s{sT2}, s{sT2}, s{sOFF}""")
    for i in range(5):
        a(f"s_add_u32 s{sLC+i}, s{sT2}, {i}\ns_sub_u32 s{sT3}, s{sLC+i}, 20\ns_cmp_ge_u32 s{sLC+i}, 20\ns_cselect_b32 s{sLC+i}, s{sT3}, s{sLC+i}")

def capture(fn):
    keep = a.items; a.items = []
    fn()
    got = a.items; a.items = keep
    return got
def groups(lines):
    cons = ("s_cselect", "s_cmov", "s_addc", "s_subb")
    nowr = ("s_mov", "s_movk", "s_mul_i32", "s_cselect", "s_cmov", "v_")
    out = []; i = 0
    while i < len(lines):
        j = i
        if lines[i].startswith("s_") and not lines[i].startswith(nowr):
            k = i + 1
            while k < len(lines):
                if lines[k].startswith(cons): j = k
                if lines[k].startswith("s_") and not lines[k].startswith(nowr): break
                k += 1
        out.append(lines[i:j+1]); i = j + 1
    return out

def tag_ready():
    a(f"""s_waitcnt lgkmcnt(0)
s_add_u32 s{sTAG}, s{sTAG}, 0x9e3779b1""")
    a.lg = []

def set_flag(base, lab, vt, wave=0, atomic=True):
    a(f"""s_cmp_lg_u32 s{sWV}, {wave}
s_cbranch_scc1 {lab}
s_lshl_b32 s{sT0}, s{sJ}, 4
s_add_u32 s{sT0}, s{sT0}, s{sR}
s_mul_i32 s{sT0}, s{sT0}, {FS}
s_add_u32 s{sT0}, s{sT0}, {base}
v_lshl_add_u32 v{vt}, v{vLANE}, 2, s{sT0}
v_mov_b32 v{vt+1}, s{sTAG}
{'s_mov_b64 exec, 1' if atomic and not E('STFLAG') else 's_mov_b32 exec_hi, 0'}""")
    a.vmem(f"{'buffer_atomic_swap' if atomic and not E('STFLAG') else 'buffer_store_dword'} v{vt+1}, v{vt}, {srd(SWS)}, 0 offen sc1", "fl", certain=False)
    a(f"s_mov_b64 exec, -1\n{lab}:")

def pk_cmul_acc(d, l, p, acc):
    a(f"""v_pk_fma_f32 {v2(d)}, {v2(p)}, {v2(l)}, {v2(acc)} op_sel_hi:[1,0,1]
v_pk_fma_f32 {v2(d)}, {v2(p)}, {v2(l)}, {v2(d)} op_sel:[1,1,0] op_sel_hi:[0,1,1] neg_lo:[0,1,0]""")

M0 = [None]
def set_m0(sreg, imm):
    if M0[0] != (sreg, imm):
        a(f"s_add_u32 m0, s{sreg}, {imm}")
        M0[0] = (sreg, imm)
def dma_x(s):
    ops = [("s", lambda: set_m0(sXB, (s%4)*4096))]
    for i in range(4):
        def f(i=i):
            set_m0(sXB, (s%4)*4096)
            a.vmem(f"buffer_load_dwordx4 v{vX+i}, {srd(SX)}, s{sKA+s} offen offset:{i*1024} lds", ("st", s))
        ops.append(("d", f))
    return ops
def dma_w(s, vaddr, rsrc, soff):
    ops = [("s", lambda: set_m0(sWB, (s%4)*20480))]
    for i in range(4):
        def f(i=i):
            set_m0(sWB, (s%4)*20480)
            a.vmem(f"buffer_load_dwordx4 v{vaddr+i}, {srd(rsrc)}, s{soff} offen offset:{i*1024} lds", ("st", s))
        ops.append(("d", f))
    ops.append(("s", lambda: set_m0(sWB, (s%4)*20480+4096)))
    def g():
        set_m0(sWB, (s%4)*20480+4096)
        a.vmem(f"buffer_load_dwordx4 v{vaddr+4}, {srd(rsrc)}, s{soff} offen lds", ("st", s))
    ops.append(("d", g))
    return ops
def dma_c(slot, sbase, ldsoff):
    ops = []
    def setup():
        a(f"""s_cmp_ge_u32 s{sLC+slot}, 10
s_cselect_b32 s{SW}, s{pCIM}, s{pCRE}
s_cselect_b32 s{SW+1}, s{pCIM+1}, s{pCRE+1}
s_cselect_b32 s{sM1}, 1280, 0
s_and_b32 s{SW+1}, s{SW+1}, 0xffff
s_lshl_b32 s{sM0}, s{sLC+slot}, 7
s_sub_u32 s{sM0}, s{sM0}, s{sM1}""")
    ops.append(("s", setup))
    for g in range(3):
        def m0(g=g):
            set_m0(sbase, ldsoff + g*4096)
            if g: a(f"s_add_u32 s{sM0}, s{sM0}, 40960")
        ops.append(("s", m0))
        for i in range(4 if g < 2 else 2):
            def f(i=i, g=g):
                set_m0(sbase, ldsoff + g*4096)
                a.vmem(f"buffer_load_dwordx4 v{vC+i}, {srd(SW)}, s{sM0} offen offset:{i*1024} lds", ("c", slot))
            ops.append(("d", f))
    return ops
CHOME = [[b + 4*n for n in range(10)] for b in (160, 200, 56, 96)] + [[136 + 4*n for n in range(6)] + [240 + 4*n for n in range(4)]]
SKH = 56
def c_reads(slot, vbase, ldsoff):
    ops = []
    for ks in range(2):
        for nt in range(5):
            def f(ks=ks, nt=nt):
                a.lds(f"ds_read_b128 {a4(CHOME[slot][ks*5+nt])}, v{vbase+ks} offset:{ldsoff + nt*2048}", ("cr", slot))
            ops.append(("r", f))
    return ops

class BG:
    def __init__(self): self.q = []; self.keys = {}; self.fast = False
    def add(self, ops, key=None):
        self.q.extend(ops)
        if key is not None: self.keys[key] = ops[-1]
    def require(self, key):
        last = self.keys.get(key)
        while last in self.q:
            print("note: forced flush for", key)
            self.q.pop(0)[1]()
    def tick(self, n=1):
        while n > 0 and self.q:
            k, f = self.q.pop(0)
            f()
            if k != "s": n -= 1
    def tick_s(self):
        while self.q and self.q[0][0] == "s":
            self.q.pop(0)[1]()
    def flush(self):
        while self.q: self.q.pop(0)[1]()

def run_ops(ops):
    for k, f in ops: f()

def gemm_loop(nstage, frags_per_stage, read_frag, mfmas, x_reads, stage_dma, bg, ring, LOOK, hooks, first_stage=0, pre_issued=2, spare=None, spare_end=None):
    F = frags_per_stage
    total = nstage * F
    NR = len(ring)
    def sid(f): return first_stage + f // F, f % F
    rq = []; last = []
    for f in range(total):
        s, i = sid(f)
        ops = []
        xr = x_reads(s)
        if i in xr: ops += xr[i]
        ops += read_frag(s, i, ring[f % NR])
        if i == 0:
            def first(s=s, e=ops[0]):
                bg.require(s)
                EA = E2("EARLY", 2)
                a.wait(vm=[("st", s)], lg=("all" if s in (EA, 14) else None))
                a("s_barrier")
                if STGST or os.environ.get('PROBE'): stamp(16 + s)
                d = stage_dma(s + 2)
                if E2("MPF", 0) == 10 + s: bg.add([("d", mall_prefetch(124))])
                if d and s != EA + 1: bg.add(d, s + 2)
                if E2("MPF", 0) == 20 + s: bg.add([("d", mall_prefetch(124))])
                if s == EA:
                    if E2("MPF", 0) == 1: bg.add([("d", mall_prefetch(124))])
                    bg.add(stage_dma(s + 3), s + 3); bg.fast = True
                    if E2("MPF", 0) == 2: bg.add([("d", mall_prefetch(124))])
                if s == EA + 1: bg.fast = False
                e()
            ops[0] = first
        rq += ops
        last.append(len(rq))
    issued = [0]
    def pop(n):
        for _ in range(n):
            rq[issued[0]](); issued[0] += 1
    pop(last[LOOK - 1])
    gap = 0
    spare = groups(spare) if spare else []
    nsp = sum(len(g) for g in spare); done = [0]
    for f in range(total):
        s, i = sid(f)
        if f == spare_end: assert not spare, len(spare)
        if (s, i) in hooks: hooks[(s, i)]()
        a.wait(lg=[("w", s, i)])
        ms = mfmas(s, i, ring[f % NR])
        need = last[min(f + LOOK - 1, total - 1)]
        for half, m in enumerate(ms):
            m()
            maxi = last[min(f + LOOK, f + NR - 1 + (1 if half == len(ms) - 1 else 0), total - 1)]
            period = 2 if bg.fast else 4
            due = lambda g: bool(bg.q) and g % period == 1
            if due(gap):
                bg.tick(1)
                if half == len(ms) - 1 and need > issued[0]: pop(need - issued[0])
            else:
                usable = 1 + sum(1 for g in range(gap + 1, gap + len(ms) - half) if not due(g))
                n = max(1, -(-(need - issued[0]) // usable))
                if due(gap + 1) and half == len(ms) - 1: pass
                pop(max(0, min(n, maxi - issued[0])))
                if due(gap + 1): bg.tick_s()
                while spare and done[0] * (spare_end - 3) < nsp * (f + (half + 1) / len(ms)):
                    g = spare.pop(0); done[0] += len(g)
                    for l in g: a(l)
            gap += 1

LOG2E = 0x3fb8aa3b
def phi(regs, sconst_log2e, tmp, NT=4):
    for n, r in enumerate(regs):
        t = tmp + (n % NT) * 2
        a(f"v_pk_mul_f32 {v2(t)}, {v2(r)}, {sp(sconst_log2e)} op_sel_hi:[1,0]")
        a(f"v_max_f32 v{r}, 0x358637bd, v{r}\nv_max_f32 v{r+1}, 0x358637bd, v{r+1}")
        a(f"v_exp_f32_e64 v{t}, v{t} clamp\nv_exp_f32_e64 v{t+1}, v{t+1} clamp")
        if n > 0:
            rp = regs[n-1]; tp = tmp + ((n-1) % NT) * 2
            a(f"v_pk_add_f32 {v2(rp)}, {v2(rp)}, {v2(tp)}")
    rp = regs[-1]; tp = tmp + ((len(regs)-1) % NT) * 2
    a(f"v_pk_add_f32 {v2(rp)}, {v2(rp)}, {v2(tp)}")

def cmul_acc(dr, di, lr, li, pr, pi, ar, ai):
    a(f"""v_fma_f32 v{dr}, v{lr}, v{pr}, v{ar}
v_fma_f32 v{di}, v{lr}, v{pi}, v{ai}
v_fma_f32 v{dr}, -v{li}, v{pi}, v{dr}
v_fma_f32 v{di}, v{li}, v{pr}, v{di}""")

AR1, AR2 = 40960, 0
K_AH = 32
K_AB = [112, 132]
K_vA, K_vM = 2, 6
K_vFB, K_vFM, K_vGA, K_vRW, K_vTmp = 11, 12, 13, 14, 15
K_vG = 18
K_FO, K_FL = 246, 247
K_sMT = sKQ + 5
def time_base(dst, srt, tmp):
    a(f"""s_lshr_b32 s{dst}, s{srt}, 1
s_lshl_b32 s{dst}, s{dst}, 5
s_and_b32 s{tmp}, s{srt}, 1
s_lshl_b32 s{tmp}, s{tmp}, 1
s_add_u32 s{dst}, s{dst}, s{tmp}""")
def skip_setup(t, sx, sd):
    mk_srd(SOUT, pDSK, 1280)
    a(f"""s_add_u32 s{sT0}, s{sWV}, s{sCT}
s_and_b32 s{sT0}, s{sT0}, 3
s_lshl_b32 s{sx}, s{sRB}, 2
s_add_u32 s{sT0}, s{sT0}, s{sx}""")
    time_base(sx, sT0, sd)
    a(f"""s_mul_i32 s{sx}, s{sx}, 1280
s_mul_i32 s{sd}, s{sCT}, 160
s_add_u32 s{sx}, s{sx}, s{sd}
v_bfe_u32 v{t}, v{vLANE}, 5, 1
v_bfe_u32 v{t+1}, v{vLANE}, 4, 1
v_lshl_add_u32 v{t}, v{t+1}, 2, v{t}
v_mul_u32_u24 v{t}, 1280, v{t}
v_lshrrev_b32 v{t+1}, 4, v{vLANE}
v_mul_u32_u24 v{t+1}, 17, v{t+1}
v_sub_u32 v{t+1}, v{vLANE}, v{t+1}
v_med3_i32 v{t+1}, v{t+1}, 0, 9
v_lshl_add_u32 v{t}, v{t+1}, 4, v{t}""")
def skip_loads(t, sx, sd, sbase, off):
    ops = [("s", lambda: set_m0(sbase, off))]
    for i in range(4):
        def f(i=i):
            set_m0(sbase, off)
            a.vmem(f"buffer_load_dwordx4 v{t}, {srd(SX)}, s{sx} offen offset:{i*1088} lds", "fx")
        ops.append(("d", f))
        if i < 3: ops.append(("s", lambda: a(f"s_add_u32 s{sx}, s{sx}, {10240-1088}")))
    ops.append(("s", lambda: set_m0(sbase, off + 4288)))
    def g():
        set_m0(sbase, off + 4288)
        a("s_mov_b64 exec, 0x3ff")
        a.vmem(f"buffer_load_dwordx4 v{t}, {srd(SOUT)}, s{sd} offen lds", "fx")
        a("s_mov_b64 exec, -1")
    ops.append(("d", g))
    return ops
def skip_reads(t, sbase, off, AB):
    def setup():
        a(f"""s_add_u32 s{sT0}, s{sbase}, {off}
v_lshrrev_b32 v{t}, 4, v{vLANE}
v_lshl_add_u32 v{t}, v{t}, 3, s{sT0}
v_and_b32 v{t+1}, 15, v{vLANE}
v_mul_u32_u24 v{t+1}, 272, v{t+1}
v_add_u32 v{t+1}, v{t+1}, v{t}""")
        a.wait(vm="fx")
    ops = [("s", setup)]
    for nt in range(5):
        ops.append(("r", lambda nt=nt: a.lds(f"ds_read_b64 a[{AB+2*nt}:{AB+1+2*nt}], v{t+1} offset:{nt*32}", "sk")))
        ops.append(("r", lambda nt=nt: a.lds(f"ds_read_b64 a[{AB+10+2*nt}:{AB+11+2*nt}], v{t} offset:{4288 + nt*32}", "sk")))
    return ops
def skip_math(t, AB, bg=None):
    for n in range(10):
        d = K_AH + 2*n
        a(f"""v_accvgpr_read_b32 v{t+1}, a{AB+n}
v_accvgpr_read_b32 v{t+3}, a{AB+10+n}
v_lshlrev_b32 v{t}, 16, v{t+1}
v_and_b32 v{t+1}, 0xffff0000, v{t+1}
v_lshlrev_b32 v{t+2}, 16, v{t+3}
v_and_b32 v{t+3}, 0xffff0000, v{t+3}
v_pk_mul_f32 {v2(t)}, {v2(t)}, {v2(t+2)}
v_cvt_pk_bf16_f32 v{t}, v{t}, v{t+1}
v_lshlrev_b32 v{d}, 16, v{t}
v_and_b32 v{d+1}, 0xffff0000, v{t}""")
        if bg: bg.tick(1)
def k2_flags(t, vfb, vfm):
    a(f"""s_lshr_b32 s{sT2}, s{sRB}, 1
v_lshl_add_u32 v{t}, v{vLANE}, 4, s{sT2}
v_mul_u32_u24 v{t}, {FS}, v{t}
v_add_u32 v{vfb}, {FB}, v{t}
s_and_b32 s{sT3}, s{sRB}, 1
s_mul_i32 s{sT3}, s{sT3}, {64*FS}
s_add_u32 s{sT3}, s{sT3}, {FM - 256*FS}
v_add_u32 v{t}, s{sT3}, v{t}
s_lshl_b32 s{sT2}, s{sCT}, 1
v_lshrrev_b32 v{vfm}, 1, v{vLANE}
v_lshl_add_u32 v{vfm}, v{vfm}, 4, s{sT2}
v_and_b32 v{t+1}, 1, v{vLANE}
v_add_u32 v{vfm}, v{vfm}, v{t+1}
v_mul_u32_u24 v{vfm}, {FS}, v{vfm}
v_add_u32 v{vfm}, {FM}, v{vfm}
v_cmp_gt_u32 vcc, 16, v{vLANE}
v_cndmask_b32 v{vfm}, v{t}, v{vfm}, vcc
v_subrev_u32 v{t}, {20*16*FS}, v{vfb}
v_cmp_gt_u32 vcc, 20, v{vLANE}
v_cndmask_b32 v{vfm}, v{t}, v{vfm}, vcc
v_subrev_u32 v{vfb}, {FB - FW}, v{vfb}""")
def k2_mt():
    a(f"s_add_u32 s{sT0}, s{sWV}, s{sCT}")
    for i in range(4):
        a(f"s_add_u32 s{K_sMT+i}, s{sT0}, {i}\ns_and_b32 s{K_sMT+i}, s{K_sMT+i}, 3")
def k2_min(l16):
    for i in range(4):
        a(f"s_mul_i32 s{sT1}, s{K_sMT+i}, {RT}\nv_add_u32 v{K_vA+i}, s{sT1}, v{l16}")
    a(f"""s_mul_i32 s{sT0}, s{sRB}, {4*RT}
s_lshl_b32 s{sT2}, s{sLC}, 11
s_add_u32 s{sKA}, s{sT0}, s{sT2}""")
def k2_offs(slots):
    a(f"s_mul_i32 s{sT0}, s{sRB}, {4*RT}\ns_add_u32 s{sT3}, s{sT0}, 40960")
    for i in slots:
        a(f"""s_lshl_b32 s{sT2}, s{sLC+i}, 11
s_add_u32 s{sKA+i}, s{sT0}, s{sT2}
s_lshl_b32 s{sT2}, s{sLC+i}, 10
s_add_u32 s{sKA+5+i}, s{sT3}, s{sT2}""")
def k2_rest(t):
    k2_offs([0, 1, 2, 3, 4])
def k2_fin(t):
    q2, q3, q4, q5 = 34, 35, 36, 37
    mk_srd(SOUT, pOUT, 2048*2560)
    a(f"s_lshl_b32 s{q2}, s{sRB}, 2\ns_add_u32 s{q2}, s{q2}, s{sWV}")
    time_base(q3, q2, q4)
    a(f"""s_mul_i32 s{q4}, s{sCT}, 320
s_mul_i32 s{q5}, s{sWV}, {16*320}
v_lshrrev_b32 v{t}, 4, v{vLANE}
v_lshlrev_b32 v{t}, 3, v{t}
v_bfe_u32 v{t+1}, v{vLANE}, 3, 1
v_add_u32 v{t}, v{t}, v{t+1}
v_bfe_u32 v{t+1}, v{vLANE}, 2, 1
v_lshl_add_u32 v{t}, v{t+1}, 2, v{t}
v_add_u32 v{t}, s{q3}, v{t}
v_mul_u32_u24 v{t}, 2560, v{t}
v_and_b32 v{t+1}, 3, v{vLANE}
v_lshl_add_u32 v{t+2}, v{t+1}, 4, s{q4}
v_add_u32 v{K_FO}, v{t}, v{t+2}
v_bfe_u32 v{t+2}, v{vLANE}, 3, 2
v_xor_b32 v{t+1}, v{t+1}, v{t+2}
v_lshrrev_b32 v{t}, 2, v{vLANE}
v_mul_u32_u24 v{t}, 320, v{t}
v_lshl_add_u32 v{t}, v{t+1}, 4, v{t}
v_add_u32 v{K_FL}, s{q5}, v{t}""")
    a(f"""v_and_b32 v{t}, 15, v{vLANE}
v_lshrrev_b32 v{t+1}, 4, v{vLANE}
v_bfe_u32 v{t+2}, v{vLANE}, 1, 2
v_xor_b32 v{t+1}, v{t+1}, v{t+2}
v_mul_u32_u24 v{t}, 320, v{t}
v_lshl_add_u32 v{t}, v{t+1}, 4, v{t}
s_mul_i32 s{q2}, s{sWV}, {64*320}
v_add_u32 v{K_vRW}, s{q2}, v{t}""")

MH = [a4(4*n) for n in range(14)] + [v4(152+4*n) for n in range(11)]
def wf_loads(vb, sx, lo=0, hi=25):
    ops = []
    for n in range(lo, hi):
        i, nt = divmod(n, 5)
        if nt == 0 or n == lo: ops.append(("s", lambda i=i, nt=nt: a(f"s_lshl_b32 s{sx}, s{sLC+i}, 10\ns_add_u32 s{sx}, s{sx}, {WS_M + nt*20480}")))
        else: ops.append(("s", lambda: a(f"s_add_u32 s{sx}, s{sx}, 20480")))
        ops.append(("d", lambda n=n: a.vmem(f"buffer_load_dwordx4 {MH[n]}, v{vb}, {srd(SWS)}, s{sx} offen sc1", "M")))
    return ops
NWF = 25 - E2('NW', 0)
def wf_base(vb):
    a(f"s_mul_i32 s{sT0}, s{sCT}, 102400\nv_lshl_add_u32 v{vb}, v{vLANE}, 4, s{sT0}")

def warm_c(ptr, vt):
    def f():
        a(f"""s_mov_b32 s{SW}, s{ptr}
s_and_b32 s{SW+1}, s{ptr+1}, 0xffff
s_lshr_b32 s{sM0}, s2, 3
s_and_b32 s{sM0}, s{sM0}, 15
s_lshl_b32 s{sM0}, s{sM0}, 2
s_add_u32 s{sM0}, s{sM0}, s{sWV}
s_mul_i32 s{sM0}, s{sM0}, 12800
v_lshlrev_b32 v{vt}, 7, v{vLANE}""")
        a.vmem(f"buffer_load_dword v{vt+1}, v{vt}, {srd(SW)}, s{sM0} offen", "warm")
        a(f"s_add_u32 s{sM0}, s{sM0}, 8192\ns_mov_b32 exec_hi, 15")
        a.vmem(f"buffer_load_dword v{vt+1}, v{vt}, {srd(SW)}, s{sM0} offen", "warm")
        a("s_mov_b32 exec_hi, -1")
    return f

def c_touch(slot, vt):
    dma_c(slot, sXB, 0)[0][1]()
    a(f"""s_mul_i32 s{sM1}, s{sCT}, {80*1280}
s_add_u32 s{sM0}, s{sM0}, s{sM1}
v_mul_u32_u24 v{vt}, 1280, v{vLANE}""")
    a.vmem(f"buffer_load_dword v{vt+1}, v{vt}, {srd(SW)}, s{sM0} offen", "warm")
    a(f"s_add_u32 s{sM0}, s{sM0}, {64*1280}\ns_mov_b64 exec, 0xffff")
    a.vmem(f"buffer_load_dword v{vt+1}, v{vt}, {srd(SW)}, s{sM0} offen", "warm")
    a("s_mov_b64 exec, -1")

def flag_touch(base, vd):
    a(f"""s_lshl_b32 s{sT0}, s{sJ}, 4
s_add_u32 s{sT0}, s{sT0}, s{sR}
s_mul_i32 s{sT0}, s{sT0}, {FS}
s_add_u32 s{sT0}, s{sT0}, {base}
s_mov_b64 exec, 1""")
    a.vmem(f"buffer_load_dword v{vd}, v{vLANE}, {srd(SWS)}, s{sT0} offen", "pt")
    a("s_mov_b64 exec, -1")

def type_A():
    bg = BG()
    AK, AG = ACC, ACC + 80
    RING = [116 + 4*i for i in range(8)]
    sZB, sKVB, sGA, sMa, sMb, sMc, sMd, sGB = 34, 35, 36, 37, 38, 39, 40, 41
    sMK = 60
    sGW = 46
    a(f"""s_lshr_b32 s{sT2}, s{sWV}, 1
s_add_u32 s{sT2}, s{sT2}, 1
s_mul_i32 s{sT2}, s{sT2}, 1280
s_mul_i32 s{sT3}, s{sJ}, 160
s_add_u32 s{sT2}, s{sT2}, s{sT3}
s_and_b32 s{sT3}, s{sWV}, 1
s_mul_i32 s{sT3}, s{sT3}, {32*3840}
s_add_u32 s{sT2}, s{sT2}, s{sT3}
s_mul_i32 s{sKQ}, s{sKA}, 1920
s_mul_i32 s{sKQ+1}, s{sKA+1}, 1920""")
    wq_pattern(vW, sT2)
    args_ready()
    a(f"s_mov_b32 s{SQ}, s{pQKV}\ns_and_b32 s{SQ+1}, s{pQKV+1}, 0xffff")
    def stage_dma(s):
        if s >= 10: return None
        return dma_x(s) + dma_w(s, vW, SQ, sKQ + s)
    run_ops(stage_dma(0))
    mk_srd(SW, pGW, 1280)
    a(f"""s_and_b32 s{sT2}, s{sWV}, 1
s_lshl_b32 s{sT2}, s{sT2}, 10
v_lshlrev_b32 v64, 4, v{vLANE}""")
    set_m0(sT2, L_GW)
    a.vmem(f"buffer_load_dwordx4 v64, {srd(SW)}, s{sT2} offen lds", ("st", 0))
    late_setup()
    kq_tables()
    vXM = vQ + 1
    a(f"""v_lshlrev_b32 v61, 3, v60
v_add_u32 v62, v58, v61
v_add_u32 v63, v59, v61
v_add_u32 v{vWR}, {L_W}, v62
v_add_u32 v{vWR+1}, {L_W}, v63
v_add_u32 v{vWR+2}, {L_W+40960}, v62
v_add_u32 v{vWR+3}, {L_W+40960}, v63
v_lshrrev_b32 v{vQ}, 4, v{vLANE}
v_lshlrev_b32 v{vQ}, 4, v{vQ}
v_add_u32 v{vQ}, {L_GW}, v{vQ}
s_and_b32 s{sT2}, s{sJ}, 1
s_lshl_b32 s{sT2}, s{sT2}, 11
s_xor_b32 s{sT3}, s{sT2}, 2048
v_add_u32 v{vXM}, s{sT2}, v{vXR}
v_add_u32 v{vXM+1}, s{sT2}, v{vXR+1}
v_add_u32 v{vXM+2}, s{sT3}, v{vXR}
v_add_u32 v{vXM+3}, s{sT3}, v{vXR+1}""")
    mk_srd(SW, pWO, 640*1280)
    a(f"""s_and_b32 s{sT1}, s{sR}, 1
s_mul_i32 s{sT2}, s{sT1}, 40
s_mul_i32 s{sT3}, s{sJ}, 80
s_add_u32 s{sT2}, s{sT2}, s{sT3}
s_mul_i32 s{sT2}, s{sT2}, 1280
s_lshr_b32 s{sT3}, s{sR}, 1
s_mul_i32 s{sT3}, s{sT3}, 160
s_add_u32 s{sT2}, s{sT2}, s{sT3}
s_mov_b32 s{sM0}, s{sT2}
s_lshl_b32 s{sM1}, s{sWV}, 10
v_mov_b32 v211, {OOB}""")
    for n in range(2):
        a(f"""v_add_u32 v65, {256*n}, v0
v_mul_u32_u24 v66, 6554, v65
v_lshrrev_b32 v66, 16, v66
v_mul_u32_u24 v67, 10, v66
v_sub_u32 v67, v65, v67
v_mul_u32_u24 v66, 1280, v66
v_lshl_add_u32 v66, v67, 4, v66
v_cmp_gt_u32 vcc, 400, v65
v_cndmask_b32 v{72+n}, v211, v66, vcc""")
    def wo_dma():
        for n in range(2):
            set_m0(sM1, L_WO + 4096*n)
            if n == 1:
                a(f"s_cmp_eq_u32 s{sWV}, 3\ns_cbranch_scc1 LskipWo")
                a.vmem(f"buffer_load_dwordx4 v73, {srd(SW)}, s{sM0} offen lds", ("st", 0), certain=False)
                a("LskipWo:")
            else:
                a.vmem(f"buffer_load_dwordx4 v72, {srd(SW)}, s{sM0} offen lds", ("st", 0))
    wo_dma()
    vGS, vZ1, vZ2, vK1, vK2, vK3, vK4 = 212, 213, 214, 215, 216, 217, 218
    vXW, vR0, vR1, vKP, vKB = 219, 220, 221, 222, 223
    vOa0, vOa1, vOb0, vOb1, vOc0, vOc1 = 224, 225, 226, 227, 228, 229
    vWo = 230
    vMS, vMR, vONE, vTG = 234, 235, 236, 237
    ZR = L_KVB + 2560
    def precompute():
        a(f"""v_and_b32 v208, 15, v{vLANE}
v_lshrrev_b32 v209, 4, v{vLANE}
v_lshrrev_b32 v210, 2, v208
v_lshlrev_b32 v{vGS}, 4, v209
v_lshl_add_u32 v{vGS}, v208, 6, v{vGS}
v_cmp_gt_u32 vcc, 2, v208
v_cndmask_b32 v{vGS}, v211, v{vGS}, vcc
s_lshl_b32 s{sGB}, s{sR}, 3
s_add_u32 s{sGB}, s{sGB}, s{sJ}
s_lshl_b32 s{sGB}, s{sGB}, 7
s_add_u32 s{sGB}, s{sGB}, {WS_G}
v_cmp_eq_u32 {sp(sMK)}, s{sWV}, v210
v_cmp_eq_u32 {sp(sT4)}, s{sWV}, v209
s_add_u32 s{sT2}, s{sWV}, 1
s_and_b32 s{sT2}, s{sT2}, 3
s_lshl_b32 s{sT2}, s{sT2}, 2
v_and_b32 v240, 3, v208
v_add_u32 v241, 16, v240
v_lshlrev_b32 v241, 4, v241
v_cndmask_b32 v241, v211, v241, {sp(sMK)}
v_mov_b32 v243, 320
v_cmp_eq_u32 vcc, s{sT2}, v208
v_cndmask_b32 v241, v241, v243, vcc
v_mul_u32_u24 v242, 336, v209
v_lshl_add_u32 v{vK1}, v208, 4, v242
v_lshlrev_b32 v{vK2}, 4, v208
v_cndmask_b32 v{vK2}, v211, v{vK2}, {sp(sT4)}
v_add_u32 v{vK3}, v241, v242
v_cndmask_b32 v{vK4}, v211, v241, {sp(sT4)}
s_lshl_b32 s{sT2}, s{sJ}, 4
s_add_u32 s{sT2}, s{sT2}, s{sR}
s_lshl_b32 s{sZB}, s{sT2}, 9
s_add_u32 s{sZB}, s{sZB}, {WS_KVR}
s_mul_i32 s{sKVB}, s{sT2}, 6720
s_mul_i32 s{sT3}, s{sWV}, 1680
s_add_u32 s{sKVB}, s{sKVB}, s{sT3}
s_add_u32 s{sKVB}, s{sKVB}, {WS_KVP}
v_lshlrev_b32 v{vR0}, 4, v{vLANE}
v_add_u32 v{vXW}, s{sXB}, v{vR0}
s_lshl_b32 s{sT2}, s{sWV}, 10
v_add_u32 v{vR1}, s{sT2}, v{vR0}
s_mul_i32 s{sT2}, s{sR}, 27
v_and_b32 v242, 31, v{vLANE}
v_min_u32 v242, 26, v242
v_add_u32 v242, s{sT2}, v242
v_min_u32 v242, 419, v242
v_lshrrev_b32 v243, 5, v{vLANE}
v_mul_u32_u24 v243, {8*6720}, v243
v_lshl_add_u32 v{vKP}, v242, 4, v243
s_mul_i32 s{sGA}, s{sJ}, {16*6720}
s_add_u32 s{sGA}, s{sGA}, {WS_KVP}
s_and_b32 s{sT1}, s{sR}, 1""")
        a(f"""v_and_b32 v242, 1, v209
v_mul_u32_u24 v242, 20, v242
v_add_u32 v242, v242, v210
v_mul_u32_u24 v243, 160, v242
v_lshl_add_u32 v243, v240, 3, v243
v_add_u32 v{vWo+3}, {L_WO + 16*160}, v243
v_lshrrev_b32 v242, 1, v209
v_mul_u32_u24 v242, {8*160}, v242
v_add_u32 v243, v243, v242
v_add_u32 v{vWo+2}, {L_WO}, v243
s_lshl_b32 s{sT2}, s{sWV}, 5
v_add_u32 v{vWo}, s{sT2}, v{vWo+2}
v_add_u32 v{vWo+1}, s{sT2}, v{vWo+3}""")
        a(f"""v_and_b32 v242, 1, v209
v_lshrrev_b32 v243, 1, v209
v_lshl_add_u32 v242, v243, 2, v242
v_lshlrev_b32 v242, 8, v242
v_lshl_add_u32 v{vMS}, v208, 4, v242
v_mul_u32_u24 v243, {4*20480}, v209
v_lshl_add_u32 v243, v208, 4, v243
s_cmp_eq_u32 s{sWV}, 0
s_cselect_b32 s{sT0}, 2, 1
v_cmp_gt_u32 vcc, s{sT0}, v209
v_cndmask_b32 v{vMR}, v211, v243, vcc
s_lshr_b32 s{sT0}, s{sR}, 1
s_mul_i32 s{sT0}, s{sT0}, {5*20480}
s_mul_i32 s{sT2}, s{sJ}, 2560
s_add_u32 s{sT0}, s{sT0}, s{sT2}
s_add_u32 s{sT0}, s{sT0}, {WS_M}
s_lshl_b32 s{sT2}, s{sT1}, 9
s_add_u32 s{sT2}, s{sT2}, s{sT0}
s_lshl_b32 s{sT3}, s{sT1}, 8
s_add_u32 s{sT3}, s{sT3}, s{sT0}
s_mul_i32 s{sT0}, s{sWV}, 20480
s_add_u32 s{sMa}, s{sT2}, s{sT0}
s_add_u32 s{sMb}, s{sT3}, s{sT0}
s_add_u32 s{sT2}, s{sT2}, {4*20480}
s_add_u32 s{sT3}, s{sT3}, {4*20480}
s_cmp_eq_u32 s{sWV}, 0
s_cselect_b32 s{sMc}, s{sT2}, {OOB}
s_cselect_b32 s{sMd}, s{sT3}, {OOB}
v_mov_b32 v{vONE}, 0x3f803f80""")
    vFBa, vFMa, vWF = 223, 224, 225
    pieces = [precompute, lambda: (skip_setup(238, 56, 57), k2_flags(240, vFBa, vFMa), wf_base(vWF)), lc_tables]
    nin = E2("INA", 3)
    for f in pieces[:nin]: f()
    spareA = capture(lambda: [f() for f in pieces[nin:]])
    stamp(34)
    if E2("IW", 0):
        a(f"""Lladder:
s_mov_b64 exec, 0
s_mov_b32 s{sT0}, s{sWV}
Lwret:
s_mov_b32 s{sT1}, s{sT0}
s_add_u32 s{sT0}, s{sT0}, 4
;LADDER
s_mov_b64 exec, -1
s_cmp_eq_u32 s100, 1
s_cbranch_scc1 LB_cont
s_branch LA_cont
.p2align 12
LA_cont:""")
    run_ops(stage_dma(1))
    def wf_read():
        for ts in range(2):
            o = 128 if ts else 0
            for hh in range(2):
                a.lds(f"ds_read_b64_tr_b16 {v2(196 + 4*ts + 2*hh)}, v{vWo + 2*ts} offset:{o + hh*640}", "wof")
            a.lds(f"ds_read_b64_tr_b16 {v2(204 + 2*ts)}, v{vWo + 2*ts + 1} offset:{o}", "wof")
    def wf_store():
        a.wait(lg="wof")
        a("v_permlane16_swap_b32 v204, v206\nv_permlane16_swap_b32 v205, v207")
        a.vmem(f"buffer_store_dwordx4 v[196:199], v{vMS}, {srd(SWS)}, s{sMa} offen sc1", "mst")
        a.vmem(f"buffer_store_dwordx4 v[200:203], v{vMS}, {srd(SWS)}, s{sMc} offen sc1", "mst")
        a.vmem(f"buffer_store_dwordx4 v[204:207], v{vMR}, {srd(SWS)}, s{sMb} offen offset:2048 sc1", "mst")
    def wf_flag():
        assert a._cnt(a.vm, "mst") is None
        set_flag(FM, "LA_nf2", 150, wave=3, atomic=False)
    tag_ready()
    a(f"""s_and_b32 s{sT2}, s{sTAG}, 0xff
v_mov_b32 v{vTG}, s{sT2}
s_lshr_b32 s{sT2}, s{sJ}, 1
s_sub_u32 s{sGW}, s{sT2}, s{sWV}""")
    stamp(0)
    XA = lambda s, ks, m: (s % 2) * 16 + ks * 8 + m * 4 + 56
    def x_reads(s):
        def mk(ks):
            return [(lambda m=m: a.lds(f"ds_read_b128 {a4(XA(s, ks, m))}, v{vXM+2*m+ks} offset:{(s%4)*4096}", ("x", s, ks))) for m in range(2)]
        return {0: mk(0), 11: mk(1)}
    def read_frag(s, i, reg):
        ks, t = divmod(i, 11)
        sl = s % 4
        if t == 10:
            def g():
                if ks == 0: a(f"v_add_u32 v148, s{sKA+s}, v{vQ}")
                a.lds(f"ds_read_b128 {v4(reg)}, v148 offset:{ks*64}", ("w", s, i))
            return [g]
        seg, T = divmod(t, 5)
        off = (sl % 2) * 20480 + seg * 10240 + ks * 5120
        out = []
        for hh in range(2):
            if T < 4: va, o = vWR + (sl // 2) * 2 + hh, off + 40 * T
            else: va, o = vT40 + (sl // 2) * 2 + hh, off + 32
            out.append(lambda hh=hh, va=va, o=o: a.lds(f"ds_read_b64_tr_b16 {v2(reg + 2*hh)}, v{va} offset:{o}", ("w", s, i)))
        return out
    def mfmas(s, i, reg):
        ks, t = divmod(i, 11)
        first = (s == 0 and ks == 0)
        if t == 10:
            def g():
                L = a.label("Lng")
                a(f"s_cmp_lg_u32 s{sGW}, 0\ns_cbranch_scc1 {L}")
                mfma(v4(AG), a4(XA(s, ks, 0)), v4(reg), "0" if first else v4(AG))
                a(f"{L}:")
            return [g]
        out = []
        for m in range(2):
            d = ACC + t * 8 + m * 4
            c = "0" if first else v4(d)
            out.append(lambda d=d, m=m, c=c: mfma(v4(d), a4(XA(s, ks, m)), v4(reg), c))
        return out
    WS0 = E2("WFS", 0)
    hooksA = {(WS0, 0): wf_read, (WS0, E2('WFD', 3)): wf_store, (WS0 + 3, 0): wf_flag,
              (8, 0): lambda: bg.add(skip_loads(238, 56, 57, sXB, 10240) + [('d', code_touch(149)), ('d', lambda: fl_issue(vFMa, 151, '0xffff', 'pfm'))]),
              (8, 18): lambda: bg.add(dma_c(3, sCW, AR1))}
    gemm_loop(10, 22, read_frag, mfmas, x_reads, stage_dma, bg, RING, 7, hooksA, spare=spareA, spare_end=8*22)
    stamp(1)
    fl_check(vFMa, 151, "0xffff", "pfm")
    bg.add(wf_loads(vWF, sT5, 0, E2("AW", 0)))
    a(f"s_mov_b32 s{sT2}, {LOG2E}\ns_movk_i32 s{sT3}, 0xff")
    T = 196
    def pack(t):
        dst = ACC + t*8
        for q in range(4):
            a(f"v_cvt_pk_bf16_f32 v{dst+q}, v{ACC + t*8 + 2*q}, v{ACC + t*8 + 2*q + 1}")
        a.lds(f"ds_write_b128 v{vXW}, {v4(dst)} offset:{t*1024}", "kvx")
    for t in range(5):
        phi([AK + 8*t + 2*n for n in range(2)], sT2, T)
        pack(5 + t)
        phi([AK + 8*t + 2*n for n in range(2, 4)], sT2, T)
        pack(t)
        bg.tick(E2("APT", 2))
    stamp(38)
    a.wait(lg="all")
    a("s_barrier")
    stamp(39)
    F0 = 32
    bg.add(dma_c(4, sCW, AR2))
    for w in range(4):
        b = F0 + w * 16
        a.lds(f"ds_read_b128 {v4(b+12)}, v{vR0} offset:{w*16384 + 9216}", ("kr", w))
        a.lds(f"ds_read_b128 {v4(b)}, v{vR1} offset:{w*16384}", ("kr", w))
        a.lds(f"ds_read_b128 {v4(b+4)}, v{vR0} offset:{w*16384 + 4096}", ("kr", w))
        a.lds(f"ds_read_b128 {v4(b+8)}, v{vR1} offset:{w*16384 + 5120}", ("kr", w))
    P = 96
    bg.tick(E2("AE", 4))
    for w in range(4):
        b = F0 + w * 16
        if w and E2("AE", 4): bg.tick(1)
        a.wait(lg=[("kr", w)])
        for q in range(4): a(f"v_cndmask_b32 v{b+12+q}, v{vONE}, v{b+12+q}, {sp(sMK)}")
        c = lambda n: "0" if w == 0 else v4(P + 4*n)
        mfma(v4(P), v4(b), v4(b+8), c(0))
        mfma(v4(P+4), v4(b+4), v4(b+8), c(1))
        mfma(v4(P+8), v4(b), v4(b+12), c(2))
        mfma(v4(P+12), v4(b+4), v4(b+12), c(3))
    for n in range(4):
        for q in (0, 2):
            a(f"v_bfi_b32 v{P+4*n+q}, s{sT3}, v{vTG}, v{P+4*n+q}")
    a.vmem(f"buffer_store_dwordx4 {v4(P)}, v{vK1}, {srd(SWS)}, s{sKVB} offen sc1", "kvst")
    a.vmem(f"buffer_store_dwordx4 {v4(P+4)}, v{vK2}, {srd(SWS)}, s{sKVB} offen offset:1344 sc1", "kvst")
    a.vmem(f"buffer_store_dwordx4 {v4(P+8)}, v{vK3}, {srd(SWS)}, s{sKVB} offen sc1", "kvst")
    a.vmem(f"buffer_store_dwordx4 {v4(P+12)}, v{vK4}, {srd(SWS)}, s{sKVB} offen offset:1344 sc1", "kvst")
    stamp(2)
    bg.flush()
    a.wait(vm=[("c", 3)])
    run_ops(c_reads(3, vCR, AR1))
    run_ops(skip_reads(T, sXB, 10240, SKH))
    a.wait(lg=[("cr", 3)])
    bg.add(dma_c(0, sCW, AR1))
    a(f"s_cmp_lg_u32 s{sGW}, 0\ns_cbranch_scc1 LA_ng")
    for q in range(2):
        r = AG + 2*q
        a(f"""v_cvt_pk_bf16_f32 v{T+1}, v{r}, v{r+1}
v_lshlrev_b32 v{r}, 16, v{T+1}
v_and_b32 v{r+1}, 0xffff0000, v{T+1}
v_mul_f32 v{r}, 0xbfb8aa3b, v{r}
v_mul_f32 v{r+1}, 0xbfb8aa3b, v{r+1}
v_exp_f32 v{r}, v{r}
v_exp_f32 v{r+1}, v{r+1}
s_nop 0
v_add_f32 v{r}, 1.0, v{r}
v_add_f32 v{r+1}, 1.0, v{r+1}
v_rcp_f32 v{r}, v{r}
v_rcp_f32 v{r+1}, v{r+1}
s_nop 0
v_cvt_pk_bf16_f32 v{T+1}, v{r}, v{r+1}
v_lshl_or_b32 v{r}, v{T+1}, 16, v{vTG}
v_and_b32 v{r+1}, 0xffff0000, v{T+1}
v_or_b32 v{r+1}, v{r+1}, v{vTG}""")
    a.vmem(f"buffer_store_dwordx4 {v4(AG)}, v{vGS}, {srd(SWS)}, s{sGB} offen sc1", "gst", certain=False)
    a("LA_ng:")
    bg.tick(3)
    a(f"v_mov_b32 v{K_vFB}, v{vFBa}\nv_mov_b32 v{K_vFM}, v{vFMa}\ns_barrier")
    k2_mt()
    k2_min(vR0)
    bg.flush()
    stamp(37)
    a(f"s_cmp_lg_u32 s{sWV}, 0\ns_cbranch_scc1 LA_ge\ns_mov_b32 s{sSPIN}, 0\nLA_gr:\ns_mov_b32 s{sT0}, s{sGA}")
    for n in range(8):
        a(f"buffer_load_dwordx4 {v4(32 + 4*n)}, v{vKP}, {srd(SWS)}, s{sT0} offen sc1")
        if n < 7: a(f"s_add_u32 s{sT0}, s{sT0}, 6720")
    a(f"s_waitcnt vmcnt(0)\nv_xor_b32 v32, v32, v{vTG}\nv_xor_b32 v34, v34, v{vTG}\nv_or_b32 v{T}, v32, v34")
    for n in range(1, 8):
        a(f"""v_xor_b32 v{32+4*n}, v{32+4*n}, v{vTG}
v_xor_b32 v{34+4*n}, v{34+4*n}, v{vTG}
v_pk_add_f32 v[32:33], v[32:33], {v2(32+4*n)}
v_or3_b32 v{T}, v{T}, v{32+4*n}, v{34+4*n}
v_pk_add_f32 v[34:35], v[34:35], {v2(34+4*n)}""")
    a(f"""v_and_b32 v{T}, 0xff, v{T}
v_cmp_ne_u32 vcc, 0, v{T}
s_add_u32 s{sSPIN}, s{sSPIN}, 1
s_cmp_gt_u32 s{sSPIN}, 0x20000
s_cbranch_scc1 LA_gd
s_cbranch_vccnz LA_gr
LA_gd:
{'v_writelane_b32 v254, s96, 40' if STAMPS else ''}
v_mov_b64 v[36:37], v[32:33]
v_mov_b64 v[38:39], v[34:35]""")
    for q in range(4): a(f"v_permlane32_swap_b32 v{32+q}, v{36+q}")
    a(f"""v_pk_add_f32 v[32:33], v[32:33], v[36:37]
v_pk_add_f32 v[34:35], v[34:35], v[38:39]
v_cvt_pk_bf16_f32 v36, v32, v33
v_cvt_pk_bf16_f32 v37, v34, v35
v_lshl_or_b32 v32, v36, 16, v{vTG}
v_and_b32 v33, 0xffff0000, v36
v_lshl_or_b32 v34, v37, 16, v{vTG}
v_and_b32 v35, 0xffff0000, v37
s_mov_b32 exec_hi, 0""")
    a.vmem(f"buffer_store_dwordx4 v[32:35], v{vR0}, {srd(SWS)}, s{sZB} offen sc1", "rst", certain=False)
    a("s_mov_b32 exec_hi, -1\nLA_ge:")
    stamp(3)
    run_ops(dma_c(2, sXB, 0))
    a.wait(vm=[("c", 4)])
    run_ops(c_reads(4, vCR, AR2))
    a.wait(lg="all")
    run_ops(dma_c(1, sCW, AR2))
    a.wait(vm=[("c", 0)])
    run_ops(c_reads(0, vCR, AR1))
    run_ops(wf_loads(vWF, sT5, E2("AW", 0), E2("AWE", 25)))
    a(f"v_mov_b32 v{K_vM}, v{vWF}")
    a.wait(vm=[("c", 1)], lg="all")
    run_ops(c_reads(1, vCR, AR2))
    stamp(4)
    poll_issue(K_vFM, K_vTmp, "0xff00000", "p2")
    a.wait(vm="p2")
    a("s_branch LK2")

OUTLINE = []
def type_B():
    if E2("PADB", 10) >= 0: a(f".p2align 12\n.fill {E2('PADB', 10)*64}, 4, 0xbf800000")
    CUR[0] = 'B'
    a("LtypeB:\ns_mov_b32 s100, 1")
    M0[0] = None
    a.vm = []; a.lg = []
    bg = BG()
    U = ACC; Q = ACC + 80
    RING = [152 + 4*i for i in range(6)]
    LAM = 176
    XR = 216
    COEF = 216
    L8, L128 = 250, 248
    T = 176
    sSa, sSb, sSc, sSd = 54, 55, 56, 57
    sSS, sKX, sKD, sC1, sC2, sT8 = 60, 61, 40, 41, 46, 47
    SXR = 36
    sVAL = 34
    a(f"""s_and_b32 s{sT2}, s{sWV}, 1
s_mul_i32 s{sT3}, s{sT2}, 40
s_mul_i32 s{sT4}, s{sJ}, 80
s_add_u32 s{sT3}, s{sT3}, s{sT4}
s_mul_i32 s{sT3}, s{sT3}, 1280
s_lshl_b32 s{sT4}, s{sT2}, 6
v_xor_b32 v64, s{sT4}, v45
v_xor_b32 v65, s{sT4}, v46
v_add_u32 v{vW}, s{sT3}, v64
v_add_u32 v65, s{sT3}, v65
v_add_u32 v{vW+1}, {10240-1024}, v65
v_add_u32 v{vW+2}, {2*(10240-1024)}, v{vW}
v_add_u32 v{vW+3}, {3*(10240-1024)}, v65
v_add_u32 v{vW+4}, {4*10240}, v{vW}
s_mul_i32 s{sT4}, s{sJ}, 160
v_min_u32 v66, 79, v0
v_lshl_add_u32 v66, v66, 1, s{sT4}
v_mov_b32 v{T}, 0
v_mov_b32 v{T+1}, 0
v_mov_b32 v{T+2}, 0
s_mul_i32 s{sKQ}, s{sKA}, 1920
s_mul_i32 s{sKQ+1}, s{sKA+1}, 1920
s_mul_i32 s{sT5}, s{sT2}, {32*3840}
s_add_u32 s{sT5}, s{sT5}, s{sT4}""")
    args_ready()
    a(f"""s_cmp_ge_u32 s{sWV}, 2
s_cselect_b32 s{SW}, s{pBIM}, s{pBRE}
s_cselect_b32 s{SW+1}, s{pBIM+1}, s{pBRE+1}
s_and_b32 s{SW+1}, s{SW+1}, 0xffff""")
    def stage_dma(s):
        if s < 10: return dma_x(s) + dma_w(s, vW, SW, sKA + s)
        if s < 15: return dma_w(s, vQ, SQ, sKQ + (s - 10))
        return None
    a.vmem(f"global_load_short_d16_hi v{T}, v66, {sp(pLRE)}", "par")
    a.vmem(f"global_load_short_d16_hi v{T+1}, v66, {sp(pLIM)}", "par")
    a.vmem(f"global_load_short_d16_hi v{T+2}, v66, {sp(pLDT)}", "par")
    run_ops(stage_dma(0))
    a(f"s_mov_b32 s{SQ}, s{pQKV}\ns_and_b32 s{SQ+1}, s{pQKV+1}, 0xffff")
    late_setup()
    def q_setup():
        wq_pattern(vQ, sT5, T+8)
        kq_tables()
        a(f"s_cmp_ge_u32 s{sWV}, 2")
        for q in range(5): a(f"s_cselect_b32 s{sKQ+q}, s{sKQ+2*q+1}, s{sKQ+2*q}")
    a(f"""v_add_u32 v{vWR}, {L_W}, v56
v_add_u32 v{vWR+1}, {L_W}, v57
v_add_u32 v{vWR+2}, {L_W+40960}, v56
v_add_u32 v{vWR+3}, {L_W+40960}, v57""")
    aTW, aTR0, aTR1, aST, aEA, aPT, aSA, aXA, aK0, aHR, aZR, aLT, aSX, aFB, aFM, aK1 = range(240, 256)
    def params():
        a.wait(vm="par")
        stamp(34)
        bg.tick(E2("PK0", 2))
        P = T + 4
        t0, t1, t2, t3 = T+16, T+17, T+18, T+19
        C = P + 8
        a(f"""v_mul_f32 v{T+2}, {LOG2E}, v{T+2}
v_exp_f32 v{T+2}, v{T+2}
s_nop 0
v_cvt_pk_bf16_f32 v{T+2}, v{T+2}, v{T+2}
v_lshlrev_b32 v{T+2}, 16, v{T+2}
v_mul_f32 v{t0}, v{T+2}, v{T}
v_mul_f32 v{t1}, v{T+2}, v{T+1}
v_mul_f32 v{t0}, {LOG2E}, v{t0}
v_mul_f32 v{t1}, 0.15915494, v{t1}
v_exp_f32 v{t0}, v{t0}
v_fract_f32 v{t1}, v{t1}
v_cos_f32 v{t2}, v{t1}
v_sin_f32 v{t3}, v{t1}
s_nop 0
v_mul_f32 v{P}, v{t0}, v{t2}
v_mul_f32 v{t3}, v{t0}, v{t3}
v_sub_f32 v{P+1}, 0, v{t3}
v_add_f32 v{t0}, -1.0, v{P}
v_mul_f32 v{t1}, v{T}, v{T}
v_fma_f32 v{t1}, v{T+1}, v{T+1}, v{t1}
v_rcp_f32 v{t1}, v{t1}
v_mul_f32 v{C}, v{t0}, v{T}
v_fma_f32 v{C}, v{t3}, v{T+1}, v{C}
v_mul_f32 v{C+1}, v{t3}, v{T}
v_fma_f32 v{C+1}, -v{t0}, v{T+1}, v{C+1}
v_add_f32 v{t1}, v{t1}, v{t1}
v_mul_f32 v{C}, v{C}, v{t1}
v_mul_f32 v{C+1}, v{C+1}, v{t1}""")
        def cmul(d, l, p):
            a(f"""v_pk_mul_f32 {v2(d)}, {v2(p)}, {v2(l)} op_sel_hi:[1,0]
v_pk_fma_f32 {v2(d)}, {v2(p)}, {v2(l)}, {v2(d)} op_sel:[1,1,0] op_sel_hi:[0,1,1] neg_lo:[0,1,0]""")
        bg.tick(E2("PK1", 0))
        cmul(P+2, P, P); cmul(P+4, P+2, P); cmul(P+6, P+2, P+2); cmul(L8, P+6, P+6)
        bg.tick(E2("PK2", 0))
        a(f"""v_mul_u32_u24 v{t0}, 48, v0
v_add_u32 v{t0}, {L_PT}, v{t0}
v_lshlrev_b32 v{t1}, 3, v0
v_add_u32 v{t1}, {L_LT}, v{t1}
v_mov_b32 v{T+20}, 1.0
v_mov_b32 v{T+21}, 0
v_cmp_gt_u32 vcc, 80, v0
s_and_saveexec_b64 {sp(sT2)}, vcc
s_cbranch_execz LB_nopar""")
        a(f"""v_lshlrev_b32 v{t2}, 3, v0
v_mov_b32 v{T+26}, s{sT8}
v_mov_b32 v{T+27}, s{sT8}
s_mul_i32 s{sT4}, s{sR}, 1280
s_add_u32 s{sT4}, s{sT4}, s{sSS}""")
        a.vmem(f"buffer_store_dwordx2 {v2(T+26)}, v{t2}, {srd(SWS)}, s{sT4} offen offset:640 sc1", "dst", certain=False)
        a(f"""v_mov_b64 {v2(P+10)}, 0
v_mov_b64 {v2(T+28)}, 0
v_mov_b64 {v2(T+30)}, 0
v_lshlrev_b32 v{t3}, 4, v0
v_add_u32 v{t3}, {L_PT + 3840}, v{t3}""")
        a.lds(f"ds_write_b128 v{t3}, {v4(T+28)}", "pt", certain=False)
        for q in range(3): a.lds(f"ds_write_b128 v{t0}, {v4(P+4*q)} offset:{16*q}", "pt", certain=False)
        a.lds(f"ds_write_b64 v{t1}, {v2(T+20)}", "pt", certain=False)
        a.lds(f"ds_write_b64 v{t1}, {v2(L8)} offset:640", "pt", certain=False)
        prev = L8
        for s in range(2, 17):
            d = (T + 22 + 2*(s % 2)) if s < 16 else L128
            cmul(d, L8, prev)
            if s < 16: a.lds(f"ds_write_b64 v{t1}, {v2(d)} offset:{s*640}", "pt", certain=False)
            prev = d
        a(f"""LB_nopar:
s_mov_b64 exec, {sp(sT2)}""")
    def stash():
        t0, t1 = T+16, T+17
        t2, t3 = T+18, T+19
        for n, ak in ((0, aK0), (1, aK1)):
            a(f"""v_lshrrev_b32 v{t0}, 5, v0
v_mul_u32_u24 v{t0}, 27, v{t0}
v_and_b32 v{t1}, 31, v0
v_add3_u32 v{t0}, v{t0}, v{t1}, 0
v_add_u32 v{t0}, {216*n}, v{t0}
v_cmp_gt_u32 {sp(sVAL)}, 27, v{t1}
v_cmp_gt_u32 vcc, 420, v{t0}
s_and_b64 vcc, vcc, {sp(sVAL)}
v_mul_u32_u24 v{t1}, 3121, v{t0}
v_lshrrev_b32 v{t1}, 16, v{t1}
v_mul_u32_u24 v{t2}, 21, v{t1}
v_sub_u32 v{t0}, v{t0}, v{t2}
v_mul_u32_u24 v{t2}, 13108, v{t1}
v_lshrrev_b32 v{t2}, 16, v{t2}
v_mul_u32_u24 v{t3}, 5, v{t2}
v_sub_u32 v{t1}, v{t1}, v{t3}
v_mul_u32_u24 v{t2}, 21, v{t2}
v_add_u32 v{t0}, v{t0}, v{t2}
v_mul_u32_u24 v{t0}, 48, v{t0}
v_lshl_add_u32 v{t0}, v{t1}, 3, v{t0}
v_add_u32 v{t0}, {L_KT}, v{t0}
v_mov_b32 v{t1}, {L_HB}
v_cndmask_b32 v{t0}, v{t1}, v{t0}, vcc
v_accvgpr_write_b32 a{ak}, v{t0}""")
        a(f"""s_add_u32 s{sT2}, s{sSS}, 640
s_add_u32 s{SXR}, s{pWS}, s{sT2}
s_addc_u32 s{SXR+1}, s{pWS+1}, 0
s_and_b32 s{SXR+1}, s{SXR+1}, 0xffff
s_movk_i32 s{SXR+2}, {16*640}
s_mov_b32 s{SXR+3}, 0x20000
s_movk_i32 s{sC1}, 3840
s_movk_i32 s{sC2}, 7680
s_movk_i32 s{sT2}, 80
v_cmp_gt_u32 {sp(sVAL)}, s{sT2}, v0
v_lshlrev_b32 v{t0}, 3, v0
v_mov_b32 v{t1}, {OOB}
v_cndmask_b32 v{t0}, v{t1}, v{t0}, {sp(sVAL)}
v_accvgpr_write_b32 a{aXA}, v{t0}
v_min_u32 v{t0}, 79, v0
v_lshlrev_b32 v{t0}, 3, v{t0}
v_add_u32 v{t0}, {L_EB}, v{t0}
v_accvgpr_write_b32 a{aSA}, v{t0}""")
        c_, g_, u0, u1, u2, u3 = T+8, T+9, T+10, T+11, T+12, T+13
        a(f"""v_and_b32 v{c_}, 15, v{vLANE}
v_lshrrev_b32 v{g_}, 4, v{vLANE}
v_mul_u32_u24 v{u0}, 48, v{c_}
v_add_u32 v{u0}, {L_PT}, v{u0}
v_accvgpr_write_b32 a{aPT}, v{u0}
v_lshrrev_b32 v{u0}, 4, v0
v_mul_u32_u24 v{u0}, 640, v{u0}
v_lshl_add_u32 v{u0}, v{c_}, 3, v{u0}
v_add_u32 v{u0}, {L_LT}, v{u0}
v_accvgpr_write_b32 a{aLT}, v{u0}
v_mul_u32_u24 v{u0}, 640, v{g_}
v_lshl_add_u32 v{u0}, v{c_}, 3, v{u0}
v_add_u32 v{u0}, s{sXB}, v{u0}
v_accvgpr_write_b32 a{aEA}, v{u0}
v_lshlrev_b32 v{u0}, 3, v{c_}
v_add_u32 v{u0}, {L_HB}, v{u0}
v_accvgpr_write_b32 a{aHR}, v{u0}
v_mul_u32_u24 v{u0}, 21, v{g_}
v_and_b32 v{u1}, 3, v{c_}
v_add_u32 v{u0}, v{u0}, v{u1}
v_mul_u32_u24 v{u0}, 48, v{u0}
v_add_u32 v{u0}, {L_KT}, v{u0}
v_mov_b32 v{u2}, {L_ZERO}
v_lshrrev_b32 v{u1}, 2, v{c_}
v_cmp_eq_u32 vcc, v{u1}, v{g_}
v_cndmask_b32 v{u0}, v{u2}, v{u0}, vcc
v_accvgpr_write_b32 a{aZR}, v{u0}
v_bfe_u32 v{u0}, v{c_}, 1, 2
v_xor_b32 v{u0}, v{u0}, v{g_}
v_lshlrev_b32 v{u0}, 4, v{u0}
v_lshl_add_u32 v{u0}, v{c_}, 6, v{u0}
s_add_u32 s{sT2}, s{sXB}, 10240
v_add_u32 v{u0}, s{sT2}, v{u0}
v_accvgpr_write_b32 a{aTW}, v{u0}
v_bfe_u32 v{u0}, v{vLANE}, 2, 2
v_lshrrev_b32 v{u1}, 1, v{g_}
v_lshl_add_u32 v{u2}, v{u1}, 3, v{u0}
v_lshlrev_b32 v{u2}, 6, v{u2}
v_and_b32 v{u3}, 1, v{g_}
v_lshl_add_u32 v{u2}, v{u3}, 3, v{u2}
v_add_u32 v{u2}, s{sT2}, v{u2}
v_lshrrev_b32 v{u0}, 1, v{u0}
v_and_b32 v{g_}, 3, v{vLANE}
v_xor_b32 v{u0}, v{u0}, v{g_}
v_lshl_add_u32 v{g_}, v{u0}, 4, v{u2}
v_accvgpr_write_b32 a{aTR0}, v{g_}
v_xor_b32 v{u0}, 2, v{u0}
v_lshl_add_u32 v{g_}, v{u0}, 4, v{u2}
v_add_u32 v{g_}, 256, v{g_}
v_accvgpr_write_b32 a{aTR1}, v{g_}
v_mul_u32_u24 v{u3}, {RT}, v{u3}
v_lshl_add_u32 v{u3}, v{u1}, 8, v{u3}
v_lshl_add_u32 v{u3}, v{c_}, 4, v{u3}
v_accvgpr_write_b32 a{aST}, v{u3}
s_lshl_b32 s{sT2}, s{sR}, 3
s_lshl_b32 s{sT3}, s{sWV}, 1
s_add_u32 s{sT2}, s{sT2}, s{sT3}
s_mul_i32 s{sT2}, s{sT2}, {RT}
s_mul_i32 s{sT3}, s{sJ}, 2560
s_add_u32 s{sSa}, s{sT2}, s{sT3}
s_add_u32 s{sSb}, s{sSa}, 20480
s_add_u32 s{sSc}, s{sSa}, 40960
s_add_u32 s{sSd}, s{sSc}, {RT}""")
    a(f"""s_lshl_b32 s{sT2}, s{sJ}, 5
s_add_u32 s{sT3}, s{sT2}, 15
s_sub_u32 s{sT3}, s{sT3}, s{sR}
s_mul_i32 s{sSS}, s{sT3}, 640
s_add_u32 s{sSS}, s{sSS}, {WS_SP}""")
    def p_skip():
        skip_setup(T+8, sKX, sKD)
        a(f"v_accvgpr_write_b32 a{aSX}, v{T+8}")
    def p_flags():
        k2_flags(T+8, T+10, T+11)
        a(f"v_accvgpr_write_b32 a{aFB}, v{T+10}\nv_accvgpr_write_b32 a{aFM}, v{T+11}")
        k2_mt()
    pieces = [q_setup, stash, p_skip, p_flags, lc_tables]
    nin = E2("INB", 3)
    for f in pieces[:nin]: f()
    spareB = capture(lambda: [f() for f in pieces[nin:]])
    tag_ready()
    a(f"s_and_b32 s{sT8}, s{sTAG}, 0xff")
    if E2("IW", 0): a("s_branch Lladder\nLB_cont:")
    bg.add(stage_dma(1), 1)
    stamp(0)
    params()
    bg.tick(E2("PK3", 2))
    bg.fast = True
    a.wait(lg="all")
    stamp(35)
    XA = lambda s, ks, m: s * 16 + ks * 8 + m * 4
    def x_reads(s):
        if s >= 10: return {}
        def mk(ks):
            return [(lambda m=m: a.lds(f"ds_read_b128 {a4(XA(s, ks, m))}, v{vXR+ks} offset:{(s%4)*4096 + m*2048}", ("x", s, ks))) for m in range(2)]
        return {0: mk(0), 10: mk(1)}
    def read_frag(s, i, reg):
        sl = s % 4
        if s < 10:
            ks, t = divmod(i, 10)
            c5, part = divmod(t, 2)
            return [lambda: a.lds(f"ds_read_b128 {v4(reg)}, v{vWR + (sl//2)*2 + ks} offset:{(sl%2)*20480 + part*10240 + c5*2048}", ("w", s, i))]
        else:
            k4, Tt = divmod(i, 5)
            return [(lambda hh=hh: a.lds(f"ds_read_b64_tr_b16 {v2(reg+2*hh)}, v{vT40 + (sl//2)*2 + hh} offset:{(sl%2)*20480 + k4*5120 + 8*Tt}", ("w", s, i))) for hh in range(2)]
    def mfmas(s, i, reg):
        out = []
        if s < 10:
            ks, t = divmod(i, 10)
            for m in range(2):
                d = U + t*8 + m*4
                c = "0" if (s == 0 and ks == 0) else v4(d)
                out.append(lambda d=d, m=m, c=c: mfma(v4(d), a4(XA(s, ks, m)), v4(reg), c))
        else:
            k4, Tt = divmod(i, 5)
            xs, ks = 2*(s-10) + k4//2, k4 % 2
            for m in range(2):
                d = Q + Tt*8 + m*4
                c = "0" if (s == 10 and k4 == 0) else v4(d)
                out.append(lambda d=d, m=m, c=c: mfma(v4(d), v4(reg), a4(XA(xs, ks, m)), c))
        return out
    def ur(c5, i): return U + (2*c5)*8 + 2*i
    def ui(c5, i): return U + (2*c5+1)*8 + 2*i
    LO = "op_sel_hi:[1,0,1]"
    HI = "op_sel:[0,1,0] op_sel_hi:[1,1,1]"
    NEG = "neg_lo:[0,1,0] neg_hi:[0,1,0]"
    vEA, vSA, vXA, vPT = vX, vX+1, vX+2, vX+3
    vTW, vTR0, vTR1, vST, vL16 = vW, vW+1, vW+2, vW+3, vW+4
    vXW, vHR, vZR, vLT = vWR, vWR+1, vWR+2, vWR+3
    def mk_ptread(c5):
        def f():
            if c5 == 0: a(f"v_accvgpr_read_b32 v{vPT}, a{aPT}")
            a.lds(f"ds_read_b128 {v4(LAM + c5*8)}, v{vPT} offset:{c5*768}", "ptr")
            a.lds(f"ds_read_b128 {v4(LAM + c5*8 + 4)}, v{vPT} offset:{c5*768 + 16}", "ptr")
            a.lds(f"ds_read_b64 {v2(COEF + c5*2)}, v{vPT} offset:{c5*768 + 32}", "ptr")
            if c5 == 4: a(f"v_accvgpr_read_b32 v{vEA}, a{aEA}\nv_accvgpr_read_b32 v{vSA}, a{aSA}\nv_accvgpr_read_b32 v{vXA}, a{aXA}")
        return f
    def scan1():
        stamp(1)
        bg.fast = False
        bg.add(dma_c(0, sXB, 0))
        tA, tB = 228, 230
        for c5 in range(5):
            c = COEF + c5*2
            for i in range(4):
                r_, i_ = ur(c5, i), ui(c5, i)
                a(f"""v_pk_mul_f32 {v2(tA)}, {v2(r_)}, {v2(c)} op_sel_hi:[1,0]
v_pk_mul_f32 {v2(tB)}, {v2(r_)}, {v2(c)} op_sel:[0,1] op_sel_hi:[1,1] neg_lo:[0,1] neg_hi:[0,1]
v_pk_fma_f32 {v2(r_)}, {v2(i_)}, {v2(c)}, {v2(tA)} {HI} {NEG}
v_pk_fma_f32 {v2(i_)}, {v2(i_)}, {v2(c)}, {v2(tB)} {LO} {NEG}""")
            l = LAM + c5*8
            for i in range(1, 4):
                a(f"""v_pk_fma_f32 {v2(ur(c5,i))}, {v2(ur(c5,i-1))}, {v2(l)}, {v2(ur(c5,i))} {LO}
v_pk_fma_f32 {v2(ui(c5,i))}, {v2(ui(c5,i-1))}, {v2(l)}, {v2(ui(c5,i))} {LO}
v_pk_fma_f32 {v2(ur(c5,i))}, {v2(ui(c5,i-1))}, {v2(l)}, {v2(ur(c5,i))} {HI} {NEG}
v_pk_fma_f32 {v2(ui(c5,i))}, {v2(ur(c5,i-1))}, {v2(l)}, {v2(ui(c5,i))} {HI}""")
            l4 = l + 6
            cmul_acc(c, c+1, l4, l4+1, ur(c5,3), ui(c5,3), ur(c5,3)+1, ui(c5,3)+1)
            a.lds(f"ds_write_b64 v{vEA}, {v2(c)} offset:{L_EB + c5*128}", "ew")
            bg.tick(E2("S1T", 1))
        stamp(38)
        a.wait(lg="all")
        a("s_barrier")
        stamp(39)
        a(f"s_cmp_ge_u32 s{sWV}, 2\ns_cbranch_scc1 LB_nocarry1")
        E0 = XR
        tA, tB = 252, vPT
        for s in range(0, 16, 2):
            a(f"ds_read2_b64 {v4(E0 + 2*s)}, v{vSA} offset0:{(s%4)*80} offset1:{(s%4)*80+80}")
            if s % 4 == 2 and s < 14: a(f"v_add_u32 v{vSA}, 16384, v{vSA}")
        a(f"""v_mov_b32 v{tA}, 0
v_mov_b32 v{tA+1}, 0
v_mov_b32 v{tB}, s{sTAG}
s_movk_i32 s{sT3}, 0xff""")
        for s in range(1, 16):
            if s % 2 == 0 or s == 1: a(f"s_waitcnt lgkmcnt({7 - s//2})")
            pk_cmul_acc(E0+2*s, L8, E0+2*s-2, E0+2*s)
        a(f"""v_bfi_b32 v{E0+30}, s{sT3}, v{tB}, v{E0+30}
v_bfi_b32 v{E0+31}, s{sT3}, v{tB}, v{E0+31}""")
        a.vmem(f"buffer_store_dwordx2 {v2(E0+30)}, v{vXA}, {srd(SWS)}, s{sSS} offen sc1", "sst", certain=False)
        a(f"s_mov_b64 exec, {sp(sVAL)}")
        for q in range(14, -1, -2):
            lo = v2(tA) if q == 0 else v2(E0+2*q-2)
            a(f"ds_write2_b64 v{vSA}, {lo}, {v2(E0+2*q)} offset0:{(q%4)*80} offset1:{(q%4)*80+80}")
            if q % 4 == 0 and q: a(f"v_subrev_u32 v{vSA}, 16384, v{vSA}")
        a("s_mov_b64 exec, -1\nLB_nocarry1:")
        stamp(2)
    def x_loads(tracked, cnt):
        ops = []
        for n in range(cnt - 1, -1, -1):
            def f(n=n):
                so = ["0", f"s{sC1}", f"s{sC2}"][n // 6]
                t = f"buffer_load_dwordx2 {v2(XR + 2*n)}, v{vXA}, {srd(SXR)}, {so} offen offset:{(n % 6)*640} sc1"
                if tracked: a.vmem(t, "xl")
                else: a(t)
            ops.append(("d", f))
        return ops
    def x_body(z, ticks):
        cnt = 16 if z else 15
        for n in range(cnt - 1, -1, -1):
            r = XR + 2*n
            a(f"v_xor_b32 v{r}, s{sT8}, v{r}\nv_xor_b32 v{r+1}, s{sT8}, v{r+1}")
            if n == cnt - 1: a(f"v_or_b32 v250, v{r}, v{r+1}")
            else:
                a(f"v_or3_b32 v250, v250, v{r}, v{r+1}")
                if z: a(f"v_pk_add_f32 {v2(r)}, {v2(r)}, {v2(r+2)}")
                else: pk_cmul_acc(r, L128, r+2, r)
            if ticks and n % 2 == 0: bg.tick(1)
        a(f"""v_and_b32 v250, 0xff, v250
v_cmp_ne_u32 vcc, 0, v250
s_add_u32 s{sSPIN}, s{sSPIN}, 1
s_and_b64 vcc, vcc, {sp(sVAL)}""")
    def x_write(z):
        if STAMPS: a("v_writelane_b32 v254, s96, 40")
        if z:
            a(f"""v_cvt_pk_bf16_f32 v250, v{XR}, v{XR+1}
v_lshlrev_b32 v{XR}, 16, v250
v_and_b32 v{XR+1}, 0xffff0000, v250""")
        a(f"s_mov_b64 exec, {sp(sVAL)}\nds_write_b64 v{vXW}, {v2(XR)}\ns_mov_b64 exec, -1")
    def x_retry(z, lab, back):
        a(f"{lab}:")
        run_ops(x_loads(False, 16 if z else 15))
        a(f"s_waitcnt vmcnt(0)\n{lab}c:")
        x_body(z, False)
        a(f"s_cmp_gt_u32 s{sSPIN}, 0x20000\ns_cbranch_scc1 {back}\ns_cbranch_vccnz {lab}\ns_branch {back}")
    OUTLINE.append(lambda: x_retry(False, "LB_rs", "LB_sok"))
    def start_x():
        bg.add(x_loads(True, 15)); bg.fast = True
    def c_start(slot):
        def f():
            bg.flush()
            a.wait(lg=[("cr", 0)])
            bg.add(dma_c(slot, sXB, 0)); bg.fast = True
        return f
    def c_read(slot):
        def f():
            bg.flush()
            a.wait(vm=[("c", slot)])
            bg.add(c_reads(slot, vXR, 0)); bg.fast = True
        return f
    def last_stage():
        a.wait(vm=[("c", 1)])
        d, r = dma_c(4, sCW, AR2), c_reads(1, vXR, 0)
        mix = []
        for op in d:
            mix.append(op)
            if op[0] == "d": mix.append(r.pop(0))
        bg.add(mix)
        bg.add([("s", lambda: a.wait(lg=[("cr", 1)]))] + dma_c(2, sXB, 0))
    hooks = {(0, E2('FEND', 14)): (lambda: setattr(bg, 'fast', False)), (10, 0): scan1, divmod(E2('C0R', 236), 20): c_read(0), (13, E2('XST', 4)): start_x, divmod(E2('C0R', 236) + 12, 20): c_start(1), (14, 0): last_stage, (13, 0): (lambda: bg.add([('s', lambda: a(f'v_accvgpr_read_b32 v252, a{aSX}'))] + skip_loads(252, sKX, sKD, sWB, 3*20480)))}
    for c5 in range(5): hooks[(9, 2*c5 + 1)] = mk_ptread(c5)
    def touches():
        bg.add([("d", code_touch(vW)), ("d", lambda: flag_touch(FB, vW+1)), ("d", lambda: flag_touch(FW, vW+1))])
    vWF = 253
    def fm_issue():
        a(f"v_accvgpr_read_b32 v{vW+2}, a{aFM}")
        fl_issue(vW+2, vW+3, "0xffff", "pfm")
    def wf_early(lo, hi):
        def f():
            if lo == 0:
                fl_check(vW+2, vW+3, "0xffff", "pfm")
                wf_base(vWF)
        return f
    hooks[(9, 10)] = fm_issue
    hooks[(11, 1)] = wf_early(0, 0)
    hooks[(9, 6)] = touches
    hooks[(9, 12)] = lambda: setattr(bg, 'fast', True)
    hooks[(14, 1)] = lambda: setattr(bg, 'fast', E2('QF', 1))
    gemm_loop(15, 20, read_frag, mfmas, x_reads, stage_dma, bg, RING, 6, hooks, spare=spareB, spare_end=E2('SPE', 9)*20)
    stamp(3)
    a(f"s_mov_b32 s{sSPIN}, 0")
    for vr, ar in ((vLT, aLT), (vTW, aTW), (vTR0, aTR0), (vTR1, aTR1), (vST, aST), (vHR, aHR), (vZR, aZR)):
        a(f"v_accvgpr_read_b32 v{vr}, a{ar}")
    a(f"v_lshlrev_b32 v{vL16}, 4, v{vLANE}\nv_add_u32 v{vXW}, {L_HB}, v{vXA}")
    H = 152
    for c5 in range(5):
        a.lds(f"ds_read_b64 {v2(H+4*c5)}, v{vEA} offset:{L_EB + c5*128}", "pl")
        a.lds(f"ds_read_b64 {v2(H+4*c5+2)}, v{vLT} offset:{c5*128}", "pl")
    a(f"s_cmp_ge_u32 s{sWV}, 2\ns_cbranch_scc1 LB_x23")
    snap = (list(bg.q), list(a.vm), list(a.lg), M0[0])
    a.wait(vm="xl")
    run_ops(skip_reads(172, sWB, 3*20480, SKH))
    x_body(False, True)
    bg.flush()
    a("s_cbranch_vccnz LB_rs\nLB_sok:")
    x_write(False)
    a("s_branch LB_xe1\nLB_x23:")
    bg.q, a.vm, a.lg, M0[0] = snap
    bg.flush()
    full = list(a.vm)
    run_ops(skip_reads(172, sWB, 3*20480, SKH))
    a.vm = full
    a("LB_xe1:")
    M0[0] = None
    a.wait(lg="all")
    a("s_barrier")
    stamp(4)
    HR = vQ + 1
    HRS = [12, 14, 22, 24, 172]
    for c5 in range(5):
        a.lds(f"ds_read_b64 {v2(HRS[c5])}, v{vHR} offset:{c5*128}", ("hin", c5))
    def trd(c5, part):
        for hh in range(2):
            a.lds(f"ds_read_b64_tr_b16 {v2(U + (2*c5+part)*8 + 4 + 2*hh)}, v{vTR0+hh} offset:{((c5%3)*2+part)*1024}", ("tr", c5, part))
    def tst(c5, part):
        a.wait(lg=[("tr", c5, part)])
        a.vmem(f"buffer_store_dwordx4 {v4(U + (2*c5+part)*8 + 4)}, v{vST}, {srd(SWS)}, s{sSa if part == 0 else sSb} offen offset:{c5*512} sc1", "ast")
    for c5 in range(5):
        h = H + 4*c5; lam = LAM + c5*8
        a.wait(lg=[("hin", c5)])
        pk_cmul_acc(h, h+2, HRS[c5], h)
        a(f"v_mov_b32 v{h+2}, v{h+1}")
        cmul_acc(h+1, h+3, lam+6, lam+7, h, h+2, ur(c5,3), ui(c5,3))
        for part in range(2):
            for i in range(4):
                l = lam + 2*i
                if part == 0: a(f"v_pk_fma_f32 {v2(ur(c5,i))}, {v2(h)}, {v2(l)}, {v2(ur(c5,i))} {LO}")
                else: a(f"v_pk_fma_f32 {v2(ui(c5,i))}, {v2(h+2)}, {v2(l)}, {v2(ui(c5,i))} {LO}")
            k = 2*c5 + part
            if k >= 1: trd((k-1)//2, (k-1) % 2)
            for i in range(4):
                l = lam + 2*i
                if part == 0: a(f"v_pk_fma_f32 {v2(ur(c5,i))}, {v2(h+2)}, {v2(l)}, {v2(ur(c5,i))} {HI} {NEG}")
                else: a(f"v_pk_fma_f32 {v2(ui(c5,i))}, {v2(h)}, {v2(l)}, {v2(ui(c5,i))} {HI}")
            if k >= 2: tst((k-2)//2, (k-2) % 2)
            src = U + k*8
            for q in range(4): a(f"v_cvt_pk_bf16_f32 v{src+q}, v{src+2*q}, v{src+2*q+1}")
            a.lds(f"ds_write_b128 v{vTW}, {v4(src)} offset:{((c5%3)*2+part)*1024}", ("tw", c5))
    trd(4, 1)
    tst(4, 0)
    tst(4, 1)
    stamp(32)
    vK0, vK1, vKA, PT_, PQ, WP, DN = 2, 3, 4, 52, 56, 80, 104
    sKR = sKA + 1
    KR = 216
    def kr_loads(tracked):
        for n in range(2):
            t = f"buffer_load_dwordx4 {v4(KR + 4*n)}, v{vKA + n}, {srd(SWS)}, s{sKR} offen sc1"
            if tracked: a.vmem(t, "kr")
            else: a(t)
    def kr_check():
        a(f"""v_xor_b32 v{KR}, s{sT8}, v{KR}
v_xor_b32 v{KR+2}, s{sT8}, v{KR+2}
v_xor_b32 v{KR+4}, s{sT8}, v{KR+4}
v_xor_b32 v{KR+6}, s{sT8}, v{KR+6}
v_or3_b32 v250, v{KR}, v{KR+2}, v{KR+4}
v_or_b32 v250, v250, v{KR+6}
v_and_b32 v250, 0xffff, v250
v_cmp_ne_u32 vcc, 0, v250
s_add_u32 s{sSPIN}, s{sSPIN}, 1""")
    def kr_retry():
        a("LB_rk:")
        kr_loads(False)
        a("s_waitcnt vmcnt(0)")
        kr_check()
        a(f"s_cmp_gt_u32 s{sSPIN}, 0x20000\ns_cbranch_scc1 LB_kok\ns_cbranch_vccnz LB_rk\ns_branch LB_kok")
    OUTLINE.append(kr_retry)
    a.wait(vm=[("c", 4)])
    a(f"""v_accvgpr_read_b32 v{K_vFB}, a{aFB}
v_accvgpr_read_b32 v{K_vFM}, a{aFM}
v_accvgpr_read_b32 v{vK0}, a{aK0}
v_accvgpr_read_b32 v{vK1}, a{aK1}
v_lshlrev_b32 v{vKA}, 4, v0
v_add_u32 v{vKA+1}, 4096, v{vKA}
s_lshl_b32 s{sKR}, s{sJ}, 13
s_add_u32 s{sKR}, s{sKR}, {WS_KVR}
s_mov_b32 s{sT4}, {LOG2E}""")
    cr1 = c_reads(4, vCR, AR2)
    bg.add(dma_c(3, sCW, AR1), "c3")
    bg.add(wf_loads(vWF, sT1, 0, NWF))
    for n in range(10):
        Tt, m = divmod(n, 2)
        if n == E2("PHF", 7):
            kr_loads(True)
            a.wait(vm="ast")
            a("s_barrier")
            set_flag(FB, "LB_nf", 100, wave=3)
            stamp(36)
        phi([Q + 4*n], sT4, PT_, NT=2)
        cr1[n][1]()
        phi([Q + 4*n + 2], sT4, PT_, NT=2)
        for q in range(2): a(f"v_cvt_pk_bf16_f32 v{PQ + 12*m + 2*Tt + q}, v{Q + 4*n + 2*q}, v{Q + 4*n + 2*q + 1}")
        bg.tick(E2("PHT", 2))
    bg.require("c3")
    a.wait(vm="kr")
    a(f"s_mov_b32 s{sSPIN}, 0\ns_mov_b32 s{sT3}, 0x07060302")
    kr_check()
    a("s_cbranch_vccnz LB_rk\nLB_kok:")
    if STAMPS: a("v_writelane_b32 v254, s96, 40")
    for n in range(2):
        a(f"""v_perm_b32 v{KR+4*n}, v{KR+4*n+1}, v{KR+4*n}, s{sT3}
v_perm_b32 v{KR+4*n+1}, v{KR+4*n+3}, v{KR+4*n+2}, s{sT3}""")
        a.lds(f"ds_write_b64 v{vK0+n}, {v2(KR+4*n)}", "ktw")
    a(f"v_mov_b64 {v2(PQ+10)}, 0\nv_mov_b64 {v2(PQ+22)}, 0")
    bg.tick(3)
    a.wait(lg="all")
    a("s_barrier")
    if E2("EP", 1): poll_issue(K_vFM, K_vTmp, "0xff00000", "p2")
    stamp(33)
    order = [5, 0, 1, 2, 3, 4]
    KFR = [196 + 4*n for n in range(13)] + [32 + 4*n for n in range(5)]
    rds = [(lambda k=k, Tt=Tt, st_=st_: a.lds(f"ds_read_b128 {v4(KFR[3*k+st_])}, v{vZR} offset:{Tt*192 + st_*16}", ("kf", 3*k+st_))) for k, Tt in enumerate(order) for st_ in range(3)]
    for f in rds[:6]: f()
    O = lambda Tt, m: DN + 4*m if Tt == 5 else Q + Tt*8 + m*4
    for k, Tt in enumerate(order):
        for st_ in range(3):
            n = 3*k + st_
            a.wait(lg=[("kf", n)])
            for m in range(2):
                mfma(v4(O(Tt, m)), v4(KFR[n]), v4(PQ + 12*m + 4*st_), "0" if st_ == 0 else v4(O(Tt, m)))
                if m == 0:
                    if n + 6 < 18: rds[n + 6]()
                elif n % 2: bg.tick(1)
                else: bg.tick_s()
        if k == 2:
            a(f"""v_add_f32 v{DN}, 0x358637bd, v{DN}
v_add_f32 v{DN+4}, 0x358637bd, v{DN+4}
v_rcp_f32 v{DN}, v{DN}
v_rcp_f32 v{DN+4}, v{DN+4}""")
    for hf in range(3):
        for m in range(2):
            d = DN + 4*m
            for Tt in ((0, 1), (2, 3), (4,))[hf]:
                for q in range(2):
                    r = Q + Tt*8 + m*4 + 2*q
                    a(f"v_pk_mul_f32 {v2(r)}, {v2(r)}, {v2(d)} op_sel_hi:[1,0]")
            for Tt in ((0, 1), (2, 3), (4,))[hf]:
                for q in range(2):
                    r = Q + Tt*8 + m*4 + 2*q
                    dst = (WP + m*8 + Tt*2 + q) if Tt < 4 else (WP + 16 + m*2 + q)
                    a(f"v_cvt_pk_bf16_f32 v{dst}, v{r}, v{r+1}")
            if hf < 2:
                a.vmem(f"buffer_store_dwordx4 {v4(WP + m*8 + hf*4)}, v{vL16}, {srd(SWS)}, s{sSc if m == 0 else sSd} offen offset:{hf*1024} sc1", "ast")
    a(f"v_permlane16_swap_b32 v{WP+16}, v{WP+18}\nv_permlane16_swap_b32 v{WP+17}, v{WP+19}")
    a.vmem(f"buffer_store_dwordx4 {v4(WP+16)}, v{vST}, {srd(SWS)}, s{sSc} offen offset:2048 sc1", "ast")
    bg.flush()
    stamp(5)
    if not E2("EP", 1): poll_issue(K_vFM, K_vTmp, "0xff00000", "p2")
    k2_min(vL16)
    a(f"v_mov_b32 v{K_vM}, v{vWF}")
    stamp(6)
    a.wait(vm="p2")
    k2()

def fl_issue(va, vt, mask, tag):
    a(f"s_mov_b64 exec, {mask}")
    a.vmem(f"buffer_load_dword v{vt}, v{va}, {srd(SWS)}, 0 offen sc1", tag)
    a("s_mov_b64 exec, -1")
def fl_check(va, vt, mask, tag):
    a.wait(vm=tag)
    L = a.label("LK_fl"); C = a.label("LK_fc"); X = a.label("LK_fe")
    a(f"""s_mov_b64 exec, {mask}
s_mov_b32 s{sSPIN}, 0
s_branch {C}
{L}:
buffer_load_dword v{vt}, v{va}, {srd(SWS)}, 0 offen sc1
s_add_u32 s{sSPIN}, s{sSPIN}, 1
s_waitcnt vmcnt(0)
{C}:
v_cmp_ne_u32 vcc, s{sTAG}, v{vt}
s_cmp_gt_u32 s{sSPIN}, 0x20000
s_cbranch_scc1 {X}
s_cbranch_vccnz {L}
{X}:
s_mov_b64 exec, -1""")
def k2():
    CUR[0] = 'K'
    a("LK2:")
    a.vm = [("p2", True)] + [("old", True)]*40; a.lg = []
    AH, AB = K_AH, K_AB
    NS = 12
    STG = [196 + 4*i for i in range(NS)]
    vA, vM, vFB, vFM, vGA, vRW, vTmp, vG, sMT = K_vA, K_vM, K_vFB, K_vFM, K_vGA, K_vRW, K_vTmp, K_vG, K_sMT
    sG = [sT2, sT3, sT4, sT5]
    stamp(7)
    poll_finish(vFM, vTmp, "0xff00000", "p2")
    stamp(8)
    frags = [("h", i, ks, mt) for i in range(5) for ks in range(2) for mt in range(4)] + [("w", i, 0, mt) for mt in range(4) for i in range(5)]
    def issueA(n):
        kind, i, ks, mt = frags[n]
        r = STG[n % NS]
        if kind == "h": a.vmem(f"buffer_load_dwordx4 {v4(r)}, v{vA+mt}, {srd(SWS)}, s{sKA+i} offen offset:{ks*1024} sc1", ("A", n))
        else: a.vmem(f"buffer_load_dwordx4 {v4(r)}, v{vA+mt}, {srd(SWS)}, s{sKA+5+i} offen sc1", ("A", n))
    def gl(i):
        assert st["sp"] >= NG
        a.vmem(f"buffer_load_dword v{vG+2*i}, v{vGA}, {srd(SWS)}, s{sG[i]} offen sc1", "g")
    extra = [(lambda i=i: gl(i)) for i in range(4)]
    D, X0 = E2("KD", 11), E2("X0", 26)
    wl = wf_loads(vM, 39, NWF, 25)
    late = [(lambda k=k: (wl[2*k][1](), wl[2*k+1][1]())) for k in range(25 - NWF)]
    Y0, Y1 = E2("Y0", 12), E2("Y1", 42)
    PW = E2("PW", 26)
    Q = []
    e = 0
    for n in range(60):
        if n == PW: Q.append(("pw", None))
        if n == X0: Q += [("x", f) for f in extra]
        while e < len(late) and n >= Y0 and (e + 1) * (Y1 - Y0 + 1) <= (n - Y0 + 1) * len(late):
            Q.append(("x", late[e])); e += 1
        Q.append(("A", n))
    pos = {v: k for k, (t, v) in enumerate(Q) if t == "A"}
    st = {"q": 0, "fm": True, "fw": False}
    def can(limitA):
        if st["q"] >= len(Q): return False
        t, v = Q[st["q"]]
        if t == "A": return v < limitA and (v < 40 or st["fw"])
        if t == "x": return st["fm"]
        return True
    def pop():
        t, v = Q[st["q"]]; st["q"] += 1
        if t == "A": issueA(v)
        elif t == "x": v()
        elif t == "pm": fl_issue(vFM, vTmp, "0xfffff", "pfm")
        else: fl_issue(vFB, vTmp, "0xff", "pfw")
    while st["q"] < E2("D0", 4) and can(8): pop()
    stamp(60)
    k2_rest(248)
    a("s_cmp_eq_u32 s100, 0\ns_cbranch_scc1 LK_c3")
    run_ops(c_reads(3, vCR, AR1))
    a("LK_c3:")
    class PB:
        def tick(self, n):
            if st["q"] < E2("D1", 6) and can(NS): pop()
    skip_math(248, SKH, PB())
    run_ops(c_reads(2, vXR, 0))
    stamp(61)
    a.wait(vm="old", lg="all")
    stamp(62)
    a("s_barrier")
    a("s_cmp_eq_u32 s100, 0\ns_cbranch_scc1 LB_nf2")
    set_flag(FW, "LB_nf2", 244, wave=3, atomic=False)
    def goffs():
        a(f"v_and_b32 v{vGA}, 15, v{vLANE}\nv_lshlrev_b32 v{vGA}, 2, v{vGA}")
        for i in range(4):
            a(f"""s_lshl_b32 s{sG[i]}, s{sRB}, 2
s_add_u32 s{sG[i]}, s{sG[i]}, s{sMT+i}
s_lshl_b32 s{sG[i]}, s{sG[i]}, 7
s_add_u32 s{sG[i]}, s{sG[i]}, {WS_G}
s_mul_i32 s{sMT+i}, s{sMT+i}, {16*320}""")
    spare = capture(goffs)
    NG = len(spare)
    spare += capture(lambda: k2_fin(248))
    st["sp"] = 0
    def g_check():
        for i in range(4): a(f"v_xor_b32 v{vG+2*i}, s{sT0}, v{vG+2*i}")
        a(f"""v_or3_b32 v{vTmp}, v{vG}, v{vG+2}, v{vG+4}
v_or_b32 v{vTmp}, v{vTmp}, v{vG+6}
v_and_b32 v{vTmp}, 0xffff, v{vTmp}
v_cmp_ne_u32 vcc, 0, v{vTmp}
s_add_u32 s{sSPIN}, s{sSPIN}, 1""")
    def g_retry():
        a("LK_rg:")
        for i in range(4): a(f"buffer_load_dword v{vG+2*i}, v{vGA}, {srd(SWS)}, s{sG[i]} offen sc1")
        a("s_waitcnt vmcnt(0)")
        g_check()
        a(f"s_cmp_gt_u32 s{sSPIN}, 0x20000\ns_cbranch_scc1 LK_gok\ns_cbranch_vccnz LK_rg\ns_branch LK_gok")
    OUTLINE.append(g_retry)
    def g_prep():
        a.wait(vm="g")
        a(f"s_and_b32 s{sT0}, s{sTAG}, 0xff\ns_mov_b32 s{sSPIN}, 0")
        g_check()
        a("s_cbranch_vccnz LK_rg\nLK_gok:")
        for i in range(4):
            g = vG + 2*i
            a(f"""v_sub_f32 v{g+1}, 1.0, v{g}
v_cvt_pk_bf16_f32 v{g+1}, v{g+1}, v{g+1}
v_lshlrev_b32 v{g+1}, 16, v{g+1}""")
    def scale_ops(mt, nt):
        g = vG + 2*mt; h = AH + (mt*5+nt)*4
        return [(lambda q=q: a(f"v_mul_f32 v{h+q}, v{g}, v{h+q}\nv_mul_f32 v{h+q+1}, v{g}, v{h+q+1}")) for q in (0, 2)]
    def fin_ops(mt, nt, pk=False):
        g = vG + 2*mt; h = AH + (mt*5+nt)*4; b = AB[mt % 2] + nt*4
        if pk: ops = [(lambda q=q: a(f"v_pk_fma_f32 {v2(h+q)}, {v2(b+q)}, {v2(g)}, {v2(h+q)} op_sel:[0,1,0] op_sel_hi:[1,1,1]")) for q in (0, 2)]
        else: ops = [(lambda q=q: a(f"v_fmac_f32 v{h+q}, v{g+1}, v{b+q}\nv_fmac_f32 v{h+q+1}, v{g+1}, v{b+q+1}")) for q in (0, 2)]
        def w():
            if nt == 0: a(f"v_add_u32 v{vTmp}, s{sMT+mt}, v{vRW}")
            a.lds(f"ds_write_b128 v{vTmp}, {v4(h)} offset:{nt*64}", "red")
        return ops + [w]
    for n in range(60):
        kind, i, ks, mt = frags[n]
        assert st["q"] > pos[n], n
        a.wait(vm=[("A", n)])
        if n == 0: stamp(14)
        if E("K2ST") and n % 4 == 0: stamp(44 + n // 4)
        if n == PW: fl_check(vFB, vTmp, "0xff", "pfw"); st["fw"] = True
        if n == 40:
            stamp(15)
            assert st["sp"] == len(spare)
            g_prep()
        fill = []
        if kind == "w":
            fill = scale_ops(mt, i) + (fin_ops(mt-1, i) if mt > 0 else [])
        target = pos[min(n + 1, 59)] + D
        for nt in range(5):
            if kind == "h":
                d = AH + (mt*5 + nt)*4
                first = (i == 0 and ks == 0 and mt != 0)
                fa = a4(CHOME[i][ks*5+nt])
            else:
                d = AB[mt % 2] + nt*4
                first = (i == 0)
                fa = MH[i*5 + nt]
            mfma(v4(d), fa, v4(STG[n % NS]), "0" if first else v4(d))
            if fill: fill.pop(0)()
            elif nt in (0, 2) and st["q"] < target and can(n + NS): pop()
            elif nt < 4:
                for _ in range(2):
                    if st["sp"] < len(spare): a(spare[st["sp"]]); st["sp"] += 1
        if st["q"] < target and can(n + NS + 1): pop()
    stamp(9)
    for nt in range(5):
        for f in fin_ops(3, nt, True): f()
    a(f"""s_cmp_lg_u32 s{sRB}, 31
s_cbranch_scc1 LK_ne
s_or_b32 s{sT2}, s{sWV}, s{sCT}
s_cmp_lg_u32 s{sT2}, 0
s_cbranch_scc1 LK_ne
v_mov_b32 v196, {WS_EPOCH}
v_mov_b32 v197, s{sTAG}
s_mov_b64 exec, 1
buffer_store_dword v197, v196, {srd(SWS)}, 0 offen sc1
s_mov_b64 exec, -1
LK_ne:""")
    a.wait(lg="all")
    a("s_barrier")
    R = 32
    for n in range(5):
        for w in range(4):
            a.lds(f"ds_read_b128 {v4(R + (n*4+w)*4)}, v{K_FL} offset:{w*64*320 + n*64}", ("rr", n))
    for n in range(5):
        a.wait(lg=[("rr", n)])
        r = R + n*16
        a(f"""v_pk_add_f32 {v2(r)}, {v2(r)}, {v2(r+4)}
v_pk_add_f32 {v2(r+2)}, {v2(r+2)}, {v2(r+6)}
v_pk_add_f32 {v2(r+8)}, {v2(r+8)}, {v2(r+12)}
v_pk_add_f32 {v2(r+10)}, {v2(r+10)}, {v2(r+14)}
v_pk_add_f32 {v2(r)}, {v2(r)}, {v2(r+8)}
v_pk_add_f32 {v2(r+2)}, {v2(r+2)}, {v2(r+10)}""")
        a.vmem(f"buffer_store_dwordx4 {v4(r)}, v{K_FO}, {srd(SOUT)}, 0 offen offset:{n*64} {os.environ.get('OST', '').replace('_', ' ')}", "ost")
    stamp(10)
    stamp_flush()
    if E("PADUS"):
        a(f"""s_waitcnt vmcnt(0)
Lpad:
s_memrealtime s[96:97]
s_waitcnt lgkmcnt(0)
s_sub_u32 s96, s96, s{sST}
{'s_sub_u32 s96, s96, s99' if os.environ.get('PROBE') else ''}
s_cmp_lt_u32 s96, {E("PADUS")*100}
s_cbranch_scc1 Lpad""")
    a("Lend:\ns_endpgm")
    for f in OUTLINE: f()
    a("Lcode_end:\n.fill 320, 4, 0xbf800000")

prologue()
type_A()
type_B()
body = a.text()
hdr = open("gated_mix__ssm_conv_s5__linear_attn_block__prompt.s.ref").read().split("; Override launch")[0]
def wrap(b):
    return hdr + f"; @launch grid=(256,1,1) block=(256,1,1) lds={LDS_BYTES}\n" + HEADER + kernel_begin(NAME) + b + kernel_desc(NAME, 512, 102, 256)
out = sys.argv[1] if len(sys.argv) > 1 else "k.s"
if E2("IW", 0):
    import subprocess, re, tempfile
    tmp = tempfile.mkdtemp()
    open(tmp + "/p.s", "w").write(wrap(body))
    subprocess.run(["clang", "-x", "assembler", "-target", "amdgcn-amd-amdhsa", "-mcpu=gfx950", "-c", tmp + "/p.s", "-o", tmp + "/p.o"], check=True)
    dis = subprocess.run(["llvm-objdump", "-d", "--mcpu=gfx950", tmp + "/p.o"], capture_output=True, text=True).stdout
    seg = dis[dis.index("<LA_cont>:"):]
    sizes = [4 * len(m.group(1).split()) for m in re.finditer(r"// [0-9A-F]{12}: ([0-9A-F ]+?)(?: <.*)?$", seg, re.M)]
    lines = body.split("\n")
    i0 = lines.index("LA_cont:")
    outl = lines[:i0+1]
    off = 0; k = 0; nxt = 0; safe = True; sv = False; n = 0; done = False
    for l in lines[i0+1:]:
        t_ = l.strip()
        isins = t_ and not t_.endswith(":") and not t_.startswith((";", "."))
        if isins and not done:
            if off >= nxt and safe:
                outl.append(f"Lw_{k}:"); outl.append("    s_cbranch_execz Lwret")
                k += 1; off += 4; nxt += 4096
            off += sizes[n]; n += 1
            if t_.startswith("s_and_saveexec"): safe = False; sv = True
            elif t_.startswith("s_mov_b64 exec,"):
                x = t_.split(",")[1].strip()
                if x == "-1" or (sv and x == sp(sT2)): safe = True; sv = False
                else: safe = False
            elif t_.startswith("s_mov_b32 exec_hi,"): safe = t_.endswith("-1")
            if t_ == "s_endpgm": done = True
        outl.append(l)
    body = "\n".join(outl).replace(";LADDER", "\n".join(f"    s_cmp_eq_u32 s{sT1}, {q}\n    s_cbranch_scc1 Lw_{q}" for q in range(k)))
src = wrap(body)
open(out, "w").write(src)
print("written", out, "nops inserted:", a.nnop, "lines", src.count("\n"))
```

```python
import sys, os
sys.path.insert(0, "work")
from asmlib import *

STAMPS = int(os.environ.get("STAMPS", "0"))
E = lambda k: int(os.environ.get(k, "0"))
E2 = lambda k, d: int(os.environ.get(k, str(d)))
STGST = int(os.environ.get("STGST", "0"))
NODMA = int(os.environ.get("NODMA", "0"))
NOMFMA = int(os.environ.get("NOMFMA", "0"))
NOREAD = int(os.environ.get("NOREAD", "0"))
LOOKA = int(os.environ.get("LOOK", "5"))

WS_A = 0
WS_M = 0x800000
WS_KVP = 0x900000
WS_KVR = 0xA00000
WS_SP = 0xA40000
WS_G = 0xA80000
WS_FL = 0xA90000
FS = 128
FW, FM, FB = WS_FL, WS_FL + 0x4000, WS_FL + 0x8000
WS_EPOCH = 0xAC0000
WS_CF = 0xB00000
WS_SIZE = 0xCA0000
WS_STAMP = 0xC000000
OOB = 0x40000000
RT = 61440
L_W = 65536
L_SCR = 147456
L_PT = L_SCR
L_KT = L_PT
L_ZERO = L_PT + 4096
L_LT = L_PT + 5120
L_HB = L_LT + 10240
L_EB = 10240
L_GW = L_SCR
L_WO = L_SCR + 2048
L_KVB = L_WO + 7168
LDS_BYTES = 163840
sWV, sR, sJ, sTAG, sT0 = 3, 4, 5, 6, 7
SX, SW, SQ, SWS, SOUT = 8, 12, 16, 20, 24
sRB, sCT, sOFF, sT1 = 28, 29, 30, 31
pX, pLRE, pLIM, pBRE, pBIM, pCRE, pCIM, pLDT, pDSK, pBX, pQKV, pWO, pGW, pOUT, pDBG, pWS = range(32, 64, 2)
sKA = 64
sKQ = 74
sLC = 84
sXB, sWB, sCW = 89, 90, 91
sT2, sT3, sT4, sT5 = 92, 93, 94, 95
sSPIN = 96
sJL = 101
sST = 98
sM0, sM1 = 50, 51
vTID, vLANE = 0, 1
vX = 2
vW = 6
vQ = 11
vXR = 16
vWR = 18
vT40 = 22
vC = 26
vCR = 30
ACC = 32

def srd(n): return f"s[{n}:{n+3}]"
def sp(n): return f"s[{n}:{n+1}]"
def v4(n): return f"v[{n}:{n+3}]"
def v2(n): return f"v[{n}:{n+1}]"
def a4(n): return f"a[{n}:{n+3}]"

a = Asm()
nstamp = [0]
CUR = ['A']
def stamp(idx, existing=False):
    pr = os.environ.get("PROBE")
    if pr:
        if idx == 11: a("s_mov_b32 s99, 0")
        if pr == f"{CUR[0]}{idx}":
            a("s_memrealtime s[96:97]\ns_waitcnt lgkmcnt(0)\ns_sub_u32 s99, s96, s98"); a.lg = []
        return
    if not STAMPS: return
    if not existing: a(f"s_memrealtime {sp(sST)}\ns_memtime s[96:97]")
    a(f"""s_waitcnt lgkmcnt(0)
v_writelane_b32 v254, s{sST}, {idx}
v_writelane_b32 v255, s96, {idx}""")
    a.lg = []

def stamp_flush():
    if not STAMPS: return
    a(f"""s_lshl_b32 s96, s2, 2
s_add_u32 s96, s96, s{sWV}
s_lshl_b32 s96, s96, 9
v_lshl_add_u32 v253, v{vLANE}, 3, s96
s_add_u32 s{sST}, s{pWS}, {WS_STAMP}
s_addc_u32 s{sST+1}, s{pWS+1}, 0
global_store_dwordx2 v253, v[254:255], {sp(sST)}""")

def mfma(d, A, B, C):
    a(f"v_mfma_f32_16x16x32_bf16 {d}, {A}, {B}, {C}")

def mk_srd(n, ptr, size):
    a(f"s_mov_b32 s{n}, s{ptr}\ns_and_b32 s{n+1}, s{ptr+1}, 0xffff\ns_mov_b32 s{n+2}, {size}\ns_mov_b32 s{n+3}, 0x20000")

POLLOP, POLLFL = ('buffer_load_dword', 'sc1') if E('LDPOLL') else ('buffer_atomic_add', 'sc0 sc1')
def poll_issue(vaddr, vtmp, execmask, tag, load=False):
    POLLOP, POLLFL = ('buffer_load_dword', 'sc1') if load else (globals()['POLLOP'], globals()['POLLFL'])
    a(f"s_cmp_eq_u32 s{sWV}, 0\ns_cselect_b32 s{sT0}, 0, {OOB}\ns_mov_b64 exec, {execmask}\nv_mov_b32 v{vtmp}, 0")
    a.vmem(f"{POLLOP} v{vtmp}, v{vaddr}, {srd(SWS)}, s{sT0} offen {POLLFL}", tag)
    a("s_mov_b64 exec, -1")
def poll_finish(vaddr, vtmp, execmask, tag):
    L = a.label("Lpoll"); E_ = a.label("Lpolle"); C = a.label("Lpollc"); S = a.label("Lpolls")
    n = a._cnt(a.vm, tag)[0]
    a(f"""s_cmp_lg_u32 s{sWV}, 0
s_cbranch_scc1 {S}
s_mov_b64 exec, {execmask}
s_mov_b32 s{sSPIN}, 0
s_waitcnt vmcnt({min(n, 63)})
s_branch {C}
{L}:
{'s_mov_b64 exec, vcc' if E2('PX', 1) else ''}
v_mov_b32 v{vtmp}, 0
{'s_sleep %d' % E('SLP') if E('SLP') else ''}
{POLLOP} v{vtmp}, v{vaddr}, {srd(SWS)}, 0 offen {POLLFL}
s_add_u32 s{sSPIN}, s{sSPIN}, 1
s_waitcnt vmcnt(0)
{C}:
v_cmp_ne_u32 vcc, s{sTAG}, v{vtmp}
s_cmp_gt_u32 s{sSPIN}, 0x20000
s_cbranch_scc1 {E_}
s_cbranch_vccnz {L}
{E_}:
s_mov_b64 exec, -1
{S}:
s_barrier""")

def wq_pattern(dst, sadd, tb=52):
    for i in range(5):
        a(f"""v_add_u32 v{tb+0}, {64*i}, v{vLANE}
v_mul_u32_u24 v{tb+1}, 6554, v{tb+0}
v_lshrrev_b32 v{tb+1}, 16, v{tb+1}
v_mul_u32_u24 v{tb+2}, 10, v{tb+1}
v_sub_u32 v{tb+2}, v{tb+0}, v{tb+2}
v_lshrrev_b32 v{tb+3}, 1, v{tb+1}
v_and_b32 v{tb+3}, 4, v{tb+3}
v_xor_b32 v{tb+1}, v{tb+1}, v{tb+3}
v_mul_u32_u24 v{tb+1}, 3840, v{tb+1}
v_lshl_add_u32 v{tb+2}, v{tb+2}, 4, s{sadd}""")
        if i & 3: a(f"v_subrev_u32 v{tb+1}, {(i&3)*1024}, v{tb+1}")
        a(f"v_add_u32 v{dst+i}, v{tb+1}, v{tb+2}")

def prologue():
    if E2("ROT", 3) == 0:
        ROT = f"""s_lshr_b32 s{sT2}, s{sCT}, 2
s_add_u32 s{sT2}, s{sT2}, s{sCT}
s_mul_i32 s{sT3}, s{sJL}, 5
s_add_u32 s{sT3}, s{sT3}, 1
s_lshr_b32 s{sT3}, s{sT3}, 1
s_add_u32 s{sT2}, s{sT2}, s{sT3}
s_sub_u32 s{sT3}, s{sT2}, 10
s_cmp_ge_u32 s{sT2}, 10
s_cselect_b32 s{sT2}, s{sT3}, s{sT2}"""
    elif E2("ROT", 3) == 1:
        ROT = f"""s_add_u32 s{sT2}, s{sCT}, s{sJL}
s_and_b32 s{sT2}, s{sT2}, 3
s_mul_i32 s{sT2}, s{sT2}, 5
s_add_u32 s{sT2}, s{sT2}, 1
s_lshr_b32 s{sT2}, s{sT2}, 1"""
    else:
        ROT = f"""s_add_u32 s{sT2}, s{sCT}, s{sJL}
s_sub_u32 s{sT3}, s{sT2}, 10
s_cmp_ge_u32 s{sT2}, 10
s_cselect_b32 s{sT2}, s{sT3}, s{sT2}
s_sub_u32 s{sT3}, s{sT2}, 5
s_cmp_ge_u32 s{sT2}, 5
s_cselect_b32 s{sT2}, s{sT3}, s{sT2}
{'s_lshl_b32 s%d, s%d, 1' % (sT2, sT2) if E2("ROT", 3) == 2 else ''}"""
    WRAP = 640 if E2("ROT", 3) == 3 else 1280
    if E("PADUS"): a(f"s_memrealtime {sp(sST)}")
    if STAMPS: a(f"s_memrealtime {sp(sST)}\ns_memtime s[96:97]")
    a(f"""s_cmp_ge_u32 s2, 256
s_cbranch_scc1 Lend
s_load_dwordx16 s[32:47], s[0:1], 0
s_load_dwordx16 s[48:63], s[0:1], 64
v_and_b32 v{vLANE}, 63, v0
v_lshrrev_b32 v32, 6, v0
s_and_b32 s{sT0}, s2, 7
s_lshr_b32 s{sT1}, s2, 3
v_readfirstlane_b32 s{sWV}, v32""")
    a(f"""s_getpc_b64 s[92:93]
Lpc:
s_lshl_b32 s{sT4}, s{sWV}, 5
s_add_u32 s{sT4}, s{sT4}, s{sT1}
s_lshl_b32 s{sT4}, s{sT4}, 10
s_cmp_ge_u32 s{sT4}, Lcode_end-Lpc
s_cbranch_scc1 Lnopf
v_lshl_add_u32 v33, v{vLANE}, 4, s{sT4}""")
    a.vmem(f"global_load_dwordx4 v[36:39], v33, s[92:93]", "pf", certain=False)
    a("Lnopf:")
    a(f"""s_lshr_b32 s{sR}, s{sT0}, 2
s_lshl_b32 s{sR}, s{sR}, 3
s_and_b32 s{sCT}, s{sT1}, 7
s_add_u32 s{sR}, s{sR}, s{sCT}
s_lshr_b32 s{sJL}, s{sT1}, 3
s_and_b32 s{sJ}, s{sT0}, 3
s_lshl_b32 s{sJ}, s{sJ}, 1
s_and_b32 s{sT3}, s{sJL}, 1
s_add_u32 s{sJ}, s{sJ}, s{sT3}
s_lshl_b32 s{sRB}, s{sT0}, 2
s_and_b32 s{sT3}, s{sCT}, 1
s_lshl_b32 s{sT3}, s{sT3}, 1
s_xor_b32 s{sT3}, s{sT3}, s{sJL}
s_add_u32 s{sRB}, s{sRB}, s{sT3}
{ROT}
s_lshl_b32 s{sKA}, s{sT2}, 7
s_add_u32 s{sKA+1}, s{sKA}, 128
s_cmp_eq_u32 s{sKA+1}, {WRAP}
s_cselect_b32 s{sKA+1}, 0, s{sKA+1}
s_lshl_b32 s{sXB}, s{sWV}, 14
s_mul_i32 s{sWB}, s{sWV}, 5120
s_add_u32 s{sWB}, s{sWB}, {L_W}""")
    a(f"""v_lshrrev_b32 v40, 3, v{vLANE}
v_and_b32 v41, 7, v{vLANE}
v_lshrrev_b32 v43, 1, v40
v_xor_b32 v41, v41, v43
v_lshlrev_b32 v41, 4, v41
v_lshrrev_b32 v42, 2, v40
v_lshlrev_b32 v42, 3, v42
v_and_b32 v43, 1, v43
v_add_u32 v42, v42, v43
v_and_b32 v43, 1, v40
v_lshl_add_u32 v42, v43, 2, v42
s_lshl_b32 s{sT2}, s{sR}, 7
s_lshl_b32 s{sT3}, s{sWV}, 5
s_add_u32 s{sT2}, s{sT2}, s{sT3}
v_add_u32 v42, s{sT2}, v42
v_mul_u32_u24 v42, 1280, v42
v_add_u32 v{vX}, v42, v41
v_xor_b32 v44, 64, v41
v_add_u32 v{vX+1}, v42, v44
v_add_u32 v{vX+1}, {16*1280-1024}, v{vX+1}
v_add_u32 v{vX+2}, 512, v{vX}
v_add_u32 v{vX+3}, 512, v{vX+1}
v_mul_u32_u24 v43, 1280, v40
v_add_u32 v45, v43, v41
v_add_u32 v46, v43, v44
s_mov_b32 s{SX+2}, {2048*1280}
s_mov_b32 s{SX+3}, 0x20000
s_mov_b32 s{SW+2}, {640*1280}
s_mov_b32 s{SW+3}, 0x20000
s_mov_b32 s{SQ+2}, {640*3840}
s_mov_b32 s{SQ+3}, 0x20000
s_cmp_lt_u32 s{sJL}, 2
s_cbranch_scc1 LtypeB
s_mov_b32 s100, 0""")

def code_touch(vt):
    def f():
        L = a.label("Lct")
        a(f"""s_getpc_b64 {sp(sT2)}
{L}:
s_sub_u32 s{sT2}, s{sT2}, {L}-Lpc
s_subb_u32 s{sT3}, s{sT3}, 0
s_lshr_b32 s{sT0}, s2, 3
s_lshl_b32 s{sT0}, s{sT0}, 2
s_add_u32 s{sT0}, s{sT0}, s{sWV}
s_lshl_b32 s{sT0}, s{sT0}, 7
v_lshl_add_u32 v{vt}, v{vLANE}, 14, s{sT0}
v_min_u32 v{vt}, Lcode_end-Lpc, v{vt}
s_mov_b64 exec, 15""")
        a.vmem(f"global_load_dword v{vt}, v{vt}, {sp(sT2)}", "ct")
        a("s_mov_b64 exec, -1")
    return f

def mall_prefetch(vt):
    def f():
        a(f"""s_lshl_b32 s{sT0}, s2, 2
s_add_u32 s{sT0}, s{sT0}, s{sWV}
s_cmp_ge_u32 s{sT0}, 512
s_cselect_b64 {sp(sT2)}, {sp(pCIM)}, {sp(pCRE)}
s_and_b32 s{sT1}, s{sT0}, 511
s_mul_i32 s{sT1}, s{sT1}, 1600
v_lshl_add_u32 v{vt}, v{vLANE}, 7, s{sT1}
s_mul_i32 s{sT0}, s{sT0}, 25
s_lshr_b32 s{sT0}, s{sT0}, 2
v_add_u32 v{vt+1}, s{sT0}, v{vLANE}
v_mul_u32_u24 v{vt+2}, 6554, v{vt+1}
v_lshrrev_b32 v{vt+2}, 16, v{vt+2}
v_mul_u32_u24 v{vt+2}, 2560, v{vt+2}
v_lshl_add_u32 v{vt+1}, v{vt+1}, 7, v{vt+2}
s_mov_b64 exec, 0x1fff""")
        a.vmem(f"global_load_dword v{vt}, v{vt}, {sp(sT2)}", "mp")
        a("s_mov_b64 exec, 0x7f")
        a.vmem(f"buffer_load_dword v{vt+1}, v{vt+1}, {srd(SQ)}, 0 offen", "mp")
        a("s_mov_b64 exec, -1")
    return f

def args_ready():
    a("s_waitcnt lgkmcnt(0)")
    stamp(11, True)
    stamp(12)
    a(f"s_mov_b32 s{SX}, s{pX}\ns_and_b32 s{SX+1}, s{pX+1}, 0xffff")

def late_setup():
    if E("WSOFF"): a(f"s_add_u32 s{pWS}, s{pWS}, {E('WSOFF') << 20}\ns_addc_u32 s{pWS+1}, s{pWS+1}, 0")
    mk_srd(SWS, pWS, WS_SIZE)
    a(f"""s_add_u32 s{sT2}, s{pWS}, {WS_EPOCH}
s_addc_u32 s{sT3}, s{pWS+1}, 0
s_load_dword s{sTAG}, s[{sT2}:{sT3}], 0""")
    if E("TOUCH"):
        sh = E("TOUCH")
        L = a.label("Ltouch")
        mk_srd(SOUT, pOUT, 2048*2560)
        a(f"""s_cmp_lg_u32 s{sWV}, 3
s_cbranch_scc1 {L}
v_lshlrev_b32 v34, {sh}, v{vLANE}
v_mov_b32 v35, 0""")
        a.vmem(f"buffer_load_dword v36, v34, {srd(SWS)}, 0 offen", "touch", certain=False)
        a.vmem(f"buffer_load_dword v36, v34, {srd(SOUT)}, 0 offen", "touch", certain=False)
        a("s_mov_b64 exec, 1")
        for p in (pCRE, pCIM, pWO, pDSK, pQKV):
            a.vmem(f"global_load_dword v36, v35, {sp(p)}", "touch", certain=False)
        a(f"s_mov_b64 exec, -1\n{L}:")
    for s in range(2, 10):
        if E2("ROT", 3) == 3:
            if s < 5: a(f"s_add_u32 s{sKA+s}, s{sKA+s-1}, 128\ns_cmp_eq_u32 s{sKA+s}, 640\ns_cselect_b32 s{sKA+s}, 0, s{sKA+s}")
            else: a(f"s_add_u32 s{sKA+s}, s{sKA+s-5}, 640")
        else: a(f"s_add_u32 s{sKA+s}, s{sKA+s-1}, 128\ns_cmp_eq_u32 s{sKA+s}, 1280\ns_cselect_b32 s{sKA+s}, 0, s{sKA+s}")
    a(f"""v_and_b32 v52, 15, v{vLANE}
v_lshrrev_b32 v53, 4, v{vLANE}
v_lshrrev_b32 v54, 1, v52
v_xor_b32 v54, v54, v53
v_lshlrev_b32 v54, 4, v54
v_lshl_add_u32 v56, v52, 7, v54
v_xor_b32 v57, 64, v56
v_add_u32 v{vXR}, s{sXB}, v56
v_add_u32 v{vXR+1}, s{sXB}, v57""")
    a(f"""v_bfe_u32 v54, v{vLANE}, 2, 2
v_lshl_add_u32 v54, v53, 3, v54
v_and_b32 v55, 1, v53
v_lshlrev_b32 v55, 2, v55
v_add_u32 v58, v54, v55
v_xor_b32 v55, 4, v55
v_add_u32 v59, v54, v55
v_mul_u32_u24 v58, 160, v58
v_mul_u32_u24 v59, 160, v59
v_and_b32 v60, 3, v{vLANE}
v_mul_u32_u24 v61, 40, v60
v_add_u32 v62, v58, v61
v_add_u32 v63, v59, v61
v_add_u32 v{vT40}, {L_W}, v62
v_add_u32 v{vT40+1}, {L_W}, v63
v_add_u32 v{vT40+2}, {L_W+40960}, v62
v_add_u32 v{vT40+3}, {L_W+40960}, v63""")
    a(f"""s_mul_i32 s{sT2}, s{sCT}, 204800
v_lshl_add_u32 v{vC}, v{vLANE}, 4, s{sT2}
v_add_u32 v{vC+1}, 4096, v{vC}
v_add_u32 v{vC+2}, 8192, v{vC}
s_lshr_b32 s{sT2}, s{sT2}, 1
v_lshl_add_u32 v{vC+3}, v{vLANE}, 4, s{sT2}""")

def kq_tables():
    for s in range(2, 10):
        a(f"s_mul_i32 s{sKQ+s}, s{sKA+s}, 1920")
def lc_tables():
    a(f"""s_lshl_b32 s{sT2}, s{sJL}, 2
s_lshr_b32 s{sOFF}, {os.environ.get('OFFT', '0x3210')}, s{sT2}
s_and_b32 s{sOFF}, s{sOFF}, 15
s_add_u32 s{sOFF}, s{sOFF}, s{sCT}
s_sub_u32 s{sT3}, s{sOFF}, 10
s_cmp_ge_u32 s{sOFF}, 10
s_cselect_b32 s{sOFF}, s{sT3}, s{sOFF}
s_sub_u32 s{sT3}, s{sOFF}, 5
s_cmp_ge_u32 s{sOFF}, 5
s_cselect_b32 s{sOFF}, s{sT3}, s{sOFF}
s_mul_i32 s{sT2}, s{sWV}, 5
s_add_u32 s{sT2}, s{sT2}, s{sOFF}""")
    for i in range(5):
        a(f"s_add_u32 s{sLC+i}, s{sT2}, {i}\ns_sub_u32 s{sT3}, s{sLC+i}, 20\ns_cmp_ge_u32 s{sLC+i}, 20\ns_cselect_b32 s{sLC+i}, s{sT3}, s{sLC+i}")

def capture(fn):
    keep = a.items; a.items = []
    fn()
    got = a.items; a.items = keep
    return got
def groups(lines):
    cons = ("s_cselect", "s_cmov", "s_addc", "s_subb")
    nowr = ("s_mov", "s_movk", "s_mul_i32", "s_cselect", "s_cmov", "v_")
    out = []; i = 0
    while i < len(lines):
        j = i
        if lines[i].startswith("s_") and not lines[i].startswith(nowr):
            k = i + 1
            while k < len(lines):
                if lines[k].startswith(cons): j = k
                if lines[k].startswith("s_") and not lines[k].startswith(nowr): break
                k += 1
        out.append(lines[i:j+1]); i = j + 1
    return out

def tag_ready():
    a(f"""s_waitcnt lgkmcnt(0)
s_add_u32 s{sTAG}, s{sTAG}, 0x9e3779b1""")
    a.lg = []

def set_flag(base, lab, vt, wave=0, atomic=True):
    a(f"""s_cmp_lg_u32 s{sWV}, {wave}
s_cbranch_scc1 {lab}
s_lshl_b32 s{sT0}, s{sJ}, 4
s_add_u32 s{sT0}, s{sT0}, s{sR}
s_mul_i32 s{sT0}, s{sT0}, {FS}
s_add_u32 s{sT0}, s{sT0}, {base}
v_lshl_add_u32 v{vt}, v{vLANE}, 2, s{sT0}
v_mov_b32 v{vt+1}, s{sTAG}
{'s_mov_b64 exec, 1' if atomic and not E('STFLAG') else 's_mov_b32 exec_hi, 0'}""")
    a.vmem(f"{'buffer_atomic_swap' if atomic and not E('STFLAG') else 'buffer_store_dword'} v{vt+1}, v{vt}, {srd(SWS)}, 0 offen sc1", "fl", certain=False)
    a(f"s_mov_b64 exec, -1\n{lab}:")

def pk_cmul_acc(d, l, p, acc):
    a(f"""v_pk_fma_f32 {v2(d)}, {v2(p)}, {v2(l)}, {v2(acc)} op_sel_hi:[1,0,1]
v_pk_fma_f32 {v2(d)}, {v2(p)}, {v2(l)}, {v2(d)} op_sel:[1,1,0] op_sel_hi:[0,1,1] neg_lo:[0,1,0]""")

M0 = [None]
def set_m0(sreg, imm):
    if M0[0] != (sreg, imm):
        a(f"s_add_u32 m0, s{sreg}, {imm}")
        M0[0] = (sreg, imm)
def dma_x(s):
    ops = [("s", lambda: set_m0(sXB, (s%4)*4096))]
    for i in range(4):
        def f(i=i):
            set_m0(sXB, (s%4)*4096)
            a.vmem(f"buffer_load_dwordx4 v{vX+i}, {srd(SX)}, s{sKA+s} offen offset:{i*1024} lds", ("st", s))
        ops.append(("d", f))
    return ops
def dma_w(s, vaddr, rsrc, soff, n=5):
    ops = [("s", lambda: set_m0(sWB, (s%4)*20480))]
    for i in range(4):
        def f(i=i):
            set_m0(sWB, (s%4)*20480)
            a.vmem(f"buffer_load_dwordx4 v{vaddr+i}, {srd(rsrc)}, s{soff} offen offset:{i*1024} lds", ("st", s))
        ops.append(("d", f))
    if n == 4: return ops
    ops.append(("s", lambda: set_m0(sWB, (s%4)*20480+4096)))
    def g():
        set_m0(sWB, (s%4)*20480+4096)
        a.vmem(f"buffer_load_dwordx4 v{vaddr+4}, {srd(rsrc)}, s{soff} offen lds", ("st", s))
    ops.append(("d", g))
    return ops
CHOME = [[b + 4*n for n in range(10)] for b in (160, 200, 0, 40)] + [[136 + 4*n for n in range(6)] + [240 + 4*n for n in range(4)]]
SKH = 136
MH = [a4(80 + 4*n) for n in range(14)] + [v4(152+4*n) for n in range(11)]
def cf_loads(slot, idx=range(10), sx=None):
    sx = sM0 if sx is None else sx
    ops = [("s", lambda: a(f"s_mul_i32 s{sx}, s{sLC+slot}, 10240\ns_add_u32 s{sx}, s{sx}, {WS_CF}"))]
    for n in idx:
        ks, nt = divmod(n, 5)
        f = 2*nt + ks
        ops.append(("d", lambda n=n, f=f: a.vmem(f"buffer_load_dwordx4 {a4(CHOME[slot][n])}, v{vC + f//4}, {srd(SWS)}, s{sx} offen offset:{(f%4)*1024} sc1", ("c", slot))))
    return ops

class BG:
    def __init__(self): self.q = []; self.keys = {}; self.fast = False; self.period = 4
    def add(self, ops, key=None):
        self.q.extend(ops)
        if key is not None: self.keys[key] = ops[-1]
    def require(self, key):
        last = self.keys.get(key)
        while last in self.q:
            print("note: forced flush for", key)
            self.q.pop(0)[1]()
    def tick(self, n=1):
        while n > 0 and self.q:
            k, f = self.q.pop(0)
            f()
            if k != "s": n -= 1
    def tick_s(self):
        while self.q and self.q[0][0] == "s":
            self.q.pop(0)[1]()
    def flush(self):
        while self.q: self.q.pop(0)[1]()

def run_ops(ops):
    for k, f in ops: f()

def gemm_loop(nstage, frags_per_stage, read_frag, mfmas, x_reads, stage_dma, bg, ring, LOOK, hooks, first_stage=0, pre_issued=2, spare=None, spare_end=None):
    FL_ = frags_per_stage if isinstance(frags_per_stage, list) else [frags_per_stage]*nstage
    ids = [(s, i) for s in range(nstage) for i in range(FL_[s])]
    total = len(ids)
    NR = len(ring)
    def sid(f): return ids[f]
    rq = []; last = []
    for f in range(total):
        s, i = sid(f)
        ops = []
        xr = x_reads(s)
        if i in xr: ops += xr[i]
        ops += read_frag(s, i, ring[f % NR])
        if i == 0:
            def first(s=s, e=ops[0]):
                bg.require(s)
                EA = E2("EARLY", 2)
                a.wait(vm=[("st", s)], lg=("all" if s == EA else None))
                a("s_barrier")
                if STGST or os.environ.get('PROBE'): stamp(16 + s)
                d = stage_dma(s + 2)
                if E2("MPF", 0) == 10 + s: bg.add([("d", mall_prefetch(124))])
                if d and s != EA + 1: bg.add(d, s + 2)
                if E2("MPF", 0) == 20 + s: bg.add([("d", mall_prefetch(124))])
                if s == EA:
                    if E2("MPF", 0) == 1: bg.add([("d", mall_prefetch(124))])
                    bg.add(stage_dma(s + 3), s + 3); bg.fast = True
                    if E2("MPF", 0) == 2: bg.add([("d", mall_prefetch(124))])
                if s == EA + 1: bg.fast = False
                e()
            ops[0] = first
        rq += ops
        last.append(len(rq))
    issued = [0]
    def pop(n):
        for _ in range(n):
            rq[issued[0]](); issued[0] += 1
    pop(last[LOOK - 1])
    gap = 0
    spare = groups(spare) if spare else []
    nsp = sum(len(g) for g in spare); done = [0]
    for f in range(total):
        s, i = sid(f)
        if f == spare_end: assert not spare, len(spare)
        if (s, i) in hooks: hooks[(s, i)]()
        a.wait(lg=[("w", s, i)])
        ms = mfmas(s, i, ring[f % NR])
        need = last[min(f + LOOK - 1, total - 1)]
        for half, m in enumerate(ms):
            m()
            maxi = last[min(f + LOOK, f + NR - 1 + (1 if half == len(ms) - 1 else 0), total - 1)]
            period = 2 if bg.fast else bg.period
            due = lambda g: bool(bg.q) and g % period == 1
            if due(gap):
                bg.tick(1)
                if half == len(ms) - 1 and need > issued[0]: pop(need - issued[0])
            else:
                usable = 1 + sum(1 for g in range(gap + 1, gap + len(ms) - half) if not due(g))
                n = max(1, -(-(need - issued[0]) // usable))
                if due(gap + 1) and half == len(ms) - 1: pass
                pop(max(0, min(n, maxi - issued[0])))
                if due(gap + 1): bg.tick_s()
                while spare and done[0] * (spare_end - 3) < nsp * (f + (half + 1) / len(ms)):
                    g = spare.pop(0); done[0] += len(g)
                    for l in g: a(l)
            gap += 1

LOG2E = 0x3fb8aa3b
def phi(regs, sconst_log2e, tmp, NT=4):
    for n, r in enumerate(regs):
        t = tmp + (n % NT) * 2
        a(f"v_pk_mul_f32 {v2(t)}, {v2(r)}, {sp(sconst_log2e)} op_sel_hi:[1,0]")
        a(f"v_max_f32 v{r}, 0x358637bd, v{r}\nv_max_f32 v{r+1}, 0x358637bd, v{r+1}")
        a(f"v_exp_f32_e64 v{t}, v{t} clamp\nv_exp_f32_e64 v{t+1}, v{t+1} clamp")
        if n > 0:
            rp = regs[n-1]; tp = tmp + ((n-1) % NT) * 2
            a(f"v_pk_add_f32 {v2(rp)}, {v2(rp)}, {v2(tp)}")
    rp = regs[-1]; tp = tmp + ((len(regs)-1) % NT) * 2
    a(f"v_pk_add_f32 {v2(rp)}, {v2(rp)}, {v2(tp)}")

def cmul_acc(dr, di, lr, li, pr, pi, ar, ai):
    a(f"""v_fma_f32 v{dr}, v{lr}, v{pr}, v{ar}
v_fma_f32 v{di}, v{lr}, v{pi}, v{ai}
v_fma_f32 v{dr}, -v{li}, v{pi}, v{dr}
v_fma_f32 v{di}, v{li}, v{pr}, v{di}""")

K_AH = 32
K_AB = [112, 132]
K_vA, K_vM = 2, 6
K_vFB, K_vFM, K_vGA, K_vRW, K_vTmp = 11, 12, 13, 14, 15
K_vG = 18
K_FO, K_FL = 246, 247
K_sMT = sKQ + 5
def time_base(dst, srt, tmp):
    a(f"""s_lshr_b32 s{dst}, s{srt}, 1
s_lshl_b32 s{dst}, s{dst}, 5
s_and_b32 s{tmp}, s{srt}, 1
s_lshl_b32 s{tmp}, s{tmp}, 1
s_add_u32 s{dst}, s{dst}, s{tmp}""")
def skip_setup(t, sx, sd):
    mk_srd(SOUT, pDSK, 1280)
    a(f"""s_add_u32 s{sT0}, s{sWV}, s{sCT}
s_and_b32 s{sT0}, s{sT0}, 3
s_lshl_b32 s{sx}, s{sRB}, 2
s_add_u32 s{sT0}, s{sT0}, s{sx}""")
    time_base(sx, sT0, sd)
    a(f"""s_mul_i32 s{sx}, s{sx}, 1280
s_mul_i32 s{sd}, s{sCT}, 160
s_add_u32 s{sx}, s{sx}, s{sd}
v_bfe_u32 v{t}, v{vLANE}, 5, 1
v_bfe_u32 v{t+1}, v{vLANE}, 4, 1
v_lshl_add_u32 v{t}, v{t+1}, 2, v{t}
v_mul_u32_u24 v{t}, 1280, v{t}
v_lshrrev_b32 v{t+1}, 4, v{vLANE}
v_mul_u32_u24 v{t+1}, 17, v{t+1}
v_sub_u32 v{t+1}, v{vLANE}, v{t+1}
v_med3_i32 v{t+1}, v{t+1}, 0, 9
v_lshl_add_u32 v{t}, v{t+1}, 4, v{t}""")
def skip_loads(t, sx, sd, sbase, off):
    ops = [("s", lambda: set_m0(sbase, off))]
    for i in range(4):
        def f(i=i):
            set_m0(sbase, off)
            a.vmem(f"buffer_load_dwordx4 v{t}, {srd(SX)}, s{sx} offen offset:{i*1088} lds", "fx")
        ops.append(("d", f))
        if i < 3: ops.append(("s", lambda: a(f"s_add_u32 s{sx}, s{sx}, {10240-1088}")))
    ops.append(("s", lambda: set_m0(sbase, off + 4288)))
    def g():
        set_m0(sbase, off + 4288)
        a("s_mov_b64 exec, 0x3ff")
        a.vmem(f"buffer_load_dwordx4 v{t}, {srd(SOUT)}, s{sd} offen lds", "fx")
        a("s_mov_b64 exec, -1")
    ops.append(("d", g))
    return ops
def skip_reads(t, sbase, off, AB):
    def setup():
        a(f"""s_add_u32 s{sT0}, s{sbase}, {off}
v_lshrrev_b32 v{t}, 4, v{vLANE}
v_lshl_add_u32 v{t}, v{t}, 3, s{sT0}
v_and_b32 v{t+1}, 15, v{vLANE}
v_mul_u32_u24 v{t+1}, 272, v{t+1}
v_add_u32 v{t+1}, v{t+1}, v{t}""")
        a.wait(vm="fx")
    ops = [("s", setup)]
    for nt in range(5):
        ops.append(("r", lambda nt=nt: a.lds(f"ds_read_b64 a[{AB+2*nt}:{AB+1+2*nt}], v{t+1} offset:{nt*32}", "sk")))
        ops.append(("r", lambda nt=nt: a.lds(f"ds_read_b64 a[{AB+10+2*nt}:{AB+11+2*nt}], v{t} offset:{4288 + nt*32}", "sk")))
    return ops
def skip_math(t, AB, bg=None):
    for n in range(10):
        d = K_AH + 2*n
        a(f"""v_accvgpr_read_b32 v{t+1}, a{AB+n}
v_accvgpr_read_b32 v{t+3}, a{AB+10+n}
v_lshlrev_b32 v{t}, 16, v{t+1}
v_and_b32 v{t+1}, 0xffff0000, v{t+1}
v_lshlrev_b32 v{t+2}, 16, v{t+3}
v_and_b32 v{t+3}, 0xffff0000, v{t+3}
v_pk_mul_f32 {v2(t)}, {v2(t)}, {v2(t+2)}
v_cvt_pk_bf16_f32 v{t}, v{t}, v{t+1}
v_lshlrev_b32 v{d}, 16, v{t}
v_and_b32 v{d+1}, 0xffff0000, v{t}""")
        if bg: bg.tick(1)
def k2_flags(t, vfb, vfm):
    a(f"""s_lshr_b32 s{sT2}, s{sRB}, 1
v_lshl_add_u32 v{t}, v{vLANE}, 4, s{sT2}
v_mul_u32_u24 v{t}, {FS}, v{t}
v_add_u32 v{vfb}, {FB}, v{t}
s_and_b32 s{sT3}, s{sRB}, 1
s_mul_i32 s{sT3}, s{sT3}, {64*FS}
s_add_u32 s{sT3}, s{sT3}, {FM - 256*FS}
v_add_u32 v{t}, s{sT3}, v{t}
s_lshl_b32 s{sT2}, s{sCT}, 1
v_lshrrev_b32 v{vfm}, 1, v{vLANE}
v_lshl_add_u32 v{vfm}, v{vfm}, 4, s{sT2}
v_and_b32 v{t+1}, 1, v{vLANE}
v_add_u32 v{vfm}, v{vfm}, v{t+1}
v_mul_u32_u24 v{vfm}, {FS}, v{vfm}
v_add_u32 v{vfm}, {FM}, v{vfm}
v_cmp_gt_u32 vcc, 16, v{vLANE}
v_cndmask_b32 v{vfm}, v{t}, v{vfm}, vcc
v_subrev_u32 v{t}, {20*16*FS}, v{vfb}
v_cmp_gt_u32 vcc, 20, v{vLANE}
v_cndmask_b32 v{vfm}, v{t}, v{vfm}, vcc
v_subrev_u32 v{vfb}, {FB - FW}, v{vfb}""")
def k2_mt():
    a(f"s_add_u32 s{sT0}, s{sWV}, s{sCT}")
    for i in range(4):
        a(f"s_add_u32 s{K_sMT+i}, s{sT0}, {i}\ns_and_b32 s{K_sMT+i}, s{K_sMT+i}, 3")
def k2_min(l16):
    for i in range(4):
        a(f"s_mul_i32 s{sT1}, s{K_sMT+i}, {RT}\nv_add_u32 v{K_vA+i}, s{sT1}, v{l16}")
    a(f"""s_mul_i32 s{sT0}, s{sRB}, {4*RT}
s_lshl_b32 s{sT2}, s{sLC}, 11
s_add_u32 s{sKA}, s{sT0}, s{sT2}""")
def k2_offs(slots):
    a(f"s_mul_i32 s{sT0}, s{sRB}, {4*RT}\ns_add_u32 s{sT3}, s{sT0}, 40960")
    for i in slots:
        a(f"""s_lshl_b32 s{sT2}, s{sLC+i}, 11
s_add_u32 s{sKA+i}, s{sT0}, s{sT2}
s_lshl_b32 s{sT2}, s{sLC+i}, 10
s_add_u32 s{sKA+5+i}, s{sT3}, s{sT2}""")
def k2_rest(t):
    k2_offs([0, 1, 2, 3, 4])
def k2_fin(t):
    q2, q3, q4, q5 = 34, 35, 36, 37
    mk_srd(SOUT, pOUT, 2048*2560)
    a(f"s_lshl_b32 s{q2}, s{sRB}, 2\ns_add_u32 s{q2}, s{q2}, s{sWV}")
    time_base(q3, q2, q4)
    a(f"""s_mul_i32 s{q4}, s{sCT}, 320
s_mul_i32 s{q5}, s{sWV}, {16*320}
v_lshrrev_b32 v{t}, 4, v{vLANE}
v_lshlrev_b32 v{t}, 3, v{t}
v_bfe_u32 v{t+1}, v{vLANE}, 3, 1
v_add_u32 v{t}, v{t}, v{t+1}
v_bfe_u32 v{t+1}, v{vLANE}, 2, 1
v_lshl_add_u32 v{t}, v{t+1}, 2, v{t}
v_add_u32 v{t}, s{q3}, v{t}
v_mul_u32_u24 v{t}, 2560, v{t}
v_and_b32 v{t+1}, 3, v{vLANE}
v_lshl_add_u32 v{t+2}, v{t+1}, 4, s{q4}
v_add_u32 v{K_FO}, v{t}, v{t+2}
v_bfe_u32 v{t+2}, v{vLANE}, 3, 2
v_xor_b32 v{t+1}, v{t+1}, v{t+2}
v_lshrrev_b32 v{t}, 2, v{vLANE}
v_mul_u32_u24 v{t}, 320, v{t}
v_lshl_add_u32 v{t}, v{t+1}, 4, v{t}
v_add_u32 v{K_FL}, s{q5}, v{t}""")
    a(f"""v_and_b32 v{t}, 15, v{vLANE}
v_lshrrev_b32 v{t+1}, 4, v{vLANE}
v_bfe_u32 v{t+2}, v{vLANE}, 1, 2
v_xor_b32 v{t+1}, v{t+1}, v{t+2}
v_mul_u32_u24 v{t}, 320, v{t}
v_lshl_add_u32 v{t}, v{t+1}, 4, v{t}
s_mul_i32 s{q2}, s{sWV}, {64*320}
v_add_u32 v{K_vRW}, s{q2}, v{t}""")

def wf_loads(vb, sx, lo=0, hi=25):
    ops = []
    for n in range(lo, hi):
        i, nt = divmod(n, 5)
        if nt == 0 or n == lo: ops.append(("s", lambda i=i, nt=nt: a(f"s_lshl_b32 s{sx}, s{sLC+i}, 10\ns_add_u32 s{sx}, s{sx}, {WS_M + nt*20480}")))
        else: ops.append(("s", lambda: a(f"s_add_u32 s{sx}, s{sx}, 20480")))
        ops.append(("d", lambda n=n: a.vmem(f"buffer_load_dwordx4 {MH[n]}, v{vb}, {srd(SWS)}, s{sx} offen sc1", "M")))
    return ops
vWF = vC + 3
def flag_touch(base, vd):
    a(f"""s_lshl_b32 s{sT0}, s{sJ}, 4
s_add_u32 s{sT0}, s{sT0}, s{sR}
s_mul_i32 s{sT0}, s{sT0}, {FS}
s_add_u32 s{sT0}, s{sT0}, {base}
s_mov_b64 exec, 1""")
    a.vmem(f"buffer_load_dword v{vd}, v{vLANE}, {srd(SWS)}, s{sT0} offen", "pt")
    a("s_mov_b64 exec, -1")

def type_A():
    bg = BG()
    AK, AG = ACC, ACC + 80
    RING = [116 + 4*i for i in range(8)]
    sZB, sKVB, sGA, sMa, sMb, sMc, sMd, sGB = 34, 35, 36, 37, 38, 39, 40, 41
    sMK = 60
    sGW = 46
    a(f"""s_lshr_b32 s{sT2}, s{sWV}, 1
s_add_u32 s{sT2}, s{sT2}, 1
s_mul_i32 s{sT2}, s{sT2}, 1280
s_mul_i32 s{sT3}, s{sJ}, 160
s_add_u32 s{sT2}, s{sT2}, s{sT3}
s_and_b32 s{sT3}, s{sWV}, 1
s_mul_i32 s{sT3}, s{sT3}, {32*3840}
s_add_u32 s{sT2}, s{sT2}, s{sT3}
s_mul_i32 s{sKQ}, s{sKA}, 1920
s_mul_i32 s{sKQ+1}, s{sKA+1}, 1920""")
    wq_pattern(vW, sT2)
    args_ready()
    a(f"s_mov_b32 s{SQ}, s{pQKV}\ns_and_b32 s{SQ+1}, s{pQKV+1}, 0xffff")
    def stage_dma(s):
        if s >= 10: return None
        if s == 3: return dma_w(s, vW, SQ, sKQ + s) + [("s", x3_guard)] + dma_x(s)
        return dma_x(s) + dma_w(s, vW, SQ, sKQ + s)
    done = {}
    def x3_guard(): assert done.get("wf")
    run_ops(stage_dma(0))
    mk_srd(SW, pGW, 1280)
    a(f"""s_and_b32 s{sT2}, s{sWV}, 1
s_lshl_b32 s{sT2}, s{sT2}, 10
v_lshlrev_b32 v64, 4, v{vLANE}""")
    set_m0(sT2, L_GW)
    a.vmem(f"buffer_load_dwordx4 v64, {srd(SW)}, s{sT2} offen lds", ("st", 0))
    late_setup()
    kq_tables()
    vXM = vQ + 1
    a(f"""v_lshlrev_b32 v61, 3, v60
v_add_u32 v62, v58, v61
v_add_u32 v63, v59, v61
v_add_u32 v{vWR}, {L_W}, v62
v_add_u32 v{vWR+1}, {L_W}, v63
v_add_u32 v{vWR+2}, {L_W+40960}, v62
v_add_u32 v{vWR+3}, {L_W+40960}, v63
v_lshrrev_b32 v{vQ}, 4, v{vLANE}
v_lshlrev_b32 v{vQ}, 4, v{vQ}
v_add_u32 v{vQ}, {L_GW}, v{vQ}
s_and_b32 s{sT2}, s{sJ}, 1
s_lshl_b32 s{sT2}, s{sT2}, 11
s_xor_b32 s{sT3}, s{sT2}, 2048
v_add_u32 v{vXM}, s{sT2}, v{vXR}
v_add_u32 v{vXM+1}, s{sT2}, v{vXR+1}
v_add_u32 v{vXM+2}, s{sT3}, v{vXR}
v_add_u32 v{vXM+3}, s{sT3}, v{vXR+1}""")
    mk_srd(SW, pWO, 640*1280)
    a(f"""s_and_b32 s{sT1}, s{sR}, 1
s_mul_i32 s{sT2}, s{sT1}, 40
s_mul_i32 s{sT3}, s{sJ}, 80
s_add_u32 s{sT2}, s{sT2}, s{sT3}
s_mul_i32 s{sT2}, s{sT2}, 1280
s_lshr_b32 s{sT3}, s{sR}, 1
s_mul_i32 s{sT3}, s{sT3}, 160
s_add_u32 s{sT2}, s{sT2}, s{sT3}
s_mov_b32 s{sM0}, s{sT2}
s_lshl_b32 s{sM1}, s{sWV}, 10
v_mov_b32 v211, {OOB}""")
    for n in range(2):
        a(f"""v_add_u32 v65, {256*n}, v0
v_mul_u32_u24 v66, 6554, v65
v_lshrrev_b32 v66, 16, v66
v_mul_u32_u24 v67, 10, v66
v_sub_u32 v67, v65, v67
v_mul_u32_u24 v66, 1280, v66
v_lshl_add_u32 v66, v67, 4, v66
v_cmp_gt_u32 vcc, 400, v65
v_cndmask_b32 v{72+n}, v211, v66, vcc""")
    def wo_dma():
        for n in range(2):
            set_m0(sM1, L_WO + 4096*n)
            if n == 1:
                a(f"s_cmp_eq_u32 s{sWV}, 3\ns_cbranch_scc1 LskipWo")
                a.vmem(f"buffer_load_dwordx4 v73, {srd(SW)}, s{sM0} offen lds", ("st", E2("PST", 0)), certain=False)
                a("LskipWo:")
            else:
                a.vmem(f"buffer_load_dwordx4 v72, {srd(SW)}, s{sM0} offen lds", ("st", E2("PST", 0)))
    PST = E2("PST", 0)
    if PST == 0: wo_dma()
    sCS, sCU = 54, 52
    a(f"""s_lshl_b32 s{sT2}, s{sJ}, 1
s_add_u32 s{sT2}, s{sT2}, s{sT1}
s_lshl_b32 s{sT2}, s{sT2}, 2
s_add_u32 s{sT2}, s{sT2}, s{sWV}
s_lshl_b32 s{sT2}, s{sT2}, 1
s_cmp_ge_u32 s{sT2}, 50
s_cselect_b32 s{SOUT}, s{pCIM}, s{pCRE}
s_cselect_b32 s{SOUT+1}, s{pCIM+1}, s{pCRE+1}
s_cselect_b32 s{sT5}, 1280, 0
s_and_b32 s{SOUT+1}, s{SOUT+1}, 0xffff
s_mov_b32 s{SOUT+2}, {640*1280}
s_mov_b32 s{SOUT+3}, 0x20000
s_lshr_b32 s{sT3}, s{sR}, 1
s_mul_i32 s{sCS}, s{sT3}, 100
s_add_u32 s{sCS}, s{sCS}, s{sT2}
s_lshl_b32 s{sCS}, s{sCS}, 11
s_add_u32 s{sCS}, s{sCS}, {WS_CF}
s_mul_i32 s{sT3}, s{sT3}, {80*1280}
s_sub_u32 s{sT5}, s{sT3}, s{sT5}
s_cmp_ge_u32 s{sT2}, 100
s_cmov_b32 s{sCS}, {OOB}
s_cmov_b32 s{sT5}, {OOB}
v_add_u32 v74, {10240-1024}, v46""")
    for k in range(2):
        a(f"""s_mul_i32 s{sT3}, s{sT2}, 13108
s_lshr_b32 s{sT3}, s{sT3}, 16
s_mul_i32 s{sT4}, s{sT3}, 5
s_sub_u32 s{sT4}, s{sT2}, s{sT4}
s_mul_i32 s{sT4}, s{sT4}, {16*1280}
s_lshl_b32 s{sT3}, s{sT3}, 7
s_add_u32 s{sT3}, s{sT3}, s{sT4}
s_add_u32 s{sCU+k}, s{sT3}, s{sT5}
s_add_u32 s{sT2}, s{sT2}, 1""")
    def cu_dma():
        for k in range(2):
            set_m0(sXB, 12288 + k*2048)
            a.vmem(f"buffer_load_dwordx4 v45, {srd(SOUT)}, s{sCU+k} offen lds", ("st", PST))
            a.vmem(f"buffer_load_dwordx4 v74, {srd(SOUT)}, s{sCU+k} offen offset:1024 lds", ("st", PST))
    if PST == 0: cu_dma()
    vGS, vZ1, vZ2, vK1, vK2, vK3, vK4 = 212, 213, 214, 215, 216, 217, 218
    vXW, vR0, vR1, vKP, vKB = 219, 220, 221, 222, 223
    vOa0, vOa1, vOb0, vOb1, vOc0, vOc1 = 224, 225, 226, 227, 228, 229
    vWo = 230
    vMS, vMR, vONE, vTG = 234, 235, 236, 237
    ZR = L_KVB + 2560
    def precompute():
        a(f"""v_and_b32 v208, 15, v{vLANE}
v_lshrrev_b32 v209, 4, v{vLANE}
v_lshrrev_b32 v210, 2, v208
v_lshlrev_b32 v{vGS}, 4, v209
v_lshl_add_u32 v{vGS}, v208, 6, v{vGS}
v_cmp_gt_u32 vcc, 2, v208
v_cndmask_b32 v{vGS}, v211, v{vGS}, vcc
s_lshl_b32 s{sGB}, s{sR}, 3
s_add_u32 s{sGB}, s{sGB}, s{sJ}
s_lshl_b32 s{sGB}, s{sGB}, 7
s_add_u32 s{sGB}, s{sGB}, {WS_G}
v_cmp_eq_u32 {sp(sMK)}, s{sWV}, v210
v_cmp_eq_u32 {sp(sT4)}, s{sWV}, v209
s_add_u32 s{sT2}, s{sWV}, 1
s_and_b32 s{sT2}, s{sT2}, 3
s_lshl_b32 s{sT2}, s{sT2}, 2
v_and_b32 v240, 3, v208
v_add_u32 v241, 16, v240
v_lshlrev_b32 v241, 4, v241
v_cndmask_b32 v241, v211, v241, {sp(sMK)}
v_mov_b32 v243, 320
v_cmp_eq_u32 vcc, s{sT2}, v208
v_cndmask_b32 v241, v241, v243, vcc
v_mul_u32_u24 v242, 336, v209
v_lshl_add_u32 v{vK1}, v208, 4, v242
v_lshlrev_b32 v{vK2}, 4, v208
v_cndmask_b32 v{vK2}, v211, v{vK2}, {sp(sT4)}
v_add_u32 v{vK3}, v241, v242
v_cndmask_b32 v{vK4}, v211, v241, {sp(sT4)}
s_lshl_b32 s{sT2}, s{sJ}, 4
s_add_u32 s{sT2}, s{sT2}, s{sR}
s_lshl_b32 s{sZB}, s{sT2}, 9
s_add_u32 s{sZB}, s{sZB}, {WS_KVR}
s_mul_i32 s{sKVB}, s{sT2}, 6720
s_mul_i32 s{sT3}, s{sWV}, 1680
s_add_u32 s{sKVB}, s{sKVB}, s{sT3}
s_add_u32 s{sKVB}, s{sKVB}, {WS_KVP}
v_lshlrev_b32 v{vR0}, 4, v{vLANE}
v_add_u32 v{vXW}, s{sXB}, v{vR0}
s_lshl_b32 s{sT2}, s{sWV}, 10
v_add_u32 v{vR1}, s{sT2}, v{vR0}
s_mul_i32 s{sT2}, s{sR}, 27
v_and_b32 v242, 31, v{vLANE}
v_min_u32 v242, 26, v242
v_add_u32 v242, s{sT2}, v242
v_min_u32 v242, 419, v242
v_lshrrev_b32 v243, 5, v{vLANE}
v_mul_u32_u24 v243, {8*6720}, v243
v_lshl_add_u32 v{vKP}, v242, 4, v243
s_mul_i32 s{sGA}, s{sJ}, {16*6720}
s_add_u32 s{sGA}, s{sGA}, {WS_KVP}
s_and_b32 s{sT1}, s{sR}, 1""")
        a(f"""v_and_b32 v242, 1, v209
v_mul_u32_u24 v242, 20, v242
v_add_u32 v242, v242, v210
v_mul_u32_u24 v243, 160, v242
v_lshl_add_u32 v243, v240, 3, v243
v_add_u32 v{vWo+3}, {L_WO + 16*160}, v243
v_lshrrev_b32 v242, 1, v209
v_mul_u32_u24 v242, {8*160}, v242
v_add_u32 v243, v243, v242
v_add_u32 v{vWo+2}, {L_WO}, v243
s_lshl_b32 s{sT2}, s{sWV}, 5
v_add_u32 v{vWo}, s{sT2}, v{vWo+2}
v_add_u32 v{vWo+1}, s{sT2}, v{vWo+3}""")
        a(f"""v_and_b32 v242, 1, v209
v_lshrrev_b32 v243, 1, v209
v_lshl_add_u32 v242, v243, 2, v242
v_lshlrev_b32 v242, 8, v242
v_lshl_add_u32 v{vMS}, v208, 4, v242
v_mul_u32_u24 v243, {4*20480}, v209
v_lshl_add_u32 v243, v208, 4, v243
s_cmp_eq_u32 s{sWV}, 0
s_cselect_b32 s{sT0}, 2, 1
v_cmp_gt_u32 vcc, s{sT0}, v209
v_cndmask_b32 v{vMR}, v211, v243, vcc
s_lshr_b32 s{sT0}, s{sR}, 1
s_mul_i32 s{sT0}, s{sT0}, {5*20480}
s_mul_i32 s{sT2}, s{sJ}, 2560
s_add_u32 s{sT0}, s{sT0}, s{sT2}
s_add_u32 s{sT0}, s{sT0}, {WS_M}
s_lshl_b32 s{sT2}, s{sT1}, 9
s_add_u32 s{sT2}, s{sT2}, s{sT0}
s_lshl_b32 s{sT3}, s{sT1}, 8
s_add_u32 s{sT3}, s{sT3}, s{sT0}
s_mul_i32 s{sT0}, s{sWV}, 20480
s_add_u32 s{sMa}, s{sT2}, s{sT0}
s_add_u32 s{sMb}, s{sT3}, s{sT0}
s_add_u32 s{sT2}, s{sT2}, {4*20480}
s_add_u32 s{sT3}, s{sT3}, {4*20480}
s_cmp_eq_u32 s{sWV}, 0
s_cselect_b32 s{sMc}, s{sT2}, {OOB}
s_cselect_b32 s{sMd}, s{sT3}, {OOB}
v_mov_b32 v{vONE}, 0x3f803f80""")
    vFBa, vFMa = 223, 224
    pieces = [precompute, lambda: k2_flags(240, vFBa, vFMa), lc_tables]
    nin = 3
    for f in pieces[:nin]: f()
    spareA = capture(lambda: [f() for f in pieces[nin:]])
    stamp(34)
    if E2("IW", 0):
        a(f"""Lladder:
s_mov_b64 exec, 0
s_mov_b32 s{sT0}, s{sWV}
Lwret:
s_mov_b32 s{sT1}, s{sT0}
s_add_u32 s{sT0}, s{sT0}, 4
;LADDER
s_mov_b64 exec, -1
s_cmp_eq_u32 s100, 1
s_cbranch_scc1 LB_cont
s_branch LA_cont
.p2align 12
LA_cont:""")
    if PST == 0: run_ops(stage_dma(1))
    else:
        run_ops(stage_dma(1)); wo_dma(); cu_dma()
    skip_setup(238, 56, 57)
    def wf_read():
        for ts in range(2):
            o = 128 if ts else 0
            for hh in range(2):
                a.lds(f"ds_read_b64_tr_b16 {v2(196 + 4*ts + 2*hh)}, v{vWo + 2*ts} offset:{o + hh*640}", "wof")
            a.lds(f"ds_read_b64_tr_b16 {v2(204 + 2*ts)}, v{vWo + 2*ts + 1} offset:{o}", "wof")
        for q in range(4):
            a.lds(f"ds_read_b128 {v4(152 + 4*q)}, v{vXR + q%2} offset:{12288 + (q//2)*2048}", "wof")
    def wf_wait():
        a.wait(lg="wof")
        done["wf"] = True
    def wf_store():
        a("v_permlane16_swap_b32 v204, v206\nv_permlane16_swap_b32 v205, v207")
        ops = [f"buffer_store_dwordx4 {v4(152 + 4*q)}, v{vR0}, {srd(SWS)}, s{sCS} offen offset:{q*1024} sc1" for q in range(4)]
        ops += [f"buffer_store_dwordx4 v[196:199], v{vMS}, {srd(SWS)}, s{sMa} offen sc1",
                f"buffer_store_dwordx4 v[200:203], v{vMS}, {srd(SWS)}, s{sMc} offen sc1",
                f"buffer_store_dwordx4 v[204:207], v{vMR}, {srd(SWS)}, s{sMb} offen offset:2048 sc1"]
        ops = [("d", lambda t=t: a.vmem(t, "mst")) for t in ops]
        if E2("SPR", 0): bg.add(ops); bg.fast = True
        else: run_ops(ops)
    def wf_flag():
        assert a._cnt(a.vm, "mst") is None
        set_flag(FM, "LA_nf2", 150, wave=3, atomic=False)
    tag_ready()
    a(f"""s_and_b32 s{sT2}, s{sTAG}, 0xff
v_mov_b32 v{vTG}, s{sT2}
s_lshr_b32 s{sT2}, s{sJ}, 1
s_sub_u32 s{sGW}, s{sT2}, s{sWV}""")
    stamp(0)
    XA = lambda s, ks, m: (s % 2) * 16 + ks * 8 + m * 4
    def x_reads(s):
        def mk(ks):
            return [(lambda m=m: a.lds(f"ds_read_b128 {a4(XA(s, ks, m))}, v{vXM+2*m+ks} offset:{(s%4)*4096}", ("x", s, ks))) for m in range(2)]
        return {0: mk(0), 11: mk(1)}
    def read_frag(s, i, reg):
        ks, t = divmod(i, 11)
        sl = s % 4
        if t == 10:
            def g():
                if ks == 0: a(f"v_add_u32 v148, s{sKA+s}, v{vQ}")
                a.lds(f"ds_read_b128 {v4(reg)}, v148 offset:{ks*64}", ("w", s, i))
            return [g]
        seg, T = divmod(t, 5)
        off = (sl % 2) * 20480 + seg * 10240 + ks * 5120
        out = []
        for hh in range(2):
            if T < 4: va, o = vWR + (sl // 2) * 2 + hh, off + 40 * T
            else: va, o = vT40 + (sl // 2) * 2 + hh, off + 32
            out.append(lambda hh=hh, va=va, o=o: a.lds(f"ds_read_b64_tr_b16 {v2(reg + 2*hh)}, v{va} offset:{o}", ("w", s, i)))
        return out
    def mfmas(s, i, reg):
        ks, t = divmod(i, 11)
        first = (s == 0 and ks == 0)
        if t == 10:
            def g():
                L = a.label("Lng")
                a(f"s_cmp_lg_u32 s{sGW}, 0\ns_cbranch_scc1 {L}")
                mfma(v4(AG), a4(XA(s, ks, 0)), v4(reg), "0" if first else v4(AG))
                a(f"{L}:")
            return [g]
        out = []
        for m in range(2):
            d = ACC + t * 8 + m * 4
            c = "0" if first else v4(d)
            out.append(lambda d=d, m=m, c=c: mfma(v4(d), a4(XA(s, ks, m)), v4(reg), c))
        return out
    def a_loads():
        bg.flush()
        fl_check(vFMa, 151, "0xffff", "pfm")
        bg.add(cf_loads(0) + cf_loads(1) + wf_loads(vWF, sT5) + cf_loads(3) + cf_loads(2) + cf_loads(4, range(5, 10)))
    WS0 = PST
    WST = E2('WST', 0)
    hooksA = {(WS0, 0): wf_read, (WS0, 2): wf_wait, (WST, E2('WFD', 3)): wf_store, (WST + E2('WFE', 3), 0): wf_flag, (WST + 1, 4): lambda: setattr(bg, 'fast', False),
              (8, 0): lambda: bg.add(skip_loads(238, 56, 57, sXB, 10240) + [('d', code_touch(149)), ('d', lambda: fl_issue(vFMa, 151, '0xffff', 'pfm'))]),
              (8, E2("AL0", 16)): a_loads}
    gemm_loop(10, 22, read_frag, mfmas, x_reads, stage_dma, bg, RING, 7, hooksA, spare=spareA, spare_end=8*22)
    stamp(1)
    a(f"s_mov_b32 s{sT2}, {LOG2E}\ns_movk_i32 s{sT3}, 0xff")
    T = 196
    def pack(t):
        dst = ACC + t*8
        for q in range(4):
            a(f"v_cvt_pk_bf16_f32 v{dst+q}, v{ACC + t*8 + 2*q}, v{ACC + t*8 + 2*q + 1}")
        a.lds(f"ds_write_b128 v{vXW}, {v4(dst)} offset:{t*1024}", "kvx")
    for t in range(5):
        phi([AK + 8*t + 2*n for n in range(2)], sT2, T)
        pack(5 + t)
        phi([AK + 8*t + 2*n for n in range(2, 4)], sT2, T)
        pack(t)
        bg.tick(E2("APT", 2))
    stamp(38)
    a.wait(lg="all")
    a("s_barrier")
    stamp(39)
    F0 = 32
    for w in range(4):
        b = F0 + w * 16
        a.lds(f"ds_read_b128 {v4(b+12)}, v{vR0} offset:{w*16384 + 9216}", ("kr", w))
        a.lds(f"ds_read_b128 {v4(b)}, v{vR1} offset:{w*16384}", ("kr", w))
        a.lds(f"ds_read_b128 {v4(b+4)}, v{vR0} offset:{w*16384 + 4096}", ("kr", w))
        a.lds(f"ds_read_b128 {v4(b+8)}, v{vR1} offset:{w*16384 + 5120}", ("kr", w))
    P = 96
    bg.tick(E2("AE", 3))
    for w in range(4):
        b = F0 + w * 16
        if w and E2("AE", 3): bg.tick(1)
        a.wait(lg=[("kr", w)])
        for q in range(4): a(f"v_cndmask_b32 v{b+12+q}, v{vONE}, v{b+12+q}, {sp(sMK)}")
        c = lambda n: "0" if w == 0 else v4(P + 4*n)
        mfma(v4(P), v4(b), v4(b+8), c(0))
        mfma(v4(P+4), v4(b+4), v4(b+8), c(1))
        mfma(v4(P+8), v4(b), v4(b+12), c(2))
        mfma(v4(P+12), v4(b+4), v4(b+12), c(3))
    for n in range(4):
        for q in (0, 2):
            a(f"v_bfi_b32 v{P+4*n+q}, s{sT3}, v{vTG}, v{P+4*n+q}")
    a.vmem(f"buffer_store_dwordx4 {v4(P)}, v{vK1}, {srd(SWS)}, s{sKVB} offen sc1", "kvst")
    a.vmem(f"buffer_store_dwordx4 {v4(P+4)}, v{vK2}, {srd(SWS)}, s{sKVB} offen offset:1344 sc1", "kvst")
    a.vmem(f"buffer_store_dwordx4 {v4(P+8)}, v{vK3}, {srd(SWS)}, s{sKVB} offen sc1", "kvst")
    a.vmem(f"buffer_store_dwordx4 {v4(P+12)}, v{vK4}, {srd(SWS)}, s{sKVB} offen offset:1344 sc1", "kvst")
    stamp(2)
    bg.tick(3)
    run_ops(skip_reads(T, sXB, 10240, SKH))
    a(f"s_cmp_lg_u32 s{sGW}, 0\ns_cbranch_scc1 LA_ng")
    for q in range(2):
        r = AG + 2*q
        a(f"""v_cvt_pk_bf16_f32 v{T+1}, v{r}, v{r+1}
v_lshlrev_b32 v{r}, 16, v{T+1}
v_and_b32 v{r+1}, 0xffff0000, v{T+1}
v_mul_f32 v{r}, 0xbfb8aa3b, v{r}
v_mul_f32 v{r+1}, 0xbfb8aa3b, v{r+1}
v_exp_f32 v{r}, v{r}
v_exp_f32 v{r+1}, v{r+1}
s_nop 0
v_add_f32 v{r}, 1.0, v{r}
v_add_f32 v{r+1}, 1.0, v{r+1}
v_rcp_f32 v{r}, v{r}
v_rcp_f32 v{r+1}, v{r+1}
s_nop 0
v_cvt_pk_bf16_f32 v{T+1}, v{r}, v{r+1}
v_lshl_or_b32 v{r}, v{T+1}, 16, v{vTG}
v_and_b32 v{r+1}, 0xffff0000, v{T+1}
v_or_b32 v{r+1}, v{r+1}, v{vTG}""")
    a.vmem(f"buffer_store_dwordx4 {v4(AG)}, v{vGS}, {srd(SWS)}, s{sGB} offen sc1", "gst", certain=False)
    a("LA_ng:")
    bg.tick(3)
    a(f"v_mov_b32 v{K_vFB}, v{vFBa}\nv_mov_b32 v{K_vFM}, v{vFMa}")
    k2_mt()
    k2_min(vR0)
    bg.tick(E2("AG", 8))
    stamp(37)
    a(f"s_cmp_lg_u32 s{sWV}, 0\ns_cbranch_scc1 LA_ge\ns_mov_b32 s{sSPIN}, 0\nLA_gr:\ns_mov_b32 s{sT0}, s{sGA}")
    for n in range(8):
        a(f"buffer_load_dwordx4 {v4(32 + 4*n)}, v{vKP}, {srd(SWS)}, s{sT0} offen sc1")
        if n < 7: a(f"s_add_u32 s{sT0}, s{sT0}, 6720")
    a(f"s_waitcnt vmcnt(0)\nv_xor_b32 v32, v32, v{vTG}\nv_xor_b32 v34, v34, v{vTG}\nv_or_b32 v{T}, v32, v34")
    for n in range(1, 8):
        a(f"""v_xor_b32 v{32+4*n}, v{32+4*n}, v{vTG}
v_xor_b32 v{34+4*n}, v{34+4*n}, v{vTG}
v_pk_add_f32 v[32:33], v[32:33], {v2(32+4*n)}
v_or3_b32 v{T}, v{T}, v{32+4*n}, v{34+4*n}
v_pk_add_f32 v[34:35], v[34:35], {v2(34+4*n)}""")
    a(f"""v_and_b32 v{T}, 0xff, v{T}
v_cmp_ne_u32 vcc, 0, v{T}
s_add_u32 s{sSPIN}, s{sSPIN}, 1
s_cmp_gt_u32 s{sSPIN}, 0x20000
s_cbranch_scc1 LA_gd
s_cbranch_vccnz LA_gr
LA_gd:
{'v_writelane_b32 v254, s96, 40' if STAMPS else ''}
v_mov_b64 v[36:37], v[32:33]
v_mov_b64 v[38:39], v[34:35]""")
    for q in range(4): a(f"v_permlane32_swap_b32 v{32+q}, v{36+q}")
    a(f"""v_pk_add_f32 v[32:33], v[32:33], v[36:37]
v_pk_add_f32 v[34:35], v[34:35], v[38:39]
v_cvt_pk_bf16_f32 v36, v32, v33
v_cvt_pk_bf16_f32 v37, v34, v35
v_lshl_or_b32 v32, v36, 16, v{vTG}
v_and_b32 v33, 0xffff0000, v36
v_lshl_or_b32 v34, v37, 16, v{vTG}
v_and_b32 v35, 0xffff0000, v37
s_mov_b32 exec_hi, 0""")
    a.vmem(f"buffer_store_dwordx4 v[32:35], v{vR0}, {srd(SWS)}, s{sZB} offen sc1", "rst", certain=False)
    a("s_mov_b32 exec_hi, -1\nLA_ge:")
    if E2("HOLD", 1): a("s_barrier")
    stamp(3)
    bg.flush()
    stamp(4)
    poll_issue(K_vFM, K_vTmp, "0xff00000", "p2")
    a.wait(vm="p2")
    a("s_branch LK2")

OUTLINE = []
def type_B():
    if E2("PADB", 10) >= 0: a(f".p2align 12\n.fill {E2('PADB', 10)*64}, 4, 0xbf800000")
    CUR[0] = 'B'
    a("LtypeB:\ns_mov_b32 s100, 1")
    M0[0] = None
    a.vm = []; a.lg = []
    bg = BG()
    U = ACC; Q = ACC + 80
    RING = [152 + 4*i for i in range(6)]
    LAM = 176
    XR = 216
    COEF = 216
    L8, L128 = 250, 248
    T = 176
    sSa, sSb, sSc, sSd = 54, 55, 56, 57
    sSS, sKX, sKD, sC1, sC2, sT8 = 60, 61, 40, 41, 46, 47
    SXR = 36
    sVAL = 34
    a(f"""s_and_b32 s{sT2}, s{sWV}, 1
s_mul_i32 s{sT3}, s{sT2}, 40
s_mul_i32 s{sT4}, s{sJ}, 80
s_add_u32 s{sT3}, s{sT3}, s{sT4}
s_mul_i32 s{sT3}, s{sT3}, 1280
s_lshl_b32 s{sT4}, s{sT2}, 6
v_xor_b32 v64, s{sT4}, v45
v_xor_b32 v65, s{sT4}, v46
v_add_u32 v{vW}, s{sT3}, v64
v_add_u32 v65, s{sT3}, v65
v_add_u32 v{vW+1}, {10240-1024}, v65
v_add_u32 v{vW+2}, {2*(10240-1024)}, v{vW}
v_add_u32 v{vW+3}, {3*(10240-1024)}, v65
v_add_u32 v{vW+4}, {4*10240}, v{vW}
s_mul_i32 s{sT4}, s{sJ}, 160
v_min_u32 v66, 79, v0
v_lshl_add_u32 v66, v66, 1, s{sT4}
v_mov_b32 v{T}, 0
v_mov_b32 v{T+1}, 0
v_mov_b32 v{T+2}, 0
s_mul_i32 s{sKQ}, s{sKA}, 1920
s_mul_i32 s{sKQ+1}, s{sKA+1}, 1920
s_mul_i32 s{sT5}, s{sT2}, {32*3840}
s_add_u32 s{sT5}, s{sT5}, s{sT4}""")
    args_ready()
    a(f"""s_cmp_ge_u32 s{sWV}, 2
s_cselect_b32 s{SW}, s{pBIM}, s{pBRE}
s_cselect_b32 s{SW+1}, s{pBIM+1}, s{pBRE+1}
s_and_b32 s{SW+1}, s{SW+1}, 0xffff""")
    def stage_dma(s):
        if s < 10: return dma_x(s) + dma_w(s, vW, SW, sKA + s)
        if s < 15: return dma_w(s, vQ, SQ, sKQ + (s - 10))
        return None
    a.vmem(f"global_load_short_d16_hi v{T}, v66, {sp(pLRE)}", "par")
    a.vmem(f"global_load_short_d16_hi v{T+1}, v66, {sp(pLIM)}", "par")
    a.vmem(f"global_load_short_d16_hi v{T+2}, v66, {sp(pLDT)}", "par")
    run_ops(stage_dma(0))
    a(f"s_mov_b32 s{SQ}, s{pQKV}\ns_and_b32 s{SQ+1}, s{pQKV+1}, 0xffff")
    late_setup()
    def q_setup():
        wq_pattern(vQ, sT5, T+8)
        kq_tables()
        a(f"s_cmp_ge_u32 s{sWV}, 2")
        for q in range(5): a(f"s_cselect_b32 s{sKQ+q}, s{sKQ+2*q+1}, s{sKQ+2*q}")
    a(f"""v_add_u32 v{vWR}, {L_W}, v56
v_add_u32 v{vWR+1}, {L_W}, v57
v_add_u32 v{vWR+2}, {L_W+40960}, v56
v_add_u32 v{vWR+3}, {L_W+40960}, v57""")
    aTW, aTR0, aTR1, aST, aEA, aPT, aSA, aXA, aK0, aHR, aZR, aLT, aSX, aFB, aFM, aK1 = range(240, 256)
    def params():
        a.wait(vm="par")
        stamp(34)
        bg.tick(E2("PK0", 2))
        P = T + 4
        t0, t1, t2, t3 = T+16, T+17, T+18, T+19
        C = P + 8
        a(f"""v_mul_f32 v{T+2}, {LOG2E}, v{T+2}
v_exp_f32 v{T+2}, v{T+2}
s_nop 0
v_cvt_pk_bf16_f32 v{T+2}, v{T+2}, v{T+2}
v_lshlrev_b32 v{T+2}, 16, v{T+2}
v_mul_f32 v{t0}, v{T+2}, v{T}
v_mul_f32 v{t1}, v{T+2}, v{T+1}
v_mul_f32 v{t0}, {LOG2E}, v{t0}
v_mul_f32 v{t1}, 0.15915494, v{t1}
v_exp_f32 v{t0}, v{t0}
v_fract_f32 v{t1}, v{t1}
v_cos_f32 v{t2}, v{t1}
v_sin_f32 v{t3}, v{t1}
s_nop 0
v_mul_f32 v{P}, v{t0}, v{t2}
v_mul_f32 v{t3}, v{t0}, v{t3}
v_sub_f32 v{P+1}, 0, v{t3}
v_add_f32 v{t0}, -1.0, v{P}
v_mul_f32 v{t1}, v{T}, v{T}
v_fma_f32 v{t1}, v{T+1}, v{T+1}, v{t1}
v_rcp_f32 v{t1}, v{t1}
v_mul_f32 v{C}, v{t0}, v{T}
v_fma_f32 v{C}, v{t3}, v{T+1}, v{C}
v_mul_f32 v{C+1}, v{t3}, v{T}
v_fma_f32 v{C+1}, -v{t0}, v{T+1}, v{C+1}
v_add_f32 v{t1}, v{t1}, v{t1}
v_mul_f32 v{C}, v{C}, v{t1}
v_mul_f32 v{C+1}, v{C+1}, v{t1}""")
        def cmul(d, l, p):
            a(f"""v_pk_mul_f32 {v2(d)}, {v2(p)}, {v2(l)} op_sel_hi:[1,0]
v_pk_fma_f32 {v2(d)}, {v2(p)}, {v2(l)}, {v2(d)} op_sel:[1,1,0] op_sel_hi:[0,1,1] neg_lo:[0,1,0]""")
        bg.tick(E2("PK1", 0))
        cmul(P+2, P, P); cmul(P+4, P+2, P); cmul(P+6, P+2, P+2); cmul(L8, P+6, P+6)
        bg.tick(E2("PK2", 0))
        a(f"""v_mul_u32_u24 v{t0}, 48, v0
v_add_u32 v{t0}, {L_PT}, v{t0}
v_lshlrev_b32 v{t1}, 3, v0
v_add_u32 v{t1}, {L_LT}, v{t1}
v_mov_b32 v{T+20}, 1.0
v_mov_b32 v{T+21}, 0
v_cmp_gt_u32 vcc, 80, v0
s_and_saveexec_b64 {sp(sT2)}, vcc
s_cbranch_execz LB_nopar""")
        a(f"""v_lshlrev_b32 v{t2}, 3, v0
v_mov_b32 v{T+26}, s{sT8}
v_mov_b32 v{T+27}, s{sT8}
s_mul_i32 s{sT4}, s{sR}, 1280
s_add_u32 s{sT4}, s{sT4}, s{sSS}""")
        a.vmem(f"buffer_store_dwordx2 {v2(T+26)}, v{t2}, {srd(SWS)}, s{sT4} offen offset:640 sc1", "dst", certain=False)
        a(f"""v_mov_b64 {v2(P+10)}, 0
v_mov_b64 {v2(T+28)}, 0
v_mov_b64 {v2(T+30)}, 0
v_lshlrev_b32 v{t3}, 4, v0
v_add_u32 v{t3}, {L_PT + 3840}, v{t3}""")
        a.lds(f"ds_write_b128 v{t3}, {v4(T+28)}", "pt", certain=False)
        for q in range(3): a.lds(f"ds_write_b128 v{t0}, {v4(P+4*q)} offset:{16*q}", "pt", certain=False)
        a.lds(f"ds_write_b64 v{t1}, {v2(T+20)}", "pt", certain=False)
        a.lds(f"ds_write_b64 v{t1}, {v2(L8)} offset:640", "pt", certain=False)
        prev = L8
        for s in range(2, 17):
            d = (T + 22 + 2*(s % 2)) if s < 16 else L128
            cmul(d, L8, prev)
            if s < 16: a.lds(f"ds_write_b64 v{t1}, {v2(d)} offset:{s*640}", "pt", certain=False)
            prev = d
        a(f"""LB_nopar:
s_mov_b64 exec, {sp(sT2)}""")
    def stash():
        t0, t1 = T+16, T+17
        t2, t3 = T+18, T+19
        for n, ak in ((0, aK0), (1, aK1)):
            a(f"""v_lshrrev_b32 v{t0}, 5, v0
v_mul_u32_u24 v{t0}, 27, v{t0}
v_and_b32 v{t1}, 31, v0
v_add3_u32 v{t0}, v{t0}, v{t1}, 0
v_add_u32 v{t0}, {216*n}, v{t0}
v_cmp_gt_u32 {sp(sVAL)}, 27, v{t1}
v_cmp_gt_u32 vcc, 420, v{t0}
s_and_b64 vcc, vcc, {sp(sVAL)}
v_mul_u32_u24 v{t1}, 3121, v{t0}
v_lshrrev_b32 v{t1}, 16, v{t1}
v_mul_u32_u24 v{t2}, 21, v{t1}
v_sub_u32 v{t0}, v{t0}, v{t2}
v_mul_u32_u24 v{t2}, 13108, v{t1}
v_lshrrev_b32 v{t2}, 16, v{t2}
v_mul_u32_u24 v{t3}, 5, v{t2}
v_sub_u32 v{t1}, v{t1}, v{t3}
v_mul_u32_u24 v{t2}, 21, v{t2}
v_add_u32 v{t0}, v{t0}, v{t2}
v_mul_u32_u24 v{t0}, 48, v{t0}
v_lshl_add_u32 v{t0}, v{t1}, 3, v{t0}
v_add_u32 v{t0}, {L_KT}, v{t0}
v_mov_b32 v{t1}, {L_HB}
v_cndmask_b32 v{t0}, v{t1}, v{t0}, vcc
v_accvgpr_write_b32 a{ak}, v{t0}""")
        a(f"""s_add_u32 s{sT2}, s{sSS}, 640
s_add_u32 s{SXR}, s{pWS}, s{sT2}
s_addc_u32 s{SXR+1}, s{pWS+1}, 0
s_and_b32 s{SXR+1}, s{SXR+1}, 0xffff
s_movk_i32 s{SXR+2}, {16*640}
s_mov_b32 s{SXR+3}, 0x20000
s_movk_i32 s{sC1}, 3840
s_movk_i32 s{sC2}, 7680
s_movk_i32 s{sT2}, 80
v_cmp_gt_u32 {sp(sVAL)}, s{sT2}, v0
v_lshlrev_b32 v{t0}, 3, v0
v_mov_b32 v{t1}, {OOB}
v_cndmask_b32 v{t0}, v{t1}, v{t0}, {sp(sVAL)}
v_accvgpr_write_b32 a{aXA}, v{t0}
v_min_u32 v{t0}, 79, v0
v_lshlrev_b32 v{t0}, 3, v{t0}
v_add_u32 v{t0}, {L_EB}, v{t0}
v_accvgpr_write_b32 a{aSA}, v{t0}""")
        c_, g_, u0, u1, u2, u3 = T+8, T+9, T+10, T+11, T+12, T+13
        a(f"""v_and_b32 v{c_}, 15, v{vLANE}
v_lshrrev_b32 v{g_}, 4, v{vLANE}
v_mul_u32_u24 v{u0}, 48, v{c_}
v_add_u32 v{u0}, {L_PT}, v{u0}
v_accvgpr_write_b32 a{aPT}, v{u0}
v_lshrrev_b32 v{u0}, 4, v0
v_mul_u32_u24 v{u0}, 640, v{u0}
v_lshl_add_u32 v{u0}, v{c_}, 3, v{u0}
v_add_u32 v{u0}, {L_LT}, v{u0}
v_accvgpr_write_b32 a{aLT}, v{u0}
v_mul_u32_u24 v{u0}, 640, v{g_}
v_lshl_add_u32 v{u0}, v{c_}, 3, v{u0}
v_add_u32 v{u0}, s{sXB}, v{u0}
v_accvgpr_write_b32 a{aEA}, v{u0}
v_lshlrev_b32 v{u0}, 3, v{c_}
v_add_u32 v{u0}, {L_HB}, v{u0}
v_accvgpr_write_b32 a{aHR}, v{u0}
v_mul_u32_u24 v{u0}, 21, v{g_}
v_and_b32 v{u1}, 3, v{c_}
v_add_u32 v{u0}, v{u0}, v{u1}
v_mul_u32_u24 v{u0}, 48, v{u0}
v_add_u32 v{u0}, {L_KT}, v{u0}
v_mov_b32 v{u2}, {L_ZERO}
v_lshrrev_b32 v{u1}, 2, v{c_}
v_cmp_eq_u32 vcc, v{u1}, v{g_}
v_cndmask_b32 v{u0}, v{u2}, v{u0}, vcc
v_accvgpr_write_b32 a{aZR}, v{u0}
v_bfe_u32 v{u0}, v{c_}, 1, 2
v_xor_b32 v{u0}, v{u0}, v{g_}
v_lshlrev_b32 v{u0}, 4, v{u0}
v_lshl_add_u32 v{u0}, v{c_}, 6, v{u0}
s_add_u32 s{sT2}, s{sXB}, 10240
v_add_u32 v{u0}, s{sT2}, v{u0}
v_accvgpr_write_b32 a{aTW}, v{u0}
v_bfe_u32 v{u0}, v{vLANE}, 2, 2
v_lshrrev_b32 v{u1}, 1, v{g_}
v_lshl_add_u32 v{u2}, v{u1}, 3, v{u0}
v_lshlrev_b32 v{u2}, 6, v{u2}
v_and_b32 v{u3}, 1, v{g_}
v_lshl_add_u32 v{u2}, v{u3}, 3, v{u2}
v_add_u32 v{u2}, s{sT2}, v{u2}
v_lshrrev_b32 v{u0}, 1, v{u0}
v_and_b32 v{g_}, 3, v{vLANE}
v_xor_b32 v{u0}, v{u0}, v{g_}
v_lshl_add_u32 v{g_}, v{u0}, 4, v{u2}
v_accvgpr_write_b32 a{aTR0}, v{g_}
v_xor_b32 v{u0}, 2, v{u0}
v_lshl_add_u32 v{g_}, v{u0}, 4, v{u2}
v_add_u32 v{g_}, 256, v{g_}
v_accvgpr_write_b32 a{aTR1}, v{g_}
v_mul_u32_u24 v{u3}, {RT}, v{u3}
v_lshl_add_u32 v{u3}, v{u1}, 8, v{u3}
v_lshl_add_u32 v{u3}, v{c_}, 4, v{u3}
v_accvgpr_write_b32 a{aST}, v{u3}
s_lshl_b32 s{sT2}, s{sR}, 3
s_lshl_b32 s{sT3}, s{sWV}, 1
s_add_u32 s{sT2}, s{sT2}, s{sT3}
s_mul_i32 s{sT2}, s{sT2}, {RT}
s_mul_i32 s{sT3}, s{sJ}, 2560
s_add_u32 s{sSa}, s{sT2}, s{sT3}
s_add_u32 s{sSb}, s{sSa}, 20480
s_add_u32 s{sSc}, s{sSa}, 40960
s_add_u32 s{sSd}, s{sSc}, {RT}""")
    a(f"""s_lshl_b32 s{sT2}, s{sJ}, 5
s_add_u32 s{sT3}, s{sT2}, 15
s_sub_u32 s{sT3}, s{sT3}, s{sR}
s_mul_i32 s{sSS}, s{sT3}, 640
s_add_u32 s{sSS}, s{sSS}, {WS_SP}""")
    def p_skip():
        skip_setup(T+8, sKX, sKD)
        a(f"v_accvgpr_write_b32 a{aSX}, v{T+8}")
    def p_flags():
        k2_flags(T+8, T+10, T+11)
        a(f"v_accvgpr_write_b32 a{aFB}, v{T+10}\nv_accvgpr_write_b32 a{aFM}, v{T+11}")
        k2_mt()
    pieces = [q_setup, stash, p_skip, p_flags, lc_tables]
    nin = E2("INB", 3)
    for f in pieces[:nin]: f()
    spareB = capture(lambda: [f() for f in pieces[nin:]])
    tag_ready()
    a(f"s_and_b32 s{sT8}, s{sTAG}, 0xff")
    if E2("IW", 0): a("s_branch Lladder\nLB_cont:")
    bg.add(stage_dma(1), 1)
    stamp(0)
    params()
    bg.tick(E2("PK3", 2))
    bg.fast = True
    a.wait(lg="all")
    stamp(35)
    XA = lambda s, ks, m: s * 16 + ks * 8 + m * 4
    def x_reads(s):
        if s >= 10: return {}
        def mk(ks):
            return [(lambda m=m: a.lds(f"ds_read_b128 {a4(XA(s, ks, m))}, v{vXR+ks} offset:{(s%4)*4096 + m*2048}", ("x", s, ks))) for m in range(2)]
        return {0: mk(0), 10: mk(1)}
    def read_frag(s, i, reg):
        sl = s % 4
        if s < 10:
            ks, t = divmod(i, 10)
            c5, part = divmod(t, 2)
            return [lambda: a.lds(f"ds_read_b128 {v4(reg)}, v{vWR + (sl//2)*2 + ks} offset:{(sl%2)*20480 + part*10240 + c5*2048}", ("w", s, i))]
        else:
            k4, Tt = divmod(i, 5)
            return [(lambda hh=hh: a.lds(f"ds_read_b64_tr_b16 {v2(reg+2*hh)}, v{vT40 + (sl//2)*2 + hh} offset:{(sl%2)*20480 + k4*5120 + 8*Tt}", ("w", s, i))) for hh in range(2)]
    def mfmas(s, i, reg):
        out = []
        if s < 10:
            ks, t = divmod(i, 10)
            for m in range(2):
                d = U + t*8 + m*4
                c = "0" if (s == 0 and ks == 0) else v4(d)
                out.append(lambda d=d, m=m, c=c: mfma(v4(d), a4(XA(s, ks, m)), v4(reg), c))
        else:
            k4, Tt = divmod(i, 5)
            xs, ks = 2*(s-10) + k4//2, k4 % 2
            for m in range(2):
                d = Q + Tt*8 + m*4
                c = "0" if (s == 10 and k4 == 0) else v4(d)
                out.append(lambda d=d, m=m, c=c: mfma(v4(d), v4(reg), a4(XA(xs, ks, m)), c))
        return out
    def ur(c5, i): return U + (2*c5)*8 + 2*i
    def ui(c5, i): return U + (2*c5+1)*8 + 2*i
    LO = "op_sel_hi:[1,0,1]"
    HI = "op_sel:[0,1,0] op_sel_hi:[1,1,1]"
    NEG = "neg_lo:[0,1,0] neg_hi:[0,1,0]"
    vEA, vSA, vXA, vPT = vX, vX+1, vX+2, vX+3
    vTW, vTR0, vTR1, vST, vL16 = vW, vW+1, vW+2, vW+3, vW+4
    vXW, vHR, vZR, vLT = vWR, vWR+1, vWR+2, vWR+3
    def mk_ptread(c5):
        def f():
            if c5 == 0: a(f"v_accvgpr_read_b32 v{vPT}, a{aPT}")
            a.lds(f"ds_read_b128 {v4(LAM + c5*8)}, v{vPT} offset:{c5*768}", "ptr")
            a.lds(f"ds_read_b128 {v4(LAM + c5*8 + 4)}, v{vPT} offset:{c5*768 + 16}", "ptr")
            a.lds(f"ds_read_b64 {v2(COEF + c5*2)}, v{vPT} offset:{c5*768 + 32}", "ptr")
            if c5 == 4: a(f"v_accvgpr_read_b32 v{vEA}, a{aEA}\nv_accvgpr_read_b32 v{vSA}, a{aSA}\nv_accvgpr_read_b32 v{vXA}, a{aXA}")
        return f
    def scan1():
        stamp(1)
        bg.fast = False
        fl_check(vW+2, vW+3, "0xffff", "pfm")
        bg.add(cf_loads(0))
        tA, tB = 228, 230
        for c5 in range(5):
            c = COEF + c5*2
            for i in range(4):
                r_, i_ = ur(c5, i), ui(c5, i)
                a(f"""v_pk_mul_f32 {v2(tA)}, {v2(r_)}, {v2(c)} op_sel_hi:[1,0]
v_pk_mul_f32 {v2(tB)}, {v2(r_)}, {v2(c)} op_sel:[0,1] op_sel_hi:[1,1] neg_lo:[0,1] neg_hi:[0,1]
v_pk_fma_f32 {v2(r_)}, {v2(i_)}, {v2(c)}, {v2(tA)} {HI} {NEG}
v_pk_fma_f32 {v2(i_)}, {v2(i_)}, {v2(c)}, {v2(tB)} {LO} {NEG}""")
            l = LAM + c5*8
            for i in range(1, 4):
                a(f"""v_pk_fma_f32 {v2(ur(c5,i))}, {v2(ur(c5,i-1))}, {v2(l)}, {v2(ur(c5,i))} {LO}
v_pk_fma_f32 {v2(ui(c5,i))}, {v2(ui(c5,i-1))}, {v2(l)}, {v2(ui(c5,i))} {LO}
v_pk_fma_f32 {v2(ur(c5,i))}, {v2(ui(c5,i-1))}, {v2(l)}, {v2(ur(c5,i))} {HI} {NEG}
v_pk_fma_f32 {v2(ui(c5,i))}, {v2(ur(c5,i-1))}, {v2(l)}, {v2(ui(c5,i))} {HI}""")
            l4 = l + 6
            cmul_acc(c, c+1, l4, l4+1, ur(c5,3), ui(c5,3), ur(c5,3)+1, ui(c5,3)+1)
            a.lds(f"ds_write_b64 v{vEA}, {v2(c)} offset:{L_EB + c5*128}", "ew")
            bg.tick(E2("S1T", 1))
        stamp(38)
        a.wait(lg="all")
        a("s_barrier")
        stamp(39)
        a(f"s_cmp_ge_u32 s{sWV}, 2\ns_cbranch_scc1 LB_nocarry1")
        E0 = XR
        tA, tB = 252, vPT
        for s in range(0, 16, 2):
            a(f"ds_read2_b64 {v4(E0 + 2*s)}, v{vSA} offset0:{(s%4)*80} offset1:{(s%4)*80+80}")
            if s % 4 == 2 and s < 14: a(f"v_add_u32 v{vSA}, 16384, v{vSA}")
        a(f"""v_mov_b32 v{tA}, 0
v_mov_b32 v{tA+1}, 0
v_mov_b32 v{tB}, s{sTAG}
s_movk_i32 s{sT3}, 0xff""")
        for s in range(1, 16):
            if s % 2 == 0 or s == 1: a(f"s_waitcnt lgkmcnt({7 - s//2})")
            pk_cmul_acc(E0+2*s, L8, E0+2*s-2, E0+2*s)
        a(f"""v_bfi_b32 v{E0+30}, s{sT3}, v{tB}, v{E0+30}
v_bfi_b32 v{E0+31}, s{sT3}, v{tB}, v{E0+31}""")
        a.vmem(f"buffer_store_dwordx2 {v2(E0+30)}, v{vXA}, {srd(SWS)}, s{sSS} offen sc1", "sst", certain=False)
        a(f"s_mov_b64 exec, {sp(sVAL)}")
        for q in range(14, -1, -2):
            lo = v2(tA) if q == 0 else v2(E0+2*q-2)
            a(f"ds_write2_b64 v{vSA}, {lo}, {v2(E0+2*q)} offset0:{(q%4)*80} offset1:{(q%4)*80+80}")
            if q % 4 == 0 and q: a(f"v_subrev_u32 v{vSA}, 16384, v{vSA}")
        a("s_mov_b64 exec, -1\nLB_nocarry1:")
        stamp(2)
    def x_loads(tracked, cnt):
        ops = []
        for n in range(cnt - 1, -1, -1):
            def f(n=n):
                so = ["0", f"s{sC1}", f"s{sC2}"][n // 6]
                t = f"buffer_load_dwordx2 {v2(XR + 2*n)}, v{vXA}, {srd(SXR)}, {so} offen offset:{(n % 6)*640} sc1"
                if tracked: a.vmem(t, "xl")
                else: a(t)
            ops.append(("d", f))
        return ops
    def x_body(z, ticks):
        cnt = 16 if z else 15
        for n in range(cnt - 1, -1, -1):
            r = XR + 2*n
            a(f"v_xor_b32 v{r}, s{sT8}, v{r}\nv_xor_b32 v{r+1}, s{sT8}, v{r+1}")
            if n == cnt - 1: a(f"v_or_b32 v250, v{r}, v{r+1}")
            else:
                a(f"v_or3_b32 v250, v250, v{r}, v{r+1}")
                if z: a(f"v_pk_add_f32 {v2(r)}, {v2(r)}, {v2(r+2)}")
                else: pk_cmul_acc(r, L128, r+2, r)
            if ticks and n % 2 == 0: bg.tick(1)
        a(f"""v_and_b32 v250, 0xff, v250
v_cmp_ne_u32 vcc, 0, v250
s_add_u32 s{sSPIN}, s{sSPIN}, 1
s_and_b64 vcc, vcc, {sp(sVAL)}""")
    def x_write(z):
        if STAMPS: a("v_writelane_b32 v254, s96, 40")
        if z:
            a(f"""v_cvt_pk_bf16_f32 v250, v{XR}, v{XR+1}
v_lshlrev_b32 v{XR}, 16, v250
v_and_b32 v{XR+1}, 0xffff0000, v250""")
        a(f"s_mov_b64 exec, {sp(sVAL)}\nds_write_b64 v{vXW}, {v2(XR)}\ns_mov_b64 exec, -1")
    def x_retry(z, lab, back):
        a(f"{lab}:")
        run_ops(x_loads(False, 16 if z else 15))
        a(f"s_waitcnt vmcnt(0)\n{lab}c:")
        x_body(z, False)
        a(f"s_cmp_gt_u32 s{sSPIN}, 0x20000\ns_cbranch_scc1 {back}\ns_cbranch_vccnz {lab}\ns_branch {back}")
    OUTLINE.append(lambda: x_retry(False, "LB_rs", "LB_sok"))
    def start_x():
        bg.add(x_loads(True, 15)); bg.fast = True
    def q_add(ops, fast):
        return lambda: (bg.add(ops), setattr(bg, 'fast', fast))
    hooks = {(0, E2('FEND', 14)): (lambda: setattr(bg, 'fast', False)), (10, 0): scan1, (13, E2('XST', 4)): start_x,
             (13, 0): (lambda: bg.add([('s', lambda: a(f'v_accvgpr_read_b32 v252, a{aSX}'))] + skip_loads(252, sKX, sKD, sWB, 3*20480))),
             divmod(E2('QC1', 244), 20): q_add(cf_loads(1), E2('QF1', 1)),
             divmod(E2('QC2', 280), 20): q_add(cf_loads(2), E2('QF2', 1)),
             (14, 1): q_add(cf_loads(3) + wf_loads(vWF, sT1, 0, E2('NE', 0)), E2('QF', 0))}
    for c5 in range(5): hooks[(9, 2*c5 + 1)] = mk_ptread(c5)
    def touches():
        if E2("CT", 1): bg.add([("d", code_touch(vW))])
        if E2("PTB", 1): bg.add([("d", lambda: flag_touch(FB, vW+1))])
        if E2("PTB", 1) == 1: bg.add([("d", lambda: flag_touch(FW, vW+1))])
    def fm_issue():
        a(f"v_accvgpr_read_b32 v{vW+2}, a{aFM}")
        fl_issue(vW+2, vW+3, "0xffff", "pfm")
    hooks[(9, 0)] = fm_issue
    hooks[(9, 6)] = touches
    hooks[(9, 12)] = lambda: setattr(bg, 'fast', True)
    gemm_loop(15, 20, read_frag, mfmas, x_reads, stage_dma, bg, RING, 6, hooks, spare=spareB, spare_end=E2('SPE', 9)*20)
    stamp(3)
    a(f"s_mov_b32 s{sSPIN}, 0")
    for vr, ar in ((vLT, aLT), (vTW, aTW), (vTR0, aTR0), (vTR1, aTR1), (vST, aST), (vHR, aHR), (vZR, aZR)):
        a(f"v_accvgpr_read_b32 v{vr}, a{ar}")
    a(f"v_lshlrev_b32 v{vL16}, 4, v{vLANE}\nv_add_u32 v{vXW}, {L_HB}, v{vXA}")
    H = 152
    for c5 in range(5):
        a.lds(f"ds_read_b64 {v2(H+4*c5)}, v{vEA} offset:{L_EB + c5*128}", "pl")
        a.lds(f"ds_read_b64 {v2(H+4*c5+2)}, v{vLT} offset:{c5*128}", "pl")
    a(f"s_cmp_ge_u32 s{sWV}, 2\ns_cbranch_scc1 LB_x23")
    snap = (list(bg.q), list(a.vm), list(a.lg), M0[0])
    a.wait(vm="xl")
    run_ops(skip_reads(172, sWB, 3*20480, SKH))
    x_body(False, True)
    bg.flush()
    a("s_cbranch_vccnz LB_rs\nLB_sok:")
    x_write(False)
    a("s_branch LB_xe1\nLB_x23:")
    bg.q, a.vm, a.lg, M0[0] = snap
    bg.flush()
    full = list(a.vm)
    run_ops(skip_reads(172, sWB, 3*20480, SKH))
    a.vm = full
    a("LB_xe1:")
    M0[0] = None
    a.wait(lg="all")
    a("s_barrier")
    stamp(4)
    HR = vQ + 1
    HRS = [12, 14, 22, 24, 172]
    for c5 in range(5):
        a.lds(f"ds_read_b64 {v2(HRS[c5])}, v{vHR} offset:{c5*128}", ("hin", c5))
    def trd(c5, part):
        for hh in range(2):
            a.lds(f"ds_read_b64_tr_b16 {v2(U + (2*c5+part)*8 + 4 + 2*hh)}, v{vTR0+hh} offset:{((c5%3)*2+part)*1024}", ("tr", c5, part))
    def tst(c5, part):
        a.wait(lg=[("tr", c5, part)])
        a.vmem(f"buffer_store_dwordx4 {v4(U + (2*c5+part)*8 + 4)}, v{vST}, {srd(SWS)}, s{sSa if part == 0 else sSb} offen offset:{c5*512} sc1", "ast")
    for c5 in range(5):
        h = H + 4*c5; lam = LAM + c5*8
        a.wait(lg=[("hin", c5)])
        pk_cmul_acc(h, h+2, HRS[c5], h)
        a(f"v_mov_b32 v{h+2}, v{h+1}")
        cmul_acc(h+1, h+3, lam+6, lam+7, h, h+2, ur(c5,3), ui(c5,3))
        for part in range(2):
            for i in range(4):
                l = lam + 2*i
                if part == 0: a(f"v_pk_fma_f32 {v2(ur(c5,i))}, {v2(h)}, {v2(l)}, {v2(ur(c5,i))} {LO}")
                else: a(f"v_pk_fma_f32 {v2(ui(c5,i))}, {v2(h+2)}, {v2(l)}, {v2(ui(c5,i))} {LO}")
            k = 2*c5 + part
            if k >= 1: trd((k-1)//2, (k-1) % 2)
            for i in range(4):
                l = lam + 2*i
                if part == 0: a(f"v_pk_fma_f32 {v2(ur(c5,i))}, {v2(h+2)}, {v2(l)}, {v2(ur(c5,i))} {HI} {NEG}")
                else: a(f"v_pk_fma_f32 {v2(ui(c5,i))}, {v2(h)}, {v2(l)}, {v2(ui(c5,i))} {HI}")
            if k >= 2: tst((k-2)//2, (k-2) % 2)
            src = U + k*8
            for q in range(4): a(f"v_cvt_pk_bf16_f32 v{src+q}, v{src+2*q}, v{src+2*q+1}")
            a.lds(f"ds_write_b128 v{vTW}, {v4(src)} offset:{((c5%3)*2+part)*1024}", ("tw", c5))
    trd(4, 1)
    tst(4, 0)
    tst(4, 1)
    stamp(32)
    vK0, vK1, vKA, PT_, PQ, WP, DN = 2, 3, 4, 52, 56, 80, 104
    sKR = sKA + 1
    KR = 216
    def kr_loads(tracked):
        for n in range(2):
            t = f"buffer_load_dwordx4 {v4(KR + 4*n)}, v{vKA + n}, {srd(SWS)}, s{sKR} offen sc1"
            if tracked: a.vmem(t, "kr")
            else: a(t)
    def kr_check():
        a(f"""v_xor_b32 v{KR}, s{sT8}, v{KR}
v_xor_b32 v{KR+2}, s{sT8}, v{KR+2}
v_xor_b32 v{KR+4}, s{sT8}, v{KR+4}
v_xor_b32 v{KR+6}, s{sT8}, v{KR+6}
v_or3_b32 v250, v{KR}, v{KR+2}, v{KR+4}
v_or_b32 v250, v250, v{KR+6}
v_and_b32 v250, 0xffff, v250
v_cmp_ne_u32 vcc, 0, v250
s_add_u32 s{sSPIN}, s{sSPIN}, 1""")
    def kr_retry():
        a("LB_rk:")
        kr_loads(False)
        a("s_waitcnt vmcnt(0)")
        kr_check()
        a(f"s_cmp_gt_u32 s{sSPIN}, 0x20000\ns_cbranch_scc1 LB_kok\ns_cbranch_vccnz LB_rk\ns_branch LB_kok")
    OUTLINE.append(kr_retry)
    a(f"""v_accvgpr_read_b32 v{K_vFB}, a{aFB}
v_accvgpr_read_b32 v{K_vFM}, a{aFM}
v_accvgpr_read_b32 v{vK0}, a{aK0}
v_accvgpr_read_b32 v{vK1}, a{aK1}
v_lshlrev_b32 v{vKA}, 4, v0
v_add_u32 v{vKA+1}, 4096, v{vKA}
s_lshl_b32 s{sKR}, s{sJ}, 13
s_add_u32 s{sKR}, s{sKR}, {WS_KVR}
s_mov_b32 s{sT4}, {LOG2E}""")
    bg.add(cf_loads(4, range(5, 10)) + wf_loads(vWF, sT1, E2('NE', 0), 25))
    for n in range(10):
        Tt, m = divmod(n, 2)
        if n == E2("PHF", 7):
            kr_loads(True)
            a.wait(vm="ast")
            a("s_barrier")
            set_flag(FB, "LB_nf", 100, wave=3)
            stamp(36)
        phi([Q + 4*n], sT4, PT_, NT=2)
        phi([Q + 4*n + 2], sT4, PT_, NT=2)
        for q in range(2): a(f"v_cvt_pk_bf16_f32 v{PQ + 12*m + 2*Tt + q}, v{Q + 4*n + 2*q}, v{Q + 4*n + 2*q + 1}")
        bg.tick(E2("PHT", 2))
    a.wait(vm="kr")
    a(f"s_mov_b32 s{sSPIN}, 0\ns_mov_b32 s{sT3}, 0x07060302")
    kr_check()
    a("s_cbranch_vccnz LB_rk\nLB_kok:")
    if STAMPS: a("v_writelane_b32 v254, s96, 40")
    for n in range(2):
        a(f"""v_perm_b32 v{KR+4*n}, v{KR+4*n+1}, v{KR+4*n}, s{sT3}
v_perm_b32 v{KR+4*n+1}, v{KR+4*n+3}, v{KR+4*n+2}, s{sT3}""")
        a.lds(f"ds_write_b64 v{vK0+n}, {v2(KR+4*n)}", "ktw")
    a(f"v_mov_b64 {v2(PQ+10)}, 0\nv_mov_b64 {v2(PQ+22)}, 0")
    bg.tick(3)
    a.wait(lg="all")
    a("s_barrier")
    if E2("EP", 1): poll_issue(K_vFM, K_vTmp, "0xff00000", "p2")
    stamp(33)
    order = [5, 0, 1, 2, 3, 4]
    KFR = [196 + 4*n for n in range(13)] + [32 + 4*n for n in range(5)]
    rds = [(lambda k=k, Tt=Tt, st_=st_: a.lds(f"ds_read_b128 {v4(KFR[3*k+st_])}, v{vZR} offset:{Tt*192 + st_*16}", ("kf", 3*k+st_))) for k, Tt in enumerate(order) for st_ in range(3)]
    for f in rds[:6]: f()
    O = lambda Tt, m: DN + 4*m if Tt == 5 else Q + Tt*8 + m*4
    for k, Tt in enumerate(order):
        for st_ in range(3):
            n = 3*k + st_
            a.wait(lg=[("kf", n)])
            for m in range(2):
                mfma(v4(O(Tt, m)), v4(KFR[n]), v4(PQ + 12*m + 4*st_), "0" if st_ == 0 else v4(O(Tt, m)))
                if m == 0:
                    if n + 6 < 18: rds[n + 6]()
                elif n % 2: bg.tick(1)
                else: bg.tick_s()
        if k == 2:
            a(f"""v_add_f32 v{DN}, 0x358637bd, v{DN}
v_add_f32 v{DN+4}, 0x358637bd, v{DN+4}
v_rcp_f32 v{DN}, v{DN}
v_rcp_f32 v{DN+4}, v{DN+4}""")
    for hf in range(3):
        for m in range(2):
            d = DN + 4*m
            for Tt in ((0, 1), (2, 3), (4,))[hf]:
                for q in range(2):
                    r = Q + Tt*8 + m*4 + 2*q
                    a(f"v_pk_mul_f32 {v2(r)}, {v2(r)}, {v2(d)} op_sel_hi:[1,0]")
            for Tt in ((0, 1), (2, 3), (4,))[hf]:
                for q in range(2):
                    r = Q + Tt*8 + m*4 + 2*q
                    dst = (WP + m*8 + Tt*2 + q) if Tt < 4 else (WP + 16 + m*2 + q)
                    a(f"v_cvt_pk_bf16_f32 v{dst}, v{r}, v{r+1}")
            if hf < 2:
                a.vmem(f"buffer_store_dwordx4 {v4(WP + m*8 + hf*4)}, v{vL16}, {srd(SWS)}, s{sSc if m == 0 else sSd} offen offset:{hf*1024} sc1", "ast")
    a(f"v_permlane16_swap_b32 v{WP+16}, v{WP+18}\nv_permlane16_swap_b32 v{WP+17}, v{WP+19}")
    a.vmem(f"buffer_store_dwordx4 {v4(WP+16)}, v{vST}, {srd(SWS)}, s{sSc} offen offset:2048 sc1", "ast")
    bg.flush()
    stamp(5)
    if not E2("EP", 1): poll_issue(K_vFM, K_vTmp, "0xff00000", "p2")
    k2_min(vL16)
    stamp(6)
    a.wait(vm="p2")
    k2()

def fl_issue(va, vt, mask, tag):
    a(f"s_mov_b64 exec, {mask}")
    a.vmem(f"buffer_load_dword v{vt}, v{va}, {srd(SWS)}, 0 offen sc1", tag)
    a("s_mov_b64 exec, -1")
def fl_check(va, vt, mask, tag):
    a.wait(vm=tag)
    L = a.label("LK_fl"); C = a.label("LK_fc"); X = a.label("LK_fe")
    a(f"""s_mov_b64 exec, {mask}
s_mov_b32 s{sSPIN}, 0
s_branch {C}
{L}:
buffer_load_dword v{vt}, v{va}, {srd(SWS)}, 0 offen sc1
s_add_u32 s{sSPIN}, s{sSPIN}, 1
s_waitcnt vmcnt(0)
{C}:
v_cmp_ne_u32 vcc, s{sTAG}, v{vt}
s_cmp_gt_u32 s{sSPIN}, 0x20000
s_cbranch_scc1 {X}
s_cbranch_vccnz {L}
{X}:
s_mov_b64 exec, -1""")
def k2():
    CUR[0] = 'K'
    a("LK2:")
    a.vm = [("p2", True)] + [("old", True)]*40; a.lg = []
    AH, AB = K_AH, K_AB
    NS = 12
    STG = [196 + 4*i for i in range(NS)]
    vA, vM, vFB, vFM, vGA, vRW, vTmp, vG, sMT = K_vA, K_vM, K_vFB, K_vFM, K_vGA, K_vRW, K_vTmp, K_vG, K_sMT
    sG = [sT2, sT3, sT4, sT5]
    stamp(7)
    poll_finish(vFM, vTmp, "0xff00000", "p2")
    stamp(8)
    frags = [("h", i, ks, mt) for i in range(5) for ks in range(2) for mt in range(4)] + [("w", i, 0, mt) for mt in range(4) for i in range(5)]
    def issueA(n):
        kind, i, ks, mt = frags[n]
        r = STG[n % NS]
        if kind == "h": a.vmem(f"buffer_load_dwordx4 {v4(r)}, v{vA+mt}, {srd(SWS)}, s{sKA+i} offen offset:{ks*1024} sc1", ("A", n))
        else: a.vmem(f"buffer_load_dwordx4 {v4(r)}, v{vA+mt}, {srd(SWS)}, s{sKA+5+i} offen sc1", ("A", n))
    def gl(i):
        assert st["sp"] >= NG
        a.vmem(f"buffer_load_dword v{vG+2*i}, v{vGA}, {srd(SWS)}, s{sG[i]} offen sc1", "g")
    extra = [(lambda i=i: gl(i)) for i in range(4)]
    D, X0 = E2("KD", 11), E2("X0", 30)
    wl = cf_loads(4, range(5), 39)
    late = [lambda: (wl[0][1](), wl[1][1]())] + [f for _, f in wl[2:]]
    Y0, Y1 = E2("Y0", 12), E2("Y1", 28)
    PW = E2("PW", 30)
    Q = []
    e = 0
    for n in range(60):
        if n == PW: Q.append(("pw", None))
        if n == X0: Q += [("x", f) for f in extra]
        while e < len(late) and n >= Y0 and (e + 1) * (Y1 - Y0 + 1) <= (n - Y0 + 1) * len(late):
            Q.append(("x", late[e])); e += 1
        Q.append(("A", n))
    pos = {v: k for k, (t, v) in enumerate(Q) if t == "A"}
    st = {"q": 0, "fm": True, "fw": False}
    def can(limitA):
        if st["q"] >= len(Q): return False
        t, v = Q[st["q"]]
        if t == "A": return v < limitA and (v < 40 or st["fw"])
        if t == "x": return st["fm"]
        return True
    def pop():
        t, v = Q[st["q"]]; st["q"] += 1
        if t == "A": issueA(v)
        elif t == "x": v()
        elif t == "pm": fl_issue(vFM, vTmp, "0xfffff", "pfm")
        else: fl_issue(vFB, vTmp, "0xff", "pfw")
    while st["q"] < E2("D0", 4) and can(8): pop()
    stamp(60)
    k2_rest(248)
    a.wait(lg="all")
    class PB:
        def tick(self, n):
            if st["q"] < E2("D1", 6) and can(NS): pop()
    skip_math(248, SKH, PB())
    stamp(61)
    a.wait(vm="old", lg="all")
    stamp(62)
    a("s_barrier")
    a("s_cmp_eq_u32 s100, 0\ns_cbranch_scc1 LB_nf2")
    set_flag(FW, "LB_nf2", 244, wave=3, atomic=False)
    def goffs():
        a(f"v_and_b32 v{vGA}, 15, v{vLANE}\nv_lshlrev_b32 v{vGA}, 2, v{vGA}")
        for i in range(4):
            a(f"""s_lshl_b32 s{sG[i]}, s{sRB}, 2
s_add_u32 s{sG[i]}, s{sG[i]}, s{sMT+i}
s_lshl_b32 s{sG[i]}, s{sG[i]}, 7
s_add_u32 s{sG[i]}, s{sG[i]}, {WS_G}
s_mul_i32 s{sMT+i}, s{sMT+i}, {16*320}""")
    spare = capture(goffs)
    NG = len(spare)
    spare += capture(lambda: k2_fin(248))
    st["sp"] = 0
    def g_check():
        for i in range(4): a(f"v_xor_b32 v{vG+2*i}, s{sT0}, v{vG+2*i}")
        a(f"""v_or3_b32 v{vTmp}, v{vG}, v{vG+2}, v{vG+4}
v_or_b32 v{vTmp}, v{vTmp}, v{vG+6}
v_and_b32 v{vTmp}, 0xffff, v{vTmp}
v_cmp_ne_u32 vcc, 0, v{vTmp}
s_add_u32 s{sSPIN}, s{sSPIN}, 1""")
    def g_retry():
        a("LK_rg:")
        for i in range(4): a(f"buffer_load_dword v{vG+2*i}, v{vGA}, {srd(SWS)}, s{sG[i]} offen sc1")
        a("s_waitcnt vmcnt(0)")
        g_check()
        a(f"s_cmp_gt_u32 s{sSPIN}, 0x20000\ns_cbranch_scc1 LK_gok\ns_cbranch_vccnz LK_rg\ns_branch LK_gok")
    OUTLINE.append(g_retry)
    def g_prep():
        a.wait(vm="g")
        a(f"s_and_b32 s{sT0}, s{sTAG}, 0xff\ns_mov_b32 s{sSPIN}, 0")
        g_check()
        a("s_cbranch_vccnz LK_rg\nLK_gok:")
        for i in range(4):
            g = vG + 2*i
            a(f"""v_sub_f32 v{g+1}, 1.0, v{g}
v_cvt_pk_bf16_f32 v{g+1}, v{g+1}, v{g+1}
v_lshlrev_b32 v{g+1}, 16, v{g+1}""")
    def scale_ops(mt, nt):
        g = vG + 2*mt; h = AH + (mt*5+nt)*4
        return [(lambda q=q: a(f"v_mul_f32 v{h+q}, v{g}, v{h+q}\nv_mul_f32 v{h+q+1}, v{g}, v{h+q+1}")) for q in (0, 2)]
    def fin_ops(mt, nt, pk=False):
        g = vG + 2*mt; h = AH + (mt*5+nt)*4; b = AB[mt % 2] + nt*4
        if pk: ops = [(lambda q=q: a(f"v_pk_fma_f32 {v2(h+q)}, {v2(b+q)}, {v2(g)}, {v2(h+q)} op_sel:[0,1,0] op_sel_hi:[1,1,1]")) for q in (0, 2)]
        else: ops = [(lambda q=q: a(f"v_fmac_f32 v{h+q}, v{g+1}, v{b+q}\nv_fmac_f32 v{h+q+1}, v{g+1}, v{b+q+1}")) for q in (0, 2)]
        def w():
            if nt == 0: a(f"v_add_u32 v{vTmp}, s{sMT+mt}, v{vRW}")
            a.lds(f"ds_write_b128 v{vTmp}, {v4(h)} offset:{nt*64}", "red")
        return ops + [w]
    for n in range(60):
        kind, i, ks, mt = frags[n]
        assert st["q"] > pos[n], n
        a.wait(vm=[("A", n)])
        if n == 0: stamp(14)
        if E("K2ST") and n % 4 == 0: stamp(44 + n // 4)
        if n == PW: fl_check(vFB, vTmp, "0xff", "pfw"); st["fw"] = True
        if n == 40:
            stamp(15)
            assert st["sp"] == len(spare)
            g_prep()
        fill = []
        if kind == "w":
            fill = scale_ops(mt, i) + (fin_ops(mt-1, i) if mt > 0 else [])
        target = pos[min(n + 1, 59)] + D
        for nt in range(5):
            if kind == "h":
                d = AH + (mt*5 + nt)*4
                first = (i == 0 and ks == 0 and mt != 0)
                fa = a4(CHOME[i][ks*5+nt])
            else:
                d = AB[mt % 2] + nt*4
                first = (i == 0)
                fa = MH[i*5 + nt]
            mfma(v4(d), fa, v4(STG[n % NS]), "0" if first else v4(d))
            if fill: fill.pop(0)()
            elif nt in (0, 2) and st["q"] < target and can(n + NS): pop()
            elif nt < 4:
                for _ in range(2):
                    if st["sp"] < len(spare): a(spare[st["sp"]]); st["sp"] += 1
        if st["q"] < target and can(n + NS + 1): pop()
    stamp(9)
    for nt in range(5):
        for f in fin_ops(3, nt, True): f()
    a(f"""s_cmp_lg_u32 s{sRB}, 31
s_cbranch_scc1 LK_ne
s_or_b32 s{sT2}, s{sWV}, s{sCT}
s_cmp_lg_u32 s{sT2}, 0
s_cbranch_scc1 LK_ne
v_mov_b32 v196, {WS_EPOCH}
v_mov_b32 v197, s{sTAG}
s_mov_b64 exec, 1
buffer_store_dword v197, v196, {srd(SWS)}, 0 offen sc1
s_mov_b64 exec, -1
LK_ne:""")
    a.wait(lg="all")
    a("s_barrier")
    R = 32
    for n in range(5):
        for w in range(4):
            a.lds(f"ds_read_b128 {v4(R + (n*4+w)*4)}, v{K_FL} offset:{w*64*320 + n*64}", ("rr", n))
    for n in range(5):
        a.wait(lg=[("rr", n)])
        r = R + n*16
        a(f"""v_pk_add_f32 {v2(r)}, {v2(r)}, {v2(r+4)}
v_pk_add_f32 {v2(r+2)}, {v2(r+2)}, {v2(r+6)}
v_pk_add_f32 {v2(r+8)}, {v2(r+8)}, {v2(r+12)}
v_pk_add_f32 {v2(r+10)}, {v2(r+10)}, {v2(r+14)}
v_pk_add_f32 {v2(r)}, {v2(r)}, {v2(r+8)}
v_pk_add_f32 {v2(r+2)}, {v2(r+2)}, {v2(r+10)}""")
        a.vmem(f"buffer_store_dwordx4 {v4(r)}, v{K_FO}, {srd(SOUT)}, 0 offen offset:{n*64} {os.environ.get('OST', '').replace('_', ' ')}", "ost")
    stamp(10)
    stamp_flush()
    if E("PADUS"):
        a(f"""s_waitcnt vmcnt(0)
Lpad:
s_memrealtime s[96:97]
s_waitcnt lgkmcnt(0)
s_sub_u32 s96, s96, s{sST}
{'s_sub_u32 s96, s96, s99' if os.environ.get('PROBE') else ''}
s_cmp_lt_u32 s96, {E("PADUS")*100}
s_cbranch_scc1 Lpad""")
    a("Lend:\ns_endpgm")
    for f in OUTLINE: f()
    a("Lcode_end:\n.fill 320, 4, 0xbf800000")

prologue()
type_A()
type_B()
body = a.text()
hdr = open("gated_mix__ssm_conv_s5__linear_attn_block__prompt.s.ref").read().split("; Override launch")[0]
def wrap(b):
    return hdr + f"; @launch grid=(256,1,1) block=(256,1,1) lds={LDS_BYTES}\n" + HEADER + kernel_begin(NAME) + b + kernel_desc(NAME, 512, 102, 256)
out = sys.argv[1] if len(sys.argv) > 1 else "k.s"
if E2("IW", 0):
    import subprocess, re, tempfile
    tmp = tempfile.mkdtemp()
    open(tmp + "/p.s", "w").write(wrap(body))
    subprocess.run(["clang", "-x", "assembler", "-target", "amdgcn-amd-amdhsa", "-mcpu=gfx950", "-c", tmp + "/p.s", "-o", tmp + "/p.o"], check=True)
    dis = subprocess.run(["llvm-objdump", "-d", "--mcpu=gfx950", tmp + "/p.o"], capture_output=True, text=True).stdout
    seg = dis[dis.index("<LA_cont>:"):]
    sizes = [4 * len(m.group(1).split()) for m in re.finditer(r"// [0-9A-F]{12}: ([0-9A-F ]+?)(?: <.*)?$", seg, re.M)]
    lines = body.split("\n")
    i0 = lines.index("LA_cont:")
    outl = lines[:i0+1]
    off = 0; k = 0; nxt = 0; safe = True; sv = False; n = 0; done = False
    for l in lines[i0+1:]:
        t_ = l.strip()
        isins = t_ and not t_.endswith(":") and not t_.startswith((";", "."))
        if isins and not done:
            if off >= nxt and safe:
                outl.append(f"Lw_{k}:"); outl.append("    s_cbranch_execz Lwret")
                k += 1; off += 4; nxt += 4096
            off += sizes[n]; n += 1
            if t_.startswith("s_and_saveexec"): safe = False; sv = True
            elif t_.startswith("s_mov_b64 exec,"):
                x = t_.split(",")[1].strip()
                if x == "-1" or (sv and x == sp(sT2)): safe = True; sv = False
                else: safe = False
            elif t_.startswith("s_mov_b32 exec_hi,"): safe = t_.endswith("-1")
            if t_ == "s_endpgm": done = True
        outl.append(l)
    body = "\n".join(outl).replace(";LADDER", "\n".join(f"    s_cmp_eq_u32 s{sT1}, {q}\n    s_cbranch_scc1 Lw_{q}" for q in range(k)))
src = wrap(body)
open(out, "w").write(src)
print("written", out, "nops inserted:", a.nnop, "lines", src.count("\n"))
```
